```python
import torch

def _softmax(x, axis=-1):
    return torch.softmax(x, dim=axis)

def _gelu(x):
    return torch.nn.functional.gelu(x, approximate='tanh')

def _silu(x):
    return torch.nn.functional.silu(x)

def _sigmoid(x):
    return torch.sigmoid(x)

def _layernorm(x, axis=-1, eps=1e-05):
    m = x.mean(dim=axis, keepdim=True)
    v = x.var(dim=axis, keepdim=True, unbiased=False)
    return (x - m) / torch.sqrt(v + eps)

def _scatter_add(tgt, idx, src, axis=0):
    return tgt.clone().index_add_(axis, idx, src)

def _segment_sum(src, seg, n):
    out = torch.zeros((n,) + src.shape[1:], dtype=src.dtype)
    return out.index_add_(0, seg, src)

def _pad(x, pw):
    flat = tuple((v for pair in reversed(pw) for v in pair))
    return torch.nn.functional.pad(x, flat)
kernel_name = 'concat_heads__linear_kernel_hedgehog__memory_aug_recurrent_mem_tr__prompt'

def setup_inputs():

    _w = lambda a: (lambda t: t.to(torch.bfloat16) if t.is_floating_point() else t)(torch.as_tensor(a))

    def _A_setup():
        B, S, D, H = (1, 2048, 448, 16)
        Dh = D // H
        return {'x': _w((lambda *s: torch.randn(*s, dtype=torch.bfloat16) * 0.4)(B, S, D)), 'wqkv': _w((lambda *s: torch.randn(*s, dtype=torch.bfloat16) * 0.4)(D, 3 * D)), 'w_phi': _w((lambda *s: torch.randn(*s, dtype=torch.bfloat16) * 0.4)(H, Dh, Dh) * Dh ** (-0.5)), 'wo': _w((lambda *s: torch.randn(*s, dtype=torch.bfloat16) * 0.05)(D, D))}
    _A_in = _A_setup()

    def _B_setup():
        B, S, Dm = (1, 2048, 448)
        H, Dh = (16, 256)
        M, seg = (8, 32)
        seg = min(seg, S)
        S = S // seg * seg
        return {'x': _w((lambda *s: torch.randn(*s, dtype=torch.bfloat16) * 0.05)(B, S, Dm)), 'mem0': _w((lambda *s: torch.randn(*s, dtype=torch.bfloat16) * 0.8)(B, M, Dm)), 'Wq': _w((lambda *s: torch.randn(*s, dtype=torch.bfloat16) * 1.6)(Dm, H, Dh) * Dm ** (-0.5)), 'Wk': _w((lambda *s: torch.randn(*s, dtype=torch.bfloat16) * 1.6)(Dm, H, Dh) * Dm ** (-0.5)), 'Wv': _w((lambda *s: torch.randn(*s, dtype=torch.bfloat16) * 0.8)(Dm, H, Dh) * Dm ** (-0.5)), 'Wo': _w((lambda *s: torch.randn(*s, dtype=torch.bfloat16) * 0.8)(H, Dh, Dm) * (H * Dh) ** (-0.5)), 'seg_len': seg}
    _B_in = _B_setup()
    return {'A_x': _A_in['x'], 'A_wqkv': _A_in['wqkv'], 'A_w_phi': _A_in['w_phi'], 'A_wo': _A_in['wo'], 'B_x': _B_in['x'], 'B_mem0': _B_in['mem0'], 'B_Wq': _B_in['Wq'], 'B_Wk': _B_in['Wk'], 'B_Wv': _B_in['Wv'], 'B_Wo': _B_in['Wo'], 'B_seg_len': _B_in['seg_len']}

def reference(A_x, A_wqkv, A_w_phi, A_wo, B_x, B_mem0, B_Wq, B_Wk, B_Wv, B_Wo, B_seg_len):

    def _A_ref(x, wqkv, w_phi, wo):
        B, S, D = x.shape
        H = 16
        Dh = D // H
        qkv = (lambda x, *d: x.permute(*d))((x @ wqkv).reshape(B, S, 3, H, Dh), 2, 0, 3, 1, 4)
        q, k, v = (qkv[0], qkv[1], qkv[2])
        pq = torch.einsum('bhsd,hdf->bhsf', q, w_phi)
        pk = torch.einsum('bhsd,hdf->bhsf', k, w_phi)
        phi_q = torch.concatenate([_softmax(pq, axis=-1), _softmax(-pq, axis=-1)], axis=-1)
        phi_k = torch.concatenate([_softmax(pk, axis=-1), _softmax(-pk, axis=-1)], axis=-1)
        kv = torch.einsum('bhsf,bhsd->bhfd', phi_k, v)
        z = torch.einsum('bhsf->bhf', phi_k)
        num = torch.einsum('bhqf,bhfd->bhqd', phi_q, kv)
        den = torch.einsum('bhqf,bhf->bhq', phi_q, z)[..., None] + 1e-06
        o = num / den
        return (lambda x, *d: x.permute(*d))(o, 0, 2, 1, 3).reshape(B, S, D) @ wo

    def _B_ref(x, mem0, Wq, Wk, Wv, Wo, seg_len):
        B, S, Dm = x.shape
        H, Dh = (Wq.shape[1], Wq.shape[2])
        M = mem0.shape[1]
        scale = Dh ** (-0.5)
        n_seg = S // seg_len
        L = M + seg_len
        idx = torch.arange(L)
        mask = (idx[:, None] < M) | (idx[:, None] >= idx[None, :])
        mem = mem0
        outs = []
        for s in range(n_seg):
            xs = x[:, s * seg_len:(s + 1) * seg_len, :].clone()
            h = torch.concatenate([mem, xs], axis=1)
            q = torch.einsum('btd,dhe->bhte', h, Wq)
            k = torch.einsum('btd,dhe->bhte', h, Wk)
            v = torch.einsum('btd,dhe->bhte', h, Wv)
            scores = torch.einsum('bhqe,bhke->bhqk', q, k) * scale
            scores = torch.where(mask[None, None], scores, -1000000000.0)
            p = _softmax(scores, axis=-1)
            o = torch.einsum('bhqk,bhke->bhqe', p, v)
            o = torch.einsum('bhte,hed->btd', o, Wo)
            mem = o[:, :M, :].clone()
            outs.append(o[:, M:, :])
        return torch.concatenate(outs, axis=1)
    a = _A_ref(A_x, A_wqkv, A_w_phi, A_wo)
    b = _B_ref(B_x, B_mem0, B_Wq, B_Wk, B_Wv, B_Wo, B_seg_len)
    return torch.concatenate([a, b], axis=-1)
```

```python
import sys
NAME = 'concat_heads__linear_kernel_hedgehog__memory_aug_recurrent_mem_tr__prompt'
HDR = open('cdna_kernels/%s.s.ref' % NAME).read().split('; Override launch')[0]

KA = dict(A_x=0, A_wqkv=8, A_w_phi=16, A_wo=24, B_x=32, B_mem0=40, B_Wq=48, B_Wk=56, B_Wv=64, B_Wo=72, seg=80, out=88, dbg=96, ws=104)
RS = 896
def al(x, a=4096): return (x + a - 1) // a * a
WS_M = 0;                 SZ_M = 2*16*448*RS
WS_GX = al(WS_M+SZ_M);    SZ_GX = 64*16*32*896
WS_VW = al(WS_GX+SZ_GX);  SZ_VW = 64*16*448*64
WS_TM = al(WS_VW+SZ_VW);  SZ_TM = 64*16*8*896
WS_UT = al(WS_TM+SZ_TM);  SZ_UT = 64*16*448*16
WS_MB = al(WS_UT+SZ_UT);  SZ_MB = 65*7168
WS_SB = al(WS_MB+SZ_MB);  SZ_SB = 64*16384
WS_P  = al(WS_SB+SZ_SB);  SZ_P = 64*16*64*64
WS_WA = al(WS_P+SZ_P);    SZ_WA = 1536*896
WS_WOT= al(WS_WA+SZ_WA);  SZ_WOT = 448*1024
WS_PQ = al(WS_WOT+SZ_WOT);SZ_PQ = 2048*16*128
WS_KV = al(WS_PQ+SZ_PQ);  SZ_KV = 16*64*32*4
WS_END = al(WS_KV+SZ_KV)

class Asm:
    def __init__(self): self.l = []; self.uid = 0
    def __call__(self, s, *a):
        self.l.append('    ' + (s % a if a else s))
    def label(self, s): self.l.append(s + ':')
    def c(self, s): self.l.append('    ; ' + s)
    def newlabel(self, p='L'):
        self.uid += 1; return '%s_%d' % (p, self.uid)
    def nop(self, n):
        while n > 0:
            k = min(n, 16); self('s_nop %d', k-1); n -= k
    def srd(self, d, lo, hi, size, off=0):
        if off:
            self('s_add_u32 s%d, s%d, 0x%x', d, lo, off & 0xffffffff)
            self('s_addc_u32 s%d, s%d, 0x%x', d+1, hi, off >> 32)
        else:
            self('s_mov_b32 s%d, s%d', d, lo); self('s_mov_b32 s%d, s%d', d+1, hi)
        self('s_mov_b32 s%d, 0x%x', d+2, size)
        self('s_mov_b32 s%d, 0x00020000', d+3)
    def begin(self, name):
        self.l += ['.text', '.globl %s' % name, '.p2align 8', '.type %s,@function' % name, name + ':']
    def end(self, name, vgpr, agpr=0, sgpr=102):
        acc = (vgpr + 3)//4*4
        self.l += ['    s_endpgm', '.section .rodata,"a"', '.p2align 6', '.amdhsa_kernel %s' % name,
          '  .amdhsa_next_free_vgpr %d' % (acc + agpr if agpr else vgpr), '  .amdhsa_next_free_sgpr %d' % sgpr,
          '  .amdhsa_accum_offset %d' % acc, '  .amdhsa_group_segment_fixed_size 0', '  .amdhsa_kernarg_size 112',
          '  .amdhsa_user_sgpr_count 2', '  .amdhsa_user_sgpr_kernarg_segment_ptr 1', '  .amdhsa_system_sgpr_workgroup_id_x 1',
          '.end_amdhsa_kernel']
def perm(a, d, src, t):
    a('v_and_b32 v%d, 0x13, v%d', d, src)
    a('v_and_b32 v%d, 4, v%d', t, src); a('v_lshl_or_b32 v%d, v%d, 1, v%d', d, t, d)
    a('v_and_b32 v%d, 8, v%d', t, src); a('v_lshrrev_b32 v%d, 1, v%d', t, t); a('v_or_b32 v%d, v%d, v%d', d, t, d)
def vr(b, n=4): return 'v[%d:%d]' % (b, b+n-1)
def ar(b, n=4): return 'a[%d:%d]' % (b, b+n-1)

def k_mm(a):
    n = 'mm_kernel'; a.begin(n)
    a('s_cmp_ge_u32 s2, 224'); a('s_cbranch_scc1 mm_done')
    a('s_load_dwordx4 s[4:7], s[0:1], %d', KA['B_Wq'])
    a('s_load_dwordx4 s[8:11], s[0:1], %d', KA['B_Wv'])
    a('s_load_dwordx2 s[12:13], s[0:1], %d', KA['ws'])
    a('s_mov_b32 s14, 0x24924925'); a('s_mul_hi_u32 s15, s2, s14')
    a('s_mul_i32 s16, s15, 7'); a('s_sub_u32 s16, s2, s16')
    a('s_lshr_b32 s17, s15, 4')
    a('s_and_b32 s18, s15, 15')
    a('v_lshrrev_b32 v1, 6, v0'); a('v_and_b32 v2, 63, v0'); a('s_nop 0')
    a('v_readfirstlane_b32 s19, v1')
    a('v_and_b32 v3, 31, v2'); a('v_lshrrev_b32 v4, 5, v2')
    a('s_nop 3')
    a('s_and_b32 s20, s19, 1'); a('s_lshr_b32 s21, s19, 1')
    a('s_waitcnt lgkmcnt(0)')
    a('s_cmp_eq_u32 s17, 0')
    a('s_cselect_b32 s24, s4, s10'); a('s_cselect_b32 s25, s5, s11')
    a('s_mov_b32 s26, 3670016'); a('s_mov_b32 s27, 0x00020000')
    a('s_cselect_b32 s28, s6, s8'); a('s_cselect_b32 s29, s7, s9')
    a('s_mov_b32 s30, 3670016'); a('s_mov_b32 s31, 0x00020000')
    a.srd(32, 12, 13, SZ_M, WS_M)
    a('s_lshl_b32 s22, s16, 6'); a('s_lshl_b32 s23, s20, 5'); a('s_add_u32 s22, s22, s23')
    a('v_add_u32 v5, s22, v3')
    a('s_mul_i32 s36, s21, 224'); a('v_add_u32 v6, s36, v3'); a('v_lshlrev_b32 v6, 13, v6')
    a('s_lshl_b32 s37, s18, 9'); a('v_add_u32 v6, s37, v6'); a('v_lshl_add_u32 v6, v4, 4, v6')
    JS = 16; KS0 = 80; KS1 = 144; ACC = 208; T = 224
    a('s_cmp_eq_u32 s17, 0'); a('s_cbranch_scc0 mm_mat1')
    a('v_lshlrev_b32 v7, 13, v5'); a('v_add_u32 v7, s37, v7'); a('v_lshl_add_u32 v7, v4, 4, v7')
    for es in range(16):
        a('buffer_load_dwordx4 %s, v7, s[24:27], 0 offen offset:%d', vr(JS+4*es), es*32)
    a('s_branch mm_go')
    a.label('mm_mat1')
    a('s_mul_i32 s38, s18, 229376'); a('v_lshlrev_b32 v7, 1, v5'); a('v_add_u32 v7, s38, v7')
    a('v_mul_u32_u24 v8, 7168, v4'); a('v_add_u32 v7, v7, v8')
    a('s_mov_b32 s39, 0')
    for es in range(16):
        for q in range(8):
            a('buffer_load_ushort v%d, v7, s[24:27], s39 offen', KS0+8*es+q)
            a('s_add_u32 s39, s39, %d', 896 if q < 7 else 896*9)
    a('s_waitcnt vmcnt(0)')
    for es in range(16):
        for q in range(4):
            a('v_lshl_or_b32 v%d, v%d, 16, v%d', JS+4*es+q, KS0+8*es+2*q+1, KS0+8*es+2*q)
    a.label('mm_go')
    a('s_mul_i32 s40, s15, 448'); a('v_add_u32 v9, s40, v5'); a('s_movk_i32 s41, %d', RS); a('v_mul_lo_u32 v9, v9, s41')
    a('s_mul_i32 s42, s21, 448'); a('v_add_u32 v9, s42, v9'); a('v_lshl_add_u32 v9, v4, 3, v9')
    def ldk(i, base):
        a('s_mov_b32 s43, %d', i*262144)
        for es in range(16):
            a('buffer_load_dwordx4 %s, v6, s[28:31], s43 offen offset:%d', vr(base+4*es), es*32)
    ldk(0, KS0)
    for i in range(7):
        cur = KS0 if i % 2 == 0 else KS1; nxt = KS1 if i % 2 == 0 else KS0
        if i < 6:
            ldk(i+1, nxt); a('s_waitcnt vmcnt(16)')
        else:
            a('s_waitcnt vmcnt(0)')
        for es in range(16):
            a('v_mfma_f32_32x32x16_bf16 %s, %s, %s, %s', vr(ACC,16), vr(cur+4*es), vr(JS+4*es), '0' if es == 0 else vr(ACC,16))
        a.nop(12)
        for q in range(4):
            a('v_cvt_pk_bf16_f32 v%d, v%d, v%d', T+2*q, ACC+4*q, ACC+4*q+1)
            a('v_cvt_pk_bf16_f32 v%d, v%d, v%d', T+2*q+1, ACC+4*q+2, ACC+4*q+3)
        for q in range(4):
            a('buffer_store_dwordx2 %s, v9, s[32:35], 0 offen offset:%d', vr(T+2*q,2), i*64+q*16)
        a('s_waitcnt vmcnt(0)') if False else None
        a.nop(2)
    a.label('mm_done')
    a.end(n, 232)

LROW = 912
def k_gx(a):
    n = 'gx_kernel'; a.begin(n)
    a('s_cmp_ge_u32 s2, 256'); a('s_cbranch_scc1 gx_done')
    a('s_load_dwordx2 s[4:5], s[0:1], %d', KA['B_x'])
    a('s_load_dwordx2 s[6:7], s[0:1], %d', KA['ws'])
    a('s_lshr_b32 s8, s2, 5'); a('s_and_b32 s9, s2, 31')
    a('s_lshr_b32 s10, s9, 4'); a('s_and_b32 s11, s9, 15')
    a('v_lshrrev_b32 v1, 6, v0'); a('v_and_b32 v2, 63, v0'); a('s_nop 0')
    a('v_readfirstlane_b32 s12, v1')
    a('v_and_b32 v3, 31, v2'); a('v_lshrrev_b32 v4, 5, v2')
    a('s_waitcnt lgkmcnt(0)')
    a.srd(16, 4, 5, 2048*896)
    a.srd(20, 6, 7, SZ_M, WS_M)
    a.srd(24, 6, 7, SZ_GX, WS_GX)
    a.srd(28, 6, 7, SZ_VW, WS_VW)
    a('s_lshl_b32 s13, s8, 8'); a('s_lshl_b32 s14, s12, 6'); a('s_add_u32 s13, s13, s14')
    perm(a, 15, 3, 14)
    a('s_cmp_eq_u32 s10, 0'); a('s_cselect_b64 vcc, -1, 0')
    a('v_cndmask_b32 v14, v15, v3, vcc')
    a('v_cndmask_b32 v15, v3, v15, vcc')
    a('v_add_u32 v5, s13, v14'); a('v_mul_u32_u24 v5, 896, v5'); a('v_lshl_add_u32 v5, v4, 4, v5')
    a('s_movk_i32 s15, 28672')
    for rt in range(2):
        for ks in range(28):
            a('buffer_load_dwordx4 %s, v5, s[16:19], %s offen offset:%d', ar((rt*28+ks)*4), 's15' if rt else '0', ks*32)
    a('v_lshrrev_b32 v6, 3, v0'); a('v_and_b32 v7, 7, v0')
    a('v_mul_u32_u24 v8, 896, v6'); a('v_lshl_add_u32 v8, v7, 4, v8')
    a('v_mul_u32_u24 v9, %d, v6', LROW); a('v_lshl_add_u32 v9, v7, 4, v9')
    a('s_mul_i32 s32, s9, %d', 448*896)
    a('v_mul_u32_u24 v10, %d, v15', LROW); a('v_lshl_add_u32 v10, v4, 4, v10')
    ST = 16; BF = 44; ACC = 64; T = 96
    BUF = 32*LROW
    def stage_load():
        for i in range(7):
            a('buffer_load_dwordx4 %s, v8, s[20:23], s32 offen offset:%d', vr(ST+4*i), i*128)
    def stage_write(areg):
        for i in range(7):
            a('ds_write_b128 v%d, %s offset:%d', areg, vr(ST+4*i), i*128)
    stage_load(); a('s_add_u32 s32, s32, 28672')
    a('s_waitcnt vmcnt(0)'); stage_write(9)
    a('v_add_u32 v11, %d, v9', BUF)
    a('s_waitcnt lgkmcnt(0)'); a('s_barrier')
    a('s_lshl_b32 s33, s8, 3'); a('s_lshl_b32 s34, s12, 1'); a('s_add_u32 s33, s33, s34')
    a('s_lshl_b32 s33, s33, 4'); a('s_add_u32 s33, s33, s11')
    a('s_mov_b32 s35, 0')
    a('s_mov_b32 s36, 0')
    a('s_cmp_eq_u32 s10, 0'); a('s_cbranch_scc0 gx_m1')
    for mat in range(2):
        if mat == 1: a.label('gx_m1')
        if mat == 0:
            a('s_mul_i32 s37, s33, 28672'); a('v_lshlrev_b32 v12, 5, v3'); a('v_add_u32 v12, s37, v12')
            a('v_lshl_add_u32 v12, v4, 4, v12'); a('v_add_u32 v13, %d, v12', 16*32*896)
        else:
            a('s_mul_i32 s37, s33, 448'); a('v_add_u32 v12, s37, v3'); a('v_lshlrev_b32 v12, 6, v12')
            a('v_lshl_add_u32 v12, v4, 4, v12'); a('v_add_u32 v13, %d, v12', 16*448*64)
        L = 'gx_loop%d' % mat
        a.label(L)
        a('s_cmp_lt_u32 s35, 13'); a('s_cbranch_scc0 %s_nl', L)
        stage_load(); a('s_add_u32 s32, s32, 28672')
        a.label(L + '_nl')
        PF = 3
        for ks in range(PF): a('ds_read_b128 %s, v10 offset:%d', vr(BF+4*(ks%4)), ks*32)
        for ks in range(28):
            if ks + PF < 28:
                a('ds_read_b128 %s, v10 offset:%d', vr(BF+4*((ks+PF)%4)), (ks+PF)*32)
                a('s_waitcnt lgkmcnt(%d)', PF)
            else:
                a('s_waitcnt lgkmcnt(%d)', 27-ks)
            for rt in range(2):
                m = vr(BF+4*(ks%4)); x = ar((rt*28+ks)*4); acc = vr(ACC+16*rt,16)
                A, B = (m, x) if mat == 0 else (x, m)
                a('v_mfma_f32_32x32x16_bf16 %s, %s, %s, %s', acc, A, B, '0' if ks == 0 else acc)
        a.nop(12)
        for rt in range(2):
            for q in range(4):
                a('v_cvt_pk_bf16_f32 v%d, v%d, v%d', T+8*rt+2*q, ACC+16*rt+4*q, ACC+16*rt+4*q+1)
                a('v_cvt_pk_bf16_f32 v%d, v%d, v%d', T+8*rt+2*q+1, ACC+16*rt+4*q+2, ACC+16*rt+4*q+3)
        for rt in range(2):
            for qq in range(2):
                a('buffer_store_dwordx4 %s, v%d, s[%d:%d], s36 offen offset:%d', vr(T+8*rt+4*qq), 12+rt, 24+4*mat, 27+4*mat, qq*(1024 if mat == 0 else 32))
        a('s_add_u32 s36, s36, 2048')
        a('s_add_u32 s35, s35, 1'); a('s_cmp_lt_u32 s35, 14'); a('s_cbranch_scc0 gx_done')
        a('s_waitcnt vmcnt(4)'); stage_write(11)
        a('v_mov_b32 v14, v9'); a('v_mov_b32 v9, v11'); a('v_mov_b32 v11, v14')
        a('s_and_b32 s39, s35, 1'); a('s_mul_i32 s39, s39, %d', BUF)
        a('v_mul_u32_u24 v10, %d, v15', LROW); a('v_lshl_add_u32 v10, v4, 4, v10'); a('v_add_u32 v10, s39, v10')
        a('s_waitcnt lgkmcnt(0)'); a('s_barrier')
        a('s_branch %s', L)
    a.label('gx_done')
    a.end(n, 112, 224)

def k_fill(a):
    n = 'fill_kernel'; a.begin(n)
    tot = WS_SB + SZ_SB - WS_MB
    a('s_load_dwordx2 s[4:5], s[0:1], %d', KA['ws'])
    a('s_load_dwordx2 s[6:7], s[0:1], %d', KA['B_mem0'])
    a('s_waitcnt lgkmcnt(0)')
    a.srd(8, 4, 5, tot, WS_MB)
    a.srd(12, 6, 7, 7168)
    a.srd(16, 4, 5, SZ_KV, WS_KV)
    a('s_lshl_b32 s3, s2, 8'); a('v_add_u32 v1, s3, v0'); a('v_lshlrev_b32 v1, 6, v1')
    for i in range(4): a('v_mov_b32 v%d, -1', 4+i)
    for i in range(4):
        a('buffer_load_dwordx4 %s, v1, s[12:15], 0 offen offset:%d', vr(8+4*i), i*16)
    a('s_movk_i32 s20, 7168'); a('v_cmp_gt_u32 vcc, s20, v1')
    a('s_waitcnt vmcnt(0)')
    for i in range(16):
        a('v_min_u32 v%d, 0xfffffffe, v%d', 8+i, 8+i)
        a('v_cndmask_b32 v%d, v4, v%d, vcc', 8+i, 8+i)
    for i in range(4):
        a('buffer_store_dwordx4 %s, v1, s[8:11], 0 offen offset:%d', vr(8+4*i), i*16)
    for i in range(4): a('v_mov_b32 v%d, 0', 24+i)
    for i in range(4):
        a('buffer_store_dwordx4 %s, v1, s[16:19], 0 offen offset:%d', vr(24), i*16)
    a.end(n, 28)
    return (tot + 16383)//16384

L_G = 0; L_ZX = L_G + 2*14*1024; B2 = L_ZX + 2*16*1024
L_MEM = B2; L_ZM = L_MEM + 8192; L_P = L_ZM + 4096
L_RED = L_P + 4*2560; L_RED2 = L_RED + 4096; L_CHAIN = L_RED2 + 4096
QT = [[0,1,2,3],[4,5,6,7],[8,9,10],[11,12,13]]
UTL = [[0,1,2],[3,4,5],[6,7,8,9],[10,11,12,13]]
SPIN = 200000
def k_chain(a, sc='sc1'):
    n = 'chain_kernel'; a.begin(n)
    a('s_cmp_ge_u32 s2, 32'); a('s_cbranch_scc1 ch_done')
    a('s_load_dwordx2 s[4:5], s[0:1], %d', KA['ws'])
    a('s_lshr_b32 s6, s2, 1'); a('s_and_b32 s7, s2, 1')
    a('v_lshrrev_b32 v1, 6, v0'); a('v_and_b32 v2, 63, v0'); a('s_nop 0')
    a('v_readfirstlane_b32 s8, v1')
    a('v_and_b32 v3, 15, v2'); a('v_lshrrev_b32 v4, 4, v2'); a('v_and_b32 v5, 7, v2')
    a('s_waitcnt lgkmcnt(0)')
    a.srd(16, 4, 5, SZ_M, WS_M); a.srd(20, 4, 5, SZ_GX, WS_GX); a.srd(24, 4, 5, SZ_VW, WS_VW)
    a.srd(28, 4, 5, SZ_TM, WS_TM); a.srd(32, 4, 5, SZ_UT, WS_UT); a.srd(36, 4, 5, SZ_MB, WS_MB); a.srd(40, 4, 5, SZ_SB, WS_SB)
    a('v_cmp_gt_u32 s[46:47], 8, v3')
    a('v_cmp_gt_u32 s[48:49], 2, v4')
    a('v_cmp_gt_u32 s[50:51], 3, v4')
    a('s_nop 1')
    a('s_and_b64 s[44:45], s[46:47], s[48:49]')
    a('s_and_b64 s[50:51], s[46:47], s[50:51]')
    a('s_mul_i32 s9, s2, 14')
    a('s_mul_i32 s10, s7, 224')
    a('v_lshlrev_b32 v6, 4, v0')
    a('v_add_u32 v10, 256, v0'); a('v_cmp_gt_u32 vcc, 448, v10'); a('s_nop 1'); a('v_cndmask_b32 v10, v0, v10, vcc')
    a('v_lshlrev_b32 v7, 4, v10')
    a('s_movk_i32 s11, 1171')
    for (src, dst) in ((0, 8), (10, 9)):
        a('v_mul_u32_u24 v11, s11, v%d', src); a('v_lshrrev_b32 v11, 16, v11')
        a('v_mul_u32_u24 v12, 56, v11'); a('v_sub_u32 v12, v%d, v12', src)
        a('v_mul_u32_u24 v11, 912, v11'); a('v_lshl_add_u32 v%d, v12, 4, v11', dst)
    a('v_mul_u32_u24 v10, 912, v5'); a('v_lshl_add_u32 v10, v4, 4, v10')
    a('v_mul_u32_u24 v11, 912, v5'); a('v_lshl_add_u32 v11, v4, 3, v11'); a('s_lshl_b32 s12, s10, 1'); a('v_add_u32 v11, s12, v11')
    a('v_lshlrev_b32 v12, 4, v2')
    a('s_lshl_b32 s12, s2, 9'); a('v_lshlrev_b32 v13, 6, v3'); a('v_add_u32 v13, s12, v13')
    a('v_lshl_add_u32 v14, v4, 3, v13'); a('v_add_u32 v14, 32, v14'); a('v_lshl_add_u32 v13, v4, 4, v13')
    a('s_lshr_b32 s12, s6, 2'); a('s_mul_i32 s12, s12, 28'); a('s_mul_i32 s14, s7, 14'); a('s_add_u32 s12, s12, s14'); a('s_lshl_b32 s12, s12, 10')
    a('s_and_b32 s14, s6, 3'); a('s_lshl_b32 s14, s14, 8'); a('s_add_u32 s12, s12, s14')
    a('v_lshlrev_b32 v15, 5, v3'); a('v_lshl_add_u32 v15, v4, 3, v15'); a('v_add_u32 v15, s12, v15')
    a('v_and_b32 v17, 1, v2'); a('v_bfe_u32 v18, v2, 1, 3')
    a('s_lshl_b32 s12, s8, 2'); a('v_add_u32 v16, s12, v4'); a('v_lshl_add_u32 v16, v16, 1, v17')
    a('v_lshlrev_b32 v16, 9, v16'); a('v_lshl_add_u32 v16, v18, 6, v16')
    a('s_mul_i32 s13, s8, 2560'); a('s_add_u32 s13, s13, %d', L_P)
    a('v_lshl_add_u32 v20, v4, 3, v18')
    a('v_lshlrev_b32 v19, 6, v20'); a('v_lshl_add_u32 v19, v17, 5, v19'); a('v_add_u32 v19, s13, v19')
    a('v_lshlrev_b32 v20, 4, v20'); a('v_add_u32 v20, s13, v20'); a('v_add_u32 v20, 2048, v20')
    a('v_lshlrev_b32 v21, 6, v5'); a('v_lshl_add_u32 v21, v4, 4, v21'); a('v_add_u32 v21, s13, v21')
    a('v_lshl_add_u32 v22, v4, 3, v5'); a('v_lshlrev_b32 v22, 4, v22'); a('v_add_u32 v22, s13, v22'); a('v_add_u32 v22, 2048, v22')
    a('s_mul_i32 s12, s6, 28672'); a('s_lshl_b32 s14, s7, 9'); a('s_add_u32 s12, s12, s14')
    a('v_lshlrev_b32 v23, 5, v3'); a('v_add_u32 v23, s12, v23')
    a('v_lshrrev_b32 v24, 1, v4'); a('v_lshl_add_u32 v23, v24, 10, v23'); a('v_and_b32 v24, 1, v4'); a('v_lshl_add_u32 v23, v24, 4, v23')
    a('s_mul_i32 s12, s8, 1792'); a('s_add_u32 s12, s12, s9'); a('v_add_u32 v24, s12, v3')
    a('v_lshlrev_b32 v24, 6, v24'); a('v_lshl_add_u32 v24, v4, 4, v24')
    a('v_mul_u32_u24 v25, 896, v3'); a('v_lshl_add_u32 v25, v4, 3, v25'); a('s_lshl_b32 s12, s9, 1'); a('v_add_u32 v25, s12, v25')
    a('s_lshl_b32 s12, s8, 10'); a('v_add_u32 v26, s12, v12')
    a('s_mov_b32 s60, 0x%x', 0x3db8aa3b)
    for r_ in (8, 9, 10, 11, 26): a('v_add_u32 v%d, %d, v%d', r_, B2, r_)
    a('v_add_u32 v17, %d, v12', B2)
    for wv in range(1, 4):
        a('s_cmp_eq_u32 s8, %d', wv); a('s_cbranch_scc1 ch_w%d', wv)
    UA = 28
    FR = 36
    GF = 48
    ACC = 60
    TP = 76
    X = 84
    WV = 88
    for wv in range(4):
        a.label('ch_w%d' % wv)
        qt = QT[wv]; ut = UTL[wv]
        units = [('q', t) for t in qt] + [('u', t) for t in ut]
        def wreg(u, ks):
            return ar(u*56 + ks*4) if u < 4 else vr(WV + (u-4)*56 + ks*4)
        a('s_mul_i32 s12, s6, 448'); a('s_add_u32 s12, s12, s10'); a('v_add_u32 v27, s12, v3')
        a('v_mul_u32_u24 v27, 896, v27'); a('v_lshl_add_u32 v27, v4, 4, v27')
        for u, (kind, t) in enumerate(units):
            if kind == 'q':
                a('s_mov_b32 s12, %d', t*16*896)
                for ks in range(14):
                    a('buffer_load_dwordx4 %s, v27, s[16:19], s12 offen offset:%d', wreg(u, ks), ks*64)
            else:
                k = u - len(qt)
                a('v_add_u32 v%d, %d, v3', X, 16*t)
                a('s_movk_i32 s12, 4682'); a('v_mul_u32_u24 v%d, s12, v%d', X+1, X); a('v_lshrrev_b32 v%d, 16, v%d', X+1, X+1)
                a('v_mul_u32_u24 v%d, 14, v%d', X+2, X+1); a('v_sub_u32 v%d, v%d, v%d', X+2, X, X+2)
                a('v_lshl_add_u32 v%d, v%d, 4, v%d', UA+k, X+1, X+2); a('v_lshlrev_b32 v%d, 4, v%d', UA+k, UA+k)
                a('v_lshl_add_u32 v%d, v4, 3, v%d', UA+k, UA+k); a('v_add_u32 v%d, %d, v%d', UA+k, L_ZM, UA+k)
                a('v_mul_u32_u24 v%d, 448, v%d', X+3, X+1); a('v_add_u32 v%d, v%d, v%d', X+3, X+3, X+2); a('v_add_u32 v%d, s9, v%d', X+3, X+3)
                a('v_lshlrev_b32 v%d, 4, v%d', UA+4+k, X+3); a('v_lshl_add_u32 v%d, v4, 3, v%d', UA+4+k, UA+4+k)
                a('v_add_u32 v%d, %d, v%d', X+3, 16*448, X+3); a('s_movk_i32 s12, 896'); a('v_mul_lo_u32 v%d, v%d, s12', X+3, X+3)
                a('v_lshl_add_u32 v%d, v4, 4, v%d', X+3, X+3)
                for ks in range(14):
                    a('buffer_load_dwordx4 %s, v%d, s[16:19], 0 offen offset:%d', wreg(u, ks), X+3, ks*64)
                a('s_nop 0')
        for r_ in range(52, 60): a('s_mov_b32 s%d, 0', r_)
        def dma(par_sgpr):
            if wv == 3:
                a('s_mul_i32 s12, s59, %d', 14*1024); a('s_add_u32 s12, s12, %d', L_G)
                a('s_mov_b32 s13, s57')
                for ks in range(14):
                    a('s_mov_b32 m0, s12'); a('s_nop 0')
                    a('buffer_load_dwordx4 v23, s[20:23], s13 offen lds')
                    a('s_add_u32 s12, s12, 1024'); a('s_add_u32 s13, s13, 2048')
            a('s_lshl_b32 s12, s59, 14'); a('s_add_u32 s12, s12, %d', L_ZX + wv*4096)
            a('s_mov_b32 s13, s58')
            for hl in range(4):
                a('s_mov_b32 m0, s12'); a('s_nop 0')
                a('buffer_load_dwordx4 v24, s[24:27], s13 offen lds')
                a('s_add_u32 s12, s12, 1024'); a('s_add_u32 s13, s13, %d', 448*64)
        dma(None)
        a('s_waitcnt vmcnt(0)')
        LP = 'ch_loop%d' % wv
        a.label(LP)
        a('s_mov_b32 s61, 0')
        a.label(LP + '_pm')
        a('buffer_load_dwordx4 %s, v6, s[36:39], s53 offen sc1', vr(FR))
        a('buffer_load_dwordx4 %s, v7, s[36:39], s53 offen sc1', vr(FR+4))
        a('s_add_u32 s61, s61, 1'); a('s_cmp_gt_u32 s61, %d', SPIN); a('s_cbranch_scc1 ch_done')
        a('s_waitcnt vmcnt(0)')
        a('v_max3_u32 v%d, v%d, v%d, v%d', X, FR, FR+1, FR+2); a('v_max3_u32 v%d, v%d, v%d, v%d', X+1, FR+3, FR+4, FR+5)
        a('v_max3_u32 v%d, v%d, v%d, v%d', X, X, FR+6, FR+7); a('v_max_u32 v%d, v%d, v%d', X, X, X+1)
        a('v_cmp_eq_u32 vcc, -1, v%d', X); a('s_cbranch_vccnz %s_pm', LP)
        a('ds_write_b128 v8, %s', vr(FR)); a('ds_write_b128 v9, %s', vr(FR+4))
        a('s_waitcnt lgkmcnt(0)'); a('s_barrier')
        hasG = (wv == 3)
        if hasG:
            a('s_mul_i32 s12, s59, %d', 14*1024); a('v_add_u32 v27, s12, v12')
        nrd = 2 if hasG else 1
        def rd(ks):
            a('ds_read_b128 %s, v10 offset:%d', vr(FR+4*(ks%3)), L_MEM - B2 + ks*64)
            if hasG: a('ds_read_b128 %s, v27 offset:%d', vr(GF+4*(ks%3)), L_G + ks*1024)
        rd(0); rd(1)
        for ks in range(14):
            if ks + 2 < 14: rd(ks+2); a('s_waitcnt lgkmcnt(%d)', 2*nrd)
            else: a('s_waitcnt lgkmcnt(%d)', (13-ks)*nrd)
            for u in range(len(qt)):
                acc = vr(ACC+4*u)
                a('v_mfma_f32_16x16x32_bf16 %s, %s, %s, %s', acc, wreg(u, ks), vr(FR+4*(ks%3)), '0' if ks == 0 else acc)
            if hasG:
                acc = vr(ACC+12)
                a('v_mfma_f32_16x16x32_bf16 %s, %s, %s, %s', acc, vr(GF+4*(ks%3)), vr(FR+4*(ks%3)), '0' if ks == 0 else acc)
        for u, t in enumerate(qt):
            a('ds_read_b64 %s, v11 offset:%d', vr(FR+2*u, 2), L_MEM - B2 + 32*t)
        if len(qt) == 3:
            a('ds_read_b64 %s, v11 offset:%d', vr(FR+6, 2), L_MEM - B2 + 32*qt[2])
        a.nop(8)
        if hasG:
            a('v_cvt_pk_bf16_f32 v%d, v%d, v%d', X, ACC+12, ACC+13); a('v_cvt_pk_bf16_f32 v%d, v%d, v%d', X+1, ACC+14, ACC+15)
            a('v_min_u32 v%d, 0xfffffffe, v%d', X, X); a('v_min_u32 v%d, 0xfffffffe, v%d', X+1, X+1)
            a('s_mov_b64 exec, s[46:47]')
            a('buffer_store_dwordx2 %s, v14, s[40:43], s54 offen %s', vr(X,2), sc)
            a('s_mov_b64 exec, -1')
        for u in range(len(qt)):
            a('v_cvt_pk_bf16_f32 v%d, v%d, v%d', TP+2*u, ACC+4*u, ACC+4*u+1)
            a('v_cvt_pk_bf16_f32 v%d, v%d, v%d', TP+2*u+1, ACC+4*u+2, ACC+4*u+3)
        if len(qt) == 3:
            a('v_mov_b32 v%d, 0', TP+6); a('v_mov_b32 v%d, 0', TP+7)
        a('s_waitcnt lgkmcnt(0)'); a('s_nop 1')
        a('v_mfma_f32_16x16x32_bf16 %s, %s, %s, 0', vr(ACC), vr(TP), vr(FR))
        a('v_mfma_f32_16x16x32_bf16 %s, %s, %s, %s', vr(ACC), vr(TP+4), vr(FR+4), vr(ACC))
        a.nop(8)
        a('ds_write_b128 v26, %s offset:%d', vr(ACC), L_RED - B2)
        a('s_waitcnt lgkmcnt(0)'); a('s_barrier')
        if wv == 0:
            for k in range(1, 4): a('ds_read_b128 %s, v17 offset:%d', vr(GF+4*(k-1)), L_RED - B2 + k*1024)
            a('s_waitcnt lgkmcnt(0)')
            for r_ in range(4):
                a('v_add_f32 v%d, v%d, v%d', ACC+r_, ACC+r_, GF+r_); a('v_add_f32 v%d, v%d, v%d', GF+4+r_, GF+4+r_, GF+8+r_)
            for r_ in range(4):
                a('v_add_f32 v%d, v%d, v%d', ACC+r_, ACC+r_, GF+4+r_); a('v_min_u32 v%d, 0xfffffffe, v%d', ACC+r_, ACC+r_)
            a('s_mov_b64 exec, s[44:45]')
            a('buffer_store_dwordx4 %s, v13, s[40:43], s54 offen %s', vr(ACC), sc)
            a('s_mov_b64 exec, -1')
        a('s_mov_b64 exec, s[46:47]')
        for u, t in enumerate(qt):
            a('s_add_u32 s62, s55, %d', 1024*t)
            a('buffer_store_dwordx2 %s, v15, s[28:31], s62 offen', vr(TP+2*u,2))
        a('s_mov_b64 exec, -1')
        def rd2(ks): a('ds_read_b128 %s, v10 offset:%d', vr(FR+4*(ks%3)), L_MEM - B2 + ks*64)
        rd2(0); rd2(1)
        nq = len(qt)
        for ks in range(14):
            if ks + 2 < 14: rd2(ks+2); a('s_waitcnt lgkmcnt(2)')
            else: a('s_waitcnt lgkmcnt(%d)', 13-ks)
            for k in range(len(ut)):
                acc = vr(ACC+4*k)
                a('v_mfma_f32_16x16x32_bf16 %s, %s, %s, %s', acc, vr(FR+4*(ks%3)), wreg(nq+k, ks), '0' if ks == 0 else acc)
        a.nop(8)
        for k in range(len(ut)):
            a('v_cvt_pk_bf16_f32 v%d, v%d, v%d', GF+2*k, ACC+4*k, ACC+4*k+1)
            a('v_cvt_pk_bf16_f32 v%d, v%d, v%d', GF+2*k+1, ACC+4*k+2, ACC+4*k+3)
        a('s_mov_b64 exec, s[48:49]')
        for k in range(len(ut)):
            a('ds_write_b64 v%d, %s', UA+k, vr(GF+2*k,2))
            a('buffer_store_dwordx2 %s, v%d, s[32:35], s56 offen', vr(GF+2*k,2), UA+4+k)
        a('s_mov_b64 exec, -1')
        a('s_xor_b32 s59, s59, 1')
        a('s_add_u32 s57, s57, %d', 16*32*896); a('s_add_u32 s58, s58, %d', 16*448*64)
        a('s_cmp_lt_u32 s52, 63'); a('s_cbranch_scc0 %s_nd', LP)
        dma(None)
        a.label(LP + '_nd')
        a('s_waitcnt lgkmcnt(0)'); a('s_barrier')
        D = FR
        a('s_mov_b32 s61, 0')
        a.label(LP + '_ps')
        for q in range(4):
            a('buffer_load_dwordx4 %s, v16, s[40:43], s54 offen offset:%d sc1', vr(D+4*q), q*16)
        a('s_add_u32 s61, s61, 1'); a('s_cmp_gt_u32 s61, %d', SPIN); a('s_cbranch_scc1 ch_done')
        a('s_waitcnt vmcnt(0)')
        a('v_max3_u32 v%d, v%d, v%d, v%d', X, D, D+1, D+2)
        for q in range(6): a('v_max3_u32 v%d, v%d, v%d, v%d', X, X, D+3+2*q, D+4+2*q)
        a('v_max_u32 v%d, v%d, v%d', X, X, D+15)
        a('v_cmp_eq_u32 vcc, -1, v%d', X); a('s_cbranch_vccnz %s_ps', LP)
        E = 52
        dpp = 'quad_perm:[1,0,3,2] row_mask:0xf bank_mask:0xf'
        for q in range(8):
            a('v_lshlrev_b32 v%d, 16, v%d', E+2*q, D+8+q); a('v_and_b32 v%d, 0xffff0000, v%d', E+2*q+1, D+8+q)
        for q in range(8):
            a('v_add_f32_dpp v%d, v%d, v%d %s', D+8+q, D+q, D+q, dpp)
        S = D+8
        a('v_max3_f32 v%d, v%d, v%d, v%d', X, S, S+1, S+2)
        a('v_max3_f32 v%d, v%d, v%d, v%d', X, X, S+3, S+4); a('v_max3_f32 v%d, v%d, v%d, v%d', X, X, S+5, S+6)
        a('v_max3_f32 v%d, v%d, v%d, v%d', X, X, S+7, E)
        for q in range(7): a('v_max3_f32 v%d, v%d, v%d, v%d', X, X, E+1+2*q, E+2+2*q)
        a('v_max_f32 v%d, v%d, v%d', X, X, E+15)
        a('s_nop 1')
        a('v_max_f32_dpp v%d, v%d, v%d %s', X+1, X, X, dpp)
        a('v_mul_f32 v%d, s60, v%d', X+1, X+1)
        for q in range(8):
            a('v_fma_f32 v%d, v%d, s60, -v%d', S+q, S+q, X+1)
        for q in range(16):
            a('v_fma_f32 v%d, v%d, s60, -v%d', E+q, E+q, X+1)
        for q in range(8): a('v_exp_f32 v%d, v%d', S+q, S+q)
        for q in range(16): a('v_exp_f32 v%d, v%d', E+q, E+q)
        a('s_nop 0')
        a('v_add_f32 v%d, v%d, v%d', X, E, E+1)
        for q in range(2, 16): a('v_add_f32 v%d, v%d, v%d', X, X, E+q)
        a('v_add_f32 v%d, v%d, v%d', X+1, S, S+1)
        for q in range(2, 8): a('v_add_f32 v%d, v%d, v%d', X+1, X+1, S+q)
        a('s_nop 0')
        a('v_add_f32_dpp v%d, v%d, v%d %s', X+2, X, X, dpp)
        a('v_add_f32 v%d, v%d, v%d', X+2, X+2, X+1)
        a('v_rcp_f32 v%d, v%d', X+2, X+2); a('s_nop 0')
        for q in range(8): a('v_mul_f32 v%d, v%d, v%d', S+q, S+q, X+2)
        for q in range(16): a('v_mul_f32 v%d, v%d, v%d', E+q, E+q, X+2)
        PK = 68
        for q in range(8): a('v_cvt_pk_bf16_f32 v%d, v%d, v%d', PK+q, E+2*q, E+2*q+1)
        for q in range(4): a('v_cvt_pk_bf16_f32 v%d, v%d, v%d', PK+8+q, S+2*q, S+2*q+1)
        a('ds_write_b128 v19, %s', vr(PK)); a('ds_write_b128 v19, %s offset:16', vr(PK+4)); a('ds_write_b128 v20, %s', vr(PK+8))
        a('s_xor_b32 s12, s59, 1'); a('s_lshl_b32 s12, s12, 14'); a('v_add_u32 v27, s12, v12')
        ZF = 36; PF_ = 56
        a('s_waitcnt lgkmcnt(0)')
        for hl in range(4):
            a('ds_read_b128 %s, v27 offset:%d', vr(ZF+4*hl), L_ZX + wv*4096 + hl*1024)
            a('ds_read_b128 %s, v21 offset:%d', vr(PF_+4*hl), hl*512)
        a('ds_read_b128 %s, v17 offset:%d', vr(ZF+16), L_ZM - B2 + wv*1024)
        a('ds_read_b128 %s, v22', vr(PF_+16))
        for k in range(5):
            a('s_waitcnt lgkmcnt(%d)', 8-2*k)
            a('v_mfma_f32_16x16x32_bf16 %s, %s, %s, %s', vr(X), vr(ZF+4*k), vr(PF_+4*k), '0' if k == 0 else vr(X))
        a.nop(8)
        a('ds_write_b128 v26, %s offset:%d', vr(X), L_RED2 - B2)
        a('s_waitcnt lgkmcnt(0)'); a('s_barrier')
        a('s_add_u32 s53, s53, 7168')
        if wv == 0:
            for k in range(1, 4): a('ds_read_b128 %s, v17 offset:%d', vr(GF+4*(k-1)), L_RED2 - B2 + k*1024)
            a('s_waitcnt lgkmcnt(0)')
            for r_ in range(4):
                a('v_add_f32 v%d, v%d, v%d', X+r_, X+r_, GF+r_); a('v_add_f32 v%d, v%d, v%d', GF+4+r_, GF+4+r_, GF+8+r_)
            for r_ in range(4): a('v_add_f32 v%d, v%d, v%d', X+r_, X+r_, GF+4+r_)
            a('v_cvt_pk_bf16_f32 v%d, v%d, v%d', GF, X, X+1); a('v_cvt_pk_bf16_f32 v%d, v%d, v%d', GF+1, X+2, X+3)
            a('v_min_u32 v%d, 0xfffffffe, v%d', GF, GF); a('v_min_u32 v%d, 0xfffffffe, v%d', GF+1, GF+1)
            a('s_mov_b64 exec, s[46:47]')
            a('buffer_store_dword v%d, v25, s[36:39], s53 offen %s', GF, sc)
            a('s_mov_b64 exec, s[50:51]')
            a('buffer_store_dword v%d, v25, s[36:39], s53 offen offset:4 %s', GF+1, sc)
            a('s_mov_b64 exec, -1')
        a('s_add_u32 s52, s52, 1'); a('s_add_u32 s54, s54, 16384'); a('s_add_u32 s55, s55, %d', 16*8*896); a('s_add_u32 s56, s56, %d', 16*448*16)
        a('s_cmp_lt_u32 s52, 64'); a('s_cbranch_scc1 %s', LP)
        a('s_branch ch_done')
    a.label('ch_done')
    a.end(n, 256, 224)

NEG = 0xf149f2ca
def k_bfin(a):
    n = 'bfin_kernel'; a.begin(n)
    a('s_cmp_ge_u32 s2, 64'); a('s_cbranch_scc1 bf_done')
    a('s_load_dwordx2 s[4:5], s[0:1], %d', KA['ws'])
    a('s_load_dwordx2 s[6:7], s[0:1], %d', KA['B_x'])
    a('s_load_dwordx2 s[8:9], s[0:1], %d', KA['out'])
    a('v_lshrrev_b32 v1, 6, v0'); a('v_and_b32 v2, 63, v0'); a('s_nop 0')
    a('v_readfirstlane_b32 s10, v1')
    a('v_and_b32 v3, 31, v2'); a('v_lshrrev_b32 v4, 5, v2')
    perm(a, 5, 3, 6)
    a('s_waitcnt lgkmcnt(0)')
    a.srd(12, 6, 7, 2048*896); a.srd(16, 4, 5, SZ_GX, WS_GX); a.srd(20, 4, 5, SZ_VW, WS_VW)
    a.srd(24, 4, 5, SZ_TM, WS_TM); a.srd(28, 4, 5, SZ_UT, WS_UT); a.srd(32, 8, 9, 2048*1792)
    a('s_lshl_b32 s11, s2, 5'); a('v_add_u32 v6, s11, v3'); a('v_mul_u32_u24 v6, 896, v6'); a('v_lshl_add_u32 v6, v4, 4, v6')
    for ks in range(28):
        a('buffer_load_dwordx4 %s, v6, s[12:15], 0 offen offset:%d', ar(4*ks), ks*32)
    a('v_lshlrev_b32 v7, 5, v5'); a('v_lshl_add_u32 v7, v4, 4, v7')
    a('v_lshlrev_b32 v8, 5, v3'); a('v_lshl_add_u32 v8, v4, 4, v8')
    a('s_lshl_b32 s36, s2, 2'); a('s_add_u32 s36, s36, s10')
    a('s_mul_i32 s37, s36, 28672')
    a('s_mul_i32 s38, s36, %d', 4*28672)
    B0 = 16; B1A = 112; ACC = 128
    def buf(b, ks): return vr(B0+4*ks) if b == 0 else ar(B1A+4*ks)
    def ld(stream, b):
        for ks in range(28):
            if ks % 4 == 0:
                if stream == 0: a('s_add_u32 s39, s37, %d', ks*1024)
                else: a('s_add_u32 s39, s38, %d', (stream-1)*28672 + ks*1024)
            if stream == 0: a('buffer_load_dwordx4 %s, v8, s[24:27], s39 offen offset:%d', buf(b, ks), (ks%4)*1024)
            else: a('buffer_load_dwordx4 %s, v7, s[16:19], s39 offen offset:%d', buf(b, ks), (ks%4)*1024)
    a('v_lshlrev_b32 v9, 3, v4'); a('v_sub_u32 v9, v3, v9')
    for i in range(16):
        q, r_ = i >> 2, i & 3
        a('v_cmp_le_i32 s[%d:%d], %d, v9', 40+2*i, 41+2*i, 16*(q>>1) + 4*(q&1) + r_)
    a('s_mov_b32 s72, 0x%x', 0x3db8aa3b)
    a('v_mov_b32 v10, 0x%x', NEG)
    ld(0, 0); ld(1, 1)
    for st in range(5):
        b = st % 2
        a('s_waitcnt vmcnt(28)' if st < 4 else 's_waitcnt vmcnt(0)')
        for ks in range(28):
            acc = vr(ACC+16*st, 16)
            a('v_mfma_f32_32x32x16_bf16 %s, %s, %s, %s', acc, buf(b, ks), ar(4*ks), '0' if ks == 0 else acc)
        if st + 2 < 5:
            a('s_nop 0'); ld(st+2, b)
    a.nop(16)
    a('v_lshlrev_b32 v11, 4, v2')
    a('s_lshl_b32 s11, s10, 13'); a('v_add_u32 v12, s11, v11')
    a('s_lshl_b32 s11, s10, 11'); a('v_add_u32 v13, s11, v11')
    T = 16; PMR = 40
    for hl in range(4):
        S = ACC + 16*(hl+1); Mm = ACC + 4*hl
        for i in range(16):
            a('v_cndmask_b32_e64 v%d, v10, v%d, s[%d:%d]', S+i, S+i, 40+2*i, 41+2*i)
        a('v_max3_f32 v%d, v%d, v%d, v%d', T, S, S+1, S+2)
        for i in range(6): a('v_max3_f32 v%d, v%d, v%d, v%d', T, T, S+3+2*i, S+4+2*i)
        a('v_max3_f32 v%d, v%d, v%d, v%d', T, T, S+15, Mm)
        a('v_max3_f32 v%d, v%d, v%d, v%d', T, T, Mm+1, Mm+2); a('v_max_f32 v%d, v%d, v%d', T, T, Mm+3)
        a('v_mov_b32 v%d, v%d', T+1, T); a('s_nop 1')
        a('v_permlane32_swap_b32 v%d, v%d', T, T+1); a('s_nop 1')
        a('v_max_f32 v%d, v%d, v%d', T, T, T+1)
        a('v_mul_f32 v%d, s72, v%d', T, T)
        for i in range(16): a('v_fma_f32 v%d, v%d, s72, -v%d', S+i, S+i, T)
        for i in range(4): a('v_fma_f32 v%d, v%d, s72, -v%d', Mm+i, Mm+i, T)
        for i in range(16): a('v_exp_f32 v%d, v%d', S+i, S+i)
        for i in range(4): a('v_exp_f32 v%d, v%d', Mm+i, Mm+i)
        a('s_nop 0')
        a('v_add_f32 v%d, v%d, v%d', T, S, S+1)
        for i in range(2, 16): a('v_add_f32 v%d, v%d, v%d', T, T, S+i)
        for i in range(4): a('v_add_f32 v%d, v%d, v%d', T, T, Mm+i)
        a('v_mov_b32 v%d, v%d', T+1, T); a('s_nop 1')
        a('v_permlane32_swap_b32 v%d, v%d', T, T+1); a('s_nop 1')
        a('v_add_f32 v%d, v%d, v%d', T, T, T+1)
        a('v_rcp_f32 v%d, v%d', T, T); a('s_nop 0')
        for i in range(16): a('v_mul_f32 v%d, v%d, v%d', S+i, S+i, T)
        for i in range(4): a('v_mul_f32 v%d, v%d, v%d', Mm+i, Mm+i, T)
        for i in range(8): a('v_cvt_pk_bf16_f32 v%d, v%d, v%d', T+8+i, S+2*i, S+2*i+1)
        for i in range(2): a('v_cvt_pk_bf16_f32 v%d, v%d, v%d', PMR+2*hl+i, Mm+2*i, Mm+2*i+1)
        a('ds_write_b128 v12, %s offset:%d', vr(T+8), hl*2048); a('ds_write_b128 v12, %s offset:%d', vr(T+12), hl*2048+1024)
        a('s_nop 1')
    for hp in range(2): a('ds_write_b128 v13, %s offset:%d', vr(PMR+4*hp), 32768 + hp*1024)
    a('s_waitcnt lgkmcnt(0)'); a('s_barrier')
    for i in range(40):
        a('ds_read_b128 %s, v11 offset:%d', ar(4*i), i*1024)
    a('s_mul_i32 s11, s2, %d', 16*448); a('s_lshl_b32 s36, s10, 5'); a('s_add_u32 s11, s11, s36')
    a('v_add_u32 v8, s11, v5')
    a('v_lshlrev_b32 v6, 6, v8'); a('v_lshl_add_u32 v6, v4, 4, v6')
    a('v_lshlrev_b32 v7, 4, v8'); a('v_lshl_add_u32 v7, v4, 3, v7')
    a('s_lshl_b32 s11, s2, 5'); a('v_add_u32 v9, s11, v3'); a('v_mul_u32_u24 v9, 1792, v9'); a('v_lshl_add_u32 v9, v4, 4, v9')
    a('s_lshl_b32 s36, s10, 6'); a('s_add_u32 s36, s36, 896'); a('v_add_u32 v9, s36, v9')
    OB = [16, 96]; OA = 176; OT = 192
    def ld2(it, hh, b):
        for h8 in range(8):
            h = 8*hh + h8
            a('s_mov_b32 s39, %d', h*448*64 + it*128*64)
            for k2 in range(2):
                a('buffer_load_dwordx4 %s, v6, s[20:23], s39 offen offset:%d', vr(OB[b]+8*h8+4*k2), k2*32)
            a('s_mov_b32 s39, %d', h*448*16 + it*128*16)
            a('buffer_load_dwordx2 %s, v7, s[28:31], s39 offen', vr(OB[b]+64+2*h8, 2))
    units = [(it, hh) for it in range(4) for hh in range(2)]
    ld2(0, 0, 0)
    a('s_waitcnt lgkmcnt(0)')
    for ui, (it, hh) in enumerate(units):
        b = ui % 2
        if it == 3 and hh == 0:
            a('s_cmp_ge_u32 s10, 2'); a('s_cbranch_scc1 bf_done')
        if ui + 1 < len(units):
            ld2(units[ui+1][0], units[ui+1][1], 1-b); a('s_waitcnt vmcnt(24)')
        else:
            a('s_waitcnt vmcnt(0)')
        acc = vr(OA, 16)
        for h8 in range(8):
            h = 8*hh + h8
            for k2 in range(2):
                a('v_mfma_f32_32x32x16_bf16 %s, %s, %s, %s', acc, vr(OB[b]+8*h8+4*k2), ar(8*h+4*k2), '0' if (hh == 0 and h8 == 0 and k2 == 0) else acc)
        for hp in range(4):
            a('v_mfma_f32_32x32x16_bf16 %s, %s, %s, %s', acc, vr(OB[b]+64+4*hp), ar(128+4*(4*hh+hp)), acc)
        if hh == 1:
            a.nop(16)
            for i in range(8): a('v_cvt_pk_bf16_f32 v%d, v%d, v%d', OT+i, OA+2*i, OA+2*i+1)
            for qq in range(2):
                a('buffer_store_dwordx4 %s, v9, s[32:35], 0 offen offset:%d', vr(OT+4*qq), it*256 + qq*32)
            a('s_nop 1')
    a.label('bf_done')
    a.end(n, 208, 224)

def k_fold(a):
    n = 'fold_kernel'; a.begin(n)
    a('s_cmp_ge_u32 s2, 336'); a('s_cbranch_scc1 fo_done')
    a('s_load_dwordx4 s[4:7], s[0:1], %d', KA['A_wqkv'])
    a('s_load_dwordx2 s[8:9], s[0:1], %d', KA['A_wo'])
    a('s_load_dwordx2 s[10:11], s[0:1], %d', KA['ws'])
    a('v_lshrrev_b32 v1, 6, v0'); a('v_and_b32 v2, 63, v0'); a('s_nop 0')
    a('v_readfirstlane_b32 s3, v1')
    a('v_and_b32 v3, 31, v2'); a('v_lshrrev_b32 v4, 5, v2')
    a('s_waitcnt lgkmcnt(0)')
    a.srd(12, 4, 5, 448*1344*2); a.srd(16, 6, 7, 16*784*2); a.srd(20, 8, 9, 448*448*2)
    a.srd(24, 10, 11, SZ_WA, WS_WA); a.srd(28, 10, 11, SZ_WOT, WS_WOT)
    a('v_mov_b32 v9, 0x7ffffff0')
    a('s_cmp_ge_u32 s2, 224'); a('s_cbranch_scc1 fo_wo')
    a('s_cmp_ge_u32 s2, 112'); a('s_cbranch_scc1 fo_v')
    a('s_lshl_b32 s32, s2, 2'); a('s_add_u32 s32, s32, s3')
    a('s_mul_i32 s33, s32, 4682'); a('s_lshr_b32 s33, s33, 16')
    a('s_mul_i32 s34, s33, 14'); a('s_sub_u32 s34, s32, s34')
    a('s_lshr_b32 s35, s33, 4'); a('s_and_b32 s36, s33, 15')
    perm(a, 5, 3, 6)
    a('s_lshl_b32 s37, s34, 5'); a('v_add_u32 v6, s37, v5'); a('v_mul_u32_u24 v6, 2688, v6')
    a('s_mul_i32 s37, s35, 896'); a('s_mul_i32 s38, s36, 56'); a('s_add_u32 s37, s37, s38'); a('v_add_u32 v6, s37, v6')
    a('v_lshl_add_u32 v6, v4, 4, v6')
    for ks in range(2):
        a('buffer_load_dwordx4 %s, v6, s[12:15], 0 offen offset:%d', vr(16+4*ks), ks*32)
    a('s_mul_i32 s37, s36, 1568'); a('v_lshlrev_b32 v7, 1, v3'); a('v_add_u32 v7, s37, v7')
    a('v_mul_u32_u24 v8, 448, v4'); a('v_add_u32 v7, v7, v8')
    a('v_cmp_gt_u32 vcc, 28, v3'); a('s_nop 1'); a('v_cndmask_b32 v7, v9, v7, vcc')
    a('v_cmp_eq_u32 vcc, 0, v4'); a('s_nop 1'); a('v_cndmask_b32 v8, v9, v7, vcc')
    for ks in range(2):
        for q in range(8):
            a('buffer_load_ushort v%d, v%d, s[16:19], 0 offen offset:%d', 32+8*ks+q, 8 if (ks == 1 and q >= 4) else 7, (16*ks+q)*56)
    a('s_waitcnt vmcnt(0)')
    for i in range(8): a('v_lshl_or_b32 v%d, v%d, 16, v%d', 24+i, 32+2*i+1, 32+2*i)
    a('s_nop 1')
    a('v_mfma_f32_32x32x16_bf16 %s, %s, %s, 0', vr(48,16), vr(16), vr(24))
    a('v_mfma_f32_32x32x16_bf16 %s, %s, %s, %s', vr(48,16), vr(20), vr(28), vr(48,16))
    a.nop(18)
    for i in range(8): a('v_cvt_pk_bf16_f32 v%d, v%d, v%d', 64+i, 48+2*i, 49+2*i)
    a('s_lshl_b32 s37, s33, 5'); a('v_add_u32 v6, s37, v3'); a('v_mul_u32_u24 v6, 896, v6')
    a('s_lshl_b32 s37, s34, 6'); a('v_add_u32 v6, s37, v6'); a('v_lshl_add_u32 v6, v4, 4, v6')
    for qq in range(2):
        a('buffer_store_dwordx4 %s, v6, s[24:27], 0 offen offset:%d', vr(64+4*qq), qq*32)
    a('s_branch fo_done')
    a.label('fo_v')
    a('s_sub_u32 s32, s2, 112'); a('s_lshl_b32 s32, s32, 8'); a('v_add_u32 v5, s32, v0')
    a('v_and_b32 v6, 511, v5'); a('v_lshrrev_b32 v7, 9, v5')
    a('v_lshrrev_b32 v8, 5, v6'); a('v_mul_u32_u24 v8, 28, v8'); a('v_add_u32 v8, v8, v3')
    a('v_mul_u32_u24 v10, %d, v7', 8*1344); a('v_add_u32 v8, v8, v10'); a('v_add_u32 v8, 896, v8'); a('v_lshlrev_b32 v8, 1, v8')
    a('v_cmp_gt_u32 vcc, 28, v3'); a('s_nop 1'); a('v_cndmask_b32 v8, v9, v8, vcc')
    a('s_mov_b32 s33, 0')
    for q in range(8):
        a('buffer_load_ushort v%d, v8, s[12:15], s33 offen', 32+q)
        a('s_add_u32 s33, s33, 2688')
    a('v_add_u32 v6, 1024, v6'); a('v_mul_u32_u24 v6, 896, v6'); a('v_lshl_add_u32 v6, v7, 4, v6')
    a('s_waitcnt vmcnt(0)')
    for i in range(4): a('v_lshl_or_b32 v%d, v%d, 16, v%d', 24+i, 32+2*i+1, 32+2*i)
    a('buffer_store_dwordx4 %s, v6, s[24:27], 0 offen', vr(24))
    a('s_branch fo_done')
    a.label('fo_wo')
    a('s_sub_u32 s32, s2, 224'); a('s_lshl_b32 s32, s32, 2'); a('s_add_u32 s32, s32, s3')
    a('s_mov_b32 s33, 0x24924925'); a('s_mul_hi_u32 s33, s32, s33')
    a('s_mul_i32 s34, s33, 7'); a('s_sub_u32 s34, s32, s34')
    a('s_lshr_b32 s35, s33, 2'); a('s_and_b32 s36, s33, 3')
    a('s_lshl_b32 s37, s34, 6'); a('v_add_u32 v5, s37, v2')
    a('s_mul_i32 s37, s35, 28'); a('s_lshl_b32 s38, s36, 3'); a('s_add_u32 s37, s37, s38'); a('s_mul_i32 s37, s37, 896')
    a('v_lshlrev_b32 v6, 1, v5'); a('v_add_u32 v6, s37, v6')
    a('s_cmp_eq_u32 s36, 3'); a('s_cselect_b64 vcc, -1, 0'); a('v_cndmask_b32 v7, v6, v9, vcc')
    a('s_movk_i32 s39, 3584')
    for q in range(8):
        a('buffer_load_ushort v%d, v%d, s[20:23], %s offen offset:%d', 32+q, 7 if q >= 4 else 6, 's39' if q >= 4 else '0', (q&3)*896)
    a('v_lshlrev_b32 v8, 10, v5'); a('s_lshl_b32 s37, s33, 4'); a('v_add_u32 v8, s37, v8')
    a('s_waitcnt vmcnt(0)')
    for i in range(4): a('v_lshl_or_b32 v%d, v%d, 16, v%d', 24+i, 32+2*i+1, 32+2*i)
    a('buffer_store_dwordx4 %s, v8, s[28:31], 0 offen', vr(24))
    a.label('fo_done')
    a.end(n, 72)

LOG2E = 0x3fb8aa3b
def k_a1(a):
    n = 'a1_kernel'; a.begin(n)
    a('s_cmp_ge_u32 s2, 256'); a('s_cbranch_scc1 a1_done')
    a('s_load_dwordx2 s[4:5], s[0:1], %d', KA['ws'])
    a('s_load_dwordx2 s[6:7], s[0:1], %d', KA['A_x'])
    a('v_lshrrev_b32 v1, 6, v0'); a('v_and_b32 v2, 63, v0'); a('s_nop 0')
    a('v_readfirstlane_b32 s10, v1')
    a('v_and_b32 v3, 31, v2'); a('v_lshrrev_b32 v4, 5, v2')
    a('s_and_b32 s8, s2, 15'); a('s_lshr_b32 s9, s2, 4')
    a('s_waitcnt lgkmcnt(0)')
    a.srd(12, 6, 7, 2048*896); a.srd(16, 4, 5, SZ_WA, WS_WA); a.srd(20, 4, 5, SZ_KV, WS_KV)
    a('s_lshl_b32 s11, s9, 2'); a('s_add_u32 s11, s11, s10'); a('s_lshl_b32 s11, s11, 5')
    a('v_add_u32 v6, s11, v3'); a('v_mul_u32_u24 v6, 896, v6'); a('v_lshl_add_u32 v6, v4, 4, v6')
    a('s_lshl_b32 s11, s8, 5'); a('s_add_u32 s11, s11, 512'); a('v_add_u32 v7, s11, v3'); a('v_mul_u32_u24 v7, 896, v7'); a('v_lshl_add_u32 v7, v4, 4, v7')
    a('s_mov_b32 s24, %d', 512*896)
    XF = 16
    for ks in range(28):
        a('buffer_load_dwordx4 %s, v6, s[12:15], 0 offen offset:%d', vr(XF+4*ks), ks*32)
        a('buffer_load_dwordx4 %s, v7, s[16:19], 0 offen offset:%d', ar(4*ks), ks*32)
        a('buffer_load_dwordx4 %s, v7, s[16:19], s24 offen offset:%d', ar(112+4*ks), ks*32)
    P = 128; V = 144; MX = 160; MN = 176; T = 192; EP = 208; EN = 224
    a('v_cmp_gt_u32 s[26:27], 28, v3'); a('v_cmp_eq_u32 s[28:29], 28, v3')
    a('v_mov_b32 v8, 0x%x', NEG); a('v_mov_b32 v9, 0x%x', NEG ^ 0x80000000); a('s_mov_b32 s30, 0x%x', LOG2E)
    a('v_mov_b32 v10, 1.0'); a('v_mov_b32 v11, 0')
    for ks in range(28):
        if ks % 4 == 0: a('s_waitcnt vmcnt(%d)', min(63, max(0, 84 - 3*(ks+4))))
        a('v_mfma_f32_32x32x16_bf16 %s, %s, %s, %s', vr(P,16), vr(XF+4*ks), ar(4*ks), '0' if ks == 0 else vr(P,16))
        a('v_mfma_f32_32x32x16_bf16 %s, %s, %s, %s', vr(V,16), vr(XF+4*ks), ar(112+4*ks), '0' if ks == 0 else vr(V,16))
    a.nop(18)
    def allred(R, op):
        for sh in (8, 4, 2, 1):
            for i in range(16):
                a('%s_dpp v%d, v%d, v%d row_ror:%d row_mask:0xf bank_mask:0xf', op, R+i, R+i, R+i, sh)
        for i in range(16): a('v_mov_b32 v%d, v%d', T+i, R+i)
        for i in range(16): a('v_permlane16_swap_b32 v%d, v%d', R+i, T+i)
        for i in range(16): a('%s v%d, v%d, v%d', op, R+i, R+i, T+i)
    for i in range(16):
        a('v_cndmask_b32_e64 v%d, v8, v%d, s[26:27]', MX+i, P+i)
        a('v_cndmask_b32_e64 v%d, v9, v%d, s[26:27]', MN+i, P+i)
    allred(MX, 'v_max_f32'); allred(MN, 'v_min_f32')
    for i in range(16):
        a('v_sub_f32 v%d, v%d, v%d', EP+i, P+i, MX+i); a('v_sub_f32 v%d, v%d, v%d', EN+i, MN+i, P+i)
    for i in range(16):
        a('v_mul_f32 v%d, s30, v%d', EP+i, EP+i); a('v_mul_f32 v%d, s30, v%d', EN+i, EN+i)
    for i in range(16):
        a('v_exp_f32 v%d, v%d', EP+i, EP+i); a('v_exp_f32 v%d, v%d', EN+i, EN+i)
    for i in range(16):
        a('v_cndmask_b32_e64 v%d, v11, v%d, s[26:27]', EP+i, EP+i); a('v_cndmask_b32_e64 v%d, v11, v%d, s[26:27]', EN+i, EN+i)
    for i in range(16):
        a('v_mov_b32 v%d, v%d', MX+i, EP+i); a('v_mov_b32 v%d, v%d', MN+i, EN+i)
    allred(MX, 'v_add_f32'); allred(MN, 'v_add_f32')
    for i in range(16):
        a('v_rcp_f32 v%d, v%d', MX+i, MX+i); a('v_rcp_f32 v%d, v%d', MN+i, MN+i)
    for i in range(16):
        a('v_mul_f32 v%d, v%d, v%d', EP+i, EP+i, MX+i); a('v_mul_f32 v%d, v%d, v%d', EN+i, EN+i, MN+i)
        a('v_cndmask_b32_e64 v%d, v%d, v10, s[28:29]', V+i, V+i)
    FP = 16; FN = 24; FV = 32
    for i in range(8):
        a('v_cvt_pk_bf16_f32 v%d, v%d, v%d', FP+i, EP+2*i, EP+2*i+1)
        a('v_cvt_pk_bf16_f32 v%d, v%d, v%d', FN+i, EN+2*i, EN+2*i+1)
        a('v_cvt_pk_bf16_f32 v%d, v%d, v%d', FV+i, V+2*i, V+2*i+1)
    a('s_nop 1')
    K0 = 48
    for sg, F in enumerate((FP, FN)):
        for k2 in range(2):
            acc = vr(K0+16*sg, 16)
            a('v_mfma_f32_32x32x16_bf16 %s, %s, %s, %s', acc, vr(FV+4*k2), vr(F+4*k2), '0' if k2 == 0 else acc)
    a.nop(18)
    a('v_lshlrev_b32 v12, 4, v2'); a('s_lshl_b32 s11, s10, 10'); a('v_add_u32 v13, s11, v12')
    for rq in range(8): a('ds_write_b128 v13, %s offset:%d', vr(K0+4*rq), rq*4096)
    a('s_waitcnt lgkmcnt(0)'); a('s_barrier')
    a('s_lshl_b32 s11, s10, 13'); a('v_add_u32 v13, s11, v12')
    for e in range(2):
        for w in range(4): a('ds_read_b128 %s, v13 offset:%d', vr(80+16*e+4*w), e*4096 + w*1024)
    a('s_lshl_b32 s11, s8, 5'); a('s_and_b32 s24, s10, 1'); a('s_lshl_b32 s24, s24, 4'); a('s_add_u32 s11, s11, s24'); a('s_lshl_b32 s11, s11, 8')
    a('s_lshr_b32 s24, s10, 1'); a('s_lshl_b32 s24, s24, 7'); a('s_add_u32 s11, s11, s24')
    a('v_lshlrev_b32 v14, 10, v4'); a('v_lshl_add_u32 v14, v3, 2, v14'); a('v_add_u32 v14, s11, v14')
    a('s_waitcnt lgkmcnt(0)')
    for e in range(2):
        for r_ in range(4):
            b = 80+16*e+r_
            a('v_add_f32 v%d, v%d, v%d', b, b, b+4); a('v_add_f32 v%d, v%d, v%d', b+8, b+8, b+12); a('v_add_f32 v%d, v%d, v%d', b, b, b+8)
    for e in range(2):
        for r_ in range(4):
            a('buffer_atomic_add_f32 v%d, v14, s[20:23], 0 offen offset:%d sc1', 80+16*e+r_, (8*e+r_)*256)
    a.label('a1_done')
    a.end(n, 240, 224)

def k_a2(a):
    n = 'a2_kernel'; a.begin(n)
    a('s_cmp_ge_u32 s2, 64'); a('s_cbranch_scc1 a2_done')
    a('s_load_dwordx2 s[4:5], s[0:1], %d', KA['ws'])
    a('s_load_dwordx2 s[6:7], s[0:1], %d', KA['A_x'])
    a('s_load_dwordx2 s[8:9], s[0:1], %d', KA['out'])
    a('v_lshrrev_b32 v1, 6, v0'); a('v_and_b32 v2, 63, v0'); a('s_nop 0')
    a('v_readfirstlane_b32 s10, v1')
    a('v_and_b32 v3, 31, v2'); a('v_lshrrev_b32 v4, 5, v2')
    perm(a, 5, 3, 6)
    a('s_waitcnt lgkmcnt(0)')
    a.srd(12, 6, 7, 2048*896); a.srd(16, 4, 5, SZ_WA, WS_WA); a.srd(20, 4, 5, SZ_KV, WS_KV)
    a.srd(24, 4, 5, SZ_WOT, WS_WOT); a.srd(32, 8, 9, 2048*1792)
    a('s_lshl_b32 s11, s2, 5'); a('v_add_u32 v6, s11, v3'); a('v_mul_u32_u24 v6, 896, v6'); a('v_lshl_add_u32 v6, v4, 4, v6')
    for ks in range(28):
        a('buffer_load_dwordx4 %s, v6, s[12:15], 0 offen offset:%d', ar(4*ks), ks*32)
    a('s_lshl_b32 s11, s10, 7'); a('v_add_u32 v8, s11, v5'); a('v_mul_u32_u24 v7, 896, v8'); a('v_lshl_add_u32 v7, v4, 4, v7')
    a('v_lshlrev_b32 v8, 8, v8'); a('v_lshl_add_u32 v8, v4, 5, v8')
    B0 = 16; B1A = 112; ACC = 128; KVF = 192
    def buf(b, ks): return vr(B0+4*ks) if b == 0 else ar(B1A+4*ks)
    def ld(hl, b):
        a('s_mov_b32 s39, %d', hl*32*896)
        for ks in range(28):
            a('buffer_load_dwordx4 %s, v7, s[16:19], s39 offen offset:%d', buf(b, ks), ks*32)
    a('v_cmp_eq_u32 s[40:41], 0, v4')
    a('v_mov_b32 v9, 0x%x', NEG); a('v_mov_b32 v10, 0x%x', NEG ^ 0x80000000); a('s_mov_b32 s30, 0x%x', LOG2E); a('v_mov_b32 v11, 0')
    ld(0, 0); ld(1, 1)
    for hl in range(4):
        b = hl % 2
        a('s_waitcnt vmcnt(28)' if hl < 3 else 's_waitcnt vmcnt(0)')
        for ks in range(28):
            acc = vr(ACC+16*hl, 16)
            a('v_mfma_f32_32x32x16_bf16 %s, %s, %s, %s', acc, buf(b, ks), ar(4*ks), '0' if ks == 0 else acc)
        if hl + 2 < 4:
            a('s_nop 0'); ld(hl+2, b)
    a.nop(16)
    a('v_lshlrev_b32 v12, 4, v2'); a('s_lshl_b32 s11, s10, 13'); a('v_add_u32 v13, s11, v12')
    EP = 16; EN = 32; T = 48; FP = 56; FK = 72; O = 88; OF = 104
    for hl in range(4):
        S = ACC + 16*hl
        a('s_mov_b32 s39, %d', hl*32*256)
        for i in range(8):
            a('buffer_load_dwordx4 %s, v8, s[20:23], s39 offen offset:%d sc1', vr(KVF+4*i), (i>>1)*64 + (i&1)*16)
        for i in range(4):
            a('v_cndmask_b32_e64 v%d, v9, v%d, s[40:41]', T+i, S+12+i); a('v_cndmask_b32_e64 v%d, v10, v%d, s[40:41]', T+4+i, S+12+i)
        a('v_max3_f32 v%d, v%d, v%d, v%d', T, T, T+1, T+2); a('v_min3_f32 v%d, v%d, v%d, v%d', T+4, T+4, T+5, T+6)
        a('v_max_f32 v%d, v%d, v%d', T, T, T+3); a('v_min_f32 v%d, v%d, v%d', T+4, T+4, T+7)
        for i in range(6):
            a('v_max3_f32 v%d, v%d, v%d, v%d', T, T, S+2*i, S+2*i+1); a('v_min3_f32 v%d, v%d, v%d, v%d', T+4, T+4, S+2*i, S+2*i+1)
        a('v_mov_b32 v%d, v%d', T+1, T); a('v_mov_b32 v%d, v%d', T+5, T+4); a('s_nop 1')
        a('v_permlane32_swap_b32 v%d, v%d', T, T+1); a('v_permlane32_swap_b32 v%d, v%d', T+4, T+5); a('s_nop 1')
        a('v_max_f32 v%d, v%d, v%d', T, T, T+1); a('v_min_f32 v%d, v%d, v%d', T+4, T+4, T+5)
        for i in range(16):
            a('v_sub_f32 v%d, v%d, v%d', EP+i, S+i, T); a('v_sub_f32 v%d, v%d, v%d', EN+i, T+4, S+i)
        for i in range(16):
            a('v_mul_f32 v%d, s30, v%d', EP+i, EP+i); a('v_mul_f32 v%d, s30, v%d', EN+i, EN+i)
        for i in range(16):
            a('v_exp_f32 v%d, v%d', EP+i, EP+i); a('v_exp_f32 v%d, v%d', EN+i, EN+i)
        a('s_nop 0')
        for i in range(12, 16):
            a('v_cndmask_b32_e64 v%d, v11, v%d, s[40:41]', EP+i, EP+i); a('v_cndmask_b32_e64 v%d, v11, v%d, s[40:41]', EN+i, EN+i)
        a('v_add_f32 v%d, v%d, v%d', T, EP, EP+1); a('v_add_f32 v%d, v%d, v%d', T+4, EN, EN+1)
        for i in range(2, 16):
            a('v_add_f32 v%d, v%d, v%d', T, T, EP+i); a('v_add_f32 v%d, v%d, v%d', T+4, T+4, EN+i)
        a('v_mov_b32 v%d, v%d', T+1, T); a('v_mov_b32 v%d, v%d', T+5, T+4); a('s_nop 1')
        a('v_permlane32_swap_b32 v%d, v%d', T, T+1); a('v_permlane32_swap_b32 v%d, v%d', T+4, T+5); a('s_nop 1')
        a('v_add_f32 v%d, v%d, v%d', T, T, T+1); a('v_add_f32 v%d, v%d, v%d', T+4, T+4, T+5)
        a('v_rcp_f32 v%d, v%d', T, T); a('v_rcp_f32 v%d, v%d', T+4, T+4); a('s_nop 0')
        for i in range(16):
            a('v_mul_f32 v%d, v%d, v%d', EP+i, EP+i, T); a('v_mul_f32 v%d, v%d, v%d', EN+i, EN+i, T+4)
        for i in range(16): a('v_cvt_pk_bf16_f32 v%d, v%d, v%d', FP+i, EP+2*i, EP+2*i+1)
        a('s_waitcnt vmcnt(0)')
        for i in range(16): a('v_cvt_pk_bf16_f32 v%d, v%d, v%d', FK+i, KVF+2*i, KVF+2*i+1)
        a('s_nop 1')
        for k in range(4):
            a('v_mfma_f32_32x32x16_bf16 %s, %s, %s, %s', vr(O,16), vr(FK+4*k), vr(FP+4*k), '0' if k == 0 else vr(O,16))
        a.nop(18)
        a('v_mov_b32 v%d, v%d', T, O+12); a('v_mov_b32 v%d, v%d', T+1, O+12); a('s_nop 1')
        a('v_permlane32_swap_b32 v%d, v%d', T, T+1); a('s_nop 1')
        a('v_add_f32 v%d, 0x358637bd, v%d', T+1, T+1)
        a('v_rcp_f32 v%d, v%d', T+1, T+1); a('s_nop 0')
        for i in range(16): a('v_mul_f32 v%d, v%d, v%d', O+i, O+i, T+1)
        for i in range(8): a('v_cvt_pk_bf16_f32 v%d, v%d, v%d', OF+i, O+2*i, O+2*i+1)
        a('ds_write_b128 v13, %s offset:%d', vr(OF), hl*2048); a('ds_write_b128 v13, %s offset:%d', vr(OF+4), hl*2048+1024)
        a('s_nop 1')
    a('s_waitcnt lgkmcnt(0)'); a('s_barrier')
    for i in range(32): a('ds_read_b128 %s, v12 offset:%d', ar(4*i), i*1024)
    a('s_lshl_b32 s11, s10, 5'); a('v_add_u32 v6, s11, v5'); a('v_lshlrev_b32 v6, 10, v6'); a('v_lshl_add_u32 v6, v4, 4, v6')
    a('s_lshl_b32 s11, s2, 5'); a('v_add_u32 v9, s11, v3'); a('v_mul_u32_u24 v9, 1792, v9'); a('v_lshl_add_u32 v9, v4, 4, v9')
    a('s_lshl_b32 s36, s10, 6'); a('v_add_u32 v9, s36, v9')
    OB = [16, 80]; OA = 144; OT = 160
    def ld2(it, hh, b):
        a('s_mov_b32 s39, %d', it*128*1024)
        for kk in range(16):
            a('buffer_load_dwordx4 %s, v6, s[24:27], s39 offen offset:%d', vr(OB[b]+4*kk), (16*hh+kk)*32)
    units = [(it, hh) for it in range(4) for hh in range(2)]
    ld2(0, 0, 0)
    a('s_waitcnt lgkmcnt(0)')
    for ui, (it, hh) in enumerate(units):
        b = ui % 2
        if it == 3 and hh == 0:
            a('s_cmp_ge_u32 s10, 2'); a('s_cbranch_scc1 a2_done')
        if ui + 1 < len(units):
            ld2(units[ui+1][0], units[ui+1][1], 1-b); a('s_waitcnt vmcnt(16)')
        else:
            a('s_waitcnt vmcnt(0)')
        acc = vr(OA, 16)
        for kk in range(16):
            a('v_mfma_f32_32x32x16_bf16 %s, %s, %s, %s', acc, vr(OB[b]+4*kk), ar(4*(16*hh+kk)), '0' if (hh == 0 and kk == 0) else acc)
        if hh == 1:
            a.nop(16)
            for i in range(8): a('v_cvt_pk_bf16_f32 v%d, v%d, v%d', OT+i, OA+2*i, OA+2*i+1)
            for qq in range(2):
                a('buffer_store_dwordx4 %s, v9, s[32:35], 0 offen offset:%d', vr(OT+4*qq), it*256 + qq*32)
            a('s_nop 1')
    a.label('a2_done')
    a.end(n, 224, 224)

def main():
    a = Asm()
    nf = k_fill(a)
    launches = [('fill_kernel', nf, 256, 0), ('mm_kernel', 224, 256, 0), ('gx_kernel', 256, 256, 2*32*LROW), ('chain_kernel', 32, 256, L_CHAIN),
                ('bfin_kernel', 64, 256, 40960), ('fold_kernel', 336, 256, 0), ('a1_kernel', 256, 256, 32768), ('a2_kernel', 64, 256, 32768)]
    k_mm(a); k_gx(a); k_chain(a); k_bfin(a); k_fold(a); k_a1(a); k_a2(a)
    out = HDR
    for (k, g, b, lds) in launches:
        out += '; @launch kernel=%s grid=(%d,1,1) block=(%d,1,1) lds=%d\n' % (k, g, b, lds)
    out += '.amdgcn_target "amdgcn-amd-amdhsa--gfx950"\n' + '\n'.join(a.l) + '\n'
    open(sys.argv[1] if len(sys.argv) > 1 else 'cdna_kernels/%s.s' % NAME, 'w').write(out)
if __name__ == '__main__': main()
```

```python
import sys
NAME = 'concat_heads__linear_kernel_hedgehog__memory_aug_recurrent_mem_tr__prompt'
HDR = open('cdna_kernels/%s.s.ref' % NAME).read().split('; Override launch')[0]

KA = dict(A_x=0, A_wqkv=8, A_w_phi=16, A_wo=24, B_x=32, B_mem0=40, B_Wq=48, B_Wk=56, B_Wv=64, B_Wo=72, seg=80, out=88, dbg=96, ws=104)
RS = 896
def al(x, a=4096): return (x + a - 1) // a * a
WS_M = 0;                 SZ_M = 2*16*448*RS
WS_GX = al(WS_M+SZ_M);    SZ_GX = 64*16*32*896
WS_VW = al(WS_GX+SZ_GX);  SZ_VW = 64*16*448*64
WS_TM = al(WS_VW+SZ_VW);  SZ_TM = 64*16*8*896
WS_UT = al(WS_TM+SZ_TM);  SZ_UT = 64*16*448*16
WS_MB = al(WS_UT+SZ_UT);  SZ_MB = 65*8192
WS_SB = al(WS_MB+SZ_MB);  SZ_SB = 64*16384
WS_P  = al(WS_SB+SZ_SB);  SZ_P = 128*4096 + 2048*64
WS_WA = al(WS_P+SZ_P);    SZ_WA = 1536*896
WS_WOT= al(WS_WA+SZ_WA);  SZ_WOT = 448*1024
WS_PQ = al(WS_WOT+SZ_WOT);SZ_PQ = 2048*16*128
WS_KV = al(WS_PQ+SZ_PQ);  SZ_KV = 16*64*32*4
WS_END = al(WS_KV+SZ_KV)

class Asm:
    def __init__(self): self.l = []; self.uid = 0
    def __call__(self, s, *a):
        self.l.append('    ' + (s % a if a else s))
    def label(self, s): self.l.append(s + ':')
    def c(self, s): self.l.append('    ; ' + s)
    def newlabel(self, p='L'):
        self.uid += 1; return '%s_%d' % (p, self.uid)
    def nop(self, n):
        while n > 0:
            k = min(n, 16); self('s_nop %d', k-1); n -= k
    def srd(self, d, lo, hi, size, off=0):
        if off:
            self('s_add_u32 s%d, s%d, 0x%x', d, lo, off & 0xffffffff)
            self('s_addc_u32 s%d, s%d, 0x%x', d+1, hi, off >> 32)
        else:
            self('s_mov_b32 s%d, s%d', d, lo); self('s_mov_b32 s%d, s%d', d+1, hi)
        self('s_mov_b32 s%d, 0x%x', d+2, size)
        self('s_mov_b32 s%d, 0x00020000', d+3)
    def begin(self, name):
        self.l += ['.text', '.globl %s' % name, '.p2align 8', '.type %s,@function' % name, name + ':']
    def end(self, name, vgpr, agpr=0, sgpr=102):
        acc = (vgpr + 3)//4*4
        self.l += ['    s_endpgm', '.section .rodata,"a"', '.p2align 6', '.amdhsa_kernel %s' % name,
          '  .amdhsa_next_free_vgpr %d' % (acc + agpr if agpr else vgpr), '  .amdhsa_next_free_sgpr %d' % sgpr,
          '  .amdhsa_accum_offset %d' % acc, '  .amdhsa_group_segment_fixed_size 0', '  .amdhsa_kernarg_size 112',
          '  .amdhsa_user_sgpr_count 2', '  .amdhsa_user_sgpr_kernarg_segment_ptr 1', '  .amdhsa_system_sgpr_workgroup_id_x 1',
          '.end_amdhsa_kernel']
def perm(a, d, src, t):
    a('v_and_b32 v%d, 0x13, v%d', d, src)
    a('v_and_b32 v%d, 4, v%d', t, src); a('v_lshl_or_b32 v%d, v%d, 1, v%d', d, t, d)
    a('v_and_b32 v%d, 8, v%d', t, src); a('v_lshrrev_b32 v%d, 1, v%d', t, t); a('v_or_b32 v%d, v%d, v%d', d, t, d)
def vr(b, n=4): return 'v[%d:%d]' % (b, b+n-1)
def ar(b, n=4): return 'a[%d:%d]' % (b, b+n-1)


INSTR = False
C_TICKET = 0; C_M = 1; C_INIT = 2; C_FOLD = 3; C_A1 = 4; C_GX = 8
LDS_TOT = 92160 + 64
L_TK = 92160
WSPIN = 3000000
def RT(a, slot, idreg='s101'):
    if not INSTR: return
    a('s_load_dwordx2 s[88:89], s[0:1], %d', KA['ws']); a('s_memrealtime s[94:95]'); a('s_waitcnt lgkmcnt(0)')
    a.srd(88, 88, 89, SZ_P, WS_P)
    a('s_lshl_b32 s92, %s, 6', idreg); a('s_add_u32 s92, s92, %d', 128*4096)
    a('v_mov_b32 v254, s94'); a('v_mov_b32 v255, 0')
    a('v_cmp_eq_u32 vcc, 0, v0'); a('s_and_b64 exec, exec, vcc')
    a('buffer_store_dword v254, v255, s[88:91], s92 offen offset:%d', slot*4)
    a('s_mov_b64 exec, -1')
def dbg_srd(a, d, t):
    a('s_load_dwordx2 s[%d:%d], s[0:1], %d', t, t+1, KA['dbg']); a('s_waitcnt lgkmcnt(0)')
    a.srd(d, t, t+1, 256)
def signal(a, d, cidx, vt, per_wave=False):
    a('s_waitcnt vmcnt(0)')
    if not per_wave: a('s_barrier')
    a('v_mov_b32 v%d, 1', vt); a('v_mov_b32 v%d, %d', vt+1, cidx*4)
    if per_wave: a('s_mov_b64 exec, 1')
    else:
        a('v_cmp_eq_u32 vcc, 0, v0'); a('s_and_b64 exec, exec, vcc')
    a('buffer_atomic_add v%d, v%d, s[%d:%d], 0 offen sc1', vt, vt+1, d, d+3)
    a('s_mov_b64 exec, -1')
def waitc(a, d, cidx, target, vt, st, fail, sleep=8):
    L = a.newlabel('wc')
    a('v_mov_b32 v%d, %d', vt+1, cidx*4); a('s_mov_b32 s%d, 0', st)
    a.label(L)
    a('buffer_load_dword v%d, v%d, s[%d:%d], 0 offen sc1', vt, vt+1, d, d+3)
    a('s_add_u32 s%d, s%d, 1', st, st); a('s_cmp_gt_u32 s%d, %d', st, WSPIN); a('s_cbranch_scc1 %s', fail)
    a('s_waitcnt vmcnt(0)')
    a('v_readfirstlane_b32 s%d, v%d', st+1, vt); a('s_nop 3')
    a('s_cmp_ge_u32 s%d, %d', st+1, target); a('s_cbranch_scc1 %s_ok', L)
    a('s_sleep %d', sleep); a('s_branch %s', L)
    a.label(L + '_ok')

def t_mg(a):
    a('s_load_dwordx4 s[4:7], s[0:1], %d', KA['B_Wq'])
    a('s_load_dwordx4 s[8:11], s[0:1], %d', KA['B_Wv'])
    a('s_load_dwordx2 s[12:13], s[0:1], %d', KA['ws'])
    a('s_load_dwordx2 s[44:45], s[0:1], %d', KA['B_x'])
    a('s_load_dwordx2 s[46:47], s[0:1], %d', KA['dbg'])
    a('s_mov_b32 s14, 0x24924925'); a('s_mul_hi_u32 s15, s100, s14')
    a('s_mul_i32 s16, s15, 7'); a('s_sub_u32 s16, s100, s16')
    a('s_lshr_b32 s17, s15, 4')
    a('s_and_b32 s18, s15, 15')
    a('v_lshrrev_b32 v1, 6, v0'); a('v_and_b32 v2, 63, v0'); a('s_nop 0')
    a('v_readfirstlane_b32 s19, v1')
    a('v_and_b32 v3, 31, v2'); a('v_lshrrev_b32 v4, 5, v2')
    perm(a, 10, 3, 11)
    a('s_and_b32 s20, s19, 1'); a('s_lshr_b32 s21, s19, 1')
    a('s_waitcnt lgkmcnt(0)')
    a('s_cmp_eq_u32 s17, 0')
    a('s_cselect_b32 s24, s4, s10'); a('s_cselect_b32 s25, s5, s11')
    a('s_mov_b32 s26, 3670016'); a('s_mov_b32 s27, 0x00020000')
    a('s_cselect_b32 s28, s6, s8'); a('s_cselect_b32 s29, s7, s9')
    a('s_mov_b32 s30, 3670016'); a('s_mov_b32 s31, 0x00020000')
    a.srd(32, 12, 13, SZ_M, WS_M)
    a.srd(48, 44, 45, 2048*896); a.srd(52, 12, 13, SZ_GX, WS_GX); a.srd(56, 12, 13, SZ_VW, WS_VW)
    a.srd(60, 46, 47, 256); a.srd(64, 12, 13, SZ_KV, WS_KV)
    a('v_mov_b32 v11, 0'); a('s_lshl_b32 s22, s100, 10'); a('v_lshlrev_b32 v12, 2, v0'); a('v_add_u32 v12, s22, v12')
    a('buffer_store_dword v11, v12, s[64:67], 0 offen sc1')
    a('s_lshl_b32 s22, s16, 6'); a('s_lshl_b32 s23, s20, 5'); a('s_add_u32 s22, s22, s23')
    a('v_add_u32 v5, s22, v10')
    a('s_mul_i32 s36, s21, 224'); a('v_add_u32 v6, s36, v10'); a('v_lshlrev_b32 v6, 13, v6')
    a('s_lshl_b32 s37, s18, 9'); a('v_add_u32 v6, s37, v6'); a('v_lshl_add_u32 v6, v4, 4, v6')
    JS = 16; KB = [80, 144]; ACC = 208; T = 224
    def kbuf(i, es):
        b = i % 3
        return vr(KB[b]+4*es) if b < 2 else ar(4*es)
    def ldk(i):
        a('s_mov_b32 s43, %d', i*262144)
        for es in range(16):
            a('buffer_load_dwordx4 %s, v6, s[28:31], s43 offen offset:%d', kbuf(i, es), es*32)
    a('s_cmp_eq_u32 s17, 0'); a('s_cbranch_scc0 mm_mat1')
    a('v_lshlrev_b32 v7, 13, v5'); a('v_add_u32 v7, s37, v7'); a('v_lshl_add_u32 v7, v4, 4, v7')
    for es in range(16):
        a('buffer_load_dwordx4 %s, v7, s[24:27], 0 offen offset:%d', vr(JS+4*es), es*32)
    ldk(0); ldk(1); ldk(2)
    a('s_branch mm_go')
    a.label('mm_mat1')
    a('s_mul_i32 s38, s18, 229376'); a('s_lshl_b32 s39, s22, 1'); a('s_add_u32 s38, s38, s39')
    a('v_mul_u32_u24 v7, 896, v10'); a('v_add_u32 v7, s38, v7'); a('v_lshl_add_u32 v7, v4, 4, v7')
    for et in range(8):
        a('s_mov_b32 s39, %d', et*32*896)
        for ks in range(2):
            a('buffer_load_dwordx4 %s, v7, s[24:27], s39 offen offset:%d', ar(64+8*et+4*ks), ks*32)
    ldk(0); ldk(1)
    a('v_lshlrev_b32 v8, 3, v4'); a('v_sub_u32 v8, v10, v8')
    a('v_mov_b32 v9, 0x3f80'); a('v_mov_b32 v11, 0x3f800000'); a('v_mov_b32 v12, 0')
    for ks in range(2):
        for q2 in range(4):
            r_ = 232 + 4*ks + q2
            a('v_cmp_eq_u32 vcc, %d, v8', 16*ks + 2*q2); a('v_cndmask_b32 v%d, v12, v9, vcc', r_)
            a('v_cmp_eq_u32 vcc, %d, v8', 16*ks + 2*q2 + 1); a('v_cndmask_b32 v%d, v%d, v11, vcc', r_, r_)
    a('s_waitcnt vmcnt(32)')
    for et in range(8):
        acc = vr(ACC, 16) if et % 2 == 0 else vr(240, 16)
        ab = ACC if et % 2 == 0 else 240
        a('v_mfma_f32_32x32x16_bf16 %s, %s, %s, 0', acc, ar(64+8*et), vr(232))
        a('v_mfma_f32_32x32x16_bf16 %s, %s, %s, %s', acc, ar(64+8*et+4), vr(236), acc)
        a.nop(18)
        for i in range(8): a('v_cvt_pk_bf16_f32 v%d, v%d, v%d', JS+8*et+i, ab+2*i, ab+2*i+1)
    ldk(2)
    a.label('mm_go')
    a('s_mul_i32 s40, s15, 448'); a('v_add_u32 v9, s40, v5'); a('s_movk_i32 s41, %d', RS); a('v_mul_lo_u32 v9, v9, s41')
    a('s_mul_i32 s42, s21, 448'); a('v_add_u32 v9, s42, v9'); a('v_lshl_add_u32 v9, v4, 4, v9')
    a('v_lshlrev_b32 v12, 4, v2')
    a('s_mul_i32 s40, s20, 28672'); a('s_mul_i32 s41, s21, 14336'); a('s_add_u32 s40, s40, s41'); a('v_add_u32 v11, s40, v12')
    for i in range(7):
        nl = min(2, 6-i)
        a('s_waitcnt vmcnt(%d)', 16*nl)
        for es in range(16):
            a('v_mfma_f32_32x32x16_bf16 %s, %s, %s, %s', vr(ACC,16), kbuf(i, es), vr(JS+4*es), '0' if es == 0 else vr(ACC,16))
        a.nop(18)
        for q in range(8):
            a('v_cvt_pk_bf16_f32 v%d, v%d, v%d', T+q, ACC+2*q, ACC+2*q+1)
        for qq in range(2):
            a('buffer_store_dwordx4 %s, v9, s[32:35], 0 offen offset:%d sc1', vr(T+4*qq), i*64+qq*32)
            a('ds_write_b128 v11, %s offset:%d', vr(T+4*qq), (2*i+qq)*1024)
        if i + 3 < 7: ldk(i+3)
        a('s_nop 1')
    a('s_waitcnt lgkmcnt(0)')
    RT(a, 1)
    signal(a, 60, C_M, 13)
    RT(a, 2)
    for f in range(56):
        a('ds_read_b128 %s, v12 offset:%d', ar(4*f), f*1024)
    a('s_cmp_eq_u32 s17, 0'); a('s_cselect_b64 vcc, -1, 0')
    a('v_cndmask_b32 v14, v10, v3, vcc')
    a('s_lshl_b32 s22, s19, 5'); a('v_add_u32 v5, s22, v14'); a('v_mul_u32_u24 v5, 896, v5'); a('v_lshl_add_u32 v5, v4, 4, v5')
    XB = [16, 72, 128]; GA = 184; GT = 216
    a('s_mov_b32 s36, 0')
    a('s_mov_b32 s37, 0')
    a('s_mov_b32 s38, 0')
    def ldx(c, b):
        for k in range(14):
            a('buffer_load_dwordx4 %s, v5, s[48:51], s36 offen offset:%d', vr(XB[b]+4*k), (14*c+k)*32)
        if c == 1: a('s_add_u32 s36, s36, %d', 4*32*896)
    ldx(0, 0); ldx(1, 1)
    a('s_waitcnt lgkmcnt(0)')
    a('s_cmp_eq_u32 s17, 0'); a('s_cbranch_scc0 gx_m1')
    for mat in range(2):
        if mat == 1: a.label('gx_m1')
        a('s_lshl_b32 s22, s19, 4'); a('s_add_u32 s22, s22, s18')
        if mat == 0:
            a('s_mul_i32 s22, s22, 28672'); a('s_lshl_b32 s23, s16, 12'); a('s_add_u32 s22, s22, s23')
            a('v_lshlrev_b32 v6, 5, v3'); a('v_add_u32 v6, s22, v6'); a('v_lshl_add_u32 v6, v4, 4, v6')
        else:
            a('s_mul_i32 s22, s22, 448'); a('s_lshl_b32 s23, s16, 6'); a('s_add_u32 s22, s22, s23')
            a('v_add_u32 v6, s22, v10'); a('v_lshlrev_b32 v6, 6, v6'); a('v_lshl_add_u32 v6, v4, 4, v6')
        for it in range(16):
            for c in range(2):
                ch = 2*it + c
                b = ch % 3
                if ch + 2 < 32:
                    ldx(c, (ch+2) % 3)
                    a('s_waitcnt vmcnt(28)')
                else:
                    a('s_waitcnt vmcnt(%d)', 14 if ch == 30 else 0)
                for k in range(14):
                    ks = 14*c + k
                    for j2 in range(2):
                        m = ar((j2*28+ks)*4); x = vr(XB[b]+4*k); acc = vr(GA+16*j2, 16)
                        A, B = (m, x) if mat == 0 else (x, m)
                        a('v_mfma_f32_32x32x16_bf16 %s, %s, %s, %s', acc, A, B, '0' if ks == 0 else acc)
            a.nop(18)
            for i in range(16): a('v_cvt_pk_bf16_f32 v%d, v%d, v%d', GT+i, GA+2*i, GA+2*i+1)
            for j2 in range(2):
                for qq in range(2):
                    off = (2*j2+qq)*1024 if mat == 0 else j2*2048 + qq*32
                    a('buffer_store_dwordx4 %s, v6, s[%d:%d], s37 offen offset:%d sc1', vr(GT+8*j2+4*qq), 52+4*mat, 55+4*mat, off)
            a('s_add_u32 s37, s37, %d', 4*16*28672)
            if it % 2 == 1:
                signal(a, 60, C_GX + it//2, 13, per_wave=True)
                if it == 1: RT(a, 3)
        a('s_branch wk_loop')

L_G = 0; L_ZX = L_G + 2*14*1024; B2 = L_ZX + 2*16*1024
L_MEM = B2; L_ZM = L_MEM + 8192; L_P = L_ZM + 4096
L_RED = L_P + 4*2560; L_RED2 = L_RED + 4096; L_CHAIN = L_RED2 + 4096
QT = [[0,1,2,3],[4,5,6,7],[8,9,10],[11,12,13]]
UTL = [[0,1,2],[3,4,5],[6,7,8,9],[10,11,12,13]]
SPIN = 200000
def k_chain(a, sc='sc1'):
    def TS(k):
        if not INSTR: return
        a('s_memtime s[64:65]'); a('s_waitcnt lgkmcnt(0)')
        a('v_mov_b32 v18, s64')
        a('s_lshl_b32 s66, s52, 6'); a('s_add_u32 s66, s66, s67')
        a('s_mov_b64 exec, 1')
        a('buffer_store_dword v18, v12, s[68:71], s66 offen offset:%d', 4*k)
        a('s_mov_b64 exec, -1')
    a('s_lshr_b32 s2, s2, 3')
    a('s_load_dwordx2 s[4:5], s[0:1], %d', KA['ws'])
    a('s_load_dwordx2 s[76:77], s[0:1], %d', KA['dbg'])
    a('s_load_dwordx2 s[78:79], s[0:1], %d', KA['B_mem0'])
    a('s_lshr_b32 s6, s2, 1'); a('s_and_b32 s7, s2, 1')
    a('v_lshrrev_b32 v1, 6, v0'); a('v_and_b32 v2, 63, v0'); a('s_nop 0')
    a('v_readfirstlane_b32 s8, v1')
    a('v_and_b32 v3, 15, v2'); a('v_lshrrev_b32 v4, 4, v2'); a('v_and_b32 v5, 7, v2')
    a('s_waitcnt lgkmcnt(0)')
    a.srd(16, 4, 5, SZ_M, WS_M); a.srd(20, 4, 5, SZ_GX, WS_GX); a.srd(24, 4, 5, SZ_VW, WS_VW)
    a.srd(28, 4, 5, SZ_TM, WS_TM); a.srd(32, 4, 5, SZ_UT, WS_UT); a.srd(36, 4, 5, SZ_MB, WS_MB); a.srd(40, 4, 5, SZ_SB, WS_SB)
    a.srd(80, 76, 77, 256); a.srd(84, 78, 79, 7168)
    if INSTR:
        a.srd(68, 4, 5, SZ_P, WS_P)
        a('s_lshl_b32 s67, s2, 2'); a('s_add_u32 s67, s67, s8'); a('s_lshl_b32 s67, s67, 12')
        a('s_mov_b32 s52, 0'); a('v_mov_b32 v12, 0')
    TS(8)
    a('s_add_u32 s101, s2, 1900'); RT(a, 0)
    for i in range(4): a('v_mov_b32 v%d, -1', 36+i)
    a('v_lshrrev_b32 v6, 2, v0'); a('v_and_b32 v7, 3, v0')
    a('v_lshlrev_b32 v8, 13, v6'); a('v_lshl_add_u32 v8, v7, 6, v8'); a('s_lshl_b32 s12, s2, 8'); a('s_add_u32 s12, s12, 8192'); a('v_add_u32 v8, s12, v8')
    for i in range(4): a('buffer_store_dwordx4 %s, v8, s[36:39], 0 offen offset:%d sc1', vr(36), i*16)
    a('v_lshlrev_b32 v8, 14, v6'); a('v_lshl_add_u32 v8, v7, 7, v8'); a('s_lshl_b32 s12, s2, 9'); a('v_add_u32 v8, s12, v8')
    for i in range(8): a('buffer_store_dwordx4 %s, v8, s[40:43], 0 offen offset:%d sc1', vr(36), i*16)
    a('v_mul_u32_u24 v8, 896, v0'); a('s_mul_i32 s12, s2, 28'); a('v_add_u32 v8, s12, v8')
    a('buffer_load_dwordx4 %s, v8, s[84:87], 0 offen', vr(40))
    a('buffer_load_dwordx3 %s, v8, s[84:87], 0 offen offset:16', vr(44,3))
    a('v_mov_b32 v47, 0'); a('v_lshlrev_b32 v9, 5, v0'); a('s_lshl_b32 s12, s2, 8'); a('v_add_u32 v9, s12, v9')
    a('s_waitcnt vmcnt(0)')
    for i in range(7): a('v_min_u32 v%d, 0xfffffffe, v%d', 40+i, 40+i)
    a('v_cmp_gt_u32 vcc, 8, v0'); a('s_and_b64 exec, exec, vcc')
    a('buffer_store_dwordx4 %s, v9, s[36:39], 0 offen sc1', vr(40))
    a('buffer_store_dwordx4 %s, v9, s[36:39], 0 offen offset:16 sc1', vr(44))
    a('s_mov_b64 exec, -1')
    signal(a, 80, C_INIT, 36)
    waitc(a, 80, C_INIT, 32, 36, 12, 'ch_done', 2)
    TS(9)
    waitc(a, 80, C_M, 224, 36, 12, 'ch_done', 2)
    TS(10)
    a('v_cmp_gt_u32 s[46:47], 8, v3')
    a('v_cmp_gt_u32 s[48:49], 2, v4')
    a('v_cmp_gt_u32 s[50:51], 3, v4')
    a('s_nop 1')
    a('s_and_b64 s[44:45], s[46:47], s[48:49]')
    a('s_and_b64 s[50:51], s[46:47], s[50:51]')
    a('s_mul_i32 s9, s2, 14')
    a('s_mul_i32 s10, s7, 224')
    a('v_lshlrev_b32 v6, 5, v0')
    a('v_lshrrev_b32 v8, 3, v0'); a('v_mul_u32_u24 v8, 28, v8'); a('v_mul_u32_u24 v9, 912, v5'); a('v_add_u32 v8, v8, v9')
    a('v_mul_u32_u24 v10, 912, v5'); a('v_lshl_add_u32 v10, v4, 4, v10')
    a('v_mul_u32_u24 v11, 912, v5'); a('v_lshl_add_u32 v11, v4, 3, v11'); a('s_lshl_b32 s12, s10, 1'); a('v_add_u32 v11, s12, v11')
    a('v_lshlrev_b32 v12, 4, v2')
    a('s_lshl_b32 s12, s2, 9'); a('v_lshlrev_b32 v13, 6, v3'); a('v_add_u32 v13, s12, v13')
    a('v_lshl_add_u32 v14, v4, 3, v13'); a('v_add_u32 v14, 32, v14'); a('v_lshl_add_u32 v13, v4, 4, v13')
    a('s_lshr_b32 s12, s6, 2'); a('s_mul_i32 s12, s12, 28'); a('s_mul_i32 s14, s7, 14'); a('s_add_u32 s12, s12, s14'); a('s_lshl_b32 s12, s12, 10')
    a('s_and_b32 s14, s6, 3'); a('s_lshl_b32 s14, s14, 8'); a('s_add_u32 s12, s12, s14')
    a('v_lshlrev_b32 v15, 5, v3'); a('v_lshl_add_u32 v15, v4, 3, v15'); a('v_add_u32 v15, s12, v15')
    a('v_and_b32 v17, 1, v2'); a('v_bfe_u32 v18, v2, 1, 3')
    a('s_lshl_b32 s12, s8, 2'); a('v_add_u32 v16, s12, v4'); a('v_lshl_add_u32 v16, v16, 1, v17')
    a('v_lshlrev_b32 v16, 9, v16'); a('v_lshl_add_u32 v16, v18, 6, v16')
    a('s_mul_i32 s13, s8, 2560'); a('s_add_u32 s13, s13, %d', L_P)
    a('v_lshl_add_u32 v20, v4, 3, v18')
    a('v_lshlrev_b32 v19, 6, v20'); a('v_lshl_add_u32 v19, v17, 5, v19'); a('v_add_u32 v19, s13, v19')
    a('v_lshlrev_b32 v20, 4, v20'); a('v_add_u32 v20, s13, v20'); a('v_add_u32 v20, 2048, v20')
    a('v_lshlrev_b32 v21, 6, v5'); a('v_lshl_add_u32 v21, v4, 4, v21'); a('v_add_u32 v21, s13, v21')
    a('v_lshl_add_u32 v22, v4, 3, v5'); a('v_lshlrev_b32 v22, 4, v22'); a('v_add_u32 v22, s13, v22'); a('v_add_u32 v22, 2048, v22')
    a('s_mul_i32 s12, s6, 28672'); a('s_lshl_b32 s14, s7, 9'); a('s_add_u32 s12, s12, s14')
    a('v_lshlrev_b32 v23, 5, v3'); a('v_add_u32 v23, s12, v23')
    a('v_lshrrev_b32 v24, 1, v4'); a('v_lshl_add_u32 v23, v24, 10, v23'); a('v_and_b32 v24, 1, v4'); a('v_lshl_add_u32 v23, v24, 4, v23')
    a('s_mul_i32 s12, s8, 1792'); a('s_add_u32 s12, s12, s9'); a('v_add_u32 v24, s12, v3')
    a('v_lshlrev_b32 v24, 6, v24'); a('v_lshl_add_u32 v24, v4, 4, v24')
    a('v_lshlrev_b32 v25, 5, v3'); a('v_lshl_add_u32 v25, v4, 3, v25'); a('s_lshl_b32 s12, s2, 8'); a('v_add_u32 v25, s12, v25')
    a('s_lshl_b32 s12, s8, 10'); a('v_add_u32 v26, s12, v12')
    a('s_mov_b32 s60, 0x%x', 0x3db8aa3b)
    for r_ in (8, 10, 11, 26): a('v_add_u32 v%d, %d, v%d', r_, B2, r_)
    a('v_add_u32 v17, %d, v12', B2)
    for wv in range(1, 4):
        a('s_cmp_eq_u32 s8, %d', wv); a('s_cbranch_scc1 ch_w%d', wv)
    UA = 28
    FR = 36
    GF = 48
    ACC = 60
    TP = 76
    X = 84
    WV = 88
    for wv in range(4):
        a.label('ch_w%d' % wv)
        qt = QT[wv]; ut = UTL[wv]
        units = [('q', t) for t in qt] + [('u', t) for t in ut]
        def wreg(u, ks):
            return ar(u*56 + ks*4) if u < 4 else vr(WV + (u-4)*56 + ks*4)
        a('s_mul_i32 s12, s6, 448'); a('s_add_u32 s12, s12, s10'); a('v_add_u32 v27, s12, v3')
        a('v_mul_u32_u24 v27, 896, v27'); a('v_lshl_add_u32 v27, v4, 4, v27')
        for u, (kind, t) in enumerate(units):
            if kind == 'q':
                a('s_mov_b32 s12, %d', t*16*896)
                for ks in range(14):
                    a('buffer_load_dwordx4 %s, v27, s[16:19], s12 offen offset:%d sc1', wreg(u, ks), ks*64)
            else:
                k = u - len(qt)
                a('v_add_u32 v%d, %d, v3', X, 16*t)
                a('s_movk_i32 s12, 4682'); a('v_mul_u32_u24 v%d, s12, v%d', X+1, X); a('v_lshrrev_b32 v%d, 16, v%d', X+1, X+1)
                a('v_mul_u32_u24 v%d, 14, v%d', X+2, X+1); a('v_sub_u32 v%d, v%d, v%d', X+2, X, X+2)
                a('v_lshl_add_u32 v%d, v%d, 4, v%d', UA+k, X+1, X+2); a('v_lshlrev_b32 v%d, 4, v%d', UA+k, UA+k)
                a('v_lshl_add_u32 v%d, v4, 3, v%d', UA+k, UA+k); a('v_add_u32 v%d, %d, v%d', UA+k, L_ZM, UA+k)
                a('v_mul_u32_u24 v%d, 448, v%d', X+3, X+1); a('v_add_u32 v%d, v%d, v%d', X+3, X+3, X+2); a('v_add_u32 v%d, s9, v%d', X+3, X+3)
                a('v_lshlrev_b32 v%d, 4, v%d', UA+4+k, X+3); a('v_lshl_add_u32 v%d, v4, 3, v%d', UA+4+k, UA+4+k)
                a('v_add_u32 v%d, %d, v%d', X+3, 16*448, X+3); a('s_movk_i32 s12, 896'); a('v_mul_lo_u32 v%d, v%d, s12', X+3, X+3)
                a('v_lshl_add_u32 v%d, v4, 4, v%d', X+3, X+3)
                for ks in range(14):
                    a('buffer_load_dwordx4 %s, v%d, s[16:19], 0 offen offset:%d sc1', wreg(u, ks), X+3, ks*64)
                a('s_nop 0')
        for r_ in range(52, 60): a('s_mov_b32 s%d, 0', r_)
        GK = [[0,1,2,3],[4,5,6,7],[8,9,10],[11,12,13]][wv]
        def dma_list():
            L = []
            for ks in GK:
                def f(ks=ks):
                    a('s_add_u32 m0, s72, %d', ks*1024); a('s_add_u32 s13, s57, %d', ks*2048)
                    a('buffer_load_dwordx4 v23, s[20:23], s13 offen sc1 lds')
                L.append(f)
            for hl in range(4):
                def f(hl=hl):
                    a('s_add_u32 m0, s73, %d', hl*1024); a('s_add_u32 s13, s58, %d', hl*448*64)
                    a('buffer_load_dwordx4 v24, s[24:27], s13 offen sc1 lds')
                L.append(f)
            return L
        def dma_bases(par):
            a('s_mul_i32 s72, %s, %d', par, 14*1024); a('s_add_u32 s72, s72, %d', L_G)
            a('s_lshl_b32 s73, %s, 14', par); a('s_add_u32 s73, s73, %d', L_ZX + wv*4096)
        a('s_waitcnt vmcnt(0)')
        TS(11)
        waitc(a, 80, C_GX, 896, 36, 12, 'ch_done', 2)
        TS(12)
        RT(a, 1)
        dma_bases('s59')
        for f in dma_list(): f()
        a('s_waitcnt vmcnt(0)')
        LP = 'ch_loop%d' % wv
        a.label(LP)
        a('s_xor_b32 s12, s59, 1'); dma_bases('s12')
        a('s_add_u32 s57, s57, %d', 16*32*896); a('s_add_u32 s58, s58, %d', 16*448*64)
        a('s_add_u32 s12, s52, 1'); a('s_and_b32 s13, s12, 7'); a('s_cmp_eq_u32 s13, 0'); a('s_cbranch_scc0 %s_ng', LP)
        a('s_cmp_lt_u32 s12, 64'); a('s_cbranch_scc0 %s_ng', LP)
        a('s_lshr_b32 s12, s12, 1'); a('s_add_u32 s12, s12, %d', C_GX*4); a('v_mov_b32 v%d, s12', X+1); a('s_mov_b32 s61, 0')
        a.label(LP + '_wg')
        a('buffer_load_dword v%d, v%d, s[80:83], 0 offen sc1', X, X+1)
        a('s_add_u32 s61, s61, 1'); a('s_cmp_gt_u32 s61, %d', WSPIN); a('s_cbranch_scc1 ch_done')
        a('s_waitcnt vmcnt(0)'); a('v_readfirstlane_b32 s13, v%d', X); a('s_nop 3')
        a('s_cmp_ge_u32 s13, 896'); a('s_cbranch_scc0 %s_wg', LP)
        a.label(LP + '_ng')
        a('s_mov_b32 s61, 0')
        a.label(LP + '_pm')
        a('buffer_load_dwordx4 %s, v6, s[36:39], s53 offen sc1', vr(FR))
        a('buffer_load_dwordx4 %s, v6, s[36:39], s53 offen offset:16 sc1', vr(FR+4))
        a('s_add_u32 s61, s61, 1'); a('s_cmp_gt_u32 s61, %d', SPIN); a('s_cbranch_scc1 ch_done')
        a('s_waitcnt vmcnt(0)')
        a('v_max3_u32 v%d, v%d, v%d, v%d', X, FR, FR+1, FR+2); a('v_max3_u32 v%d, v%d, v%d, v%d', X+1, FR+3, FR+4, FR+5)
        a('v_max3_u32 v%d, v%d, v%d, v%d', X, X, FR+6, FR+7); a('v_max_u32 v%d, v%d, v%d', X, X, X+1)
        a('v_cmp_eq_u32 vcc, -1, v%d', X); a('s_cbranch_vccnz %s_pm', LP)
        TS(0)
        for q in range(3): a('ds_write2_b32 v8, v%d, v%d offset0:%d offset1:%d', FR+2*q, FR+2*q+1, 2*q, 2*q+1)
        a('ds_write_b32 v8, v%d offset:24', FR+6)
        a('s_waitcnt lgkmcnt(0)'); a('s_barrier')
        TS(1)
        hasG = (wv == 3)
        if hasG:
            a('s_mul_i32 s12, s59, %d', 14*1024); a('v_add_u32 v27, s12, v12')
        nrd = 2 if hasG else 1
        def rd(ks):
            a('ds_read_b128 %s, v10 offset:%d', vr(FR+4*(ks%3)), L_MEM - B2 + ks*64)
            if hasG: a('ds_read_b128 %s, v27 offset:%d', vr(GF+4*(ks%3)), L_G + ks*1024)
        rd(0); rd(1)
        DL = dma_list()
        for ks in range(14):
            if ks + 2 < 14: rd(ks+2); a('s_waitcnt lgkmcnt(%d)', 2*nrd)
            else: a('s_waitcnt lgkmcnt(%d)', (13-ks)*nrd)
            for u in range(len(qt)):
                acc = vr(ACC+4*u)
                a('v_mfma_f32_16x16x32_bf16 %s, %s, %s, %s', acc, wreg(u, ks), vr(FR+4*(ks%3)), '0' if ks == 0 else acc)
            if hasG:
                acc = vr(ACC+12)
                a('v_mfma_f32_16x16x32_bf16 %s, %s, %s, %s', acc, vr(GF+4*(ks%3)), vr(FR+4*(ks%3)), '0' if ks == 0 else acc)
            if ks < len(DL): DL[ks]()
        for u, t in enumerate(qt):
            a('ds_read_b64 %s, v11 offset:%d', vr(FR+2*u, 2), L_MEM - B2 + 32*t)
        if len(qt) == 3:
            a('ds_read_b64 %s, v11 offset:%d', vr(FR+6, 2), L_MEM - B2 + 32*qt[2])
        a.nop(8)
        if hasG:
            a('v_cvt_pk_bf16_f32 v%d, v%d, v%d', X, ACC+12, ACC+13); a('v_cvt_pk_bf16_f32 v%d, v%d, v%d', X+1, ACC+14, ACC+15)
            a('v_min_u32 v%d, 0xfffffffe, v%d', X, X); a('v_min_u32 v%d, 0xfffffffe, v%d', X+1, X+1)
            a('s_mov_b64 exec, s[46:47]')
            a('buffer_store_dwordx2 %s, v14, s[40:43], s54 offen %s', vr(X,2), sc)
            a('s_mov_b64 exec, -1')
        for u in range(len(qt)):
            a('v_cvt_pk_bf16_f32 v%d, v%d, v%d', TP+2*u, ACC+4*u, ACC+4*u+1)
            a('v_cvt_pk_bf16_f32 v%d, v%d, v%d', TP+2*u+1, ACC+4*u+2, ACC+4*u+3)
        if len(qt) == 3:
            a('v_mov_b32 v%d, 0', TP+6); a('v_mov_b32 v%d, 0', TP+7)
        a('s_waitcnt lgkmcnt(0)'); a('s_nop 1')
        a('v_mfma_f32_16x16x32_bf16 %s, %s, %s, 0', vr(ACC), vr(TP), vr(FR))
        a('v_mfma_f32_16x16x32_bf16 %s, %s, %s, %s', vr(ACC), vr(TP+4), vr(FR+4), vr(ACC))
        a.nop(8)
        a('ds_write_b128 v26, %s offset:%d', vr(ACC), L_RED - B2)
        a('s_waitcnt lgkmcnt(0)'); a('s_barrier')
        if wv == 0:
            for k in range(1, 4): a('ds_read_b128 %s, v17 offset:%d', vr(GF+4*(k-1)), L_RED - B2 + k*1024)
            a('s_waitcnt lgkmcnt(0)')
            for r_ in range(4):
                a('v_add_f32 v%d, v%d, v%d', ACC+r_, ACC+r_, GF+r_); a('v_add_f32 v%d, v%d, v%d', GF+4+r_, GF+4+r_, GF+8+r_)
            for r_ in range(4):
                a('v_add_f32 v%d, v%d, v%d', ACC+r_, ACC+r_, GF+4+r_); a('v_min_u32 v%d, 0xfffffffe, v%d', ACC+r_, ACC+r_)
            a('s_mov_b64 exec, s[44:45]')
            a('buffer_store_dwordx4 %s, v13, s[40:43], s54 offen %s', vr(ACC), sc)
            a('s_mov_b64 exec, -1')
        TS(2)
        a('s_mov_b64 exec, s[46:47]')
        for u, t in enumerate(qt):
            a('s_add_u32 s62, s55, %d', 1024*t)
            a('buffer_store_dwordx2 %s, v15, s[28:31], s62 offen sc1', vr(TP+2*u,2))
        a('s_mov_b64 exec, -1')
        def rd2(ks): a('ds_read_b128 %s, v10 offset:%d', vr(FR+4*(ks%3)), L_MEM - B2 + ks*64)
        rd2(0); rd2(1)
        nq = len(qt)
        for ks in range(14):
            if ks + 2 < 14: rd2(ks+2); a('s_waitcnt lgkmcnt(2)')
            else: a('s_waitcnt lgkmcnt(%d)', 13-ks)
            for k in range(len(ut)):
                acc = vr(ACC+4*k)
                a('v_mfma_f32_16x16x32_bf16 %s, %s, %s, %s', acc, vr(FR+4*(ks%3)), wreg(nq+k, ks), '0' if ks == 0 else acc)
        a.nop(8)
        for k in range(len(ut)):
            a('v_cvt_pk_bf16_f32 v%d, v%d, v%d', GF+2*k, ACC+4*k, ACC+4*k+1)
            a('v_cvt_pk_bf16_f32 v%d, v%d, v%d', GF+2*k+1, ACC+4*k+2, ACC+4*k+3)
        a('s_mov_b64 exec, s[48:49]')
        for k in range(len(ut)):
            a('ds_write_b64 v%d, %s', UA+k, vr(GF+2*k,2))
            a('buffer_store_dwordx2 %s, v%d, s[32:35], s56 offen sc1', vr(GF+2*k,2), UA+4+k)
        a('s_mov_b64 exec, -1')
        a('s_xor_b32 s59, s59, 1')
        a('s_waitcnt lgkmcnt(0)'); a('s_barrier')
        TS(3)
        D = FR
        a('s_mov_b32 s61, 0')
        a.label(LP + '_ps')
        for q in range(4):
            a('buffer_load_dwordx4 %s, v16, s[40:43], s54 offen offset:%d sc1', vr(D+4*q), q*16)
        a('s_add_u32 s61, s61, 1'); a('s_cmp_gt_u32 s61, %d', SPIN); a('s_cbranch_scc1 ch_done')
        a('s_waitcnt vmcnt(0)')
        a('v_max3_u32 v%d, v%d, v%d, v%d', X, D, D+1, D+2)
        for q in range(6): a('v_max3_u32 v%d, v%d, v%d, v%d', X, X, D+3+2*q, D+4+2*q)
        a('v_max_u32 v%d, v%d, v%d', X, X, D+15)
        a('v_cmp_eq_u32 vcc, -1, v%d', X); a('s_cbranch_vccnz %s_ps', LP)
        TS(4)
        E = 52
        dpp = 'quad_perm:[1,0,3,2] row_mask:0xf bank_mask:0xf'
        for q in range(8):
            a('v_lshlrev_b32 v%d, 16, v%d', E+2*q, D+8+q); a('v_and_b32 v%d, 0xffff0000, v%d', E+2*q+1, D+8+q)
        for q in range(8):
            a('v_add_f32_dpp v%d, v%d, v%d %s', D+8+q, D+q, D+q, dpp)
        S = D+8
        a('v_max3_f32 v%d, v%d, v%d, v%d', X, S, S+1, S+2)
        a('v_max3_f32 v%d, v%d, v%d, v%d', X, X, S+3, S+4); a('v_max3_f32 v%d, v%d, v%d, v%d', X, X, S+5, S+6)
        a('v_max3_f32 v%d, v%d, v%d, v%d', X, X, S+7, E)
        for q in range(7): a('v_max3_f32 v%d, v%d, v%d, v%d', X, X, E+1+2*q, E+2+2*q)
        a('v_max_f32 v%d, v%d, v%d', X, X, E+15)
        a('s_nop 1')
        a('v_max_f32_dpp v%d, v%d, v%d %s', X+1, X, X, dpp)
        a('v_mul_f32 v%d, s60, v%d', X+1, X+1)
        for q in range(8):
            a('v_fma_f32 v%d, v%d, s60, -v%d', S+q, S+q, X+1)
        for q in range(16):
            a('v_fma_f32 v%d, v%d, s60, -v%d', E+q, E+q, X+1)
        for q in range(8): a('v_exp_f32 v%d, v%d', S+q, S+q)
        for q in range(16): a('v_exp_f32 v%d, v%d', E+q, E+q)
        a('s_nop 0')
        a('v_add_f32 v%d, v%d, v%d', X, E, E+1)
        for q in range(2, 16): a('v_add_f32 v%d, v%d, v%d', X, X, E+q)
        a('v_add_f32 v%d, v%d, v%d', X+1, S, S+1)
        for q in range(2, 8): a('v_add_f32 v%d, v%d, v%d', X+1, X+1, S+q)
        a('s_nop 0')
        a('v_add_f32_dpp v%d, v%d, v%d %s', X+2, X, X, dpp)
        a('v_add_f32 v%d, v%d, v%d', X+2, X+2, X+1)
        a('v_rcp_f32 v%d, v%d', X+2, X+2); a('s_nop 0')
        for q in range(8): a('v_mul_f32 v%d, v%d, v%d', S+q, S+q, X+2)
        for q in range(16): a('v_mul_f32 v%d, v%d, v%d', E+q, E+q, X+2)
        PK = 68
        for q in range(8): a('v_cvt_pk_bf16_f32 v%d, v%d, v%d', PK+q, E+2*q, E+2*q+1)
        for q in range(4): a('v_cvt_pk_bf16_f32 v%d, v%d, v%d', PK+8+q, S+2*q, S+2*q+1)
        a('ds_write_b128 v19, %s', vr(PK)); a('ds_write_b128 v19, %s offset:16', vr(PK+4)); a('ds_write_b128 v20, %s', vr(PK+8))
        TS(5)
        a('s_xor_b32 s12, s59, 1'); a('s_lshl_b32 s12, s12, 14'); a('v_add_u32 v27, s12, v12')
        ZF = 36; PF_ = 56
        a('s_waitcnt lgkmcnt(0)')
        for hl in range(4):
            a('ds_read_b128 %s, v27 offset:%d', vr(ZF+4*hl), L_ZX + wv*4096 + hl*1024)
            a('ds_read_b128 %s, v21 offset:%d', vr(PF_+4*hl), hl*512)
        a('ds_read_b128 %s, v17 offset:%d', vr(ZF+16), L_ZM - B2 + wv*1024)
        a('ds_read_b128 %s, v22', vr(PF_+16))
        for k in range(5):
            a('s_waitcnt lgkmcnt(%d)', 8-2*k)
            a('v_mfma_f32_16x16x32_bf16 %s, %s, %s, %s', vr(X), vr(ZF+4*k), vr(PF_+4*k), '0' if k == 0 else vr(X))
        a.nop(8)
        a('ds_write_b128 v26, %s offset:%d', vr(X), L_RED2 - B2)
        a('s_waitcnt lgkmcnt(0)'); a('s_barrier')
        a('s_add_u32 s53, s53, 8192')
        if wv == 0:
            for k in range(1, 4): a('ds_read_b128 %s, v17 offset:%d', vr(GF+4*(k-1)), L_RED2 - B2 + k*1024)
            a('s_waitcnt lgkmcnt(0)')
            for r_ in range(4):
                a('v_add_f32 v%d, v%d, v%d', X+r_, X+r_, GF+r_); a('v_add_f32 v%d, v%d, v%d', GF+4+r_, GF+4+r_, GF+8+r_)
            for r_ in range(4): a('v_add_f32 v%d, v%d, v%d', X+r_, X+r_, GF+4+r_)
            a('v_cvt_pk_bf16_f32 v%d, v%d, v%d', GF, X, X+1); a('v_cvt_pk_bf16_f32 v%d, v%d, v%d', GF+1, X+2, X+3)
            a('v_min_u32 v%d, 0xfffffffe, v%d', GF, GF); a('v_min_u32 v%d, 0xfffffffe, v%d', GF+1, GF+1)
            a('s_mov_b64 exec, s[46:47]')
            a('buffer_store_dwordx2 %s, v25, s[36:39], s53 offen %s', vr(GF,2), sc)
            a('s_mov_b64 exec, -1')
        TS(6)
        a('s_add_u32 s52, s52, 1'); a('s_add_u32 s54, s54, 16384'); a('s_add_u32 s55, s55, %d', 16*8*896); a('s_add_u32 s56, s56, %d', 16*448*16)
        a('s_cmp_lt_u32 s52, 64'); a('s_cbranch_scc1 %s', LP)
        a('s_branch ch_done')
    a.label('ch_done')
    RT(a, 2)
    a('s_endpgm')

NEG = 0xf149f2ca
def k_bfin(a):

    a('s_load_dwordx2 s[4:5], s[0:1], %d', KA['ws'])
    a('s_load_dwordx2 s[6:7], s[0:1], %d', KA['B_x'])
    a('s_load_dwordx2 s[8:9], s[0:1], %d', KA['out'])
    a('v_lshrrev_b32 v1, 6, v0'); a('v_and_b32 v2, 63, v0'); a('s_nop 0')
    a('v_readfirstlane_b32 s10, v1')
    a('v_and_b32 v3, 31, v2'); a('v_lshrrev_b32 v4, 5, v2')
    perm(a, 5, 3, 6)
    a('s_waitcnt lgkmcnt(0)')
    a.srd(12, 6, 7, 2048*896); a.srd(16, 4, 5, SZ_GX, WS_GX); a.srd(20, 4, 5, SZ_VW, WS_VW)
    a.srd(24, 4, 5, SZ_TM, WS_TM); a.srd(28, 4, 5, SZ_UT, WS_UT); a.srd(32, 8, 9, 2048*1792); a.srd(76, 4, 5, SZ_MB, WS_MB)
    a('s_lshl_b32 s11, s100, 5'); a('v_add_u32 v6, s11, v3'); a('v_mul_u32_u24 v6, 896, v6'); a('v_lshl_add_u32 v6, v4, 4, v6')
    for ks in range(28):
        a('buffer_load_dwordx4 %s, v6, s[12:15], 0 offen offset:%d', ar(4*ks), ks*32)
    a('v_lshlrev_b32 v7, 5, v5'); a('v_lshl_add_u32 v7, v4, 4, v7')
    a('v_lshlrev_b32 v8, 5, v3'); a('v_lshl_add_u32 v8, v4, 4, v8')
    a('s_lshl_b32 s36, s100, 2'); a('s_add_u32 s36, s36, s10')
    a('s_mul_i32 s37, s36, 28672')
    a('s_mul_i32 s38, s36, %d', 4*28672)
    B0 = 16; B1A = 112; ACC = 128
    def buf(b, ks): return vr(B0+4*ks) if b == 0 else ar(B1A+4*ks)
    def ld(stream, b):
        for ks in range(28):
            if ks % 4 == 0:
                if stream == 0: a('s_add_u32 s39, s37, %d', ks*1024)
                else: a('s_add_u32 s39, s38, %d', (stream-1)*28672 + ks*1024)
            if stream == 0: a('buffer_load_dwordx4 %s, v8, s[24:27], s39 offen offset:%d sc1', buf(b, ks), (ks%4)*1024)
            else: a('buffer_load_dwordx4 %s, v7, s[16:19], s39 offen offset:%d sc1', buf(b, ks), (ks%4)*1024)
    a('v_lshlrev_b32 v9, 3, v4'); a('v_sub_u32 v9, v3, v9')
    for i in range(16):
        q, r_ = i >> 2, i & 3
        a('v_cmp_le_i32 s[%d:%d], %d, v9', 40+2*i, 41+2*i, 16*(q>>1) + 4*(q&1) + r_)
    a('s_mov_b32 s72, 0x%x', 0x3db8aa3b)
    a('v_mov_b32 v10, 0x%x', NEG)
    dbg_srd(a, 80, 74)
    a('s_lshr_b32 s11, s100, 3'); a('s_lshl_b32 s11, s11, 2'); a('s_add_u32 s11, s11, %d', C_GX*4); a('v_mov_b32 v13, s11'); a('s_mov_b32 s74, 0')
    a.label('bf_wg')
    a('buffer_load_dword v12, v13, s[80:83], 0 offen sc1')
    a('s_add_u32 s74, s74, 1'); a('s_cmp_gt_u32 s74, %d', WSPIN); a('s_cbranch_scc1 wk_done')
    a('s_waitcnt vmcnt(0)'); a('v_readfirstlane_b32 s75, v12'); a('s_nop 3')
    a('s_cmp_ge_u32 s75, 896'); a('s_cbranch_scc1 bf_g'); a('s_sleep 8'); a('s_branch bf_wg')
    a.label('bf_g')
    waitc(a, 80, C_INIT, 32, 12, 74, 'wk_done')
    order = [1, 2, 3, 4, 0]
    ld(1, 0); ld(2, 1)
    for oi, st in enumerate(order):
        b = oi % 2
        a('s_waitcnt vmcnt(28)' if oi < 3 else 's_waitcnt vmcnt(0)')
        for ks in range(28):
            acc = vr(ACC+16*st, 16)
            a('v_mfma_f32_32x32x16_bf16 %s, %s, %s, %s', acc, buf(b, ks), ar(4*ks), '0' if ks == 0 else acc)
        if oi + 2 < 4:
            a('s_nop 0'); ld(order[oi+2], b)
        if oi == 3:
            a('s_add_u32 s11, s100, 1'); a('s_lshl_b32 s11, s11, 13'); a('v_lshlrev_b32 v13, 8, v3'); a('s_mov_b32 s74, 0')
            a.label('bf_wm')
            a('buffer_load_dword v12, v13, s[76:79], s11 offen sc1')
            a('s_add_u32 s74, s74, 1'); a('s_cmp_gt_u32 s74, %d', WSPIN); a('s_cbranch_scc1 wk_done')
            a('s_waitcnt vmcnt(0)')
            a('v_cmp_eq_u32 vcc, -1, v12'); a('s_cbranch_vccz bf_m'); a('s_sleep 16'); a('s_branch bf_wm')
            a.label('bf_m')
            ld(0, 0)
    a.nop(16)
    a('v_lshlrev_b32 v11, 4, v2')
    a('s_lshl_b32 s11, s10, 13'); a('v_add_u32 v12, s11, v11')
    a('s_lshl_b32 s11, s10, 11'); a('v_add_u32 v13, s11, v11')
    T = 16; PMR = 40
    for hl in range(4):
        S = ACC + 16*(hl+1); Mm = ACC + 4*hl
        for i in range(16):
            a('v_cndmask_b32_e64 v%d, v10, v%d, s[%d:%d]', S+i, S+i, 40+2*i, 41+2*i)
        a('v_max3_f32 v%d, v%d, v%d, v%d', T, S, S+1, S+2)
        for i in range(6): a('v_max3_f32 v%d, v%d, v%d, v%d', T, T, S+3+2*i, S+4+2*i)
        a('v_max3_f32 v%d, v%d, v%d, v%d', T, T, S+15, Mm)
        a('v_max3_f32 v%d, v%d, v%d, v%d', T, T, Mm+1, Mm+2); a('v_max_f32 v%d, v%d, v%d', T, T, Mm+3)
        a('v_mov_b32 v%d, v%d', T+1, T); a('s_nop 1')
        a('v_permlane32_swap_b32 v%d, v%d', T, T+1); a('s_nop 1')
        a('v_max_f32 v%d, v%d, v%d', T, T, T+1)
        a('v_mul_f32 v%d, s72, v%d', T, T)
        for i in range(16): a('v_fma_f32 v%d, v%d, s72, -v%d', S+i, S+i, T)
        for i in range(4): a('v_fma_f32 v%d, v%d, s72, -v%d', Mm+i, Mm+i, T)
        for i in range(16): a('v_exp_f32 v%d, v%d', S+i, S+i)
        for i in range(4): a('v_exp_f32 v%d, v%d', Mm+i, Mm+i)
        a('s_nop 0')
        a('v_add_f32 v%d, v%d, v%d', T, S, S+1)
        for i in range(2, 16): a('v_add_f32 v%d, v%d, v%d', T, T, S+i)
        for i in range(4): a('v_add_f32 v%d, v%d, v%d', T, T, Mm+i)
        a('v_mov_b32 v%d, v%d', T+1, T); a('s_nop 1')
        a('v_permlane32_swap_b32 v%d, v%d', T, T+1); a('s_nop 1')
        a('v_add_f32 v%d, v%d, v%d', T, T, T+1)
        a('v_rcp_f32 v%d, v%d', T, T); a('s_nop 0')
        for i in range(16): a('v_mul_f32 v%d, v%d, v%d', S+i, S+i, T)
        for i in range(4): a('v_mul_f32 v%d, v%d, v%d', Mm+i, Mm+i, T)
        for i in range(8): a('v_cvt_pk_bf16_f32 v%d, v%d, v%d', T+8+i, S+2*i, S+2*i+1)
        for i in range(2): a('v_cvt_pk_bf16_f32 v%d, v%d, v%d', PMR+2*hl+i, Mm+2*i, Mm+2*i+1)
        a('ds_write_b128 v12, %s offset:%d', vr(T+8), hl*2048); a('ds_write_b128 v12, %s offset:%d', vr(T+12), hl*2048+1024)
        a('s_nop 1')
    for hp in range(2): a('ds_write_b128 v13, %s offset:%d', vr(PMR+4*hp), 32768 + hp*1024)
    a('s_waitcnt lgkmcnt(0)'); a('s_barrier')
    for i in range(40):
        a('ds_read_b128 %s, v11 offset:%d', ar(4*i), i*1024)
    a('s_mul_i32 s11, s100, %d', 16*448); a('s_lshl_b32 s36, s10, 5'); a('s_add_u32 s11, s11, s36')
    a('v_add_u32 v8, s11, v5')
    a('v_lshlrev_b32 v6, 6, v8'); a('v_lshl_add_u32 v6, v4, 4, v6')
    a('v_lshlrev_b32 v7, 4, v8'); a('v_lshl_add_u32 v7, v4, 3, v7')
    a('s_lshl_b32 s11, s100, 5'); a('v_add_u32 v9, s11, v3'); a('v_mul_u32_u24 v9, 1792, v9'); a('v_lshl_add_u32 v9, v4, 4, v9')
    a('s_lshl_b32 s36, s10, 6'); a('s_add_u32 s36, s36, 896'); a('v_add_u32 v9, s36, v9')
    OB = [16, 96]; OA = 176; OT = 192
    def ld2(it, hh, b):
        for h8 in range(8):
            h = 8*hh + h8
            a('s_mov_b32 s39, %d', h*448*64 + it*128*64)
            for k2 in range(2):
                a('buffer_load_dwordx4 %s, v6, s[20:23], s39 offen offset:%d sc1', vr(OB[b]+8*h8+4*k2), k2*32)
            a('s_mov_b32 s39, %d', h*448*16 + it*128*16)
            a('buffer_load_dwordx2 %s, v7, s[28:31], s39 offen sc1', vr(OB[b]+64+2*h8, 2))
    units = [(it, hh) for it in range(4) for hh in range(2)]
    ld2(0, 0, 0)
    a('s_waitcnt lgkmcnt(0)')
    for ui, (it, hh) in enumerate(units):
        b = ui % 2
        if it == 3 and hh == 0:
            a('s_cmp_ge_u32 s10, 2'); a('s_cbranch_scc1 wk_loop')
        if ui + 1 < len(units):
            ld2(units[ui+1][0], units[ui+1][1], 1-b); a('s_waitcnt vmcnt(24)')
        else:
            a('s_waitcnt vmcnt(0)')
        acc = vr(OA, 16)
        for h8 in range(8):
            h = 8*hh + h8
            for k2 in range(2):
                a('v_mfma_f32_32x32x16_bf16 %s, %s, %s, %s', acc, vr(OB[b]+8*h8+4*k2), ar(8*h+4*k2), '0' if (hh == 0 and h8 == 0 and k2 == 0) else acc)
        for hp in range(4):
            a('v_mfma_f32_32x32x16_bf16 %s, %s, %s, %s', acc, vr(OB[b]+64+4*hp), ar(128+4*(4*hh+hp)), acc)
        if hh == 1:
            a.nop(16)
            for i in range(8): a('v_cvt_pk_bf16_f32 v%d, v%d, v%d', OT+i, OA+2*i, OA+2*i+1)
            for qq in range(2):
                a('buffer_store_dwordx4 %s, v9, s[32:35], 0 offen offset:%d', vr(OT+4*qq), it*256 + qq*32)
            a('s_nop 1')
    a('s_branch wk_loop')

def k_fold(a):
    a('s_load_dwordx4 s[4:7], s[0:1], %d', KA['A_wqkv'])
    a('s_load_dwordx2 s[8:9], s[0:1], %d', KA['A_wo'])
    a('s_load_dwordx2 s[10:11], s[0:1], %d', KA['ws'])
    a('v_lshrrev_b32 v1, 6, v0'); a('v_and_b32 v2, 63, v0'); a('s_nop 0')
    a('v_readfirstlane_b32 s3, v1')
    a('v_and_b32 v3, 31, v2'); a('v_lshrrev_b32 v4, 5, v2')
    a('s_waitcnt lgkmcnt(0)')
    a.srd(12, 4, 5, 448*1344*2); a.srd(16, 6, 7, 16*784*2); a.srd(20, 8, 9, 448*448*2)
    a.srd(24, 10, 11, SZ_WA, WS_WA); a.srd(28, 10, 11, SZ_WOT, WS_WOT)
    a('v_mov_b32 v9, 0x7ffffff0')
    a('s_cmp_ge_u32 s100, 224'); a('s_cbranch_scc1 fo_wo')
    a('s_cmp_ge_u32 s100, 112'); a('s_cbranch_scc1 fo_v')
    a('s_lshl_b32 s32, s100, 2'); a('s_add_u32 s32, s32, s3')
    a('s_mul_i32 s33, s32, 4682'); a('s_lshr_b32 s33, s33, 16')
    a('s_mul_i32 s34, s33, 14'); a('s_sub_u32 s34, s32, s34')
    a('s_lshr_b32 s35, s33, 4'); a('s_and_b32 s36, s33, 15')
    perm(a, 5, 3, 6)
    a('s_lshl_b32 s37, s34, 5'); a('v_add_u32 v6, s37, v5'); a('v_mul_u32_u24 v6, 2688, v6')
    a('s_mul_i32 s37, s35, 896'); a('s_mul_i32 s38, s36, 56'); a('s_add_u32 s37, s37, s38'); a('v_add_u32 v6, s37, v6')
    a('v_lshl_add_u32 v6, v4, 4, v6')
    for ks in range(2):
        a('buffer_load_dwordx4 %s, v6, s[12:15], 0 offen offset:%d', vr(16+4*ks), ks*32)
    a('s_mul_i32 s37, s36, 1568'); a('v_lshlrev_b32 v7, 1, v3'); a('v_add_u32 v7, s37, v7')
    a('v_mul_u32_u24 v8, 448, v4'); a('v_add_u32 v7, v7, v8')
    a('v_cmp_gt_u32 vcc, 28, v3'); a('s_nop 1'); a('v_cndmask_b32 v7, v9, v7, vcc')
    a('v_cmp_eq_u32 vcc, 0, v4'); a('s_nop 1'); a('v_cndmask_b32 v8, v9, v7, vcc')
    for ks in range(2):
        for q in range(8):
            a('buffer_load_ushort v%d, v%d, s[16:19], 0 offen offset:%d', 32+8*ks+q, 8 if (ks == 1 and q >= 4) else 7, (16*ks+q)*56)
    a('s_waitcnt vmcnt(0)')
    for i in range(8): a('v_lshl_or_b32 v%d, v%d, 16, v%d', 24+i, 32+2*i+1, 32+2*i)
    a('s_nop 1')
    a('v_mfma_f32_32x32x16_bf16 %s, %s, %s, 0', vr(48,16), vr(16), vr(24))
    a('v_mfma_f32_32x32x16_bf16 %s, %s, %s, %s', vr(48,16), vr(20), vr(28), vr(48,16))
    a.nop(18)
    for i in range(8): a('v_cvt_pk_bf16_f32 v%d, v%d, v%d', 64+i, 48+2*i, 49+2*i)
    a('s_lshl_b32 s37, s33, 5'); a('v_add_u32 v6, s37, v3'); a('v_mul_u32_u24 v6, 896, v6')
    a('s_lshl_b32 s37, s34, 6'); a('v_add_u32 v6, s37, v6'); a('v_lshl_add_u32 v6, v4, 4, v6')
    for qq in range(2):
        a('buffer_store_dwordx4 %s, v6, s[24:27], 0 offen offset:%d sc1', vr(64+4*qq), qq*32)
    a('s_branch fo_done')
    a.label('fo_v')
    a('s_sub_u32 s32, s100, 112'); a('s_lshl_b32 s32, s32, 8'); a('v_add_u32 v5, s32, v0')
    a('v_and_b32 v6, 511, v5'); a('v_lshrrev_b32 v7, 9, v5')
    a('v_lshrrev_b32 v8, 5, v6'); a('v_mul_u32_u24 v8, 28, v8'); a('v_add_u32 v8, v8, v3')
    a('v_mul_u32_u24 v10, %d, v7', 8*1344); a('v_add_u32 v8, v8, v10'); a('v_add_u32 v8, 896, v8'); a('v_lshlrev_b32 v8, 1, v8')
    a('v_cmp_gt_u32 vcc, 28, v3'); a('s_nop 1'); a('v_cndmask_b32 v8, v9, v8, vcc')
    a('s_mov_b32 s33, 0')
    for q in range(8):
        a('buffer_load_ushort v%d, v8, s[12:15], s33 offen', 32+q)
        a('s_add_u32 s33, s33, 2688')
    a('v_add_u32 v6, 1024, v6'); a('v_mul_u32_u24 v6, 896, v6'); a('v_lshl_add_u32 v6, v7, 4, v6')
    a('s_waitcnt vmcnt(0)')
    for i in range(4): a('v_lshl_or_b32 v%d, v%d, 16, v%d', 24+i, 32+2*i+1, 32+2*i)
    a('buffer_store_dwordx4 %s, v6, s[24:27], 0 offen sc1', vr(24))
    a('s_branch fo_done')
    a.label('fo_wo')
    a('s_sub_u32 s32, s100, 224'); a('s_lshl_b32 s32, s32, 2'); a('s_add_u32 s32, s32, s3')
    a('s_mov_b32 s33, 0x24924925'); a('s_mul_hi_u32 s33, s32, s33')
    a('s_mul_i32 s34, s33, 7'); a('s_sub_u32 s34, s32, s34')
    a('s_lshr_b32 s35, s33, 2'); a('s_and_b32 s36, s33, 3')
    a('s_lshl_b32 s37, s34, 6'); a('v_add_u32 v5, s37, v2')
    a('s_mul_i32 s37, s35, 28'); a('s_lshl_b32 s38, s36, 3'); a('s_add_u32 s37, s37, s38'); a('s_mul_i32 s37, s37, 896')
    a('v_lshlrev_b32 v6, 1, v5'); a('v_add_u32 v6, s37, v6')
    a('s_cmp_eq_u32 s36, 3'); a('s_cselect_b64 vcc, -1, 0'); a('v_cndmask_b32 v7, v6, v9, vcc')
    a('s_movk_i32 s39, 3584')
    for q in range(8):
        a('buffer_load_ushort v%d, v%d, s[20:23], %s offen offset:%d', 32+q, 7 if q >= 4 else 6, 's39' if q >= 4 else '0', (q&3)*896)
    a('v_lshlrev_b32 v8, 10, v5'); a('s_lshl_b32 s37, s33, 4'); a('v_add_u32 v8, s37, v8')
    a('s_waitcnt vmcnt(0)')
    for i in range(4): a('v_lshl_or_b32 v%d, v%d, 16, v%d', 24+i, 32+2*i+1, 32+2*i)
    a('buffer_store_dwordx4 %s, v8, s[28:31], 0 offen sc1', vr(24))
    a.label('fo_done')
    dbg_srd(a, 80, 74)
    signal(a, 80, C_FOLD, 12)
    a('s_branch wk_loop')

LOG2E = 0x3fb8aa3b
def k_a1(a):
    dbg_srd(a, 80, 74)
    waitc(a, 80, C_FOLD, 336, 12, 74, 'wk_done')
    waitc(a, 80, C_M, 224, 12, 74, 'wk_done')
    a('s_load_dwordx2 s[4:5], s[0:1], %d', KA['ws'])
    a('s_load_dwordx2 s[6:7], s[0:1], %d', KA['A_x'])
    a('v_lshrrev_b32 v1, 6, v0'); a('v_and_b32 v2, 63, v0'); a('s_nop 0')
    a('v_readfirstlane_b32 s10, v1')
    a('v_and_b32 v3, 31, v2'); a('v_lshrrev_b32 v4, 5, v2')
    a('s_and_b32 s8, s100, 15'); a('s_lshr_b32 s9, s100, 4')
    a('s_waitcnt lgkmcnt(0)')
    a.srd(12, 6, 7, 2048*896); a.srd(16, 4, 5, SZ_WA, WS_WA); a.srd(20, 4, 5, SZ_KV, WS_KV)
    a('s_lshl_b32 s11, s9, 2'); a('s_add_u32 s11, s11, s10'); a('s_lshl_b32 s11, s11, 5')
    a('v_add_u32 v6, s11, v3'); a('v_mul_u32_u24 v6, 896, v6'); a('v_lshl_add_u32 v6, v4, 4, v6')
    a('s_lshl_b32 s11, s8, 5'); a('s_add_u32 s11, s11, 512'); a('v_add_u32 v7, s11, v3'); a('v_mul_u32_u24 v7, 896, v7'); a('v_lshl_add_u32 v7, v4, 4, v7')
    a('s_mov_b32 s24, %d', 512*896)
    XF = 16
    for ks in range(28):
        a('buffer_load_dwordx4 %s, v6, s[12:15], 0 offen offset:%d', vr(XF+4*ks), ks*32)
        a('buffer_load_dwordx4 %s, v7, s[16:19], 0 offen offset:%d sc1', ar(4*ks), ks*32)
        a('buffer_load_dwordx4 %s, v7, s[16:19], s24 offen offset:%d sc1', ar(112+4*ks), ks*32)
    P = 128; V = 144; MX = 160; MN = 176; T = 192; EP = 208; EN = 224
    a('v_cmp_gt_u32 s[26:27], 28, v3'); a('v_cmp_eq_u32 s[28:29], 28, v3')
    a('v_mov_b32 v8, 0x%x', NEG); a('v_mov_b32 v9, 0x%x', NEG ^ 0x80000000); a('s_mov_b32 s30, 0x%x', LOG2E)
    a('v_mov_b32 v10, 1.0'); a('v_mov_b32 v11, 0')
    for ks in range(28):
        if ks % 4 == 0: a('s_waitcnt vmcnt(%d)', min(63, max(0, 84 - 3*(ks+4))))
        a('v_mfma_f32_32x32x16_bf16 %s, %s, %s, %s', vr(P,16), vr(XF+4*ks), ar(4*ks), '0' if ks == 0 else vr(P,16))
        a('v_mfma_f32_32x32x16_bf16 %s, %s, %s, %s', vr(V,16), vr(XF+4*ks), ar(112+4*ks), '0' if ks == 0 else vr(V,16))
    a.nop(18)
    def allred(R, op):
        for sh in (8, 4, 2, 1):
            for i in range(16):
                a('%s_dpp v%d, v%d, v%d row_ror:%d row_mask:0xf bank_mask:0xf', op, R+i, R+i, R+i, sh)
        for i in range(16): a('v_mov_b32 v%d, v%d', T+i, R+i)
        for i in range(16): a('v_permlane16_swap_b32 v%d, v%d', R+i, T+i)
        for i in range(16): a('%s v%d, v%d, v%d', op, R+i, R+i, T+i)
    for i in range(16):
        a('v_cndmask_b32_e64 v%d, v8, v%d, s[26:27]', MX+i, P+i)
        a('v_cndmask_b32_e64 v%d, v9, v%d, s[26:27]', MN+i, P+i)
    allred(MX, 'v_max_f32'); allred(MN, 'v_min_f32')
    for i in range(16):
        a('v_sub_f32 v%d, v%d, v%d', EP+i, P+i, MX+i); a('v_sub_f32 v%d, v%d, v%d', EN+i, MN+i, P+i)
    for i in range(16):
        a('v_mul_f32 v%d, s30, v%d', EP+i, EP+i); a('v_mul_f32 v%d, s30, v%d', EN+i, EN+i)
    for i in range(16):
        a('v_exp_f32 v%d, v%d', EP+i, EP+i); a('v_exp_f32 v%d, v%d', EN+i, EN+i)
    for i in range(16):
        a('v_cndmask_b32_e64 v%d, v11, v%d, s[26:27]', EP+i, EP+i); a('v_cndmask_b32_e64 v%d, v11, v%d, s[26:27]', EN+i, EN+i)
    for i in range(16):
        a('v_mov_b32 v%d, v%d', MX+i, EP+i); a('v_mov_b32 v%d, v%d', MN+i, EN+i)
    allred(MX, 'v_add_f32'); allred(MN, 'v_add_f32')
    for i in range(16):
        a('v_rcp_f32 v%d, v%d', MX+i, MX+i); a('v_rcp_f32 v%d, v%d', MN+i, MN+i)
    for i in range(16):
        a('v_mul_f32 v%d, v%d, v%d', EP+i, EP+i, MX+i); a('v_mul_f32 v%d, v%d, v%d', EN+i, EN+i, MN+i)
        a('v_cndmask_b32_e64 v%d, v%d, v10, s[28:29]', V+i, V+i)
    FP = 16; FN = 24; FV = 32
    for i in range(8):
        a('v_cvt_pk_bf16_f32 v%d, v%d, v%d', FP+i, EP+2*i, EP+2*i+1)
        a('v_cvt_pk_bf16_f32 v%d, v%d, v%d', FN+i, EN+2*i, EN+2*i+1)
        a('v_cvt_pk_bf16_f32 v%d, v%d, v%d', FV+i, V+2*i, V+2*i+1)
    a('s_nop 1')
    K0 = 48
    for sg, F in enumerate((FP, FN)):
        for k2 in range(2):
            acc = vr(K0+16*sg, 16)
            a('v_mfma_f32_32x32x16_bf16 %s, %s, %s, %s', acc, vr(FV+4*k2), vr(F+4*k2), '0' if k2 == 0 else acc)
    a.nop(18)
    a('v_lshlrev_b32 v12, 4, v2'); a('s_lshl_b32 s11, s10, 10'); a('v_add_u32 v13, s11, v12')
    for rq in range(8): a('ds_write_b128 v13, %s offset:%d', vr(K0+4*rq), rq*4096)
    a('s_waitcnt lgkmcnt(0)'); a('s_barrier')
    a('s_lshl_b32 s11, s10, 13'); a('v_add_u32 v13, s11, v12')
    for e in range(2):
        for w in range(4): a('ds_read_b128 %s, v13 offset:%d', vr(80+16*e+4*w), e*4096 + w*1024)
    a('s_lshl_b32 s11, s8, 5'); a('s_and_b32 s24, s10, 1'); a('s_lshl_b32 s24, s24, 4'); a('s_add_u32 s11, s11, s24'); a('s_lshl_b32 s11, s11, 8')
    a('s_lshr_b32 s24, s10, 1'); a('s_lshl_b32 s24, s24, 7'); a('s_add_u32 s11, s11, s24')
    a('v_lshlrev_b32 v14, 10, v4'); a('v_lshl_add_u32 v14, v3, 2, v14'); a('v_add_u32 v14, s11, v14')
    a('s_waitcnt lgkmcnt(0)')
    for e in range(2):
        for r_ in range(4):
            b = 80+16*e+r_
            a('v_add_f32 v%d, v%d, v%d', b, b, b+4); a('v_add_f32 v%d, v%d, v%d', b+8, b+8, b+12); a('v_add_f32 v%d, v%d, v%d', b, b, b+8)
    for e in range(2):
        for r_ in range(4):
            a('buffer_atomic_add_f32 v%d, v14, s[20:23], 0 offen offset:%d sc1', 80+16*e+r_, (8*e+r_)*256)
    signal(a, 80, C_A1, 12)
    a('s_branch wk_loop')

def k_a2(a):
    dbg_srd(a, 80, 74)
    waitc(a, 80, C_FOLD, 336, 12, 74, 'wk_done')
    a('s_load_dwordx2 s[4:5], s[0:1], %d', KA['ws'])
    a('s_load_dwordx2 s[6:7], s[0:1], %d', KA['A_x'])
    a('s_load_dwordx2 s[8:9], s[0:1], %d', KA['out'])
    a('v_lshrrev_b32 v1, 6, v0'); a('v_and_b32 v2, 63, v0'); a('s_nop 0')
    a('v_readfirstlane_b32 s10, v1')
    a('v_and_b32 v3, 31, v2'); a('v_lshrrev_b32 v4, 5, v2')
    perm(a, 5, 3, 6)
    a('s_waitcnt lgkmcnt(0)')
    a.srd(12, 6, 7, 2048*896); a.srd(16, 4, 5, SZ_WA, WS_WA); a.srd(20, 4, 5, SZ_KV, WS_KV)
    a.srd(24, 4, 5, SZ_WOT, WS_WOT); a.srd(32, 8, 9, 2048*1792)
    a('s_lshl_b32 s11, s100, 5'); a('v_add_u32 v6, s11, v3'); a('v_mul_u32_u24 v6, 896, v6'); a('v_lshl_add_u32 v6, v4, 4, v6')
    for ks in range(28):
        a('buffer_load_dwordx4 %s, v6, s[12:15], 0 offen offset:%d', ar(4*ks), ks*32)
    a('s_lshl_b32 s11, s10, 7'); a('v_add_u32 v8, s11, v5'); a('v_mul_u32_u24 v7, 896, v8'); a('v_lshl_add_u32 v7, v4, 4, v7')
    a('v_lshlrev_b32 v8, 8, v8'); a('v_lshl_add_u32 v8, v4, 5, v8')
    B0 = 16; B1A = 112; ACC = 128; KVF = 192
    def buf(b, ks): return vr(B0+4*ks) if b == 0 else ar(B1A+4*ks)
    def ld(hl, b):
        a('s_mov_b32 s39, %d', hl*32*896)
        for ks in range(28):
            a('buffer_load_dwordx4 %s, v7, s[16:19], s39 offen offset:%d sc1', buf(b, ks), ks*32)
    a('v_cmp_eq_u32 s[40:41], 0, v4')
    a('v_mov_b32 v9, 0x%x', NEG); a('v_mov_b32 v10, 0x%x', NEG ^ 0x80000000); a('s_mov_b32 s30, 0x%x', LOG2E); a('v_mov_b32 v11, 0')
    ld(0, 0); ld(1, 1)
    for hl in range(4):
        b = hl % 2
        a('s_waitcnt vmcnt(28)' if hl < 3 else 's_waitcnt vmcnt(0)')
        for ks in range(28):
            acc = vr(ACC+16*hl, 16)
            a('v_mfma_f32_32x32x16_bf16 %s, %s, %s, %s', acc, buf(b, ks), ar(4*ks), '0' if ks == 0 else acc)
        if hl + 2 < 4:
            a('s_nop 0'); ld(hl+2, b)
    a.nop(16)
    waitc(a, 80, C_A1, 256, 12, 74, 'wk_done')
    a('v_lshlrev_b32 v12, 4, v2'); a('s_lshl_b32 s11, s10, 13'); a('v_add_u32 v13, s11, v12')
    EP = 16; EN = 32; T = 48; FP = 56; FK = 72; O = 88; OF = 104
    for hl in range(4):
        S = ACC + 16*hl
        a('s_mov_b32 s39, %d', hl*32*256)
        for i in range(8):
            a('buffer_load_dwordx4 %s, v8, s[20:23], s39 offen offset:%d sc1', vr(KVF+4*i), (i>>1)*64 + (i&1)*16)
        for i in range(4):
            a('v_cndmask_b32_e64 v%d, v9, v%d, s[40:41]', T+i, S+12+i); a('v_cndmask_b32_e64 v%d, v10, v%d, s[40:41]', T+4+i, S+12+i)
        a('v_max3_f32 v%d, v%d, v%d, v%d', T, T, T+1, T+2); a('v_min3_f32 v%d, v%d, v%d, v%d', T+4, T+4, T+5, T+6)
        a('v_max_f32 v%d, v%d, v%d', T, T, T+3); a('v_min_f32 v%d, v%d, v%d', T+4, T+4, T+7)
        for i in range(6):
            a('v_max3_f32 v%d, v%d, v%d, v%d', T, T, S+2*i, S+2*i+1); a('v_min3_f32 v%d, v%d, v%d, v%d', T+4, T+4, S+2*i, S+2*i+1)
        a('v_mov_b32 v%d, v%d', T+1, T); a('v_mov_b32 v%d, v%d', T+5, T+4); a('s_nop 1')
        a('v_permlane32_swap_b32 v%d, v%d', T, T+1); a('v_permlane32_swap_b32 v%d, v%d', T+4, T+5); a('s_nop 1')
        a('v_max_f32 v%d, v%d, v%d', T, T, T+1); a('v_min_f32 v%d, v%d, v%d', T+4, T+4, T+5)
        for i in range(16):
            a('v_sub_f32 v%d, v%d, v%d', EP+i, S+i, T); a('v_sub_f32 v%d, v%d, v%d', EN+i, T+4, S+i)
        for i in range(16):
            a('v_mul_f32 v%d, s30, v%d', EP+i, EP+i); a('v_mul_f32 v%d, s30, v%d', EN+i, EN+i)
        for i in range(16):
            a('v_exp_f32 v%d, v%d', EP+i, EP+i); a('v_exp_f32 v%d, v%d', EN+i, EN+i)
        a('s_nop 0')
        for i in range(12, 16):
            a('v_cndmask_b32_e64 v%d, v11, v%d, s[40:41]', EP+i, EP+i); a('v_cndmask_b32_e64 v%d, v11, v%d, s[40:41]', EN+i, EN+i)
        a('v_add_f32 v%d, v%d, v%d', T, EP, EP+1); a('v_add_f32 v%d, v%d, v%d', T+4, EN, EN+1)
        for i in range(2, 16):
            a('v_add_f32 v%d, v%d, v%d', T, T, EP+i); a('v_add_f32 v%d, v%d, v%d', T+4, T+4, EN+i)
        a('v_mov_b32 v%d, v%d', T+1, T); a('v_mov_b32 v%d, v%d', T+5, T+4); a('s_nop 1')
        a('v_permlane32_swap_b32 v%d, v%d', T, T+1); a('v_permlane32_swap_b32 v%d, v%d', T+4, T+5); a('s_nop 1')
        a('v_add_f32 v%d, v%d, v%d', T, T, T+1); a('v_add_f32 v%d, v%d, v%d', T+4, T+4, T+5)
        a('v_rcp_f32 v%d, v%d', T, T); a('v_rcp_f32 v%d, v%d', T+4, T+4); a('s_nop 0')
        for i in range(16):
            a('v_mul_f32 v%d, v%d, v%d', EP+i, EP+i, T); a('v_mul_f32 v%d, v%d, v%d', EN+i, EN+i, T+4)
        for i in range(16): a('v_cvt_pk_bf16_f32 v%d, v%d, v%d', FP+i, EP+2*i, EP+2*i+1)
        a('s_waitcnt vmcnt(0)')
        for i in range(16): a('v_cvt_pk_bf16_f32 v%d, v%d, v%d', FK+i, KVF+2*i, KVF+2*i+1)
        a('s_nop 1')
        for k in range(4):
            a('v_mfma_f32_32x32x16_bf16 %s, %s, %s, %s', vr(O,16), vr(FK+4*k), vr(FP+4*k), '0' if k == 0 else vr(O,16))
        a.nop(18)
        a('v_mov_b32 v%d, v%d', T, O+12); a('v_mov_b32 v%d, v%d', T+1, O+12); a('s_nop 1')
        a('v_permlane32_swap_b32 v%d, v%d', T, T+1); a('s_nop 1')
        a('v_add_f32 v%d, 0x358637bd, v%d', T+1, T+1)
        a('v_rcp_f32 v%d, v%d', T+1, T+1); a('s_nop 0')
        for i in range(16): a('v_mul_f32 v%d, v%d, v%d', O+i, O+i, T+1)
        for i in range(8): a('v_cvt_pk_bf16_f32 v%d, v%d, v%d', OF+i, O+2*i, O+2*i+1)
        a('ds_write_b128 v13, %s offset:%d', vr(OF), hl*2048); a('ds_write_b128 v13, %s offset:%d', vr(OF+4), hl*2048+1024)
        a('s_nop 1')
    a('s_waitcnt lgkmcnt(0)'); a('s_barrier')
    for i in range(32): a('ds_read_b128 %s, v12 offset:%d', ar(4*i), i*1024)
    a('s_lshl_b32 s11, s10, 5'); a('v_add_u32 v6, s11, v5'); a('v_lshlrev_b32 v6, 10, v6'); a('v_lshl_add_u32 v6, v4, 4, v6')
    a('s_lshl_b32 s11, s100, 5'); a('v_add_u32 v9, s11, v3'); a('v_mul_u32_u24 v9, 1792, v9'); a('v_lshl_add_u32 v9, v4, 4, v9')
    a('s_lshl_b32 s36, s10, 6'); a('v_add_u32 v9, s36, v9')
    OB = [16, 80]; OA = 144; OT = 160
    def ld2(it, hh, b):
        a('s_mov_b32 s39, %d', it*128*1024)
        for kk in range(16):
            a('buffer_load_dwordx4 %s, v6, s[24:27], s39 offen offset:%d sc1', vr(OB[b]+4*kk), (16*hh+kk)*32)
    units = [(it, hh) for it in range(4) for hh in range(2)]
    ld2(0, 0, 0)
    a('s_waitcnt lgkmcnt(0)')
    for ui, (it, hh) in enumerate(units):
        b = ui % 2
        if it == 3 and hh == 0:
            a('s_cmp_ge_u32 s10, 2'); a('s_cbranch_scc1 wk_loop')
        if ui + 1 < len(units):
            ld2(units[ui+1][0], units[ui+1][1], 1-b); a('s_waitcnt vmcnt(16)')
        else:
            a('s_waitcnt vmcnt(0)')
        acc = vr(OA, 16)
        for kk in range(16):
            a('v_mfma_f32_32x32x16_bf16 %s, %s, %s, %s', acc, vr(OB[b]+4*kk), ar(4*(16*hh+kk)), '0' if (hh == 0 and kk == 0) else acc)
        if hh == 1:
            a.nop(16)
            for i in range(8): a('v_cvt_pk_bf16_f32 v%d, v%d, v%d', OT+i, OA+2*i, OA+2*i+1)
            for qq in range(2):
                a('buffer_store_dwordx4 %s, v9, s[32:35], 0 offen offset:%d', vr(OT+4*qq), it*256 + qq*32)
            a('s_nop 1')
    a('s_branch wk_loop')


def k_mega(a):
    n = 'mega_kernel'; a.begin(n)
    a('s_cmp_ge_u32 s2, 256'); a('s_cbranch_scc1 wk_done')
    a('s_and_b32 s3, s2, 7'); a('s_cmp_eq_u32 s3, 0'); a('s_cbranch_scc1 ch_entry')
    a('s_movk_i32 s101, 2000')
    a.label('wk_loop')
    a('s_waitcnt vmcnt(0) lgkmcnt(0)'); a('s_barrier')
    RT(a, 7)
    dbg_srd(a, 80, 74)
    a('v_mov_b32 v1, 1'); a('v_mov_b32 v2, %d', C_TICKET*4); a('v_mov_b32 v3, %d', L_TK)
    a('v_cmp_eq_u32 vcc, 0, v0'); a('s_and_b64 exec, exec, vcc')
    a('buffer_atomic_add v1, v2, s[80:83], 0 offen sc0 sc1')
    a('s_waitcnt vmcnt(0)')
    a('ds_write_b32 v3, v1')
    a('s_mov_b64 exec, -1')
    a('s_waitcnt lgkmcnt(0)'); a('s_barrier')
    a('ds_read_b32 v1, v3'); a('s_waitcnt lgkmcnt(0)')
    a('v_readfirstlane_b32 s100, v1'); a('s_nop 3')
    a('s_mov_b32 s101, s100')
    RT(a, 0)
    tasks = [('mg', 224, t_mg), ('fold', 336, k_fold), ('a1', 256, k_a1), ('a2', 64, k_a2), ('bfin', 64, k_bfin)]
    for (nm, cnt, fn) in tasks:
        a('s_cmp_lt_u32 s100, %d', cnt); a('s_cbranch_scc1 tk_%s', nm)
        a('s_sub_u32 s100, s100, %d', cnt)
    a.label('wk_done')
    a('s_endpgm')
    for (nm, cnt, fn) in tasks:
        a.label('tk_%s' % nm); fn(a)
    a.label('ch_entry')
    k_chain(a)
    a.end(n, 256, 224)

def main():
    global INSTR
    INSTR = len(sys.argv) > 2
    a = Asm()
    k_mega(a)
    launches = [('mega_kernel', 256, 256, LDS_TOT)]
    out = HDR
    for (k, g, b, lds) in launches:
        out += '; @launch kernel=%s grid=(%d,1,1) block=(%d,1,1) lds=%d\n' % (k, g, b, lds)
    out += '.amdgcn_target "amdgcn-amd-amdhsa--gfx950"\n' + '\n'.join(a.l) + '\n'
    open(sys.argv[1] if len(sys.argv) > 1 else 'cdna_kernels/%s.s' % NAME, 'w').write(out)
if __name__ == '__main__': main()
```

```python
import sys
NAME = 'concat_heads__linear_kernel_hedgehog__memory_aug_recurrent_mem_tr__prompt'
HDR = open('cdna_kernels/%s.s.ref' % NAME).read().split('; Override launch')[0]

KA = dict(A_x=0, A_wqkv=8, A_w_phi=16, A_wo=24, B_x=32, B_mem0=40, B_Wq=48, B_Wk=56, B_Wv=64, B_Wo=72, seg=80, out=88, dbg=96, ws=104)
RS = 896
def al(x, a=4096): return (x + a - 1) // a * a
WS_M = 0;                 SZ_M = 2*16*448*RS
WS_GX = al(WS_M+SZ_M);    SZ_GX = 64*16*32*896
WS_VW = al(WS_GX+SZ_GX);  SZ_VW = 64*16*448*64
WS_TM = al(WS_VW+SZ_VW);  SZ_TM = 64*16*8*896
WS_UT = al(WS_TM+SZ_TM);  SZ_UT = 64*16*448*16
WS_MB = al(WS_UT+SZ_UT);  SZ_MB = 65*8192
WS_SB = al(WS_MB+SZ_MB);  SZ_SB = 64*32768
WS_MF = al(WS_SB+SZ_SB);  SZ_MF = 64*128
WS_P  = al(WS_MF+SZ_MF);  SZ_P = 128*4096 + 2048*64
WS_WA = al(WS_P+SZ_P);    SZ_WA = 1536*896
WS_WOT= al(WS_WA+SZ_WA);  SZ_WOT = 448*1024
WS_PQ = al(WS_WOT+SZ_WOT);SZ_PQ = 2048*16*128
WS_KV = al(WS_PQ+SZ_PQ);  SZ_KV = 16*64*32*4
WS_XF = al(WS_KV+SZ_KV);  SZ_XF = 2*64*28672
WS_FL = al(WS_XF+SZ_XF);  SZ_FL = 16384
F_M = 0; F_FOLD = 1024; F_A1 = 3072; F_GX = 4096
WS_END = al(WS_FL+SZ_FL)

class Asm:
    def __init__(self): self.l = []; self.uid = 0
    def __call__(self, s, *a):
        self.l.append('    ' + (s % a if a else s))
    def label(self, s): self.l.append(s + ':')
    def c(self, s): self.l.append('    ; ' + s)
    def newlabel(self, p='L'):
        self.uid += 1; return '%s_%d' % (p, self.uid)
    def nop(self, n):
        while n > 0:
            k = min(n, 16); self('s_nop %d', k-1); n -= k
    def srd(self, d, lo, hi, size, off=0):
        if off:
            self('s_add_u32 s%d, s%d, 0x%x', d, lo, off & 0xffffffff)
            self('s_addc_u32 s%d, s%d, 0x%x', d+1, hi, off >> 32)
        else:
            self('s_mov_b32 s%d, s%d', d, lo); self('s_mov_b32 s%d, s%d', d+1, hi)
        self('s_mov_b32 s%d, 0x%x', d+2, size)
        self('s_mov_b32 s%d, 0x00020000', d+3)
    def begin(self, name):
        self.l += ['.text', '.globl %s' % name, '.p2align 8', '.type %s,@function' % name, name + ':']
    def end(self, name, vgpr, agpr=0, sgpr=102):
        acc = (vgpr + 3)//4*4
        self.l += ['    s_endpgm', '.section .rodata,"a"', '.p2align 6', '.amdhsa_kernel %s' % name,
          '  .amdhsa_next_free_vgpr %d' % (acc + agpr if agpr else vgpr), '  .amdhsa_next_free_sgpr %d' % sgpr,
          '  .amdhsa_accum_offset %d' % acc, '  .amdhsa_group_segment_fixed_size 0', '  .amdhsa_kernarg_size 112',
          '  .amdhsa_user_sgpr_count 2', '  .amdhsa_user_sgpr_kernarg_segment_ptr 1', '  .amdhsa_system_sgpr_workgroup_id_x 1',
          '.end_amdhsa_kernel']
def perm(a, d, src, t):
    a('v_and_b32 v%d, 0x13, v%d', d, src)
    a('v_and_b32 v%d, 4, v%d', t, src); a('v_lshl_or_b32 v%d, v%d, 1, v%d', d, t, d)
    a('v_and_b32 v%d, 8, v%d', t, src); a('v_lshrrev_b32 v%d, 1, v%d', t, t); a('v_or_b32 v%d, v%d, v%d', d, t, d)
def vr(b, n=4): return 'v[%d:%d]' % (b, b+n-1)
def ar(b, n=4): return 'a[%d:%d]' % (b, b+n-1)


INSTR = False
import os
OPT = dict(kv.split('=') for kv in os.environ.get('OPT','').split(',') if kv)
def opt(k, d=0): return int(OPT.get(k, d))
C_TICKET = 0; C_M = 1; C_INIT = 2; C_FOLD = 3; C_A1 = 4; C_XCC = 5; C_XF = 6; C_GX = 8
LDS_TOT = 92160 + 64
L_TK = 92160
WSPIN = 3000000
def RT(a, slot, idreg='s101'):
    if not INSTR: return
    a('s_load_dwordx2 s[88:89], s[0:1], %d', KA['ws']); a('s_memrealtime s[94:95]'); a('s_waitcnt lgkmcnt(0)')
    a.srd(88, 88, 89, SZ_P, WS_P)
    a('s_lshl_b32 s92, %s, 6', idreg); a('s_add_u32 s92, s92, %d', 128*4096)
    a('v_mov_b32 v254, s94'); a('v_mov_b32 v255, 0')
    a('v_cmp_eq_u32 vcc, 0, v0'); a('s_and_b64 exec, exec, vcc')
    a('buffer_store_dword v254, v255, s[88:91], s92 offen offset:%d', slot*4)
    a('s_mov_b64 exec, -1')
def dbg_srd(a, d, t):
    a('s_load_dwordx2 s[%d:%d], s[0:1], %d', t, t+1, KA['dbg']); a('s_waitcnt lgkmcnt(0)')
    a.srd(d, t, t+1, 256)
def signal(a, d, cidx, vt, per_wave=False):
    a('s_waitcnt vmcnt(0)')
    if not per_wave: a('s_barrier')
    a('v_mov_b32 v%d, 1', vt); a('v_mov_b32 v%d, %d', vt+1, cidx*4)
    if per_wave: a('s_mov_b64 exec, 1')
    else:
        a('v_cmp_eq_u32 vcc, 0, v0'); a('s_and_b64 exec, exec, vcc')
    a('buffer_atomic_add v%d, v%d, s[%d:%d], 0 offen sc1', vt, vt+1, d, d+3)
    a('s_mov_b64 exec, -1')
def waitc(a, d, cidx, target, vt, st, fail, sleep=8):
    L = a.newlabel('wc')
    a('v_mov_b32 v%d, %d', vt+1, cidx*4); a('s_mov_b32 s%d, 0', st)
    a.label(L)
    a('buffer_load_dword v%d, v%d, s[%d:%d], 0 offen sc1', vt, vt+1, d, d+3)
    a('s_add_u32 s%d, s%d, 1', st, st); a('s_cmp_gt_u32 s%d, %d', st, WSPIN); a('s_cbranch_scc1 %s', fail)
    a('s_waitcnt vmcnt(0)')
    a('v_readfirstlane_b32 s%d, v%d', st+1, vt); a('s_nop 3')
    a('s_cmp_ge_u32 s%d, %d', st+1, target); a('s_cbranch_scc1 %s_ok', L)
    a('s_sleep %d', sleep); a('s_branch %s', L)
    a.label(L + '_ok')

def init_seen(a, vt, st, fail):
    L = a.newlabel('is')
    a('s_cmp_eq_u32 s93, 1'); a('s_cbranch_scc1 %s', L)
    dbg_srd(a, 84, st)
    waitc(a, 84, C_INIT, 32, vt, st, fail, 16)
    a('s_mov_b32 s93, 1')
    a.label(L)
def flag_set(a, d, base, idx, vt, st, fail, wait=True, chk=True):
    if chk: init_seen(a, vt, st, fail)
    if wait: a('s_waitcnt vmcnt(0)')
    a('s_barrier')
    a('v_mov_b32 v%d, 0', vt); a('s_lshl_b32 s%d, %s, 2', st, idx)
    if base >= 4096: a('s_add_u32 s%d, s%d, %d', st, st, base); base = 0
    a('v_cmp_eq_u32 vcc, 0, v0'); a('s_and_b64 exec, exec, vcc')
    a('buffer_store_dword v%d, v%d, s[%d:%d], s%d offen offset:%d sc1', vt, vt, d, d+3, st, base)
    a('s_mov_b64 exec, -1')
def flag_poll(a, d, base, count, vt, st, fail, sleep=8, lanev=None):
    L = a.newlabel('fw')
    nl = count // 4
    va = vt + 8
    a('v_and_b32 v%d, 63, v0', va); a('v_lshlrev_b32 v%d, 4, v%d', va, va)
    if isinstance(base, int): a('v_add_u32 v%d, %d, v%d', va, base, va)
    else: a('v_add_u32 v%d, %s, v%d', va, base, va)
    a('s_mov_b32 s%d, 0', st)
    for r_ in range(8): a('v_mov_b32 v%d, 0', vt+r_)
    a.label(L)
    def msk(n):
        a('s_mov_b32 exec_lo, 0x%x', 0xffffffff if n >= 32 else (1 << n) - 1); a('s_mov_b32 exec_hi, 0x%x', 0 if n <= 32 else (0xffffffff if n >= 64 else (1 << (n-32)) - 1))
    msk(nl)
    a('buffer_load_dwordx4 %s, v%d, s[%d:%d], 0 offen sc1', vr(vt), va, d, d+3)
    if nl > 64:
        msk(nl - 64)
        a('buffer_load_dwordx4 %s, v%d, s[%d:%d], 0 offen offset:1024 sc1', vr(vt+4), va, d, d+3)
    a('s_mov_b64 exec, -1')
    a('s_add_u32 s%d, s%d, 1', st, st); a('s_cmp_gt_u32 s%d, %d', st, WSPIN); a('s_cbranch_scc1 %s', fail)
    a('s_waitcnt vmcnt(0)')
    a('v_max3_u32 v%d, v%d, v%d, v%d', vt, vt, vt+1, vt+2); a('v_max3_u32 v%d, v%d, v%d, v%d', vt+4, vt+4, vt+5, vt+6)
    a('v_max3_u32 v%d, v%d, v%d, v%d', vt, vt, vt+3, vt+7); a('v_max_u32 v%d, v%d, v%d', vt, vt, vt+4)
    a('v_cmp_eq_u32 vcc, -1, v%d', vt); a('s_cbranch_vccz %s_ok', L)
    a('s_sleep %d', sleep); a('s_branch %s', L)
    a.label(L + '_ok')
def flag_wait(a, d, base, count, vt, st, fail, sleep=8, chk=True):
    L = a.newlabel('fx')
    if chk: init_seen(a, vt, st, fail)
    a('v_readfirstlane_b32 s%d, v0', st); a('s_nop 3'); a('s_cmp_lt_u32 s%d, 64', st); a('s_cbranch_scc0 %s', L)
    flag_poll(a, d, base, count, vt, st, fail, sleep)
    a.label(L)
    a('s_barrier')

def t_mg(a):
    a('s_load_dwordx4 s[4:7], s[0:1], %d', KA['B_Wq'])
    a('s_load_dwordx4 s[8:11], s[0:1], %d', KA['B_Wv'])
    a('s_load_dwordx2 s[12:13], s[0:1], %d', KA['ws'])
    a('s_load_dwordx2 s[44:45], s[0:1], %d', KA['B_x'])
    a('s_load_dwordx2 s[46:47], s[0:1], %d', KA['dbg'])
    a('s_mov_b32 s14, 0x24924925'); a('s_mul_hi_u32 s15, s100, s14')
    a('s_mul_i32 s16, s15, 7'); a('s_sub_u32 s16, s100, s16')
    a('s_lshr_b32 s17, s15, 4')
    a('s_and_b32 s18, s15, 15')
    a('v_lshrrev_b32 v1, 6, v0'); a('v_and_b32 v2, 63, v0'); a('s_nop 0')
    a('v_readfirstlane_b32 s19, v1')
    a('v_and_b32 v3, 31, v2'); a('v_lshrrev_b32 v4, 5, v2')
    perm(a, 10, 3, 11)
    a('s_and_b32 s20, s19, 1'); a('s_lshr_b32 s21, s19, 1')
    a('s_waitcnt lgkmcnt(0)')
    a('s_cmp_eq_u32 s17, 0')
    a('s_cselect_b32 s24, s4, s10'); a('s_cselect_b32 s25, s5, s11')
    a('s_mov_b32 s26, 3670016'); a('s_mov_b32 s27, 0x00020000')
    a('s_cselect_b32 s28, s6, s8'); a('s_cselect_b32 s29, s7, s9')
    a('s_mov_b32 s30, 3670016'); a('s_mov_b32 s31, 0x00020000')
    a.srd(32, 12, 13, SZ_M, WS_M)
    a.srd(48, 12, 13, SZ_XF//2, WS_XF); a.srd(52, 12, 13, SZ_GX, WS_GX); a.srd(56, 12, 13, SZ_VW, WS_VW)
    a.srd(60, 46, 47, 256); a.srd(64, 12, 13, SZ_KV, WS_KV)
    a('v_mov_b32 v11, 0'); a('s_lshl_b32 s22, s100, 10'); a('v_lshlrev_b32 v12, 2, v0'); a('v_add_u32 v12, s22, v12')
    a('buffer_store_dword v11, v12, s[64:67], 0 offen sc1')
    a('s_lshl_b32 s22, s16, 6'); a('s_lshl_b32 s23, s20, 5'); a('s_add_u32 s22, s22, s23')
    a('v_add_u32 v5, s22, v10')
    a('s_mul_i32 s36, s21, 224'); a('v_add_u32 v6, s36, v10'); a('v_lshlrev_b32 v6, 13, v6')
    a('s_lshl_b32 s37, s18, 9'); a('v_add_u32 v6, s37, v6'); a('v_lshl_add_u32 v6, v4, 4, v6')
    JS = 16; KB = [80, 144]; ACC = 208; T = 224
    def kbuf(i, es):
        b = i % 3
        return vr(KB[b]+4*es) if b < 2 else ar(4*es)
    def ldk(i):
        a('s_mov_b32 s43, %d', i*262144)
        for es in range(16):
            a('buffer_load_dwordx4 %s, v6, s[28:31], s43 offen offset:%d', kbuf(i, es), es*32)
    a('s_cmp_eq_u32 s17, 0'); a('s_cbranch_scc0 mm_mat1')
    a('v_lshlrev_b32 v7, 13, v5'); a('v_add_u32 v7, s37, v7'); a('v_lshl_add_u32 v7, v4, 4, v7')
    for es in range(16):
        a('buffer_load_dwordx4 %s, v7, s[24:27], 0 offen offset:%d', vr(JS+4*es), es*32)
    ldk(0); ldk(1); ldk(2)
    a('s_branch mm_go')
    a.label('mm_mat1')
    a('s_mul_i32 s38, s18, 229376'); a('s_lshl_b32 s39, s22, 1'); a('s_add_u32 s38, s38, s39')
    a('v_mul_u32_u24 v7, 896, v10'); a('v_add_u32 v7, s38, v7'); a('v_lshl_add_u32 v7, v4, 4, v7')
    for et in range(8):
        a('s_mov_b32 s39, %d', et*32*896)
        for ks in range(2):
            a('buffer_load_dwordx4 %s, v7, s[24:27], s39 offen offset:%d', ar(64+8*et+4*ks), ks*32)
    ldk(0); ldk(1)
    a('v_lshlrev_b32 v8, 3, v4'); a('v_sub_u32 v8, v10, v8')
    a('v_mov_b32 v9, 0x3f80'); a('v_mov_b32 v11, 0x3f800000'); a('v_mov_b32 v12, 0')
    for ks in range(2):
        for q2 in range(4):
            r_ = 232 + 4*ks + q2
            a('v_cmp_eq_u32 vcc, %d, v8', 16*ks + 2*q2); a('v_cndmask_b32 v%d, v12, v9, vcc', r_)
            a('v_cmp_eq_u32 vcc, %d, v8', 16*ks + 2*q2 + 1); a('v_cndmask_b32 v%d, v%d, v11, vcc', r_, r_)
    a('s_waitcnt vmcnt(32)')
    for et in range(8):
        acc = vr(ACC, 16) if et % 2 == 0 else vr(240, 16)
        ab = ACC if et % 2 == 0 else 240
        a('v_mfma_f32_32x32x16_bf16 %s, %s, %s, 0', acc, ar(64+8*et), vr(232))
        a('v_mfma_f32_32x32x16_bf16 %s, %s, %s, %s', acc, ar(64+8*et+4), vr(236), acc)
        a.nop(18)
        for i in range(8): a('v_cvt_pk_bf16_f32 v%d, v%d, v%d', JS+8*et+i, ab+2*i, ab+2*i+1)
    ldk(2)
    a.label('mm_go')
    a('s_mul_i32 s40, s15, 448'); a('v_add_u32 v9, s40, v5'); a('s_movk_i32 s41, %d', RS); a('v_mul_lo_u32 v9, v9, s41')
    a('s_mul_i32 s42, s21, 448'); a('v_add_u32 v9, s42, v9'); a('v_lshl_add_u32 v9, v4, 4, v9')
    a('v_lshlrev_b32 v12, 4, v2')
    a('s_mul_i32 s40, s20, 28672'); a('s_mul_i32 s41, s21, 14336'); a('s_add_u32 s40, s40, s41'); a('v_add_u32 v11, s40, v12')
    for i in range(7):
        nl = min(2, 6-i)
        a('s_waitcnt vmcnt(%d)', 16*nl)
        for es in range(16):
            a('v_mfma_f32_32x32x16_bf16 %s, %s, %s, %s', vr(ACC,16), kbuf(i, es), vr(JS+4*es), '0' if es == 0 else vr(ACC,16))
        a.nop(18)
        for q in range(8):
            a('v_cvt_pk_bf16_f32 v%d, v%d, v%d', T+q, ACC+2*q, ACC+2*q+1)
        for qq in range(2):
            a('buffer_store_dwordx4 %s, v9, s[32:35], 0 offen offset:%d sc1', vr(T+4*qq), i*64+qq*32)
            a('ds_write_b128 v11, %s offset:%d', vr(T+4*qq), (2*i+qq)*1024)
        if i + 3 < 7: ldk(i+3)
        a('s_nop 1')
    a('s_waitcnt lgkmcnt(0)')
    RT(a, 1)
    flag_set(a, 96, F_M, 's100', 13, 22, 'wk_done')
    RT(a, 2)
    for f in range(56):
        a('ds_read_b128 %s, v12 offset:%d', ar(4*f), f*1024)
    a('s_cmp_eq_u32 s17, 0'); a('s_cselect_b64 vcc, -1, 0')
    a('v_cndmask_b32 v14, v10, v3, vcc')
    a('s_mul_i32 s22, s19, 28672'); a('v_lshl_add_u32 v5, v4, 5, v14'); a('v_lshlrev_b32 v5, 4, v5'); a('v_add_u32 v5, s22, v5')
    XB = [16, 72, 128]; GA = 184; GT = 216
    a('s_mov_b32 s36, 0')
    a('s_mov_b32 s37, 0')
    a('s_mov_b32 s38, 0')
    def ldx(c, b):
        for k in range(14):
            ks = 14*c + k
            if k == 0 or ks % 4 == 0: a('s_add_u32 s39, s36, %d', (ks//4)*4096)
            if not opt('mgnold'): a('buffer_load_dwordx4 %s, v5, s[48:51], s39 offen offset:%d', vr(XB[b]+4*k), (ks%4)*1024)
        if c == 1: a('s_add_u32 s36, s36, %d', 4*28672)
    ldx(0, 0); ldx(1, 1)
    a('s_waitcnt lgkmcnt(0)')
    a('s_cmp_eq_u32 s17, 0'); a('s_cbranch_scc0 gx_m1')
    for mat in range(2):
        if mat == 1: a.label('gx_m1')
        a('s_lshl_b32 s22, s19, 4'); a('s_add_u32 s22, s22, s18')
        if mat == 0:
            a('s_mul_i32 s22, s22, 28672'); a('s_lshl_b32 s23, s16, 11'); a('s_add_u32 s22, s22, s23')
            a('v_lshrrev_b32 v6, 4, v3'); a('v_mul_u32_u24 v6, 14336, v6'); a('v_add_u32 v6, s22, v6'); a('v_lshl_add_u32 v6, v4, 8, v6')
            a('v_and_b32 v7, 15, v3'); a('v_lshl_add_u32 v6, v7, 4, v6')
        else:
            a('s_mul_i32 s22, s22, 28672'); a('s_lshl_b32 s23, s16, 10'); a('s_add_u32 s22, s22, s23')
            a('v_lshlrev_b32 v6, 4, v10'); a('v_add_u32 v6, s22, v6'); a('v_mul_u32_u24 v7, 7168, v4'); a('v_add_u32 v6, v6, v7')
            a('v_add_u32 v7, 14336, v6')
        def sig(blk):
            flag_set(a, 96, F_GX + 1024*blk, 's100', 13, 22, 'wk_done', wait=False, chk=False)
        for it in range(16):
            for c in range(2):
                ch = 2*it + c
                b = ch % 3
                if ch + 2 < 32:
                    ldx(c, (ch+2) % 3)
                    a('s_waitcnt vmcnt(28)')
                    if c == 1 and it % 2 == 0 and it > 0:
                        sig(it//2 - 1)
                        if it == 2: RT(a, 3)
                else:
                    a('s_waitcnt vmcnt(%d)', 14 if ch == 30 else 0)
                for k in range(14):
                    ks = 14*c + k
                    for j2 in range(2):
                        m = ar((j2*28+ks)*4); x = vr(XB[b]+4*k); acc = vr(GA+16*j2, 16)
                        A, B = (m, x) if mat == 0 else (x, m)
                        if not opt('mgnomf') or ks == 0: a('v_mfma_f32_32x32x16_bf16 %s, %s, %s, %s', acc, A, B, '0' if ks == 0 else acc)
            a.nop(18)
            for i in range(16): a('v_cvt_pk_bf16_f32 v%d, v%d, v%d', GT+i, GA+2*i, GA+2*i+1)
            for j2 in range(2):
                for qq in range(2):
                    off = j2*1024 + qq*512 if mat == 0 else j2*512
                    if not opt('mgnost'): a('buffer_store_dwordx4 %s, v%d, s[%d:%d], s37 offen offset:%d sc1', vr(GT+8*j2+4*qq), 7 if (mat == 1 and qq == 1) else 6, 52+4*mat, 55+4*mat, off)
            a('s_add_u32 s37, s37, %d', 4*16*28672)
        a('s_waitcnt vmcnt(0)'); sig(7)
        a('s_branch wk_loop')

L_MEM = 0; L_ZM = L_MEM + 8192; L_TP = L_ZM + 4096
L_RED = L_TP + 8192; L_RED2 = L_RED + 4096; L_CHAIN = L_RED2 + 1024
QT = [[0,1,2,3],[4,5,6,7],[8,9,10],[11,12,13]]
UTL = [[0,1,2],[3,4,5],[6,7,8,9],[10,11,12,13]]
SPIN = 200000
SBS = 32768
FORCE_SLOW = False
import os
OPT = dict(kv.split('=') for kv in os.environ.get('OPT','').split(',') if kv)
def opt(k, d=0): return int(OPT.get(k, d))
PRETOUCH = True
def k_chain(a):
    def TS(k):
        if not INSTR: return
        a('s_memrealtime s[64:65]' if opt('rt') else 's_memtime s[64:65]'); a('s_waitcnt lgkmcnt(0)')
        a('v_mov_b32 v87, s64')
        a('s_lshl_b32 s66, s52, 6'); a('s_add_u32 s66, s66, s67')
        a('s_mov_b64 exec, 1')
        a('buffer_store_dword v87, v3, s[68:71], s66 offen offset:%d', 4*k)
        a('s_mov_b64 exec, -1')
    def TV(k, sreg):
        if not INSTR: return
        a('v_mov_b32 v87, %s', sreg)
        a('s_lshl_b32 s66, s52, 6'); a('s_add_u32 s66, s66, s67')
        a('s_mov_b64 exec, 1')
        a('buffer_store_dword v87, v3, s[68:71], s66 offen offset:%d', 4*k)
        a('s_mov_b64 exec, -1')
    def pub(fmt, *args):
        L = a.newlabel('pb')
        a('s_cmp_eq_u32 s63, 0'); a('s_cbranch_scc1 %s_s', L)
        a(fmt, *(args + ('',))); a('s_branch %s_d', L)
        a.label(L + '_s'); a(fmt, *(args + ('sc1',))); a.label(L + '_d')
    def pub2(fmt, *args):
        if not opt('wb'):
            a(fmt, *(args + ('sc1',))); return
        L = a.newlabel('pc')
        a('s_cmp_eq_u32 s94, 0'); a('s_cbranch_scc1 %s_s', L)
        a(fmt, *(args + ('',))); a('s_branch %s_d', L)
        a.label(L + '_s'); a(fmt, *(args + ('sc1',))); a.label(L + '_d')
    a('s_lshr_b32 s2, s2, 3')
    a('s_load_dwordx2 s[4:5], s[0:1], %d', KA['ws'])
    a('s_load_dwordx2 s[76:77], s[0:1], %d', KA['dbg'])
    a('s_load_dwordx2 s[78:79], s[0:1], %d', KA['B_mem0'])
    a('s_lshr_b32 s6, s2, 1'); a('s_and_b32 s7, s2, 1')
    a('v_lshrrev_b32 v1, 6, v0'); a('v_and_b32 v22, 63, v0'); a('s_nop 0')
    a('v_readfirstlane_b32 s8, v1')
    a('v_and_b32 v23, 15, v22'); a('v_lshrrev_b32 v24, 4, v22'); a('v_and_b32 v25, 7, v22')
    a('v_lshlrev_b32 v3, 4, v22')
    a('s_waitcnt lgkmcnt(0)')
    a.srd(16, 4, 5, SZ_M, WS_M); a.srd(20, 4, 5, SZ_GX, WS_GX); a.srd(24, 4, 5, SZ_VW, WS_VW)
    a.srd(28, 4, 5, SZ_TM, WS_TM); a.srd(32, 4, 5, SZ_UT, WS_UT); a.srd(36, 4, 5, SZ_MB, WS_MB); a.srd(40, 4, 5, SZ_SB, WS_SB)
    a.srd(80, 76, 77, 256); a.srd(84, 78, 79, 7168); a.srd(96, 4, 5, SZ_MF, WS_MF)
    a('s_mov_b32 s52, 0')
    if INSTR:
        a.srd(68, 4, 5, SZ_P, WS_P)
        a('s_lshl_b32 s67, s2, 2'); a('s_add_u32 s67, s67, s8'); a('s_lshl_b32 s67, s67, 12')
    TS(8)
    a('s_add_u32 s101, s2, 1900'); RT(a, 0)
    a('s_load_dwordx2 s[12:13], s[0:1], %d', KA['B_x']); a('s_load_dwordx2 s[14:15], s[0:1], %d', KA['A_x'])
    a('v_and_b32 v6, 31, v22'); a('v_lshrrev_b32 v7, 5, v22')
    a('s_lshr_b32 s9, s8, 1'); a('s_lshl_b32 s10, s2, 1'); a('s_add_u32 s9, s9, s10')
    a('s_and_b32 s10, s8, 1')
    a('s_lshl_b32 s11, s9, 5'); a('v_add_u32 v8, s11, v6'); a('v_mul_u32_u24 v8, 896, v8'); a('v_lshl_add_u32 v8, v7, 4, v8')
    a('s_mul_i32 s11, s10, 448'); a('v_add_u32 v8, s11, v8')
    a('s_mul_i32 s11, s9, 28672'); a('s_mul_i32 s10, s10, 14336'); a('s_add_u32 s11, s11, s10'); a('v_add_u32 v9, s11, v3')
    a('s_waitcnt lgkmcnt(0)')
    a.srd(44, 12, 13, 2048*896); a.srd(48, 14, 15, 2048*896); a.srd(72, 4, 5, SZ_XF, WS_XF)
    for src in range(2):
        for k in range(14):
            a('buffer_load_dwordx4 %s, v8, s[%d:%d], 0 offen offset:%d', vr(88+56*src+4*k), 44+4*src, 47+4*src, k*32)
    for src in range(2):
        for k in range(14):
            a('s_waitcnt vmcnt(%d)', 27)
            if k % 4 == 0: a('s_mov_b32 s9, %d', src*64*28672 + (k//4)*4096)
            a('buffer_store_dwordx4 %s, v9, s[72:75], s9 offen offset:%d sc1', vr(88+56*src+4*k), (k%4)*1024)
    a.srd(72, 4, 5, SZ_FL, WS_FL)
    for i in range(4): a('v_mov_b32 v%d, -1', 36+i)
    a('v_lshrrev_b32 v6, 2, v0'); a('v_and_b32 v7, 3, v0')
    a('v_lshlrev_b32 v8, 13, v6'); a('v_lshl_add_u32 v8, v7, 6, v8'); a('s_lshl_b32 s12, s2, 8'); a('s_add_u32 s12, s12, 8192'); a('v_add_u32 v8, s12, v8')
    for i in range(4): a('buffer_store_dwordx4 %s, v8, s[36:39], 0 offen offset:%d sc1', vr(36), i*16)
    a('v_lshlrev_b32 v8, 15, v6'); a('v_lshl_add_u32 v8, v7, 4, v8'); a('s_lshl_b32 s12, s2, 10'); a('v_add_u32 v8, s12, v8')
    for i in range(16): a('buffer_store_dwordx4 %s, v8, s[40:43], 0 offen offset:%d sc1', vr(36), i*64)
    a('v_lshlrev_b32 v8, 7, v0'); a('s_lshl_b32 s12, s2, 2'); a('v_add_u32 v8, s12, v8')
    a('buffer_store_dword v36, v8, s[96:99], 0 offen sc1')
    a('v_lshlrev_b32 v8, 1, v0'); a('s_lshl_b32 s12, s2, 9'); a('v_add_u32 v8, s12, v8')
    a('buffer_store_short v36, v8, s[72:75], 0 offen sc1')
    a('v_mul_u32_u24 v8, 896, v0'); a('s_mul_i32 s12, s2, 28'); a('v_add_u32 v8, s12, v8')
    a('buffer_load_dwordx4 %s, v8, s[84:87], 0 offen', vr(40))
    a('buffer_load_dwordx3 %s, v8, s[84:87], 0 offen offset:16', vr(44,3))
    a('v_mov_b32 v47, 0'); a('v_lshlrev_b32 v9, 5, v0'); a('s_lshl_b32 s12, s2, 8'); a('v_add_u32 v9, s12, v9')
    a('s_getreg_b32 s12, hwreg(HW_REG_XCC_ID, 0, 4)'); a('s_lshl_b32 s12, 1, s12')
    a('v_mov_b32 v48, s12'); a('v_mov_b32 v49, %d', C_XCC*4)
    a('s_waitcnt vmcnt(0)')
    for i in range(7): a('v_min_u32 v%d, 0xfffffffe, v%d', 40+i, 40+i)
    a('v_cmp_gt_u32 vcc, 8, v0'); a('s_and_b64 exec, exec, vcc')
    a('buffer_store_dwordx4 %s, v9, s[36:39], 0 offen sc1', vr(40))
    a('buffer_store_dwordx4 %s, v9, s[36:39], 0 offen offset:16 sc1', vr(44))
    a('s_mov_b64 exec, -1')
    a('v_cmp_eq_u32 vcc, 0, v0'); a('s_and_b64 exec, exec, vcc')
    a('buffer_atomic_or v48, v49, s[80:83], 0 offen sc1')
    a('s_mov_b64 exec, -1')
    signal(a, 80, C_INIT, 36)
    waitc(a, 80, C_INIT, 32, 36, 12, 'ch_done', 8)
    a('buffer_load_dword v48, v49, s[80:83], 0 offen sc1'); a('s_waitcnt vmcnt(0)')
    a('v_readfirstlane_b32 s12, v48'); a('s_nop 3')
    a('s_bcnt1_i32_b32 s12, s12'); a('s_cmp_eq_u32 s12, 1'); a('s_cselect_b32 s63, 1, 0')
    if FORCE_SLOW: a('s_mov_b32 s63, 0')
    TS(9)
    flag_wait(a, 72, F_M, 224, 36, 12, 'ch_done', 4, chk=False)
    a('s_mov_b32 s76, s72'); a('s_mov_b32 s77, s73'); a('s_mov_b32 s78, s74'); a('s_mov_b32 s79, s75')
    TS(10)
    a('v_cmp_gt_u32 s[46:47], 8, v23')
    a('v_cmp_gt_u32 s[48:49], 2, v24')
    a('v_cmp_eq_u32 s[50:51], 0, v24')
    a('v_cmp_gt_u32 s[72:73], 14, v23')
    a('v_cmp_gt_u32 vcc, 32, v22')
    a('s_nop 1')
    a('s_mov_b64 s[84:85], vcc')
    a('s_and_b64 s[44:45], s[46:47], s[48:49]')
    a('s_and_b64 s[50:51], s[46:47], s[50:51]')
    a('s_mul_i32 s9, s2, 14')
    a('s_mul_i32 s10, s7, 224')
    a('s_lshr_b32 s11, s6, 3'); a('s_bfe_u32 s14, s6, 0x10002'); a('s_and_b32 s15, s6, 3')
    a('v_mul_u32_u24 v1, 912, v25'); a('v_lshl_add_u32 v1, v24, 4, v1')
    a('v_mul_u32_u24 v2, 912, v25'); a('v_lshl_add_u32 v2, v24, 3, v2'); a('s_lshl_b32 s12, s10, 1'); a('v_add_u32 v2, s12, v2')
    a('v_lshlrev_b32 v4, 5, v25'); a('v_lshl_add_u32 v4, v24, 3, v4')
    a('s_lshl_b32 s12, s8, 10'); a('v_add_u32 v6, s12, v3')
    a('s_mov_b32 s60, 0x%x', 0x3db8aa3b); a('s_mov_b32 s61, s60')
    for wv in range(1, 4):
        a('s_cmp_eq_u32 s8, %d', wv); a('s_cbranch_scc1 ch_w%d', wv)
    UA = 7
    FR = 20; GF = 32; ACC = 44; TP = 60; X = 68; UP = 60
    WV = 88
    ZA = 224
    for wv in range(4):
        a.label('ch_w%d' % wv)
        X = 68
        qt = QT[wv]; ut = UTL[wv]; nq = len(qt)
        units = [('q', t) for t in qt] + [('u', t) for t in ut]
        def wreg(u, ks):
            return ar(u*56 + ks*4) if u < 4 else vr(WV + (u-4)*56 + ks*4)
        def greg(ks):
            return ar(ZA+4*ks) if ks < 8 else vr([36,40,68,72,76,80][ks-8])
        a('s_mul_i32 s12, s6, 448'); a('s_add_u32 s12, s12, s10'); a('v_add_u32 v27, s12, v23')
        a('v_mul_u32_u24 v27, 896, v27'); a('v_lshl_add_u32 v27, v24, 4, v27')
        for u, (kind, t) in enumerate(units):
            if kind == 'q':
                a('s_mov_b32 s12, %d', t*16*896)
                for ks in range(14):
                    a('buffer_load_dwordx4 %s, v27, s[16:19], s12 offen offset:%d sc1', wreg(u, ks), ks*64)
            else:
                k = u - nq
                a('v_add_u32 v%d, %d, v23', X, 16*t)
                a('s_movk_i32 s12, 4682'); a('v_mul_u32_u24 v%d, s12, v%d', X+1, X); a('v_lshrrev_b32 v%d, 16, v%d', X+1, X+1)
                a('v_mul_u32_u24 v%d, 14, v%d', X+2, X+1); a('v_sub_u32 v%d, v%d, v%d', X+2, X, X+2)
                a('v_lshl_add_u32 v%d, v%d, 4, v%d', UA+k, X+1, X+2); a('v_lshlrev_b32 v%d, 4, v%d', UA+k, UA+k)
                a('v_lshl_add_u32 v%d, v24, 3, v%d', UA+k, UA+k); a('v_add_u32 v%d, %d, v%d', UA+k, L_ZM, UA+k)
                a('v_mul_u32_u24 v%d, 448, v%d', X+3, X+1); a('v_add_u32 v%d, v%d, v%d', X+3, X+3, X+2); a('v_add_u32 v%d, s9, v%d', X+3, X+3)
                a('v_add_u32 v%d, %d, v%d', X+3, 16*448, X+3); a('s_movk_i32 s12, 896'); a('v_mul_lo_u32 v%d, v%d, s12', X+3, X+3)
                a('v_lshl_add_u32 v%d, v24, 4, v%d', X+3, X+3)
                for ks in range(14):
                    a('buffer_load_dwordx4 %s, v%d, s[16:19], 0 offen offset:%d sc1', wreg(u, ks), X+3, ks*64)
                a('s_nop 0')
        if wv < 2:
            a('v_lshlrev_b32 v15, 3, v22')
            a('v_add_u32 v18, s9, v23'); a('v_lshlrev_b32 v18, 4, v18'); a('v_mul_u32_u24 v26, 7168, v24'); a('v_add_u32 v18, v18, v26')
            if wv == 0:
                a('s_lshl_b32 s12, s11, 1'); a('s_add_u32 s12, s12, s7'); a('s_lshl_b32 s12, s12, 11'); a('s_add_u32 s12, s12, 16384')
                a('s_lshl_b32 s13, s15, 8'); a('s_add_u32 s12, s12, s13'); a('s_lshl_b32 s13, s14, 7'); a('s_add_u32 s12, s12, s13')
                a('v_lshlrev_b32 v11, 4, v23'); a('v_lshl_add_u32 v11, v24, 10, v11'); a('v_add_u32 v11, s12, v11')
                a('v_lshlrev_b32 v14, 5, v23'); a('v_lshl_add_u32 v14, v24, 3, v14'); a('s_lshl_b32 s13, s2, 8'); a('v_add_u32 v14, s13, v14')
                a('s_lshl_b32 s13, s2, 10'); a('v_lshlrev_b32 v19, 7, v25'); a('v_add_u32 v19, s13, v19')
            else:
                a('v_and_b32 v19, 1, v22'); a('v_lshlrev_b32 v19, 7, v19'); a('s_lshl_b32 s13, s2, 8'); a('v_add_u32 v19, s13, v19')
        else:
            a('v_lshrrev_b32 v26, 3, v22'); a('v_lshlrev_b32 v15, 8, v26'); a('v_lshl_add_u32 v15, v25, 4, v15'); a('v_add_u32 v15, %d, v15', (wv-2)*128)
            a('v_add_u32 v17, 4096, v15')
            a('v_mul_u32_u24 v16, 28, v26'); a('v_and_b32 v26, 1, v22'); a('v_lshl_add_u32 v16, v26, 4, v16')
            a('v_bfe_u32 v26, v22, 1, 2'); a('v_mul_u32_u24 v26, 912, v26'); a('v_add_u32 v16, v16, v26')
            a('v_add_u32 v16, %d, v16', 4*(wv-2)*912)
            a('v_add_u32 v11, 4096, v3')
            a('s_lshr_b32 s12, s6, 2'); a('s_mul_i32 s12, s12, 28'); a('s_mul_i32 s13, s7, 14'); a('s_add_u32 s12, s12, s13'); a('s_lshl_b32 s12, s12, 10')
            a('s_lshl_b32 s13, s15, 8'); a('s_add_u32 s12, s12, s13')
            a('v_lshlrev_b32 v12, 10, v24'); a('v_lshl_add_u32 v12, v23, 4, v12'); a('v_add_u32 v12, s12, v12')
            a('v_mul_u32_u24 v13, 448, v24'); a('v_add_u32 v13, v13, v23'); a('v_add_u32 v13, s9, v13'); a('v_lshlrev_b32 v13, 4, v13')
            if wv == 2:
                a('s_mul_i32 s12, s2, 14336'); a('v_lshlrev_b32 v14, 7, v22'); a('v_add_u32 v14, s12, v14'); a('v_mov_b32 v18, 0')
                a('s_mov_b32 s57, %d', 16*28672)
            if wv == 3:
                a('s_lshl_b32 s12, s11, 2'); a('s_add_u32 s12, s12, s15'); a('s_lshl_b32 s12, s12, 11')
                a('s_lshl_b32 s13, s7, 9'); a('s_add_u32 s12, s12, s13'); a('s_lshl_b32 s13, s14, 7'); a('s_add_u32 s12, s12, s13')
                a('v_and_b32 v26, 1, v24'); a('v_lshlrev_b32 v18, 10, v26'); a('v_lshrrev_b32 v26, 1, v24'); a('v_lshl_add_u32 v18, v26, 8, v18')
                a('v_lshl_add_u32 v18, v23, 4, v18'); a('v_add_u32 v18, s12, v18')
                a('s_lshl_b32 s12, s11, 1'); a('s_add_u32 s12, s12, s7'); a('s_lshl_b32 s12, s12, 9'); a('s_add_u32 s12, s12, 24576')
                a('s_lshl_b32 s13, s15, 7'); a('s_add_u32 s12, s12, s13'); a('s_lshl_b32 s13, s14, 6'); a('s_add_u32 s12, s12, s13')
                a('v_lshlrev_b32 v19, 3, v23'); a('v_add_u32 v19, s12, v19')
                a('s_mul_i32 s12, s6, 28672'); a('s_mul_i32 s13, s7, 14336'); a('s_add_u32 s12, s12, s13'); a('v_add_u32 v14, s12, v3')
        for r_ in range(53, 60):
            if not (wv == 2 and r_ == 57): a('s_mov_b32 s%d, 0', r_)
        a('s_mov_b32 s55, %d', -16*8*896); a('s_mov_b32 s56, %d', -16*448*16)
        for r_ in range(88, 94): a('s_mov_b32 s%d, 0', r_)
        def gx_wait(L, step_reg_expr):
            a('s_and_b32 s13, s12, 7'); a('s_cmp_eq_u32 s13, 0'); a('s_cbranch_scc0 %s_ng', L)
            a('s_cmp_lt_u32 s12, 64'); a('s_cbranch_scc0 %s_ng', L)
            a('s_lshl_b32 s12, s12, 7'); a('s_add_u32 s12, s12, %d', F_GX)
            flag_poll(a, 76, 's12', 224, 20, 62, 'ch_done', 1)
            a.label(L + '_ng')
        def g_loads():
            for ks in range(14):
                if ks % 4 == 0: a('s_add_u32 s13, s57, %d', ks*1024)
                a('buffer_load_dwordx4 %s, v14, s[20:23], s13 offen offset:%d sc1', greg(ks), (ks%4)*1024)
            a('s_add_u32 s57, s57, %d', 16*28672)
        def g_load1(ks):
            a('s_add_u32 s13, s57, %d', (ks//4)*4096)
            a('buffer_load_dwordx4 %s, v14, s[20:23], s13 offen offset:%d sc1', greg(ks), (ks%4)*1024)
            if ks == 13:
                a('s_add_u32 s57, s57, %d', 16*28672); a('s_min_u32 s57, s57, %d', 63*16*28672)
        GP = opt('gp', 0)
        a('s_waitcnt vmcnt(0)')
        TS(11)
        if wv == 3:
            a('s_mov_b32 s12, 0'); gx_wait('ch_pro', None)
            TS(12)
            g_loads()
        if wv == 0: RT(a, 1)
        LP = 'ch_loop%d' % wv
        a.label(LP)
        if wv >= 2:
            PM = opt('pm', 3)
            SETS = [FR, ACC]
            def pl(b, ks=range(4)):
                for k in ks: a('buffer_load_dwordx4 %s, v%d, s[36:39], s53 offen offset:%d sc1', vr(SETS[b]+4*k), 15 if k < 2 else 17, (k&1)*2048)
            def chkm(R):
                a('v_max3_u32 v84, v%d, v%d, v%d', R, R+2, R+4); a('v_max3_u32 v85, v%d, v%d, v%d', R+6, R+8, R+10)
                a('v_max3_u32 v84, v84, v%d, v%d', R+12, R+14); a('v_max_u32 v84, v84, v85')
                a('v_cmp_eq_u32 vcc, -1, v84')
            def stage(R):
                TS(0); TV(13, 's62')
                for p in (2, 0):
                    for k in range(4):
                        a('ds_write2_b32 v16, v%d, v%d offset0:%d offset1:%d', R+4*k+p, R+4*k+p+1, 56*k+p, 56*k+p+1)
            a('s_mov_b32 s62, 0')
            if PM == 0:
                pl(0)
                a.label(LP + '_pm')
                for b in range(2):
                    R = SETS[b]
                    pl(1-b)
                    if b == 0:
                        a('s_add_u32 s62, s62, 1'); a('s_cmp_gt_u32 s62, %d', SPIN); a('s_cbranch_scc1 ch_done')
                    a('s_waitcnt vmcnt(4)')
                    chkm(R)
                    if b == 0: a('s_cbranch_vccz %s_g0', LP)
                    else: a('s_cbranch_vccnz %s_pm', LP)
                for b in (1, 0):
                    R = SETS[b]
                    if b == 0: a.label(LP + '_g0')
                    stage(R)
                    if b == 1: a('s_branch %s_g1', LP)
                a.label(LP + '_g1')
            elif PM == 1:
                R = FR
                a.label(LP + '_pm')
                pl(0, [0])
                a('s_add_u32 s62, s62, 1'); a('s_cmp_gt_u32 s62, %d', SPIN); a('s_cbranch_scc1 ch_done')
                a('s_waitcnt vmcnt(0)')
                a('v_max_u32 v84, v%d, v%d', R, R+2); a('v_cmp_eq_u32 vcc, -1, v84'); a('s_cbranch_vccnz %s_pm', LP)
                a.label(LP + '_pm2')
                pl(0, [1, 2, 3])
                a('s_add_u32 s62, s62, 1'); a('s_cmp_gt_u32 s62, %d', SPIN); a('s_cbranch_scc1 ch_done')
                a('s_waitcnt vmcnt(0)')
                chkm(R); a('s_cbranch_vccnz %s_pm2', LP)
                stage(R)
            elif PM == 2:
                R = FR
                a.label(LP + '_pm')
                pl(0)
                a('s_add_u32 s62, s62, 1'); a('s_cmp_gt_u32 s62, %d', SPIN); a('s_cbranch_scc1 ch_done')
                a('s_waitcnt vmcnt(0)')
                chkm(R); a('s_cbranch_vccnz %s_pm', LP)
                stage(R)
            elif PM == 3:
                R = FR
                a('s_sleep %d', opt('pms', 4))
                TS(14)
                a.label(LP + '_pm')
                pl(0)
                a('s_add_u32 s62, s62, 1'); a('s_cmp_gt_u32 s62, %d', SPIN); a('s_cbranch_scc1 ch_done')
                a('s_waitcnt vmcnt(0)')
                chkm(R); a('s_cbranch_vccnz %s_pm', LP)
                stage(R)
            a('s_waitcnt lgkmcnt(0)')
        a('s_barrier')
        if wv >= 2: a('s_waitcnt vmcnt(0)')
        TS(1)
        NR = 4 if wv == 3 else 3
        def rd(ks): a('ds_read_b128 %s, v1 offset:%d', vr(FR+4*(ks%NR)), L_MEM + ks*64)
        def mf(acc, A, B, first):
            a('v_mfma_f32_16x16x32_bf16 %s, %s, %s, %s', acc, A, B, '0' if first else acc)
        def kloop(mfs, extra=None):
            for k_ in range(NR-1): rd(k_)
            for ks in range(14):
                a('s_waitcnt lgkmcnt(%d)', min(NR-2, 13-ks))
                for j, f in enumerate(mfs(ks, vr(FR+4*(ks%NR)))):
                    f()
                    if j == 0 and ks + NR-1 < 14: rd(ks+NR-1)
                    if extra: extra(ks, j)
        fill = []
        BK = [32, 36, 40, 56, 68, 72, 76, 80]
        def bulk_rd():
            for k in range(4):
                a('ds_read_b128 %s, v11 offset:%d', vr(BK[k]), L_TP + 1024*k)
                a('ds_read_b128 %s, v3 offset:%d', vr(BK[4+k]), L_ZM + 1024*k)
        def bulk_st(k):
            if k < 4:
                a('s_mov_b64 exec, s[%d:%d]', *((88, 89) if k < 3 else (90, 91))); a('s_add_u32 s12, s55, %d', 4096*k)
                pub2('buffer_store_dwordx4 %s, v12, s[28:31], s12 offen %s', vr(BK[k]))
            else:
                a('s_mov_b64 exec, s[92:93]'); a('s_add_u32 s12, s56, %d', 4*448*16*(k-4))
                pub2('buffer_store_dwordx4 %s, v13, s[32:35], s12 offen %s', vr(BK[k]))
            a('s_mov_b64 exec, -1')
        if wv == 3:
            GAc = ACC+12
            X = 60
            kloop(lambda ks, fr: [lambda: mf(vr(GAc), greg(ks), fr, ks == 0), lambda: mf(vr(ACC), wreg(0, ks), fr, ks == 0)])
            def F(s, *ar_): fill.append(lambda: a(s, *ar_))
            F('s_nop 3')
            for r_ in range(4): F('v_mul_f32 v%d, s60, v%d', X+r_, GAc+r_)
            F('v_max3_f32 v%d, v%d, v%d, v%d', X+4, X, X+1, X+2); F('v_max_f32 v%d, v%d, v%d', X+4, X+4, X+3)
            F('v_mov_b32 v%d, v%d', X+6, X+4); F('s_nop 1')
            F('v_permlane32_swap_b32 v%d, v%d', X+4, X+6); F('s_nop 1')
            F('v_max_f32 v%d, v%d, v%d', X+4, X+4, X+6); F('s_nop 0')
            F('v_mov_b32 v%d, v%d', X+6, X+4); F('s_nop 1')
            F('v_permlane16_swap_b32 v%d, v%d', X+4, X+6); F('s_nop 1')
            F('v_max_f32 v%d, v%d, v%d', X+4, X+4, X+6)
            for r_ in range(4): F('v_sub_f32 v%d, v%d, v%d', X+r_, X+r_, X+4)
            for r_ in range(4): F('v_exp_f32 v%d, v%d', X+r_, X+r_)
            F('s_nop 0')
            F('v_min_u32 v%d, 0xfffffffe, v%d', X, X)
            F('v_add_f32 v%d, v%d, v%d', X+5, X, X+1); F('v_add_f32 v%d, v%d, v%d', X+6, X+2, X+3)
            def st_e():
                a('s_mov_b64 exec, s[46:47]')
                pub('buffer_store_dwordx4 %s, v18, s[40:43], s54 offen %s', vr(X))
                a('s_mov_b64 exec, -1')
            fill.append(st_e)
            F('v_add_f32 v%d, v%d, v%d', X+5, X+5, X+6); F('s_nop 0')
            F('v_mov_b32 v%d, v%d', X+6, X+5); F('s_nop 1')
            F('v_permlane32_swap_b32 v%d, v%d', X+5, X+6); F('s_nop 1')
            F('v_add_f32 v%d, v%d, v%d', X+5, X+5, X+6); F('s_nop 0')
            F('v_mov_b32 v%d, v%d', X+6, X+5); F('s_nop 1')
            F('v_permlane16_swap_b32 v%d, v%d', X+5, X+6); F('s_nop 1')
            F('v_add_f32 v%d, v%d, v%d', X+5, X+5, X+6)
            F('v_min_u32 v%d, 0xfffffffe, v%d', X+4, X+4)
            def st_ml():
                a('s_mov_b64 exec, s[50:51]')
                pub('buffer_store_dwordx2 %s, v19, s[40:43], s54 offen %s', vr(X+4, 2))
                a('s_mov_b64 exec, -1')
            fill.append(st_ml)
            def exB(ks, j):
                for _ in range(2):
                    if fill: fill.pop(0)()
                if GP == 1 and ks < 7: g_load1(2*ks+j)
                if GP == 2 and ks >= 11: g_load1(2*(ks-11)+j)
            kloop(lambda ks, fr: [(lambda u=u: mf(vr(ACC+4*u), wreg(u, ks), fr, ks == 0)) for u in (1, 2)], exB)
            assert not fill
        else:
            def exT(ks, j):
                if wv < 2 and j == 1 and ks < 8 and not opt('noz'):
                    a('s_add_u32 s13, s58, %d', (8*wv+ks)*28672)
                    a('buffer_load_dwordx4 %s, v18, s[24:27], s13 offen sc1', ar(ZA+4*ks))
                if wv < 2 and j == 1 and ks == 8 and PRETOUCH:
                    if wv == 0:
                        a('s_add_u32 s12, s54, %d', SBS); a('buffer_load_dword v86, v19, s[40:43], s12 offen sc1')
                    else:
                        a('s_add_u32 s12, s53, 16384'); a('buffer_load_dword v86, v19, s[36:39], s12 offen sc1')
                if wv == 2 and j == 0 and ks == 0 and not opt('wb'):
                    a('s_cmp_lt_u32 s52, 2'); a('s_cbranch_scc1 %s_nf', LP)
                    a('s_mov_b64 exec, 1')
                    a('s_lshl_b32 s12, s52, 7'); a('s_lshl_b32 s13, s2, 2'); a('s_add_u32 s12, s12, s13'); a('s_sub_u32 s12, s12, 256')
                    a('buffer_store_dword v3, v3, s[96:99], s12 offen sc1')
                    a('s_mov_b64 exec, -1')
                    a.label(LP + '_nf')
                if wv == 2 and j == 0 and ks == 0 and opt('wb'):
                    LW = opt('lw', 59)
                    a('s_cmp_le_u32 s52, %d', LW+1); a('s_cselect_b32 s94, s63, 0')
                    a('s_cmp_lt_u32 s52, 2'); a('s_cbranch_scc1 %s_nf', LP)
                    a('s_cmp_eq_u32 s63, 0'); a('s_cbranch_scc1 %s_of', LP)
                    a('s_cmp_gt_u32 s52, %d', LW+2); a('s_cbranch_scc1 %s_of', LP)
                    if opt('wb') == 2:
                        a('s_and_b32 s12, s52, 7'); a('s_cmp_eq_u32 s12, 1'); a('s_cbranch_scc0 %s_nf', LP)
                    a('s_and_b32 s12, s52, 31'); a('s_cmp_eq_u32 s12, s2'); a('s_cbranch_scc0 %s_nf', LP)
                    a('buffer_wbl2 sc1')
                    a('s_branch %s_nf', LP)
                    a.label(LP + '_of')
                    a('s_mov_b64 exec, 1')
                    a('s_lshl_b32 s12, s52, 7'); a('s_lshl_b32 s13, s2, 2'); a('s_add_u32 s12, s12, s13'); a('s_sub_u32 s12, s12, 256')
                    a('buffer_store_dword v3, v3, s[96:99], s12 offen sc1')
                    a('s_mov_b64 exec, -1')
                    a.label(LP + '_nf')
                    a('s_cmp_eq_u32 s63, 0'); a('s_cbranch_scc1 %s_na', LP)
                    a('s_cmp_lt_u32 s52, 3'); a('s_cbranch_scc1 %s_na', LP)
                    a('s_cmp_gt_u32 s52, %d', LW+3); a('s_cbranch_scc1 %s_na', LP)
                    a('s_sub_u32 s12, s52, 1'); a('s_and_b32 s12, s12, 31'); a('s_cmp_eq_u32 s12, s2'); a('s_cbranch_scc0 %s_na', LP)
                    if opt('wb') == 2:
                        a('s_and_b32 s12, s52, 7'); a('s_cmp_eq_u32 s12, 2'); a('s_cbranch_scc0 %s_na', LP)
                        a('s_lshl_b32 s12, s52, 7'); a('s_sub_u32 s12, s12, 1280')
                        a('buffer_store_dwordx4 v[0:3], v3, s[96:99], s12 offen sc1')
                    else:
                        a('s_mov_b64 exec, 0xff')
                        a('s_lshl_b32 s12, s52, 7'); a('s_sub_u32 s12, s12, 384')
                        a('buffer_store_dwordx4 v[0:3], v3, s[96:99], s12 offen sc1')
                        a('s_mov_b64 exec, -1')
                    a.label(LP + '_na')
                if wv == 2 and j >= 1 and ks < 4 and not opt('nob'): bulk_st(2*ks + j-1)
                if wv == 2 and j == 1 and ks == opt('pfk', 8) and opt('pf', 0):
                    a('s_cmp_eq_u32 s52, 63'); a('s_cbranch_scc1 %s_npf', LP)
                    a('s_mov_b32 exec_hi, 0x00ffffff'); a('s_add_u32 s12, s57, 7168')
                    for srd in (20, 24):
                        a('buffer_atomic_or v18, v14, s[%d:%d], s57 offen', srd, srd+3)
                        a('buffer_atomic_or v18, v14, s[%d:%d], s12 offen', srd, srd+3)
                    a('s_mov_b64 exec, -1'); a('s_add_u32 s57, s57, %d', 16*28672)
                    a.label(LP + '_npf')
            if wv == 2: bulk_rd()
            kloop(lambda ks, fr: [(lambda u=u: mf(vr(ACC+4*u), wreg(u, ks), fr, ks == 0)) for u in range(nq)], exT)
        for u, t in enumerate(qt):
            a('ds_read_b64 %s, v2 offset:%d', vr(FR+2*u, 2), L_MEM + 32*t)
        if nq == 3:
            a('v_mov_b32 v%d, 0', FR+6); a('v_mov_b32 v%d, 0', FR+7)
            a('v_mov_b32 v%d, 0', TP+6); a('v_mov_b32 v%d, 0', TP+7)
            a.nop(2)
        else:
            a.nop(4)
        for u in range(nq):
            a('v_cvt_pk_bf16_f32 v%d, v%d, v%d', TP+2*u, ACC+4*u, ACC+4*u+1)
            a('v_cvt_pk_bf16_f32 v%d, v%d, v%d', TP+2*u+1, ACC+4*u+2, ACC+4*u+3)
        a('s_waitcnt lgkmcnt(0)'); a('s_nop 1')
        a('v_mfma_f32_16x16x32_bf16 %s, %s, %s, 0', vr(ACC), vr(TP), vr(FR))
        a('v_mfma_f32_16x16x32_bf16 %s, %s, %s, %s', vr(ACC), vr(TP+4), vr(FR+4), vr(ACC))
        for u, t in enumerate(qt):
            a('ds_write_b64 v4, %s offset:%d', vr(TP+2*u, 2), L_TP + 256*t)
        a.nop(8 - nq)
        if wv > 0:
            a('ds_write_b128 v6, %s offset:%d', vr(ACC), L_RED)
            a('s_waitcnt lgkmcnt(0)')
        a('s_barrier')
        if wv == 0:
            for k in range(1, 4): a('ds_read_b128 %s, v3 offset:%d', vr(GF+4*(k-1)), L_RED + k*1024)
            a('s_waitcnt lgkmcnt(1)')
            for r_ in range(4): a('v_add_f32 v%d, v%d, v%d', GF+r_, GF+r_, GF+4+r_)
            for r_ in range(4): a('v_add_f32 v%d, v%d, v%d', ACC+r_, ACC+r_, GF+r_)
            a('s_waitcnt lgkmcnt(0)')
            for r_ in range(4): a('v_add_f32 v%d, v%d, v%d', ACC+r_, ACC+r_, GF+8+r_)
            a('v_min_u32 v%d, 0xfffffffe, v%d', ACC, ACC)
            a('s_mov_b64 exec, s[44:45]')
            pub('buffer_store_dwordx4 %s, v11, s[40:43], s54 offen %s', vr(ACC))
            a('s_mov_b64 exec, -1')
        TS(2)
        a('v_xor_b32 v4, 4096, v4')
        E = 32; ML = 64; S0 = 20; S1 = [28, 68]; T = 72
        UAC = 72 if wv < 2 else ACC
        UP = 84 if wv < 2 else 60
        p1 = []
        if wv < 2:
            a('s_add_u32 s74, s54, %d', wv*8192); a('s_add_u32 s75, s54, %d', wv*8192+4096)
            a('s_add_u32 s14, s54, %d', 16384 + wv*4096); a('s_add_u32 s15, s54, %d', 24576 + wv*1024)
            for m in range(4):
                for q in range(2):
                    p1.append(lambda m=m, q=q: a('buffer_load_dwordx4 %s, v3, s[40:43], %s offen offset:%d sc1', vr(E+8*m+4*q), 's74' if m < 2 else 's75', (m&1)*2048 + q*1024))
            for c_ in range(2):
                p1.append(lambda c_=c_: a('buffer_load_dwordx2 %s, v15, s[40:43], s15 offen offset:%d sc1', vr(ML+2*c_, 2), 512*c_))
        def exU(ks, j):
            if wv < 2 and j == 1 and ks >= 4: p1[ks-4]()
            if wv == 3 and GP == 2 and ks < 2: g_load1(6 + 4*ks + j)
        kloop(lambda ks, fr: [(lambda k=k: mf(vr(UAC+4*k), fr, wreg(nq+k, ks), ks == 0)) for k in range(len(ut))], exU)
        def p2():
            for c_ in range(2):
                for q in range(2):
                    a('buffer_load_dwordx4 %s, v3, s[40:43], s14 offen offset:%d sc1', vr(S0+4*q if c_ == 0 else S1[q]), 2048*c_+1024*q)
        if wv < 2:
            p2(); a.nop(4)
            UP = UAC
        else:
            a.nop(8)
        for k in range(len(ut)):
            a('v_cvt_pk_bf16_f32 v%d, v%d, v%d', UP+2*k, UAC+4*k, UAC+4*k+1)
            a('v_cvt_pk_bf16_f32 v%d, v%d, v%d', UP+2*k+1, UAC+4*k+2, UAC+4*k+3)
        a('s_mov_b64 exec, s[48:49]')
        for k in range(len(ut)):
            a('ds_write_b64 v%d, %s', UA+k, vr(UP+2*k,2))
        a('s_mov_b64 exec, -1')
        if wv >= 2:
            if wv == 2:
                a('v_xor_b32 v11, 4096, v11')
                a('s_mov_b64 s[88:89], -1'); a('s_mov_b64 s[90:91], s[84:85]'); a('s_mov_b64 s[92:93], s[72:73]')
                a('s_waitcnt vmcnt(0)')
            a('s_waitcnt lgkmcnt(0)')
            TS(3)
            a('s_barrier')
            if wv == 3:
                a('s_add_u32 s12, s52, 2'); gx_wait(LP, None)
                if not opt('nog') and GP == 0: g_loads()
            a('s_barrier')
            a('s_add_u32 s53, s53, 8192')
        else:
            TS(3)
            a('s_mov_b32 s62, 0')
            T2 = 84
            def chk1():
                a('v_max3_u32 v%d, v%d, v%d, v%d', T2, E, E+4, E+8); a('v_max3_u32 v%d, v%d, v%d, v%d', T2+1, E+12, E+16, E+20)
                a('v_max3_u32 v%d, v%d, v%d, v%d', T2, T2, E+24, E+28); a('v_max3_u32 v%d, v%d, v%d, v%d', T2+1, T2+1, ML, ML+2)
                a('v_max_u32 v%d, v%d, v%d', T2, T2, T2+1)
                a('v_cmp_eq_u32 vcc, -1, v%d', T2)
            a('s_waitcnt vmcnt(4)')
            chk1(); a('s_cbranch_vccz %s_p1d', LP)
            a.label(LP + '_p1')
            for f in p1: f()
            a('s_add_u32 s62, s62, 1'); a('s_cmp_gt_u32 s62, %d', SPIN); a('s_cbranch_scc1 ch_done')
            a('s_waitcnt vmcnt(0)')
            chk1(); a('s_cbranch_vccnz %s_p1', LP)
            a.label(LP + '_p1d')
            TS(7)
            a('s_waitcnt lgkmcnt(0)')
            a('v_max_f32 v%d, v%d, v%d', T+6, ML, ML+2)
            a('s_branch %s_p2c', LP)
            a.label(LP + '_p2')
            p2()
            a('s_add_u32 s62, s62, 1'); a('s_cmp_gt_u32 s62, %d', SPIN); a('s_cbranch_scc1 ch_done')
            a.label(LP + '_p2c')
            a('s_waitcnt vmcnt(0)')
            a('v_max3_u32 v%d, v%d, v%d, v%d', T2, S0, S0+4, S1[0]); a('v_max_u32 v%d, v%d, v%d', T2, T2, S1[1])
            a('v_cmp_eq_u32 vcc, -1, v%d', T2); a('s_cbranch_vccnz %s_p2', LP)
            TS(4); TV(13, 's62')
            for q in range(4): a('v_pk_add_f32 %s, %s, %s', vr(S0+2*q,2), vr(S0+2*q,2), vr(S1[q>>1]+2*(q&1),2))
            M_ = T+4
            a('v_max3_f32 v%d, v%d, v%d, v%d', M_, S0, S0+1, S0+2); a('v_max3_f32 v%d, v%d, v%d, v%d', M_+1, S0+3, S0+4, S0+5)
            a('v_max3_f32 v%d, v%d, v%d, v%d', M_, M_, S0+6, S0+7); a('v_max_f32 v%d, v%d, v%d', M_, M_, M_+1)
            a('v_mul_f32 v%d, s60, v%d', M_, M_); a('v_max_f32 v%d, v%d, v%d', M_, M_, T+6)
            a('v_sub_f32 v%d, v%d, v%d', T, ML, M_); a('v_sub_f32 v%d, v%d, v%d', T+1, ML+2, M_)
            for q in range(4):
                a('v_pk_fma_f32 %s, %s, s[60:61], %s op_sel_hi:[1,1,0] neg_lo:[0,0,1] neg_hi:[0,0,1]', vr(S0+2*q,2), vr(S0+2*q,2), vr(M_,2))
            a('v_exp_f32 v%d, v%d', T, T); a('v_exp_f32 v%d, v%d', T+1, T+1)
            for q in range(8): a('v_exp_f32 v%d, v%d', S0+q, S0+q)
            a('v_mul_f32 v%d, v%d, v%d', T+2, T, ML+1); a('v_fma_f32 v%d, v%d, v%d, v%d', T+2, T+1, ML+3, T+2)
            a('v_pk_add_f32 %s, %s, %s', vr(T+4,2), vr(S0,2), vr(S0+2,2)); a('v_pk_add_f32 %s, %s, %s', vr(T+6,2), vr(S0+4,2), vr(S0+6,2))
            a('v_pk_add_f32 %s, %s, %s', vr(T+4,2), vr(T+4,2), vr(T+6,2))
            a('v_add_f32 v%d, v%d, v%d', T+2, T+2, T+4); a('v_add_f32 v%d, v%d, v%d', T+2, T+2, T+5)
            a('v_rcp_f32 v%d, v%d', T+4, T+2); a('s_nop 0')
            a('v_pk_mul_f32 %s, %s, %s op_sel_hi:[1,0]', vr(T,2), vr(T,2), vr(T+4,2))
            a('s_nop 1')
            a('v_permlane32_swap_b32 v%d, v%d', T, T+1); a('s_nop 0')
            a('v_mov_b32 v%d, v%d', T+2, T); a('v_mov_b32 v%d, v%d', T+3, T+1)
            a('s_barrier')
            a('s_nop 0')
            a('v_permlane16_swap_b32 v%d, v%d', T, T+2); a('v_permlane16_swap_b32 v%d, v%d', T+1, T+3)
            for hh in range(2): a('ds_read_b128 %s, v3 offset:%d', vr(S1[hh]), L_ZM + (2*wv+hh)*1024)
            A1 = E+4; A2 = ML
            Fsel = [(T, 0), (T+2, 0), (T, 1), (T+2, 1)]
            for m in range(4):
                fb, hi = Fsel[m]
                for q in range(4):
                    a('v_pk_mul_f32 %s, %s, %s %s', vr(E+8*m+2*q,2), vr(E+8*m+2*q,2), vr(fb,2), 'op_sel:[0,1] op_sel_hi:[1,1]' if hi else 'op_sel_hi:[1,0]')
                for q in range(4):
                    a('v_cvt_pk_bf16_f32 v%d, v%d, v%d', E+8*m+q, E+8*m+2*q, E+8*m+2*q+1)
                if m == 3:
                    for q in range(4):
                        a('v_pk_mul_f32 %s, %s, %s op_sel_hi:[1,0]', vr(S0+2*q,2), vr(S0+2*q,2), vr(T+4,2))
                else:
                    a('s_nop 1')
                a('v_mfma_f32_16x16x32_bf16 %s, %s, %s, %s', vr(A1), ar(ZA+4*m), vr(E+8*m), '0' if m == 0 else vr(A1))
                a('v_mfma_f32_16x16x32_bf16 %s, %s, %s, %s', vr(A2), ar(ZA+16+4*m), vr(E+8*m), '0' if m == 0 else vr(A2))
            for q in range(4): a('v_cvt_pk_bf16_f32 v%d, v%d, v%d', S0+q, S0+2*q, S0+2*q+1)
            a('s_waitcnt lgkmcnt(0)'); a('s_nop 0')
            a('v_mfma_f32_16x16x32_bf16 %s, %s, %s, %s', vr(A1), vr(S1[0]), vr(S0), vr(A1))
            a('v_mfma_f32_16x16x32_bf16 %s, %s, %s, %s', vr(A2), vr(S1[1]), vr(S0), vr(A2))
            TS(5)
            a('s_add_u32 s53, s53, 8192'); a('s_add_u32 s58, s58, %d', 16*28672)
            a.nop(7)
            for r_ in range(4):
                a('v_add_f32_dpp v%d, v%d, v%d row_ror:8 row_mask:0xf bank_mask:0xf', A1+r_, A2+r_, A1+r_)
            if wv == 1:
                a('ds_write_b128 v3, %s offset:%d', vr(A1), L_RED2)
                a('s_waitcnt lgkmcnt(0)')
            a('s_barrier')
            if wv == 0:
                a('ds_read_b128 %s, v3 offset:%d', vr(A2), L_RED2)
                a('s_waitcnt lgkmcnt(0)')
                for r_ in range(4): a('v_add_f32 v%d, v%d, v%d', A1+r_, A1+r_, A2+r_)
                a('v_cvt_pk_bf16_f32 v%d, v%d, v%d', T, A1, A1+1); a('v_cvt_pk_bf16_f32 v%d, v%d, v%d', T+1, A1+2, A1+3)
                a('v_min_u32 v%d, 0xfffffffe, v%d', T, T)
                a('s_mov_b64 exec, s[46:47]')
                pub('buffer_store_dwordx2 %s, v14, s[36:39], s53 offen %s', vr(T,2))
                if opt('dup'):
                    a('buffer_store_dwordx2 %s, v14, s[28:31], s53 offen sc1', vr(T,2))
                a('s_mov_b64 exec, -1')
            else:
                pass
            TS(6)
        a('s_add_u32 s52, s52, 1'); a('s_add_u32 s54, s54, %d', SBS); a('s_add_u32 s55, s55, %d', 16*8*896); a('s_add_u32 s56, s56, %d', 16*448*16)
        a('s_cmp_lt_u32 s52, 64'); a('s_cbranch_scc1 %s', LP)
        if wv == 2:
            a('s_mov_b32 s94, 0')
            bulk_rd(); a('s_waitcnt lgkmcnt(0)')
            for k in range(8): bulk_st(k)
            a('s_waitcnt vmcnt(0)')
            a('s_mov_b64 exec, 1')
            a('s_lshl_b32 s13, s2, 2'); a('s_add_u32 s12, s13, %d', 62*128)
            a('buffer_store_dword v3, v3, s[96:99], s12 offen sc1')
            a('buffer_store_dword v3, v3, s[96:99], s12 offen offset:128 sc1')
            a('s_mov_b64 exec, -1')
        a('s_waitcnt vmcnt(0)')
        a('s_branch ch_done')
    a.label('ch_done')
    RT(a, 2)
    a('s_endpgm')

NEG = 0xf149f2ca
def k_bfin(a):

    a('s_load_dwordx2 s[4:5], s[0:1], %d', KA['ws'])
    a('s_load_dwordx2 s[6:7], s[0:1], %d', KA['B_x'])
    a('s_load_dwordx2 s[8:9], s[0:1], %d', KA['out'])
    a('v_lshrrev_b32 v1, 6, v0'); a('v_and_b32 v2, 63, v0'); a('s_nop 0')
    a('v_readfirstlane_b32 s10, v1')
    a('v_and_b32 v3, 31, v2'); a('v_lshrrev_b32 v4, 5, v2')
    perm(a, 5, 3, 6)
    a('s_waitcnt lgkmcnt(0)')
    a.srd(12, 6, 7, 2048*896); a.srd(16, 4, 5, SZ_GX, WS_GX); a.srd(20, 4, 5, SZ_VW, WS_VW)
    a.srd(24, 4, 5, SZ_TM, WS_TM); a.srd(28, 4, 5, SZ_UT, WS_UT); a.srd(32, 8, 9, 2048*1792); a.srd(76, 4, 5, SZ_MF, WS_MF)
    a('s_lshl_b32 s11, s100, 5'); a('v_add_u32 v6, s11, v3'); a('v_mul_u32_u24 v6, 896, v6'); a('v_lshl_add_u32 v6, v4, 4, v6')
    for ks in range(28):
        a('buffer_load_dwordx4 %s, v6, s[12:15], 0 offen offset:%d', ar(4*ks), ks*32)
    a('v_lshrrev_b32 v7, 4, v5'); a('v_mul_u32_u24 v7, 14336, v7'); a('v_lshl_add_u32 v7, v4, 8, v7'); a('v_and_b32 v8, 15, v5'); a('v_lshl_add_u32 v7, v8, 4, v7')
    a('v_lshlrev_b32 v8, 5, v3'); a('v_lshl_add_u32 v8, v4, 4, v8')
    a('s_lshl_b32 s36, s100, 2'); a('s_add_u32 s36, s36, s10')
    a('s_mul_i32 s37, s36, 28672')
    a('s_mul_i32 s38, s36, %d', 4*28672)
    B0 = 16; B1A = 112; ACC = 128
    def buf(b, ks): return vr(B0+4*ks) if b == 0 else ar(B1A+4*ks)
    def ld(stream, b):
        for ks in range(28):
            if ks % 4 == 0:
                if stream == 0: a('s_add_u32 s39, s37, %d', ks*1024)
                else: a('s_add_u32 s39, s38, %d', (stream-1)*28672 + ks*512)
            if stream == 0: a('buffer_load_dwordx4 %s, v8, s[24:27], s39 offen offset:%d sc1', buf(b, ks), (ks%4)*1024)
            else: a('buffer_load_dwordx4 %s, v7, s[16:19], s39 offen offset:%d sc1', buf(b, ks), (ks%4)*512)
    a('v_lshlrev_b32 v9, 3, v4'); a('v_sub_u32 v9, v3, v9')
    for i in range(16):
        q, r_ = i >> 2, i & 3
        a('v_cmp_le_i32 s[%d:%d], %d, v9', 40+2*i, 41+2*i, 16*(q>>1) + 4*(q&1) + r_)
    a('s_mov_b32 s72, 0x%x', 0x3db8aa3b)
    a('v_mov_b32 v10, 0x%x', NEG)
    a('s_lshr_b32 s11, s100, 3'); a('s_lshl_b32 s11, s11, 10'); a('s_add_u32 s11, s11, %d', F_GX)
    flag_wait(a, 96, 's11', 224, 208, 74, 'wk_done')
    order = [1, 2, 3, 4, 0]
    ld(1, 0); ld(2, 1)
    for oi, st in enumerate(order):
        b = oi % 2
        a('s_waitcnt vmcnt(28)' if oi < 3 else 's_waitcnt vmcnt(0)')
        for ks in range(28):
            acc = vr(ACC+16*st, 16)
            a('v_mfma_f32_32x32x16_bf16 %s, %s, %s, %s', acc, buf(b, ks), ar(4*ks), '0' if ks == 0 else acc)
        if oi + 2 < 4:
            a('s_nop 0'); ld(order[oi+2], b)
        if oi == 3:
            a('s_lshl_b32 s11, s100, 7'); a('v_lshlrev_b32 v13, 2, v3'); a('s_mov_b32 s74, 0')
            a.label('bf_wm')
            a('buffer_load_dword v12, v13, s[76:79], s11 offen sc1')
            a('s_add_u32 s74, s74, 1'); a('s_cmp_gt_u32 s74, %d', WSPIN); a('s_cbranch_scc1 wk_done')
            a('s_waitcnt vmcnt(0)')
            a('v_cmp_eq_u32 vcc, -1, v12'); a('s_cbranch_vccz bf_m'); a('s_sleep 16'); a('s_branch bf_wm')
            a.label('bf_m')
            ld(0, 0)
    a.nop(16)
    a('v_lshlrev_b32 v11, 4, v2')
    a('s_lshl_b32 s11, s10, 13'); a('v_add_u32 v12, s11, v11')
    a('s_lshl_b32 s11, s10, 11'); a('v_add_u32 v13, s11, v11')
    T = 16; PMR = 40
    for hl in range(4):
        S = ACC + 16*(hl+1); Mm = ACC + 4*hl
        for i in range(16):
            a('v_cndmask_b32_e64 v%d, v10, v%d, s[%d:%d]', S+i, S+i, 40+2*i, 41+2*i)
        a('v_max3_f32 v%d, v%d, v%d, v%d', T, S, S+1, S+2)
        for i in range(6): a('v_max3_f32 v%d, v%d, v%d, v%d', T, T, S+3+2*i, S+4+2*i)
        a('v_max3_f32 v%d, v%d, v%d, v%d', T, T, S+15, Mm)
        a('v_max3_f32 v%d, v%d, v%d, v%d', T, T, Mm+1, Mm+2); a('v_max_f32 v%d, v%d, v%d', T, T, Mm+3)
        a('v_mov_b32 v%d, v%d', T+1, T); a('s_nop 1')
        a('v_permlane32_swap_b32 v%d, v%d', T, T+1); a('s_nop 1')
        a('v_max_f32 v%d, v%d, v%d', T, T, T+1)
        a('v_mul_f32 v%d, s72, v%d', T, T)
        for i in range(16): a('v_fma_f32 v%d, v%d, s72, -v%d', S+i, S+i, T)
        for i in range(4): a('v_fma_f32 v%d, v%d, s72, -v%d', Mm+i, Mm+i, T)
        for i in range(16): a('v_exp_f32 v%d, v%d', S+i, S+i)
        for i in range(4): a('v_exp_f32 v%d, v%d', Mm+i, Mm+i)
        a('s_nop 0')
        a('v_add_f32 v%d, v%d, v%d', T, S, S+1)
        for i in range(2, 16): a('v_add_f32 v%d, v%d, v%d', T, T, S+i)
        for i in range(4): a('v_add_f32 v%d, v%d, v%d', T, T, Mm+i)
        a('v_mov_b32 v%d, v%d', T+1, T); a('s_nop 1')
        a('v_permlane32_swap_b32 v%d, v%d', T, T+1); a('s_nop 1')
        a('v_add_f32 v%d, v%d, v%d', T, T, T+1)
        a('v_rcp_f32 v%d, v%d', T, T); a('s_nop 0')
        for i in range(16): a('v_mul_f32 v%d, v%d, v%d', S+i, S+i, T)
        for i in range(4): a('v_mul_f32 v%d, v%d, v%d', Mm+i, Mm+i, T)
        for i in range(8): a('v_cvt_pk_bf16_f32 v%d, v%d, v%d', T+8+i, S+2*i, S+2*i+1)
        for i in range(2): a('v_cvt_pk_bf16_f32 v%d, v%d, v%d', PMR+2*hl+i, Mm+2*i, Mm+2*i+1)
        a('ds_write_b128 v12, %s offset:%d', vr(T+8), hl*2048); a('ds_write_b128 v12, %s offset:%d', vr(T+12), hl*2048+1024)
        a('s_nop 1')
    for hp in range(2): a('ds_write_b128 v13, %s offset:%d', vr(PMR+4*hp), 32768 + hp*1024)
    a('s_waitcnt lgkmcnt(0)'); a('s_barrier')
    for i in range(40):
        a('ds_read_b128 %s, v11 offset:%d', ar(4*i), i*1024)
    a('s_mul_i32 s11, s100, %d', 16*448); a('s_lshl_b32 s36, s10, 5'); a('s_add_u32 s11, s11, s36')
    a('v_add_u32 v8, s11, v5')
    a('s_mul_i32 s37, s100, %d', 16*28672); a('v_add_u32 v6, s36, v5'); a('v_lshlrev_b32 v6, 4, v6'); a('v_add_u32 v6, s37, v6')
    a('v_mul_u32_u24 v7, 7168, v4'); a('v_add_u32 v6, v6, v7')
    a('v_lshlrev_b32 v7, 4, v8'); a('v_lshl_add_u32 v7, v4, 3, v7')
    a('s_lshl_b32 s11, s100, 5'); a('v_add_u32 v9, s11, v3'); a('v_mul_u32_u24 v9, 1792, v9'); a('v_lshl_add_u32 v9, v4, 4, v9')
    a('s_lshl_b32 s36, s10, 6'); a('s_add_u32 s36, s36, 896'); a('v_add_u32 v9, s36, v9')
    OB = [16, 96]; OA = 176; OT = 192
    def ld2(it, hh, b):
        for h8 in range(8):
            h = 8*hh + h8
            for k2 in range(2):
                a('s_mov_b32 s39, %d', h*28672 + it*2048 + k2*14336)
                a('buffer_load_dwordx4 %s, v6, s[20:23], s39 offen sc1', vr(OB[b]+8*h8+4*k2))
            a('s_mov_b32 s39, %d', h*448*16 + it*128*16)
            a('buffer_load_dwordx2 %s, v7, s[28:31], s39 offen sc1', vr(OB[b]+64+2*h8, 2))
    units = [(it, hh) for it in range(4) for hh in range(2)]
    ld2(0, 0, 0)
    a('s_waitcnt lgkmcnt(0)')
    for ui, (it, hh) in enumerate(units):
        b = ui % 2
        if it == 3 and hh == 0:
            a('s_cmp_ge_u32 s10, 2'); a('s_cbranch_scc1 wk_loop')
        if ui + 1 < len(units):
            ld2(units[ui+1][0], units[ui+1][1], 1-b); a('s_waitcnt vmcnt(24)')
        else:
            a('s_waitcnt vmcnt(0)')
        acc = vr(OA, 16)
        for h8 in range(8):
            h = 8*hh + h8
            for k2 in range(2):
                a('v_mfma_f32_32x32x16_bf16 %s, %s, %s, %s', acc, vr(OB[b]+8*h8+4*k2), ar(8*h+4*k2), '0' if (hh == 0 and h8 == 0 and k2 == 0) else acc)
        for hp in range(4):
            a('v_mfma_f32_32x32x16_bf16 %s, %s, %s, %s', acc, vr(OB[b]+64+4*hp), ar(128+4*(4*hh+hp)), acc)
        if hh == 1:
            a.nop(16)
            for i in range(8): a('v_cvt_pk_bf16_f32 v%d, v%d, v%d', OT+i, OA+2*i, OA+2*i+1)
            for qq in range(2):
                a('buffer_store_dwordx4 %s, v9, s[32:35], 0 offen offset:%d', vr(OT+4*qq), it*256 + qq*32)
            a('s_nop 1')
    a('s_branch wk_loop')

def k_fold(a):
    a('s_load_dwordx4 s[4:7], s[0:1], %d', KA['A_wqkv'])
    a('s_load_dwordx2 s[8:9], s[0:1], %d', KA['A_wo'])
    a('s_load_dwordx2 s[10:11], s[0:1], %d', KA['ws'])
    a('v_lshrrev_b32 v1, 6, v0'); a('v_and_b32 v2, 63, v0'); a('s_nop 0')
    a('v_readfirstlane_b32 s3, v1')
    a('v_and_b32 v3, 31, v2'); a('v_lshrrev_b32 v4, 5, v2')
    a('s_waitcnt lgkmcnt(0)')
    a.srd(12, 4, 5, 448*1344*2); a.srd(16, 6, 7, 16*784*2); a.srd(20, 8, 9, 448*448*2)
    a.srd(24, 10, 11, SZ_WA, WS_WA); a.srd(28, 10, 11, SZ_WOT, WS_WOT)
    a('v_mov_b32 v9, 0x7ffffff0')
    a('s_cmp_ge_u32 s100, 224'); a('s_cbranch_scc1 fo_wo')
    a('s_cmp_ge_u32 s100, 112'); a('s_cbranch_scc1 fo_v')
    a('s_lshl_b32 s32, s100, 2'); a('s_add_u32 s32, s32, s3')
    a('s_mul_i32 s33, s32, 4682'); a('s_lshr_b32 s33, s33, 16')
    a('s_mul_i32 s34, s33, 14'); a('s_sub_u32 s34, s32, s34')
    a('s_lshr_b32 s35, s33, 4'); a('s_and_b32 s36, s33, 15')
    perm(a, 5, 3, 6)
    a('s_lshl_b32 s37, s34, 5'); a('v_add_u32 v6, s37, v5'); a('v_mul_u32_u24 v6, 2688, v6')
    a('s_mul_i32 s37, s35, 896'); a('s_mul_i32 s38, s36, 56'); a('s_add_u32 s37, s37, s38'); a('v_add_u32 v6, s37, v6')
    a('v_lshl_add_u32 v6, v4, 4, v6')
    for ks in range(2):
        a('buffer_load_dwordx4 %s, v6, s[12:15], 0 offen offset:%d', vr(16+4*ks), ks*32)
    a('s_mul_i32 s37, s36, 1568'); a('v_lshlrev_b32 v7, 1, v3'); a('v_add_u32 v7, s37, v7')
    a('v_mul_u32_u24 v8, 448, v4'); a('v_add_u32 v7, v7, v8')
    a('v_cmp_gt_u32 vcc, 28, v3'); a('s_nop 1'); a('v_cndmask_b32 v7, v9, v7, vcc')
    a('v_cmp_eq_u32 vcc, 0, v4'); a('s_nop 1'); a('v_cndmask_b32 v8, v9, v7, vcc')
    for ks in range(2):
        for q in range(8):
            a('buffer_load_ushort v%d, v%d, s[16:19], 0 offen offset:%d', 32+8*ks+q, 8 if (ks == 1 and q >= 4) else 7, (16*ks+q)*56)
    a('s_waitcnt vmcnt(0)')
    for i in range(8): a('v_lshl_or_b32 v%d, v%d, 16, v%d', 24+i, 32+2*i+1, 32+2*i)
    a('s_nop 1')
    a('v_mfma_f32_32x32x16_bf16 %s, %s, %s, 0', vr(48,16), vr(16), vr(24))
    a('v_mfma_f32_32x32x16_bf16 %s, %s, %s, %s', vr(48,16), vr(20), vr(28), vr(48,16))
    a.nop(18)
    for i in range(8): a('v_cvt_pk_bf16_f32 v%d, v%d, v%d', 64+i, 48+2*i, 49+2*i)
    a('s_lshl_b32 s37, s33, 5'); a('v_add_u32 v6, s37, v3'); a('v_mul_u32_u24 v6, 896, v6')
    a('s_lshl_b32 s37, s34, 6'); a('v_add_u32 v6, s37, v6'); a('v_lshl_add_u32 v6, v4, 4, v6')
    for qq in range(2):
        a('buffer_store_dwordx4 %s, v6, s[24:27], 0 offen offset:%d sc1', vr(64+4*qq), qq*32)
    a('s_branch fo_done')
    a.label('fo_v')
    a('s_sub_u32 s32, s100, 112'); a('s_lshl_b32 s32, s32, 8'); a('v_add_u32 v5, s32, v0')
    a('v_and_b32 v6, 511, v5'); a('v_lshrrev_b32 v7, 9, v5')
    a('v_lshrrev_b32 v8, 5, v6'); a('v_mul_u32_u24 v8, 28, v8'); a('v_add_u32 v8, v8, v3')
    a('v_mul_u32_u24 v10, %d, v7', 8*1344); a('v_add_u32 v8, v8, v10'); a('v_add_u32 v8, 896, v8'); a('v_lshlrev_b32 v8, 1, v8')
    a('v_cmp_gt_u32 vcc, 28, v3'); a('s_nop 1'); a('v_cndmask_b32 v8, v9, v8, vcc')
    a('s_mov_b32 s33, 0')
    for q in range(8):
        a('buffer_load_ushort v%d, v8, s[12:15], s33 offen', 32+q)
        a('s_add_u32 s33, s33, 2688')
    a('v_add_u32 v6, 1024, v6'); a('v_mul_u32_u24 v6, 896, v6'); a('v_lshl_add_u32 v6, v7, 4, v6')
    a('s_waitcnt vmcnt(0)')
    for i in range(4): a('v_lshl_or_b32 v%d, v%d, 16, v%d', 24+i, 32+2*i+1, 32+2*i)
    a('buffer_store_dwordx4 %s, v6, s[24:27], 0 offen sc1', vr(24))
    a('s_branch fo_done')
    a.label('fo_wo')
    a('s_sub_u32 s32, s100, 224'); a('s_lshl_b32 s32, s32, 2'); a('s_add_u32 s32, s32, s3')
    a('s_mov_b32 s33, 0x24924925'); a('s_mul_hi_u32 s33, s32, s33')
    a('s_mul_i32 s34, s33, 7'); a('s_sub_u32 s34, s32, s34')
    a('s_lshr_b32 s35, s33, 2'); a('s_and_b32 s36, s33, 3')
    a('s_lshl_b32 s37, s34, 6'); a('v_add_u32 v5, s37, v2')
    a('s_mul_i32 s37, s35, 28'); a('s_lshl_b32 s38, s36, 3'); a('s_add_u32 s37, s37, s38'); a('s_mul_i32 s37, s37, 896')
    a('v_lshlrev_b32 v6, 1, v5'); a('v_add_u32 v6, s37, v6')
    a('s_cmp_eq_u32 s36, 3'); a('s_cselect_b64 vcc, -1, 0'); a('v_cndmask_b32 v7, v6, v9, vcc')
    a('s_movk_i32 s39, 3584')
    for q in range(8):
        a('buffer_load_ushort v%d, v%d, s[20:23], %s offen offset:%d', 32+q, 7 if q >= 4 else 6, 's39' if q >= 4 else '0', (q&3)*896)
    a('v_lshlrev_b32 v8, 10, v5'); a('s_lshl_b32 s37, s33, 4'); a('v_add_u32 v8, s37, v8')
    a('s_waitcnt vmcnt(0)')
    for i in range(4): a('v_lshl_or_b32 v%d, v%d, 16, v%d', 24+i, 32+2*i+1, 32+2*i)
    a('buffer_store_dwordx4 %s, v8, s[28:31], 0 offen sc1', vr(24))
    a.label('fo_done')
    flag_set(a, 96, F_FOLD, 's100', 12, 74, 'wk_done')
    a('s_branch wk_loop')

LOG2E = 0x3fb8aa3b
def k_a1(a):
    flag_wait(a, 96, F_FOLD, 336, 12, 74, 'wk_done')
    flag_wait(a, 96, F_M, 224, 12, 74, 'wk_done')
    a('s_load_dwordx2 s[4:5], s[0:1], %d', KA['ws'])
    a('s_load_dwordx2 s[6:7], s[0:1], %d', KA['A_x'])
    a('v_lshrrev_b32 v1, 6, v0'); a('v_and_b32 v2, 63, v0'); a('s_nop 0')
    a('v_readfirstlane_b32 s10, v1')
    a('v_and_b32 v3, 31, v2'); a('v_lshrrev_b32 v4, 5, v2')
    a('s_and_b32 s8, s100, 15'); a('s_lshr_b32 s9, s100, 4')
    a('s_waitcnt lgkmcnt(0)')
    a.srd(12, 6, 7, 2048*896); a.srd(16, 4, 5, SZ_WA, WS_WA); a.srd(20, 4, 5, SZ_KV, WS_KV)
    a('s_lshl_b32 s11, s9, 2'); a('s_add_u32 s11, s11, s10'); a('s_lshl_b32 s11, s11, 5')
    a('v_add_u32 v6, s11, v3'); a('v_mul_u32_u24 v6, 896, v6'); a('v_lshl_add_u32 v6, v4, 4, v6')
    a('s_lshl_b32 s11, s8, 5'); a('s_add_u32 s11, s11, 512'); a('v_add_u32 v7, s11, v3'); a('v_mul_u32_u24 v7, 896, v7'); a('v_lshl_add_u32 v7, v4, 4, v7')
    a('s_mov_b32 s24, %d', 512*896)
    XF = 16
    for ks in range(28):
        a('buffer_load_dwordx4 %s, v6, s[12:15], 0 offen offset:%d', vr(XF+4*ks), ks*32)
        a('buffer_load_dwordx4 %s, v7, s[16:19], 0 offen offset:%d sc1', ar(4*ks), ks*32)
        a('buffer_load_dwordx4 %s, v7, s[16:19], s24 offen offset:%d sc1', ar(112+4*ks), ks*32)
    P = 128; V = 144; MX = 160; MN = 176; T = 192; EP = 208; EN = 224
    a('v_cmp_gt_u32 s[26:27], 28, v3'); a('v_cmp_eq_u32 s[28:29], 28, v3')
    a('v_mov_b32 v8, 0x%x', NEG); a('v_mov_b32 v9, 0x%x', NEG ^ 0x80000000); a('s_mov_b32 s30, 0x%x', LOG2E)
    a('v_mov_b32 v10, 1.0'); a('v_mov_b32 v11, 0')
    for ks in range(28):
        if ks % 4 == 0: a('s_waitcnt vmcnt(%d)', min(63, max(0, 84 - 3*(ks+4))))
        a('v_mfma_f32_32x32x16_bf16 %s, %s, %s, %s', vr(P,16), vr(XF+4*ks), ar(4*ks), '0' if ks == 0 else vr(P,16))
        a('v_mfma_f32_32x32x16_bf16 %s, %s, %s, %s', vr(V,16), vr(XF+4*ks), ar(112+4*ks), '0' if ks == 0 else vr(V,16))
    a.nop(18)
    def allred(R, op):
        for sh in (8, 4, 2, 1):
            for i in range(16):
                a('%s_dpp v%d, v%d, v%d row_ror:%d row_mask:0xf bank_mask:0xf', op, R+i, R+i, R+i, sh)
        for i in range(16): a('v_mov_b32 v%d, v%d', T+i, R+i)
        for i in range(16): a('v_permlane16_swap_b32 v%d, v%d', R+i, T+i)
        for i in range(16): a('%s v%d, v%d, v%d', op, R+i, R+i, T+i)
    for i in range(16):
        a('v_cndmask_b32_e64 v%d, v8, v%d, s[26:27]', MX+i, P+i)
        a('v_cndmask_b32_e64 v%d, v9, v%d, s[26:27]', MN+i, P+i)
    allred(MX, 'v_max_f32'); allred(MN, 'v_min_f32')
    for i in range(16):
        a('v_sub_f32 v%d, v%d, v%d', EP+i, P+i, MX+i); a('v_sub_f32 v%d, v%d, v%d', EN+i, MN+i, P+i)
    for i in range(16):
        a('v_mul_f32 v%d, s30, v%d', EP+i, EP+i); a('v_mul_f32 v%d, s30, v%d', EN+i, EN+i)
    for i in range(16):
        a('v_exp_f32 v%d, v%d', EP+i, EP+i); a('v_exp_f32 v%d, v%d', EN+i, EN+i)
    for i in range(16):
        a('v_cndmask_b32_e64 v%d, v11, v%d, s[26:27]', EP+i, EP+i); a('v_cndmask_b32_e64 v%d, v11, v%d, s[26:27]', EN+i, EN+i)
    for i in range(16):
        a('v_mov_b32 v%d, v%d', MX+i, EP+i); a('v_mov_b32 v%d, v%d', MN+i, EN+i)
    allred(MX, 'v_add_f32'); allred(MN, 'v_add_f32')
    for i in range(16):
        a('v_rcp_f32 v%d, v%d', MX+i, MX+i); a('v_rcp_f32 v%d, v%d', MN+i, MN+i)
    for i in range(16):
        a('v_mul_f32 v%d, v%d, v%d', EP+i, EP+i, MX+i); a('v_mul_f32 v%d, v%d, v%d', EN+i, EN+i, MN+i)
        a('v_cndmask_b32_e64 v%d, v%d, v10, s[28:29]', V+i, V+i)
    FP = 16; FN = 24; FV = 32
    for i in range(8):
        a('v_cvt_pk_bf16_f32 v%d, v%d, v%d', FP+i, EP+2*i, EP+2*i+1)
        a('v_cvt_pk_bf16_f32 v%d, v%d, v%d', FN+i, EN+2*i, EN+2*i+1)
        a('v_cvt_pk_bf16_f32 v%d, v%d, v%d', FV+i, V+2*i, V+2*i+1)
    a('s_nop 1')
    K0 = 48
    for sg, F in enumerate((FP, FN)):
        for k2 in range(2):
            acc = vr(K0+16*sg, 16)
            a('v_mfma_f32_32x32x16_bf16 %s, %s, %s, %s', acc, vr(FV+4*k2), vr(F+4*k2), '0' if k2 == 0 else acc)
    a.nop(18)
    a('v_lshlrev_b32 v12, 4, v2'); a('s_lshl_b32 s11, s10, 10'); a('v_add_u32 v13, s11, v12')
    for rq in range(8): a('ds_write_b128 v13, %s offset:%d', vr(K0+4*rq), rq*4096)
    a('s_waitcnt lgkmcnt(0)'); a('s_barrier')
    a('s_lshl_b32 s11, s10, 13'); a('v_add_u32 v13, s11, v12')
    for e in range(2):
        for w in range(4): a('ds_read_b128 %s, v13 offset:%d', vr(80+16*e+4*w), e*4096 + w*1024)
    a('s_lshl_b32 s11, s8, 5'); a('s_and_b32 s24, s10, 1'); a('s_lshl_b32 s24, s24, 4'); a('s_add_u32 s11, s11, s24'); a('s_lshl_b32 s11, s11, 8')
    a('s_lshr_b32 s24, s10, 1'); a('s_lshl_b32 s24, s24, 7'); a('s_add_u32 s11, s11, s24')
    a('v_lshlrev_b32 v14, 10, v4'); a('v_lshl_add_u32 v14, v3, 2, v14'); a('v_add_u32 v14, s11, v14')
    a('s_waitcnt lgkmcnt(0)')
    for e in range(2):
        for r_ in range(4):
            b = 80+16*e+r_
            a('v_add_f32 v%d, v%d, v%d', b, b, b+4); a('v_add_f32 v%d, v%d, v%d', b+8, b+8, b+12); a('v_add_f32 v%d, v%d, v%d', b, b, b+8)
    for e in range(2):
        for r_ in range(4):
            a('buffer_atomic_add_f32 v%d, v14, s[20:23], 0 offen offset:%d sc1', 80+16*e+r_, (8*e+r_)*256)
    flag_set(a, 96, F_A1, 's100', 12, 74, 'wk_done')
    a('s_branch wk_loop')

def k_a2(a):
    flag_wait(a, 96, F_FOLD, 336, 12, 74, 'wk_done')
    a('s_load_dwordx2 s[4:5], s[0:1], %d', KA['ws'])
    a('s_load_dwordx2 s[6:7], s[0:1], %d', KA['A_x'])
    a('s_load_dwordx2 s[8:9], s[0:1], %d', KA['out'])
    a('v_lshrrev_b32 v1, 6, v0'); a('v_and_b32 v2, 63, v0'); a('s_nop 0')
    a('v_readfirstlane_b32 s10, v1')
    a('v_and_b32 v3, 31, v2'); a('v_lshrrev_b32 v4, 5, v2')
    perm(a, 5, 3, 6)
    a('s_waitcnt lgkmcnt(0)')
    a.srd(12, 6, 7, 2048*896); a.srd(16, 4, 5, SZ_WA, WS_WA); a.srd(20, 4, 5, SZ_KV, WS_KV)
    a.srd(24, 4, 5, SZ_WOT, WS_WOT); a.srd(32, 8, 9, 2048*1792)
    a('s_lshl_b32 s11, s100, 5'); a('v_add_u32 v6, s11, v3'); a('v_mul_u32_u24 v6, 896, v6'); a('v_lshl_add_u32 v6, v4, 4, v6')
    for ks in range(28):
        a('buffer_load_dwordx4 %s, v6, s[12:15], 0 offen offset:%d', ar(4*ks), ks*32)
    a('s_lshl_b32 s11, s10, 7'); a('v_add_u32 v8, s11, v5'); a('v_mul_u32_u24 v7, 896, v8'); a('v_lshl_add_u32 v7, v4, 4, v7')
    a('v_lshlrev_b32 v8, 8, v8'); a('v_lshl_add_u32 v8, v4, 5, v8')
    B0 = 16; B1A = 112; ACC = 128; KVF = 192
    def buf(b, ks): return vr(B0+4*ks) if b == 0 else ar(B1A+4*ks)
    def ld(hl, b):
        a('s_mov_b32 s39, %d', hl*32*896)
        for ks in range(28):
            a('buffer_load_dwordx4 %s, v7, s[16:19], s39 offen offset:%d sc1', buf(b, ks), ks*32)
    a('v_cmp_eq_u32 s[40:41], 0, v4')
    a('v_mov_b32 v9, 0x%x', NEG); a('v_mov_b32 v10, 0x%x', NEG ^ 0x80000000); a('s_mov_b32 s30, 0x%x', LOG2E); a('v_mov_b32 v11, 0')
    ld(0, 0); ld(1, 1)
    for hl in range(4):
        b = hl % 2
        a('s_waitcnt vmcnt(28)' if hl < 3 else 's_waitcnt vmcnt(0)')
        for ks in range(28):
            acc = vr(ACC+16*hl, 16)
            a('v_mfma_f32_32x32x16_bf16 %s, %s, %s, %s', acc, buf(b, ks), ar(4*ks), '0' if ks == 0 else acc)
        if hl + 2 < 4:
            a('s_nop 0'); ld(hl+2, b)
    a.nop(16)
    flag_wait(a, 96, F_A1, 256, 224, 74, 'wk_done')
    a('v_lshlrev_b32 v12, 4, v2'); a('s_lshl_b32 s11, s10, 13'); a('v_add_u32 v13, s11, v12')
    EP = 16; EN = 32; T = 48; FP = 56; FK = 72; O = 88; OF = 104
    for hl in range(4):
        S = ACC + 16*hl
        a('s_mov_b32 s39, %d', hl*32*256)
        for i in range(8):
            a('buffer_load_dwordx4 %s, v8, s[20:23], s39 offen offset:%d sc1', vr(KVF+4*i), (i>>1)*64 + (i&1)*16)
        for i in range(4):
            a('v_cndmask_b32_e64 v%d, v9, v%d, s[40:41]', T+i, S+12+i); a('v_cndmask_b32_e64 v%d, v10, v%d, s[40:41]', T+4+i, S+12+i)
        a('v_max3_f32 v%d, v%d, v%d, v%d', T, T, T+1, T+2); a('v_min3_f32 v%d, v%d, v%d, v%d', T+4, T+4, T+5, T+6)
        a('v_max_f32 v%d, v%d, v%d', T, T, T+3); a('v_min_f32 v%d, v%d, v%d', T+4, T+4, T+7)
        for i in range(6):
            a('v_max3_f32 v%d, v%d, v%d, v%d', T, T, S+2*i, S+2*i+1); a('v_min3_f32 v%d, v%d, v%d, v%d', T+4, T+4, S+2*i, S+2*i+1)
        a('v_mov_b32 v%d, v%d', T+1, T); a('v_mov_b32 v%d, v%d', T+5, T+4); a('s_nop 1')
        a('v_permlane32_swap_b32 v%d, v%d', T, T+1); a('v_permlane32_swap_b32 v%d, v%d', T+4, T+5); a('s_nop 1')
        a('v_max_f32 v%d, v%d, v%d', T, T, T+1); a('v_min_f32 v%d, v%d, v%d', T+4, T+4, T+5)
        for i in range(16):
            a('v_sub_f32 v%d, v%d, v%d', EP+i, S+i, T); a('v_sub_f32 v%d, v%d, v%d', EN+i, T+4, S+i)
        for i in range(16):
            a('v_mul_f32 v%d, s30, v%d', EP+i, EP+i); a('v_mul_f32 v%d, s30, v%d', EN+i, EN+i)
        for i in range(16):
            a('v_exp_f32 v%d, v%d', EP+i, EP+i); a('v_exp_f32 v%d, v%d', EN+i, EN+i)
        a('s_nop 0')
        for i in range(12, 16):
            a('v_cndmask_b32_e64 v%d, v11, v%d, s[40:41]', EP+i, EP+i); a('v_cndmask_b32_e64 v%d, v11, v%d, s[40:41]', EN+i, EN+i)
        a('v_add_f32 v%d, v%d, v%d', T, EP, EP+1); a('v_add_f32 v%d, v%d, v%d', T+4, EN, EN+1)
        for i in range(2, 16):
            a('v_add_f32 v%d, v%d, v%d', T, T, EP+i); a('v_add_f32 v%d, v%d, v%d', T+4, T+4, EN+i)
        a('v_mov_b32 v%d, v%d', T+1, T); a('v_mov_b32 v%d, v%d', T+5, T+4); a('s_nop 1')
        a('v_permlane32_swap_b32 v%d, v%d', T, T+1); a('v_permlane32_swap_b32 v%d, v%d', T+4, T+5); a('s_nop 1')
        a('v_add_f32 v%d, v%d, v%d', T, T, T+1); a('v_add_f32 v%d, v%d, v%d', T+4, T+4, T+5)
        a('v_rcp_f32 v%d, v%d', T, T); a('v_rcp_f32 v%d, v%d', T+4, T+4); a('s_nop 0')
        for i in range(16):
            a('v_mul_f32 v%d, v%d, v%d', EP+i, EP+i, T); a('v_mul_f32 v%d, v%d, v%d', EN+i, EN+i, T+4)
        for i in range(16): a('v_cvt_pk_bf16_f32 v%d, v%d, v%d', FP+i, EP+2*i, EP+2*i+1)
        a('s_waitcnt vmcnt(0)')
        for i in range(16): a('v_cvt_pk_bf16_f32 v%d, v%d, v%d', FK+i, KVF+2*i, KVF+2*i+1)
        a('s_nop 1')
        for k in range(4):
            a('v_mfma_f32_32x32x16_bf16 %s, %s, %s, %s', vr(O,16), vr(FK+4*k), vr(FP+4*k), '0' if k == 0 else vr(O,16))
        a.nop(18)
        a('v_mov_b32 v%d, v%d', T, O+12); a('v_mov_b32 v%d, v%d', T+1, O+12); a('s_nop 1')
        a('v_permlane32_swap_b32 v%d, v%d', T, T+1); a('s_nop 1')
        a('v_add_f32 v%d, 0x358637bd, v%d', T+1, T+1)
        a('v_rcp_f32 v%d, v%d', T+1, T+1); a('s_nop 0')
        for i in range(16): a('v_mul_f32 v%d, v%d, v%d', O+i, O+i, T+1)
        for i in range(8): a('v_cvt_pk_bf16_f32 v%d, v%d, v%d', OF+i, O+2*i, O+2*i+1)
        a('ds_write_b128 v13, %s offset:%d', vr(OF), hl*2048); a('ds_write_b128 v13, %s offset:%d', vr(OF+4), hl*2048+1024)
        a('s_nop 1')
    a('s_waitcnt lgkmcnt(0)'); a('s_barrier')
    for i in range(32): a('ds_read_b128 %s, v12 offset:%d', ar(4*i), i*1024)
    a('s_lshl_b32 s11, s10, 5'); a('v_add_u32 v6, s11, v5'); a('v_lshlrev_b32 v6, 10, v6'); a('v_lshl_add_u32 v6, v4, 4, v6')
    a('s_lshl_b32 s11, s100, 5'); a('v_add_u32 v9, s11, v3'); a('v_mul_u32_u24 v9, 1792, v9'); a('v_lshl_add_u32 v9, v4, 4, v9')
    a('s_lshl_b32 s36, s10, 6'); a('v_add_u32 v9, s36, v9')
    OB = [16, 80]; OA = 144; OT = 160
    def ld2(it, hh, b):
        a('s_mov_b32 s39, %d', it*128*1024)
        for kk in range(16):
            a('buffer_load_dwordx4 %s, v6, s[24:27], s39 offen offset:%d sc1', vr(OB[b]+4*kk), (16*hh+kk)*32)
    units = [(it, hh) for it in range(4) for hh in range(2)]
    ld2(0, 0, 0)
    a('s_waitcnt lgkmcnt(0)')
    for ui, (it, hh) in enumerate(units):
        b = ui % 2
        if it == 3 and hh == 0:
            a('s_cmp_ge_u32 s10, 2'); a('s_cbranch_scc1 wk_loop')
        if ui + 1 < len(units):
            ld2(units[ui+1][0], units[ui+1][1], 1-b); a('s_waitcnt vmcnt(16)')
        else:
            a('s_waitcnt vmcnt(0)')
        acc = vr(OA, 16)
        for kk in range(16):
            a('v_mfma_f32_32x32x16_bf16 %s, %s, %s, %s', acc, vr(OB[b]+4*kk), ar(4*(16*hh+kk)), '0' if (hh == 0 and kk == 0) else acc)
        if hh == 1:
            a.nop(16)
            for i in range(8): a('v_cvt_pk_bf16_f32 v%d, v%d, v%d', OT+i, OA+2*i, OA+2*i+1)
            for qq in range(2):
                a('buffer_store_dwordx4 %s, v9, s[32:35], 0 offen offset:%d', vr(OT+4*qq), it*256 + qq*32)
            a('s_nop 1')
    a('s_branch wk_loop')


TASKS = [('mg', 224), ('fold', 336), ('a1', 256), ('a2', 64), ('bfin', 64)]
def k_mega(a):
    n = 'mega_kernel'; a.begin(n)
    a('s_cmp_ge_u32 s2, 256'); a('s_cbranch_scc1 wk_done')
    a('s_and_b32 s3, s2, 7'); a('s_cmp_eq_u32 s3, 0'); a('s_cbranch_scc1 ch_entry')
    a('s_movk_i32 s101, 2000'); a('s_mov_b32 s93, 0')
    a('s_load_dwordx2 s[4:5], s[0:1], %d', KA['ws']); a('s_waitcnt lgkmcnt(0)')
    a.srd(96, 4, 5, SZ_FL, WS_FL)
    a.label('wk_loop')
    a('s_waitcnt vmcnt(0) lgkmcnt(0)'); a('s_barrier')
    RT(a, 7)
    dbg_srd(a, 80, 74)
    a('v_mov_b32 v1, 1'); a('v_mov_b32 v2, %d', C_TICKET*4); a('v_mov_b32 v3, %d', L_TK)
    a('v_cmp_eq_u32 vcc, 0, v0'); a('s_and_b64 exec, exec, vcc')
    a('buffer_atomic_add v1, v2, s[80:83], 0 offen sc0 sc1')
    a('s_waitcnt vmcnt(0)')
    a('ds_write_b32 v3, v1')
    a('s_mov_b64 exec, -1')
    a('s_waitcnt lgkmcnt(0)'); a('s_barrier')
    a('ds_read_b32 v1, v3'); a('s_waitcnt lgkmcnt(0)')
    a('v_readfirstlane_b32 s100, v1'); a('s_nop 3')
    a('s_mov_b32 s101, s100')
    RT(a, 0)
    tasks = [('mg', 224, t_mg), ('fold', 336, k_fold), ('a1', 256, k_a1), ('a2', 64, k_a2), ('bfin', 64, k_bfin)]
    for (nm, cnt, fn) in tasks:
        a('s_cmp_lt_u32 s100, %d', cnt); a('s_cbranch_scc1 tk_%s', nm)
        a('s_sub_u32 s100, s100, %d', cnt)
    a.label('wk_done')
    a('s_endpgm')
    for (nm, cnt, fn) in tasks:
        a.label('tk_%s' % nm); fn(a)
    a.label('ch_entry')
    k_chain(a)
    a.end(n, 256, 256)

def main():
    global INSTR
    INSTR = len(sys.argv) > 2
    a = Asm()
    k_mega(a)
    launches = [('mega_kernel', 256, 256, LDS_TOT)]
    out = HDR
    for (k, g, b, lds) in launches:
        out += '; @launch kernel=%s grid=(%d,1,1) block=(%d,1,1) lds=%d\n' % (k, g, b, lds)
    out += '.amdgcn_target "amdgcn-amd-amdhsa--gfx950"\n' + '\n'.join(a.l) + '\n'
    open(sys.argv[1] if len(sys.argv) > 1 else 'cdna_kernels/%s.s' % NAME, 'w').write(out)
if __name__ == '__main__': main()
```

```python
import sys
NAME = 'concat_heads__linear_kernel_hedgehog__memory_aug_recurrent_mem_tr__prompt'
HDR = open('cdna_kernels/%s.s.ref' % NAME).read().split('; Override launch')[0]

KA = dict(A_x=0, A_wqkv=8, A_w_phi=16, A_wo=24, B_x=32, B_mem0=40, B_Wq=48, B_Wk=56, B_Wv=64, B_Wo=72, seg=80, out=88, dbg=96, ws=104)
RS = 896
def al(x, a=4096): return (x + a - 1) // a * a
WS_M = 0;                 SZ_M = 2*16*448*RS
WS_GX = al(WS_M+SZ_M);    SZ_GX = 64*16*32*896
WS_VW = al(WS_GX+SZ_GX);  SZ_VW = 64*16*448*64
WS_TM = al(WS_VW+SZ_VW);  SZ_TM = 64*16*8*896
WS_UT = al(WS_TM+SZ_TM);  SZ_UT = 64*16*448*16
WS_MB = al(WS_UT+SZ_UT);  SZ_MB = 65*8192
WS_SB = al(WS_MB+SZ_MB);  SZ_SB = 64*32768
WS_M2 = al(WS_SB+SZ_SB);  SZ_M2 = 64*7168
WS_MF = al(WS_M2+SZ_M2);  SZ_MF = 64*512
WS_FL = al(WS_MF+SZ_MF);  SZ_FL = 16384
F_M = 0; F_FOLD = 1024; F_A1 = 3072; F_GX = 4096
WS_IN = WS_MB + 8192;     SZ_IN = WS_FL + SZ_FL - WS_IN
WS_P  = al(WS_FL+SZ_FL);  SZ_P = 128*4096 + 2048*64
WS_WA = al(WS_P+SZ_P);    SZ_WA = 1536*896
WS_WOT= al(WS_WA+SZ_WA);  SZ_WOT = 448*1024
WS_PQ = al(WS_WOT+SZ_WOT);SZ_PQ = 2048*16*128
WS_KV = al(WS_PQ+SZ_PQ);  SZ_KV = 16*64*32*4
WS_XF = al(WS_KV+SZ_KV);  SZ_XF = 2*64*28672
WS_END = al(WS_XF+SZ_XF)

class Asm:
    def __init__(self): self.l = []; self.uid = 0
    def __call__(self, s, *a):
        self.l.append('    ' + (s % a if a else s))
    def label(self, s): self.l.append(s + ':')
    def c(self, s): self.l.append('    ; ' + s)
    def newlabel(self, p='L'):
        self.uid += 1; return '%s_%d' % (p, self.uid)
    def nop(self, n):
        while n > 0:
            k = min(n, 16); self('s_nop %d', k-1); n -= k
    def srd(self, d, lo, hi, size, off=0):
        if off:
            self('s_add_u32 s%d, s%d, 0x%x', d, lo, off & 0xffffffff)
            self('s_addc_u32 s%d, s%d, 0x%x', d+1, hi, off >> 32)
        else:
            self('s_mov_b32 s%d, s%d', d, lo); self('s_mov_b32 s%d, s%d', d+1, hi)
        self('s_mov_b32 s%d, 0x%x', d+2, size)
        self('s_mov_b32 s%d, 0x00020000', d+3)
    def begin(self, name):
        self.l += ['.text', '.globl %s' % name, '.p2align 8', '.type %s,@function' % name, name + ':']
    def end(self, name, vgpr, agpr=0, sgpr=102):
        acc = (vgpr + 3)//4*4
        self.l += ['    s_endpgm', '.section .rodata,"a"', '.p2align 6', '.amdhsa_kernel %s' % name,
          '  .amdhsa_next_free_vgpr %d' % (acc + agpr if agpr else vgpr), '  .amdhsa_next_free_sgpr %d' % sgpr,
          '  .amdhsa_accum_offset %d' % acc, '  .amdhsa_group_segment_fixed_size 0', '  .amdhsa_kernarg_size 112',
          '  .amdhsa_user_sgpr_count 2', '  .amdhsa_user_sgpr_kernarg_segment_ptr 1', '  .amdhsa_system_sgpr_workgroup_id_x 1',
          '.end_amdhsa_kernel']
def perm(a, d, src, t):
    a('v_and_b32 v%d, 0x13, v%d', d, src)
    a('v_and_b32 v%d, 4, v%d', t, src); a('v_lshl_or_b32 v%d, v%d, 1, v%d', d, t, d)
    a('v_and_b32 v%d, 8, v%d', t, src); a('v_lshrrev_b32 v%d, 1, v%d', t, t); a('v_or_b32 v%d, v%d, v%d', d, t, d)
def vr(b, n=4): return 'v[%d:%d]' % (b, b+n-1)
def ar(b, n=4): return 'a[%d:%d]' % (b, b+n-1)


INSTR = False
import os
OPT = dict(kv.split('=') for kv in os.environ.get('OPT','').split(',') if kv)
def opt(k, d=0): return int(OPT.get(k, d))
C_TICKET = 0; C_M = 1; C_INIT = 2; C_FOLD = 3; C_A1 = 4; C_XCC = 5; C_XF = 6; C_GX = 8
LDS_TOT = 92160 + 64
L_TK = 92160
WSPIN = 3000000
def RT(a, slot, idreg='s101'):
    if not INSTR: return
    a('s_load_dwordx2 s[88:89], s[0:1], %d', KA['ws']); a('s_memrealtime s[94:95]'); a('s_waitcnt lgkmcnt(0)')
    a.srd(88, 88, 89, SZ_P, WS_P)
    a('s_lshl_b32 s92, %s, 6', idreg); a('s_add_u32 s92, s92, %d', 128*4096)
    a('v_mov_b32 v254, s94'); a('v_mov_b32 v255, 0')
    a('v_cmp_eq_u32 vcc, 0, v0'); a('s_and_b64 exec, exec, vcc')
    a('buffer_store_dword v254, v255, s[88:91], s92 offen offset:%d', slot*4)
    a('s_mov_b64 exec, -1')
def dbg_srd(a, d, t):
    a('s_load_dwordx2 s[%d:%d], s[0:1], %d', t, t+1, KA['dbg']); a('s_waitcnt lgkmcnt(0)')
    a.srd(d, t, t+1, 256)
def signal(a, d, cidx, vt, per_wave=False):
    a('s_waitcnt vmcnt(0)')
    if not per_wave: a('s_barrier')
    a('v_mov_b32 v%d, 1', vt); a('v_mov_b32 v%d, %d', vt+1, cidx*4)
    if per_wave: a('s_mov_b64 exec, 1')
    else:
        a('v_cmp_eq_u32 vcc, 0, v0'); a('s_and_b64 exec, exec, vcc')
    a('buffer_atomic_add v%d, v%d, s[%d:%d], 0 offen sc1', vt, vt+1, d, d+3)
    a('s_mov_b64 exec, -1')
def waitc(a, d, cidx, target, vt, st, fail, sleep=8):
    L = a.newlabel('wc')
    a('v_mov_b32 v%d, %d', vt+1, cidx*4); a('s_mov_b32 s%d, 0', st)
    a.label(L)
    a('buffer_load_dword v%d, v%d, s[%d:%d], 0 offen sc1', vt, vt+1, d, d+3)
    a('s_add_u32 s%d, s%d, 1', st, st); a('s_cmp_gt_u32 s%d, %d', st, WSPIN); a('s_cbranch_scc1 %s', fail)
    a('s_waitcnt vmcnt(0)')
    a('v_readfirstlane_b32 s%d, v%d', st+1, vt); a('s_nop 3')
    a('s_cmp_ge_u32 s%d, %d', st+1, target); a('s_cbranch_scc1 %s_ok', L)
    a('s_sleep %d', sleep); a('s_branch %s', L)
    a.label(L + '_ok')

def init_seen(a, vt, st, fail):
    L = a.newlabel('is')
    a('s_cmp_eq_u32 s93, 1'); a('s_cbranch_scc1 %s', L)
    dbg_srd(a, 84, st)
    waitc(a, 84, C_INIT, 32, vt, st, fail, 16)
    a('s_mov_b32 s93, 1')
    a.label(L)
def flag_set(a, d, base, idx, vt, st, fail, wait=True, chk=True):
    if chk: init_seen(a, vt, st, fail)
    if wait: a('s_waitcnt vmcnt(0)')
    a('s_barrier')
    a('v_mov_b32 v%d, 0', vt); a('s_lshl_b32 s%d, %s, 2', st, idx)
    if base >= 4096: a('s_add_u32 s%d, s%d, %d', st, st, base); base = 0
    a('v_cmp_eq_u32 vcc, 0, v0'); a('s_and_b64 exec, exec, vcc')
    a('buffer_store_dword v%d, v%d, s[%d:%d], s%d offen offset:%d sc1', vt, vt, d, d+3, st, base)
    a('s_mov_b64 exec, -1')
def flag_poll(a, d, base, count, vt, st, fail, sleep=8, lanev=None):
    L = a.newlabel('fw')
    nl = count // 4
    va = vt + 8
    a('v_and_b32 v%d, 63, v0', va); a('v_lshlrev_b32 v%d, 4, v%d', va, va)
    if isinstance(base, int): a('v_add_u32 v%d, %d, v%d', va, base, va)
    else: a('v_add_u32 v%d, %s, v%d', va, base, va)
    a('s_mov_b32 s%d, 0', st)
    for r_ in range(8): a('v_mov_b32 v%d, 0', vt+r_)
    a.label(L)
    def msk(n):
        a('s_mov_b32 exec_lo, 0x%x', 0xffffffff if n >= 32 else (1 << n) - 1); a('s_mov_b32 exec_hi, 0x%x', 0 if n <= 32 else (0xffffffff if n >= 64 else (1 << (n-32)) - 1))
    msk(nl)
    a('buffer_load_dwordx4 %s, v%d, s[%d:%d], 0 offen sc1', vr(vt), va, d, d+3)
    if nl > 64:
        msk(nl - 64)
        a('buffer_load_dwordx4 %s, v%d, s[%d:%d], 0 offen offset:1024 sc1', vr(vt+4), va, d, d+3)
    a('s_mov_b64 exec, -1')
    a('s_add_u32 s%d, s%d, 1', st, st); a('s_cmp_gt_u32 s%d, %d', st, WSPIN); a('s_cbranch_scc1 %s', fail)
    a('s_waitcnt vmcnt(0)')
    a('v_max3_u32 v%d, v%d, v%d, v%d', vt, vt, vt+1, vt+2); a('v_max3_u32 v%d, v%d, v%d, v%d', vt+4, vt+4, vt+5, vt+6)
    a('v_max3_u32 v%d, v%d, v%d, v%d', vt, vt, vt+3, vt+7); a('v_max_u32 v%d, v%d, v%d', vt, vt, vt+4)
    a('v_cmp_eq_u32 vcc, -1, v%d', vt); a('s_cbranch_vccz %s_ok', L)
    a('s_sleep %d', sleep); a('s_branch %s', L)
    a.label(L + '_ok')
def flag_wait(a, d, base, count, vt, st, fail, sleep=8, chk=True):
    L = a.newlabel('fx')
    if chk: init_seen(a, vt, st, fail)
    a('v_readfirstlane_b32 s%d, v0', st); a('s_nop 3'); a('s_cmp_lt_u32 s%d, 64', st); a('s_cbranch_scc0 %s', L)
    flag_poll(a, d, base, count, vt, st, fail, sleep)
    a.label(L)
    a('s_barrier')

def t_mg(a):
    a('s_load_dwordx4 s[4:7], s[0:1], %d', KA['B_Wq'])
    a('s_load_dwordx4 s[8:11], s[0:1], %d', KA['B_Wv'])
    a('s_load_dwordx2 s[12:13], s[0:1], %d', KA['ws'])
    a('s_load_dwordx2 s[44:45], s[0:1], %d', KA['B_x'])
    a('s_load_dwordx2 s[46:47], s[0:1], %d', KA['dbg'])
    a('s_mov_b32 s14, 0x24924925'); a('s_mul_hi_u32 s15, s100, s14')
    a('s_mul_i32 s16, s15, 7'); a('s_sub_u32 s16, s100, s16')
    a('s_lshr_b32 s17, s15, 4')
    a('s_and_b32 s18, s15, 15')
    a('v_lshrrev_b32 v1, 6, v0'); a('v_and_b32 v2, 63, v0'); a('s_nop 0')
    a('v_readfirstlane_b32 s19, v1')
    a('v_and_b32 v3, 31, v2'); a('v_lshrrev_b32 v4, 5, v2')
    perm(a, 10, 3, 11)
    a('s_and_b32 s20, s19, 1'); a('s_lshr_b32 s21, s19, 1')
    a('s_waitcnt lgkmcnt(0)')
    a('s_cmp_eq_u32 s17, 0')
    a('s_cselect_b32 s24, s4, s10'); a('s_cselect_b32 s25, s5, s11')
    a('s_mov_b32 s26, 3670016'); a('s_mov_b32 s27, 0x00020000')
    a('s_cselect_b32 s28, s6, s8'); a('s_cselect_b32 s29, s7, s9')
    a('s_mov_b32 s30, 3670016'); a('s_mov_b32 s31, 0x00020000')
    a.srd(32, 12, 13, SZ_M, WS_M)
    a.srd(48, 12, 13, SZ_XF//2, WS_XF); a.srd(52, 12, 13, SZ_GX, WS_GX); a.srd(56, 12, 13, SZ_VW, WS_VW)
    a.srd(60, 46, 47, 256); a.srd(64, 12, 13, SZ_KV, WS_KV)
    a('v_mov_b32 v11, 0'); a('s_lshl_b32 s22, s100, 10'); a('v_lshlrev_b32 v12, 2, v0'); a('v_add_u32 v12, s22, v12')
    a('buffer_store_dword v11, v12, s[64:67], 0 offen sc1')
    a('s_lshl_b32 s22, s16, 6'); a('s_lshl_b32 s23, s20, 5'); a('s_add_u32 s22, s22, s23')
    a('v_add_u32 v5, s22, v10')
    a('s_mul_i32 s36, s21, 224'); a('v_add_u32 v6, s36, v10'); a('v_lshlrev_b32 v6, 13, v6')
    a('s_lshl_b32 s37, s18, 9'); a('v_add_u32 v6, s37, v6'); a('v_lshl_add_u32 v6, v4, 4, v6')
    JS = 16; KB = [80, 144]; ACC = 208; T = 224
    def kbuf(i, es):
        b = i % 3
        return vr(KB[b]+4*es) if b < 2 else ar(4*es)
    def ldk(i):
        a('s_mov_b32 s43, %d', i*262144)
        for es in range(16):
            a('buffer_load_dwordx4 %s, v6, s[28:31], s43 offen offset:%d', kbuf(i, es), es*32)
    a('s_cmp_eq_u32 s17, 0'); a('s_cbranch_scc0 mm_mat1')
    a('v_lshlrev_b32 v7, 13, v5'); a('v_add_u32 v7, s37, v7'); a('v_lshl_add_u32 v7, v4, 4, v7')
    for es in range(16):
        a('buffer_load_dwordx4 %s, v7, s[24:27], 0 offen offset:%d', vr(JS+4*es), es*32)
    ldk(0); ldk(1); ldk(2)
    a('s_branch mm_go')
    a.label('mm_mat1')
    a('s_mul_i32 s38, s18, 229376'); a('s_lshl_b32 s39, s22, 1'); a('s_add_u32 s38, s38, s39')
    a('v_mul_u32_u24 v7, 896, v10'); a('v_add_u32 v7, s38, v7'); a('v_lshl_add_u32 v7, v4, 4, v7')
    for et in range(8):
        a('s_mov_b32 s39, %d', et*32*896)
        for ks in range(2):
            a('buffer_load_dwordx4 %s, v7, s[24:27], s39 offen offset:%d', ar(64+8*et+4*ks), ks*32)
    ldk(0); ldk(1)
    a('v_lshlrev_b32 v8, 3, v4'); a('v_sub_u32 v8, v10, v8')
    a('v_mov_b32 v9, 0x3f80'); a('v_mov_b32 v11, 0x3f800000'); a('v_mov_b32 v12, 0')
    for ks in range(2):
        for q2 in range(4):
            r_ = 232 + 4*ks + q2
            a('v_cmp_eq_u32 vcc, %d, v8', 16*ks + 2*q2); a('v_cndmask_b32 v%d, v12, v9, vcc', r_)
            a('v_cmp_eq_u32 vcc, %d, v8', 16*ks + 2*q2 + 1); a('v_cndmask_b32 v%d, v%d, v11, vcc', r_, r_)
    a('s_waitcnt vmcnt(32)')
    for et in range(8):
        acc = vr(ACC, 16) if et % 2 == 0 else vr(240, 16)
        ab = ACC if et % 2 == 0 else 240
        a('v_mfma_f32_32x32x16_bf16 %s, %s, %s, 0', acc, ar(64+8*et), vr(232))
        a('v_mfma_f32_32x32x16_bf16 %s, %s, %s, %s', acc, ar(64+8*et+4), vr(236), acc)
        a.nop(18)
        for i in range(8): a('v_cvt_pk_bf16_f32 v%d, v%d, v%d', JS+8*et+i, ab+2*i, ab+2*i+1)
    ldk(2)
    a.label('mm_go')
    a('s_cmp_eq_u32 s17, 0'); a('s_cbranch_scc0 mm_a1')
    a('v_cmp_le_u32 vcc, 224, v5'); a('v_mov_b32 v8, 0'); a('v_mov_b32 v13, 0'); a('v_mov_b32 v9, 224'); a('v_mov_b32 v14, 1')
    a('v_cndmask_b32 v8, v8, v9, vcc'); a('v_cndmask_b32 v13, v13, v14, vcc')
    a('v_sub_u32 v8, v5, v8')
    a('s_lshl_b32 s40, s18, 1'); a('v_add_u32 v13, s40, v13')
    a('s_branch mm_a2')
    a.label('mm_a1')
    a('s_movk_i32 s40, 4682'); a('v_mul_u32_u24 v13, s40, v5'); a('v_lshrrev_b32 v13, 16, v13')
    a('v_mul_u32_u24 v8, 14, v13'); a('v_sub_u32 v8, v5, v8')
    a('s_mul_i32 s40, s18, 14'); a('s_add_u32 s40, s40, 224'); a('v_add_u32 v8, s40, v8')
    a.label('mm_a2')
    a('s_mov_b32 s40, 401408'); a('v_mul_lo_u32 v9, v13, s40')
    a('v_lshrrev_b32 v13, 4, v8'); a('v_mul_u32_u24 v13, 14336, v13'); a('v_add_u32 v9, v9, v13')
    a('v_and_b32 v8, 15, v8'); a('v_lshl_add_u32 v9, v8, 4, v9'); a('v_lshl_add_u32 v9, v4, 8, v9')
    a('s_mul_i32 s42, s21, 7168'); a('v_add_u32 v9, s42, v9'); a('v_add_u32 v8, 4096, v9')
    a('v_lshlrev_b32 v12, 4, v2')
    a('s_mul_i32 s40, s20, 28672'); a('s_mul_i32 s41, s21, 14336'); a('s_add_u32 s40, s40, s41'); a('v_add_u32 v11, s40, v12')
    for i in range(7):
        nl = min(2, 6-i)
        a('s_waitcnt vmcnt(%d)', 16*nl)
        for es in range(16):
            a('v_mfma_f32_32x32x16_bf16 %s, %s, %s, %s', vr(ACC,16), kbuf(i, es), vr(JS+4*es), '0' if es == 0 else vr(ACC,16))
        a.nop(18)
        for q in range(8):
            a('v_cvt_pk_bf16_f32 v%d, v%d, v%d', T+q, ACC+2*q, ACC+2*q+1)
        for qq in range(2):
            a('buffer_store_dwordx4 %s, v%d, s[32:35], 0 offen offset:%d sc1', vr(T+4*qq), 9 if i < 4 else 8, (i&3)*1024+qq*512)
            a('ds_write_b128 v11, %s offset:%d', vr(T+4*qq), (2*i+qq)*1024)
        if i + 3 < 7: ldk(i+3)
        a('s_nop 1')
    a('s_waitcnt lgkmcnt(0)')
    RT(a, 1)
    flag_set(a, 96, F_M, 's100', 13, 22, 'wk_done')
    RT(a, 2)
    for f in range(56):
        a('ds_read_b128 %s, v12 offset:%d', ar(4*f), f*1024)
    a('s_cmp_eq_u32 s17, 0'); a('s_cselect_b64 vcc, -1, 0')
    a('v_cndmask_b32 v14, v10, v3, vcc')
    a('s_mul_i32 s22, s19, 28672'); a('v_lshl_add_u32 v5, v4, 5, v14'); a('v_lshlrev_b32 v5, 4, v5'); a('v_add_u32 v5, s22, v5')
    XB = [16, 72, 128]; GA = 184; GT = 216
    a('s_mov_b32 s36, 0')
    a('s_mov_b32 s37, 0')
    a('s_mov_b32 s38, 0')
    def ldx(c, b):
        for k in range(14):
            ks = 14*c + k
            if k == 0 or ks % 4 == 0: a('s_add_u32 s39, s36, %d', (ks//4)*4096)
            if not opt('mgnold'): a('buffer_load_dwordx4 %s, v5, s[48:51], s39 offen offset:%d', vr(XB[b]+4*k), (ks%4)*1024)
        if c == 1: a('s_add_u32 s36, s36, %d', 4*28672)
    ldx(0, 0); ldx(1, 1)
    a('s_waitcnt lgkmcnt(0)')
    a('s_cmp_eq_u32 s17, 0'); a('s_cbranch_scc0 gx_m1')
    for mat in range(2):
        if mat == 1: a.label('gx_m1')
        a('s_lshl_b32 s22, s19, 4'); a('s_add_u32 s22, s22, s18')
        if mat == 0:
            a('s_mul_i32 s22, s22, 28672'); a('s_lshl_b32 s23, s16, 11'); a('s_add_u32 s22, s22, s23')
            a('v_lshrrev_b32 v6, 4, v3'); a('v_mul_u32_u24 v6, 14336, v6'); a('v_add_u32 v6, s22, v6'); a('v_lshl_add_u32 v6, v4, 8, v6')
            a('v_and_b32 v7, 15, v3'); a('v_lshl_add_u32 v6, v7, 4, v6')
        else:
            a('s_mul_i32 s22, s22, 28672'); a('s_lshl_b32 s23, s16, 10'); a('s_add_u32 s22, s22, s23')
            a('v_lshlrev_b32 v6, 4, v10'); a('v_add_u32 v6, s22, v6'); a('v_mul_u32_u24 v7, 7168, v4'); a('v_add_u32 v6, v6, v7')
            a('v_add_u32 v7, 14336, v6')
        def sig(blk):
            flag_set(a, 96, F_GX + 1024*blk, 's100', 13, 22, 'wk_done', wait=False, chk=False)
        for it in range(16):
            for c in range(2):
                ch = 2*it + c
                b = ch % 3
                if ch + 2 < 32:
                    ldx(c, (ch+2) % 3)
                    a('s_waitcnt vmcnt(28)')
                    if c == 1 and it % 2 == 0 and it > 0:
                        sig(it//2 - 1)
                        if it == 2: RT(a, 3)
                else:
                    a('s_waitcnt vmcnt(%d)', 14 if ch == 30 else 0)
                for k in range(14):
                    ks = 14*c + k
                    for j2 in range(2):
                        m = ar((j2*28+ks)*4); x = vr(XB[b]+4*k); acc = vr(GA+16*j2, 16)
                        A, B = (m, x) if mat == 0 else (x, m)
                        if not opt('mgnomf') or ks == 0: a('v_mfma_f32_32x32x16_bf16 %s, %s, %s, %s', acc, A, B, '0' if ks == 0 else acc)
            a.nop(18)
            for i in range(16): a('v_cvt_pk_bf16_f32 v%d, v%d, v%d', GT+i, GA+2*i, GA+2*i+1)
            for j2 in range(2):
                for qq in range(2):
                    off = j2*1024 + qq*512 if mat == 0 else j2*512
                    if not opt('mgnost'): a('buffer_store_dwordx4 %s, v%d, s[%d:%d], s37 offen offset:%d sc1', vr(GT+8*j2+4*qq), 7 if (mat == 1 and qq == 1) else 6, 52+4*mat, 55+4*mat, off)
            a('s_add_u32 s37, s37, %d', 4*16*28672)
        a('s_waitcnt vmcnt(0)'); sig(7)
        a('s_branch wk_loop')

L_MEM = 0; L_ZM = L_MEM + 8192; L_TP = L_ZM + 4096
L_RED = L_TP + 8192; L_RED2 = L_RED + 4096; L_CHAIN = L_RED2 + 1024
QT = [[0,1,2,3],[4,5,6,7],[8,9,10],[11,12,13]]
UTL = [[0,1,2],[3,4,5],[6,7,8,9],[10,11,12,13]]
SPIN = 200000
SBS = 32768
FORCE_SLOW = False
import os
OPT = dict(kv.split('=') for kv in os.environ.get('OPT','').split(',') if kv)
def opt(k, d=0): return int(OPT.get(k, d))
PRETOUCH = True
GM = ['sc1', '', 'nt', 'sc0'][opt('gm', 0)]
def load_weights(a, units, wreg, nq, UA, X):
    a('s_mul_i32 s13, s2, 401408')
    for u, (kind, t) in enumerate(units):
        un = t if kind == 'q' else 14 + t
        for ks in range(14):
            if ks % 4 == 0: a('s_add_u32 s12, s13, %d', un*14336 + ks*1024)
            a('buffer_load_dwordx4 %s, v3, s[16:19], s12 offen offset:%d', wreg(u, ks), (ks%4)*1024)
        if kind == 'u':
            k = u - nq
            a('v_add_u32 v%d, %d, v23', X, 16*t)
            a('s_movk_i32 s12, 4682'); a('v_mul_u32_u24 v%d, s12, v%d', X+1, X); a('v_lshrrev_b32 v%d, 16, v%d', X+1, X+1)
            a('v_mul_u32_u24 v%d, 14, v%d', X+2, X+1); a('v_sub_u32 v%d, v%d, v%d', X+2, X, X+2)
            a('v_lshl_add_u32 v%d, v%d, 4, v%d', UA+k, X+1, X+2); a('v_lshlrev_b32 v%d, 4, v%d', UA+k, UA+k)
            a('v_lshl_add_u32 v%d, v24, 3, v%d', UA+k, UA+k); a('v_add_u32 v%d, %d, v%d', UA+k, L_ZM, UA+k)

def k_tu(a):
    flag_wait(a, 96, F_M, 224, 12, 74, 'wk_done')
    a('s_mov_b32 s2, s100')
    a('s_load_dwordx2 s[4:5], s[0:1], %d', KA['ws'])
    a('s_lshr_b32 s6, s2, 1'); a('s_and_b32 s7, s2, 1')
    a('v_lshrrev_b32 v1, 6, v0'); a('v_and_b32 v22, 63, v0'); a('s_nop 0')
    a('v_readfirstlane_b32 s8, v1')
    a('v_and_b32 v23, 15, v22'); a('v_lshrrev_b32 v24, 4, v22'); a('v_and_b32 v25, 7, v22')
    a('v_lshlrev_b32 v3, 4, v22')
    a('s_waitcnt lgkmcnt(0)')
    a.srd(16, 4, 5, SZ_M, WS_M); a.srd(28, 4, 5, SZ_TM, WS_TM); a.srd(32, 4, 5, SZ_UT, WS_UT)
    a.srd(36, 4, 5, SZ_M2, WS_M2); a.srd(40, 4, 5, SZ_MF, WS_MF)
    a('v_cmp_gt_u32 s[48:49], 2, v24')
    a('v_cmp_gt_u32 s[72:73], 14, v23')
    a('v_cmp_gt_u32 s[44:45], 32, v22')
    a('v_cmp_gt_u32 s[46:47], 56, v22')
    a('s_mul_i32 s9, s2, 14'); a('s_and_b32 s15, s6, 3')
    a('v_mul_u32_u24 v1, 912, v25'); a('v_lshl_add_u32 v1, v24, 4, v1')
    a('v_lshlrev_b32 v4, 5, v25'); a('v_lshl_add_u32 v4, v24, 3, v4')
    a('s_mul_i32 s12, s8, 1792'); a('v_add_u32 v15, s12, v3')
    a('s_mul_i32 s12, s8, 1824'); a('v_add_u32 v16, s12, v3')
    a('s_lshl_b32 s12, s8, 10'); a('v_add_u32 v11, s12, v3')
    a('s_lshr_b32 s12, s6, 2'); a('s_mul_i32 s12, s12, 28'); a('s_mul_i32 s13, s7, 14'); a('s_add_u32 s12, s12, s13'); a('s_lshl_b32 s12, s12, 10')
    a('s_lshl_b32 s13, s15, 8'); a('s_add_u32 s12, s12, s13'); a('s_lshl_b32 s13, s8, 12'); a('s_add_u32 s12, s12, s13')
    a('v_lshlrev_b32 v12, 10, v24'); a('v_lshl_add_u32 v12, v23, 4, v12'); a('v_add_u32 v12, s12, v12')
    a('v_mul_u32_u24 v13, 448, v24'); a('v_add_u32 v13, v13, v23'); a('v_add_u32 v13, s9, v13'); a('v_lshlrev_b32 v13, 4, v13')
    a('s_mul_i32 s12, s8, %d', 4*448*16); a('v_add_u32 v13, s12, v13')
    a('s_lshl_b32 s57, s2, 4'); a('s_lshl_b32 s12, s8, 2'); a('s_add_u32 s57, s57, s12')
    for r_ in (52, 53, 55, 56): a('s_mov_b32 s%d, 0', r_)
    for wv in range(1, 4):
        a('s_cmp_eq_u32 s8, %d', wv); a('s_cbranch_scc1 tu_w%d', wv)
    UA = 5; FR = 20; ACC = 32; TP = 60; X = 68; WV = 88; PL = 76
    for wv in range(4):
        a.label('tu_w%d' % wv)
        qt = QT[wv]; ut = UTL[wv]; nq = len(qt)
        units = [('q', t) for t in qt] + [('u', t) for t in ut]
        def wreg(u, ks):
            return ar(u*56 + ks*4) if u < 4 else vr(WV + (u-4)*56 + ks*4)
        load_weights(a, units, wreg, nq, UA, X)
        for r_ in range(8): a('v_mov_b32 v%d, 0', PL+r_)
        LP = 'tu_loop%d' % wv
        a.label(LP)
        a('s_mov_b32 s62, 0')
        a.label(LP + '_p')
        a('s_mov_b64 exec, s[46:47]')
        for k in range(2): a('buffer_load_dwordx4 %s, v15, s[36:39], s53 offen offset:%d sc1', vr(PL+4*k), k*896)
        a('s_mov_b64 exec, -1')
        a('s_waitcnt vmcnt(0)')
        a('s_cmp_eq_u32 s62, 0'); a('s_cbranch_scc0 %s_nf', LP)
        a('s_cmp_eq_u32 s52, 0'); a('s_cbranch_scc1 %s_nf', LP)
        a('s_mov_b64 exec, 1'); a('buffer_store_dword v3, v3, s[40:43], s57 offen sc1'); a('s_mov_b64 exec, -1')
        a('s_add_u32 s57, s57, 512')
        a.label(LP + '_nf')
        a('s_add_u32 s62, s62, 1'); a('s_cmp_gt_u32 s62, %d', WSPIN); a('s_cbranch_scc1 wk_done')
        a('v_max_u32 v84, v%d, v%d', PL, PL+4); a('v_cmp_eq_u32 vcc, -1, v84'); a('s_cbranch_vccz %s_g', LP)
        a('s_sleep 2'); a('s_branch %s_p', LP)
        a.label(LP + '_g')
        a('s_mov_b64 exec, s[46:47]')
        for k in range(2): a('ds_write_b128 v16, %s offset:%d', vr(PL+4*k), L_MEM + k*912)
        a('s_mov_b64 exec, -1')
        a('s_waitcnt lgkmcnt(0)'); a('s_barrier')
        def rd(ks): a('ds_read_b128 %s, v1 offset:%d', vr(FR+4*(ks%3)), L_MEM + ks*64)
        rd(0); rd(1)
        for ks in range(14):
            a('s_waitcnt lgkmcnt(%d)', min(1, 13-ks))
            fr = vr(FR+4*(ks%3))
            for u in range(7):
                A, B = (wreg(u, ks), fr) if u < nq else (fr, wreg(u, ks))
                a('v_mfma_f32_16x16x32_bf16 %s, %s, %s, %s', vr(ACC+4*u), A, B, '0' if ks == 0 else vr(ACC+4*u))
                if u == 0 and ks + 2 < 14: rd(ks+2)
        a.nop(8)
        for u in range(7):
            a('v_cvt_pk_bf16_f32 v%d, v%d, v%d', TP+2*u, ACC+4*u, ACC+4*u+1)
            a('v_cvt_pk_bf16_f32 v%d, v%d, v%d', TP+2*u+1, ACC+4*u+2, ACC+4*u+3)
        for u, t in enumerate(qt):
            a('ds_write_b64 v4, %s offset:%d', vr(TP+2*u, 2), L_TP + 256*t)
        a('s_mov_b64 exec, s[48:49]')
        for k in range(len(ut)):
            a('ds_write_b64 v%d, %s', UA+k, vr(TP+2*(nq+k), 2))
        a('s_mov_b64 exec, -1')
        a('s_waitcnt lgkmcnt(0)'); a('s_barrier')
        a('ds_read_b128 %s, v11 offset:%d', vr(ACC), L_TP); a('ds_read_b128 %s, v11 offset:%d', vr(ACC+4), L_ZM)
        a('s_waitcnt lgkmcnt(1)')
        if wv == 3: a('s_mov_b64 exec, s[44:45]')
        a('buffer_store_dwordx4 %s, v12, s[28:31], s55 offen sc1', vr(ACC))
        a('s_mov_b64 exec, s[72:73]'); a('s_waitcnt lgkmcnt(0)')
        a('buffer_store_dwordx4 %s, v13, s[32:35], s56 offen sc1', vr(ACC+4))
        a('s_mov_b64 exec, -1')
        a('s_add_u32 s52, s52, 1'); a('s_add_u32 s53, s53, 7168'); a('s_add_u32 s55, s55, %d', 16*8*896); a('s_add_u32 s56, s56, %d', 16*448*16)
        a('s_cmp_lt_u32 s52, 64'); a('s_cbranch_scc1 %s', LP)
        a('s_waitcnt vmcnt(0)')
        a('s_mov_b64 exec, 1'); a('buffer_store_dword v3, v3, s[40:43], s57 offen sc1'); a('s_mov_b64 exec, -1')
        a('s_branch wk_loop')

def k_chain(a):
    def TS(k):
        if not INSTR: return
        a('s_memrealtime s[64:65]' if opt('rt') else 's_memtime s[64:65]'); a('s_waitcnt lgkmcnt(0)')
        a('v_mov_b32 v87, s64')
        a('s_lshl_b32 s66, s52, 6'); a('s_add_u32 s66, s66, s67')
        a('s_mov_b64 exec, 1')
        a('buffer_store_dword v87, v3, s[68:71], s66 offen offset:%d', 4*k)
        a('s_mov_b64 exec, -1')
    def TV(k, sreg):
        if not INSTR: return
        a('v_mov_b32 v87, %s', sreg)
        a('s_lshl_b32 s66, s52, 6'); a('s_add_u32 s66, s66, s67')
        a('s_mov_b64 exec, 1')
        a('buffer_store_dword v87, v3, s[68:71], s66 offen offset:%d', 4*k)
        a('s_mov_b64 exec, -1')
    def pub(fmt, *args):
        L = a.newlabel('pb')
        a('s_cmp_eq_u32 s63, 0'); a('s_cbranch_scc1 %s_s', L)
        a(fmt, *(args + ('',))); a('s_branch %s_d', L)
        a.label(L + '_s'); a(fmt, *(args + ('sc1',))); a.label(L + '_d')
    a('s_lshr_b32 s2, s2, 3')
    a('s_load_dwordx2 s[4:5], s[0:1], %d', KA['ws'])
    a('s_load_dwordx2 s[76:77], s[0:1], %d', KA['dbg'])
    a('s_load_dwordx2 s[78:79], s[0:1], %d', KA['B_mem0'])
    a('s_lshr_b32 s6, s2, 1'); a('s_and_b32 s7, s2, 1')
    a('v_lshrrev_b32 v1, 6, v0'); a('v_and_b32 v22, 63, v0'); a('s_nop 0')
    a('v_readfirstlane_b32 s8, v1')
    a('v_and_b32 v23, 15, v22'); a('v_lshrrev_b32 v24, 4, v22'); a('v_and_b32 v25, 7, v22')
    a('v_lshlrev_b32 v3, 4, v22')
    a('s_waitcnt lgkmcnt(0)')
    a.srd(16, 4, 5, SZ_M, WS_M); a.srd(20, 4, 5, SZ_GX, WS_GX); a.srd(24, 4, 5, SZ_VW, WS_VW)
    a.srd(28, 4, 5, SZ_M2, WS_M2); a.srd(32, 4, 5, SZ_IN, WS_IN); a.srd(36, 4, 5, SZ_MB, WS_MB); a.srd(40, 4, 5, SZ_SB, WS_SB)
    a.srd(80, 76, 77, 256); a.srd(84, 78, 79, 7168)
    a('s_mov_b32 s52, 0')
    if INSTR:
        a.srd(68, 4, 5, SZ_P, WS_P)
        a('s_lshl_b32 s67, s2, 2'); a('s_add_u32 s67, s67, s8'); a('s_lshl_b32 s67, s67, 12')
    TS(8)
    a('s_add_u32 s101, s2, 1900'); RT(a, 0)
    a('s_load_dwordx2 s[12:13], s[0:1], %d', KA['B_x']); a('s_load_dwordx2 s[14:15], s[0:1], %d', KA['A_x'])
    a('v_and_b32 v6, 31, v22'); a('v_lshrrev_b32 v7, 5, v22')
    a('s_lshr_b32 s9, s8, 1'); a('s_lshl_b32 s10, s2, 1'); a('s_add_u32 s9, s9, s10')
    a('s_and_b32 s10, s8, 1')
    a('s_lshl_b32 s11, s9, 5'); a('v_add_u32 v8, s11, v6'); a('v_mul_u32_u24 v8, 896, v8'); a('v_lshl_add_u32 v8, v7, 4, v8')
    a('s_mul_i32 s11, s10, 448'); a('v_add_u32 v8, s11, v8')
    a('s_mul_i32 s11, s9, 28672'); a('s_mul_i32 s10, s10, 14336'); a('s_add_u32 s11, s11, s10'); a('v_add_u32 v9, s11, v3')
    a('s_waitcnt lgkmcnt(0)')
    a.srd(44, 12, 13, 2048*896); a.srd(48, 14, 15, 2048*896); a.srd(72, 4, 5, SZ_XF, WS_XF)
    for src in range(2):
        for k in range(14):
            a('buffer_load_dwordx4 %s, v8, s[%d:%d], 0 offen offset:%d', vr(88+56*src+4*k), 44+4*src, 47+4*src, k*32)
    for src in range(2):
        for k in range(14):
            a('s_waitcnt vmcnt(%d)', 27)
            if k % 4 == 0: a('s_mov_b32 s9, %d', src*64*28672 + (k//4)*4096)
            a('buffer_store_dwordx4 %s, v9, s[72:75], s9 offen offset:%d sc1', vr(88+56*src+4*k), (k%4)*1024)
    a.srd(72, 4, 5, SZ_FL, WS_FL)
    for i in range(4): a('v_mov_b32 v%d, -1', 36+i)
    NI = (SZ_IN + 131071) // 131072
    a('s_lshl_b32 s12, s2, 2'); a('s_add_u32 s12, s12, s8'); a('s_mul_i32 s12, s12, %d', NI*1024); a('v_add_u32 v8, s12, v3')
    for i in range(NI):
        a('buffer_store_dwordx4 %s, v8, s[32:35], 0 offen offset:%d sc1', vr(36), (i%4)*1024)
        if i % 4 == 3: a('v_add_u32 v8, 4096, v8')
    a('v_mul_u32_u24 v8, 896, v0'); a('s_mul_i32 s12, s2, 28'); a('v_add_u32 v8, s12, v8')
    a('buffer_load_dwordx4 %s, v8, s[84:87], 0 offen', vr(40))
    a('buffer_load_dwordx3 %s, v8, s[84:87], 0 offen offset:16', vr(44,3))
    a('v_mov_b32 v47, 0'); a('v_lshlrev_b32 v9, 5, v0'); a('s_lshl_b32 s12, s2, 8'); a('v_add_u32 v9, s12, v9')
    a('s_getreg_b32 s12, hwreg(HW_REG_XCC_ID, 0, 4)'); a('s_lshl_b32 s12, 1, s12')
    a('v_mov_b32 v48, s12'); a('v_mov_b32 v49, %d', C_XCC*4)
    a('s_waitcnt vmcnt(0)')
    for i in range(7): a('v_min_u32 v%d, 0xfffffffe, v%d', 40+i, 40+i)
    a('v_cmp_gt_u32 vcc, 8, v0'); a('s_and_b64 exec, exec, vcc')
    a('buffer_store_dwordx4 %s, v9, s[36:39], 0 offen sc1', vr(40))
    a('buffer_store_dwordx4 %s, v9, s[36:39], 0 offen offset:16 sc1', vr(44))
    a('s_mov_b64 exec, -1')
    a('v_cmp_eq_u32 vcc, 0, v0'); a('s_and_b64 exec, exec, vcc')
    a('buffer_atomic_or v48, v49, s[80:83], 0 offen sc1')
    a('s_mov_b64 exec, -1')
    signal(a, 80, C_INIT, 36)
    waitc(a, 80, C_INIT, 32, 36, 12, 'ch_done', 8)
    a('buffer_load_dword v48, v49, s[80:83], 0 offen sc1'); a('s_waitcnt vmcnt(0)')
    a('v_readfirstlane_b32 s12, v48'); a('s_nop 3')
    a('s_bcnt1_i32_b32 s12, s12'); a('s_cmp_eq_u32 s12, 1'); a('s_cselect_b32 s63, 1, 0')
    if FORCE_SLOW: a('s_mov_b32 s63, 0')
    TS(9)
    flag_wait(a, 72, F_M, 224, 36, 12, 'ch_done', 4, chk=False)
    a('s_mov_b32 s76, s72'); a('s_mov_b32 s77, s73'); a('s_mov_b32 s78, s74'); a('s_mov_b32 s79, s75')
    TS(10)
    a('v_cmp_gt_u32 s[46:47], 8, v23')
    a('v_cmp_gt_u32 s[48:49], 2, v24')
    a('v_cmp_eq_u32 s[50:51], 0, v24')
    a('v_cmp_gt_u32 s[72:73], 14, v23')
    a('v_cmp_gt_u32 vcc, 32, v22')
    a('s_nop 1')
    a('s_mov_b64 s[84:85], vcc')
    a('s_and_b64 s[44:45], s[46:47], s[48:49]')
    a('s_and_b64 s[50:51], s[46:47], s[50:51]')
    a('s_mul_i32 s9, s2, 14')
    a('s_mul_i32 s10, s7, 224')
    a('s_lshr_b32 s11, s6, 3'); a('s_bfe_u32 s14, s6, 0x10002'); a('s_and_b32 s15, s6, 3')
    a('v_mul_u32_u24 v1, 912, v25'); a('v_lshl_add_u32 v1, v24, 4, v1')
    a('v_mul_u32_u24 v2, 912, v25'); a('v_lshl_add_u32 v2, v24, 3, v2'); a('s_lshl_b32 s12, s10, 1'); a('v_add_u32 v2, s12, v2')
    a('v_lshlrev_b32 v4, 5, v25'); a('v_lshl_add_u32 v4, v24, 3, v4')
    a('s_lshl_b32 s12, s8, 10'); a('v_add_u32 v6, s12, v3')
    a('s_mov_b32 s60, 0x%x', 0x3db8aa3b); a('s_mov_b32 s61, s60')
    for wv in range(1, 4):
        a('s_cmp_eq_u32 s8, %d', wv); a('s_cbranch_scc1 ch_w%d', wv)
    UA = 7
    FR = 20; GF = 32; ACC = 44; TP = 60; X = 68; UP = 60
    WV = 88
    ZA = 224
    for wv in range(4):
        a.label('ch_w%d' % wv)
        X = 68
        qt = QT[wv]; ut = UTL[wv]; nq = len(qt)
        units = [('q', t) for t in qt] + [('u', t) for t in ut]
        def wreg(u, ks):
            return ar(u*56 + ks*4) if u < 4 else vr(WV + (u-4)*56 + ks*4)
        def greg(ks):
            return ar(ZA+4*ks) if ks < 8 else vr([36,40,68,72,76,80][ks-8])
        load_weights(a, units, wreg, nq, UA, X)
        if wv < 2:
            a('v_lshlrev_b32 v15, 3, v22')
            a('v_add_u32 v18, s9, v23'); a('v_lshlrev_b32 v18, 4, v18'); a('v_mul_u32_u24 v26, 7168, v24'); a('v_add_u32 v18, v18, v26')
            if wv == 0:
                a('s_lshl_b32 s12, s11, 1'); a('s_add_u32 s12, s12, s7'); a('s_lshl_b32 s12, s12, 11'); a('s_add_u32 s12, s12, 16384')
                a('s_lshl_b32 s13, s15, 8'); a('s_add_u32 s12, s12, s13'); a('s_lshl_b32 s13, s14, 7'); a('s_add_u32 s12, s12, s13')
                a('v_lshlrev_b32 v11, 4, v23'); a('v_lshl_add_u32 v11, v24, 10, v11'); a('v_add_u32 v11, s12, v11')
                a('v_lshlrev_b32 v14, 5, v23'); a('v_lshl_add_u32 v14, v24, 3, v14'); a('s_lshl_b32 s13, s2, 8'); a('v_add_u32 v14, s13, v14')
                a('s_lshl_b32 s13, s2, 10'); a('v_lshlrev_b32 v19, 7, v25'); a('v_add_u32 v19, s13, v19')
            else:
                a('v_and_b32 v19, 1, v22'); a('v_lshlrev_b32 v19, 7, v19'); a('s_lshl_b32 s13, s2, 8'); a('v_add_u32 v19, s13, v19')
        else:
            a('v_lshrrev_b32 v26, 3, v22'); a('v_lshlrev_b32 v15, 8, v26'); a('v_lshl_add_u32 v15, v25, 4, v15'); a('v_add_u32 v15, %d, v15', (wv-2)*128)
            a('v_add_u32 v17, 4096, v15')
            a('v_mul_u32_u24 v16, 28, v26'); a('v_and_b32 v26, 1, v22'); a('v_lshl_add_u32 v16, v26, 4, v16')
            a('v_bfe_u32 v26, v22, 1, 2'); a('v_mul_u32_u24 v26, 912, v26'); a('v_add_u32 v16, v16, v26')
            a('v_add_u32 v16, %d, v16', 4*(wv-2)*912)
            if wv == 2:
                a('s_lshr_b32 s12, s2, 2'); a('s_mul_i32 s12, s12, 912'); a('s_and_b32 s13, s2, 3'); a('s_mul_i32 s13, s13, 224'); a('s_add_u32 s12, s12, s13')
                a('v_add_u32 v11, s12, v3'); a('s_mul_i32 s12, s2, 224'); a('v_add_u32 v12, s12, v3')
            if wv == 3:
                a('s_lshl_b32 s12, s11, 2'); a('s_add_u32 s12, s12, s15'); a('s_lshl_b32 s12, s12, 11')
                a('s_lshl_b32 s13, s7, 9'); a('s_add_u32 s12, s12, s13'); a('s_lshl_b32 s13, s14, 7'); a('s_add_u32 s12, s12, s13')
                a('v_and_b32 v26, 1, v24'); a('v_lshlrev_b32 v18, 10, v26'); a('v_lshrrev_b32 v26, 1, v24'); a('v_lshl_add_u32 v18, v26, 8, v18')
                a('v_lshl_add_u32 v18, v23, 4, v18'); a('v_add_u32 v18, s12, v18')
                a('s_lshl_b32 s12, s11, 1'); a('s_add_u32 s12, s12, s7'); a('s_lshl_b32 s12, s12, 9'); a('s_add_u32 s12, s12, 24576')
                a('s_lshl_b32 s13, s15, 7'); a('s_add_u32 s12, s12, s13'); a('s_lshl_b32 s13, s14, 6'); a('s_add_u32 s12, s12, s13')
                a('v_lshlrev_b32 v19, 3, v23'); a('v_add_u32 v19, s12, v19')
                a('s_mul_i32 s12, s6, 28672'); a('s_mul_i32 s13, s7, 14336'); a('s_add_u32 s12, s12, s13'); a('v_add_u32 v14, s12, v3')
        for r_ in range(53, 60): a('s_mov_b32 s%d, 0', r_)
        def gx_wait(L, step_reg_expr):
            a('s_and_b32 s13, s12, 7'); a('s_cmp_eq_u32 s13, 0'); a('s_cbranch_scc0 %s_ng', L)
            a('s_cmp_lt_u32 s12, 64'); a('s_cbranch_scc0 %s_ng', L)
            a('s_lshl_b32 s12, s12, 7'); a('s_add_u32 s12, s12, %d', F_GX)
            flag_poll(a, 76, 's12', 224, 20, 62, 'ch_done', 1)
            a.label(L + '_ng')
        def g_loads():
            for ks in range(14):
                if ks % 4 == 0: a('s_add_u32 s13, s57, %d', ks*1024)
                a('buffer_load_dwordx4 %s, v14, s[20:23], s13 offen offset:%d %s', greg(ks), (ks%4)*1024, GM)
            a('s_add_u32 s57, s57, %d', 16*28672)
        def g_load1(ks):
            a('s_add_u32 s13, s57, %d', (ks//4)*4096)
            a('buffer_load_dwordx4 %s, v14, s[20:23], s13 offen offset:%d %s', greg(ks), (ks%4)*1024, GM)
            if ks == 13:
                a('s_add_u32 s57, s57, %d', 16*28672); a('s_min_u32 s57, s57, %d', 63*16*28672)
        GP = opt('gp', 3)
        a('s_waitcnt vmcnt(0)')
        TS(11)
        if wv == 3:
            a('s_mov_b32 s12, 0'); gx_wait('ch_pro', None)
            TS(12)
            g_loads()
        if wv == 0: RT(a, 1)
        LP = 'ch_loop%d' % wv
        a.label(LP)
        if wv >= 2:
            PM = opt('pm', 3)
            SETS = [FR, ACC]
            def pl(b, ks=range(4)):
                for k in ks: a('buffer_load_dwordx4 %s, v%d, s[36:39], s53 offen offset:%d sc1', vr(SETS[b]+4*k), 15 if k < 2 else 17, (k&1)*2048)
            def chkm(R):
                a('v_max3_u32 v84, v%d, v%d, v%d', R, R+2, R+4); a('v_max3_u32 v85, v%d, v%d, v%d', R+6, R+8, R+10)
                a('v_max3_u32 v84, v84, v%d, v%d', R+12, R+14); a('v_max_u32 v84, v84, v85')
                a('v_cmp_eq_u32 vcc, -1, v84')
            def stage(R):
                TS(0); TV(13, 's62')
                for p in (2, 0):
                    for k in range(4):
                        a('ds_write2_b32 v16, v%d, v%d offset0:%d offset1:%d', R+4*k+p, R+4*k+p+1, 56*k+p, 56*k+p+1)
            a('s_mov_b32 s62, 0')
            if PM == 0:
                pl(0)
                a.label(LP + '_pm')
                for b in range(2):
                    R = SETS[b]
                    pl(1-b)
                    if b == 0:
                        a('s_add_u32 s62, s62, 1'); a('s_cmp_gt_u32 s62, %d', SPIN); a('s_cbranch_scc1 ch_done')
                    a('s_waitcnt vmcnt(4)')
                    chkm(R)
                    if b == 0: a('s_cbranch_vccz %s_g0', LP)
                    else: a('s_cbranch_vccnz %s_pm', LP)
                for b in (1, 0):
                    R = SETS[b]
                    if b == 0: a.label(LP + '_g0')
                    stage(R)
                    if b == 1: a('s_branch %s_g1', LP)
                a.label(LP + '_g1')
            elif PM == 1:
                R = FR
                a.label(LP + '_pm')
                pl(0, [0])
                a('s_add_u32 s62, s62, 1'); a('s_cmp_gt_u32 s62, %d', SPIN); a('s_cbranch_scc1 ch_done')
                a('s_waitcnt vmcnt(0)')
                a('v_max_u32 v84, v%d, v%d', R, R+2); a('v_cmp_eq_u32 vcc, -1, v84'); a('s_cbranch_vccnz %s_pm', LP)
                a.label(LP + '_pm2')
                pl(0, [1, 2, 3])
                a('s_add_u32 s62, s62, 1'); a('s_cmp_gt_u32 s62, %d', SPIN); a('s_cbranch_scc1 ch_done')
                a('s_waitcnt vmcnt(0)')
                chkm(R); a('s_cbranch_vccnz %s_pm2', LP)
                stage(R)
            elif PM == 2:
                R = FR
                a.label(LP + '_pm')
                pl(0)
                a('s_add_u32 s62, s62, 1'); a('s_cmp_gt_u32 s62, %d', SPIN); a('s_cbranch_scc1 ch_done')
                a('s_waitcnt vmcnt(0)')
                chkm(R); a('s_cbranch_vccnz %s_pm', LP)
                stage(R)
            elif PM == 3:
                R = FR
                a('s_sleep %d', opt('pms', 4))
                TS(14)
                a.label(LP + '_pm')
                pl(0)
                a('s_add_u32 s62, s62, 1'); a('s_cmp_gt_u32 s62, %d', SPIN); a('s_cbranch_scc1 ch_done')
                a('s_waitcnt vmcnt(0)')
                chkm(R); a('s_cbranch_vccnz %s_pm', LP)
                stage(R)
            a('s_waitcnt lgkmcnt(0)')
        a('s_barrier')
        if wv >= 2: a('s_waitcnt vmcnt(0)')
        TS(1)
        NR = 4 if wv == 3 else 3
        def rd(ks): a('ds_read_b128 %s, v1 offset:%d', vr(FR+4*(ks%NR)), L_MEM + ks*64)
        def mf(acc, A, B, first):
            a('v_mfma_f32_16x16x32_bf16 %s, %s, %s, %s', acc, A, B, '0' if first else acc)
        def kloop(mfs, extra=None):
            for k_ in range(NR-1): rd(k_)
            for ks in range(14):
                a('s_waitcnt lgkmcnt(%d)', min(NR-2, 13-ks))
                for j, f in enumerate(mfs(ks, vr(FR+4*(ks%NR)))):
                    f()
                    if j == 0 and ks + NR-1 < 14: rd(ks+NR-1)
                    if extra: extra(ks, j)
        fill = []
        def bc_rd(): a('ds_read_b128 v[32:35], v11 offset:%d', L_MEM)
        def bc_st():
            a('v_min_u32 v32, 0xfffffffe, v32'); a('s_mov_b64 exec, 0x3fff')
            a('buffer_store_dwordx4 v[32:35], v12, s[28:31], s55 offen sc1'); a('s_mov_b64 exec, -1')
        if wv == 2: bc_rd()
        a('s_cmp_eq_u32 s52, 63'); a('s_cbranch_scc1 %s_end', LP)
        if wv == 3:
            GAc = ACC+12
            X = 60
            kloop(lambda ks, fr: [lambda: mf(vr(GAc), greg(ks), fr, ks == 0), lambda: mf(vr(ACC), wreg(0, ks), fr, ks == 0)])
            def F(s, *ar_): fill.append(lambda: a(s, *ar_))
            F('s_nop 3')
            for r_ in range(4): F('v_mul_f32 v%d, s60, v%d', X+r_, GAc+r_)
            F('v_max3_f32 v%d, v%d, v%d, v%d', X+4, X, X+1, X+2); F('v_max_f32 v%d, v%d, v%d', X+4, X+4, X+3)
            F('v_mov_b32 v%d, v%d', X+6, X+4); F('s_nop 1')
            F('v_permlane32_swap_b32 v%d, v%d', X+4, X+6); F('s_nop 1')
            F('v_max_f32 v%d, v%d, v%d', X+4, X+4, X+6); F('s_nop 0')
            F('v_mov_b32 v%d, v%d', X+6, X+4); F('s_nop 1')
            F('v_permlane16_swap_b32 v%d, v%d', X+4, X+6); F('s_nop 1')
            F('v_max_f32 v%d, v%d, v%d', X+4, X+4, X+6)
            for r_ in range(4): F('v_sub_f32 v%d, v%d, v%d', X+r_, X+r_, X+4)
            for r_ in range(4): F('v_exp_f32 v%d, v%d', X+r_, X+r_)
            F('s_nop 0')
            F('v_min_u32 v%d, 0xfffffffe, v%d', X, X)
            F('v_add_f32 v%d, v%d, v%d', X+5, X, X+1); F('v_add_f32 v%d, v%d, v%d', X+6, X+2, X+3)
            def st_e():
                a('s_mov_b64 exec, s[46:47]')
                pub('buffer_store_dwordx4 %s, v18, s[40:43], s54 offen %s', vr(X))
                a('s_mov_b64 exec, -1')
            fill.append(st_e)
            F('v_add_f32 v%d, v%d, v%d', X+5, X+5, X+6); F('s_nop 0')
            F('v_mov_b32 v%d, v%d', X+6, X+5); F('s_nop 1')
            F('v_permlane32_swap_b32 v%d, v%d', X+5, X+6); F('s_nop 1')
            F('v_add_f32 v%d, v%d, v%d', X+5, X+5, X+6); F('s_nop 0')
            F('v_mov_b32 v%d, v%d', X+6, X+5); F('s_nop 1')
            F('v_permlane16_swap_b32 v%d, v%d', X+5, X+6); F('s_nop 1')
            F('v_add_f32 v%d, v%d, v%d', X+5, X+5, X+6)
            F('v_min_u32 v%d, 0xfffffffe, v%d', X+4, X+4)
            def st_ml():
                a('s_mov_b64 exec, s[50:51]')
                pub('buffer_store_dwordx2 %s, v19, s[40:43], s54 offen %s', vr(X+4, 2))
                a('s_mov_b64 exec, -1')
            fill.append(st_ml)
            def exB(ks, j):
                for _ in range(2):
                    if fill: fill.pop(0)()
                if GP == 1 and ks < 7: g_load1(2*ks+j)
                if GP == 2 and ks >= 11: g_load1(2*(ks-11)+j)
            kloop(lambda ks, fr: [(lambda u=u: mf(vr(ACC+4*u), wreg(u, ks), fr, ks == 0)) for u in (1, 2)], exB)
            assert not fill
        else:
            def exT(ks, j):
                if wv < 2 and j == 1 and ks < 8 and not opt('noz'):
                    a('s_add_u32 s13, s58, %d', (8*wv+ks)*28672)
                    a('buffer_load_dwordx4 %s, v18, s[24:27], s13 offen %s', ar(ZA+4*ks), GM)
                if wv < 2 and j == 1 and ks == 8 and PRETOUCH:
                    if wv == 0:
                        a('s_add_u32 s12, s54, %d', SBS); a('buffer_load_dword v86, v19, s[40:43], s12 offen sc1')
                    else:
                        a('s_add_u32 s12, s53, 16384'); a('buffer_load_dword v86, v19, s[36:39], s12 offen sc1')
                if wv == 2 and j == 1 and ks == 0: bc_st()
            kloop(lambda ks, fr: [(lambda u=u: mf(vr(ACC+4*u), wreg(u, ks), fr, ks == 0)) for u in range(nq)], exT)
        for u, t in enumerate(qt):
            a('ds_read_b64 %s, v2 offset:%d', vr(FR+2*u, 2), L_MEM + 32*t)
        if nq == 3:
            a('v_mov_b32 v%d, 0', FR+6); a('v_mov_b32 v%d, 0', FR+7)
            a('v_mov_b32 v%d, 0', TP+6); a('v_mov_b32 v%d, 0', TP+7)
            a.nop(2)
        else:
            a.nop(4)
        for u in range(nq):
            a('v_cvt_pk_bf16_f32 v%d, v%d, v%d', TP+2*u, ACC+4*u, ACC+4*u+1)
            a('v_cvt_pk_bf16_f32 v%d, v%d, v%d', TP+2*u+1, ACC+4*u+2, ACC+4*u+3)
        a('s_waitcnt lgkmcnt(0)'); a('s_nop 1')
        a('v_mfma_f32_16x16x32_bf16 %s, %s, %s, 0', vr(ACC), vr(TP), vr(FR))
        a('v_mfma_f32_16x16x32_bf16 %s, %s, %s, %s', vr(ACC), vr(TP+4), vr(FR+4), vr(ACC))
        a.nop(8)
        if wv > 0:
            a('ds_write_b128 v6, %s offset:%d', vr(ACC), L_RED)
            a('s_waitcnt lgkmcnt(0)')
        a('s_barrier')
        if wv == 0:
            for k in range(1, 4): a('ds_read_b128 %s, v3 offset:%d', vr(GF+4*(k-1)), L_RED + k*1024)
            a('s_waitcnt lgkmcnt(1)')
            for r_ in range(4): a('v_add_f32 v%d, v%d, v%d', GF+r_, GF+r_, GF+4+r_)
            for r_ in range(4): a('v_add_f32 v%d, v%d, v%d', ACC+r_, ACC+r_, GF+r_)
            a('s_waitcnt lgkmcnt(0)')
            for r_ in range(4): a('v_add_f32 v%d, v%d, v%d', ACC+r_, ACC+r_, GF+8+r_)
            a('v_min_u32 v%d, 0xfffffffe, v%d', ACC, ACC)
            a('s_mov_b64 exec, s[44:45]')
            pub('buffer_store_dwordx4 %s, v11, s[40:43], s54 offen %s', vr(ACC))
            a('s_mov_b64 exec, -1')
        TS(2)
        E = 32; ML = 64; S0 = 20; S1 = [28, 68]; T = 72
        UAC = 72 if wv < 2 else ACC
        UP = 84 if wv < 2 else 60
        p1 = []
        if wv < 2:
            a('s_add_u32 s74, s54, %d', wv*8192); a('s_add_u32 s75, s54, %d', wv*8192+4096)
            a('s_add_u32 s14, s54, %d', 16384 + wv*4096); a('s_add_u32 s15, s54, %d', 24576 + wv*1024)
            for m in range(4):
                for q in range(2):
                    p1.append(lambda m=m, q=q: a('buffer_load_dwordx4 %s, v3, s[40:43], %s offen offset:%d sc1', vr(E+8*m+4*q), 's74' if m < 2 else 's75', (m&1)*2048 + q*1024))
            for c_ in range(2):
                p1.append(lambda c_=c_: a('buffer_load_dwordx2 %s, v15, s[40:43], s15 offen offset:%d sc1', vr(ML+2*c_, 2), 512*c_))
        def exU(ks, j):
            if wv < 2 and j == 1 and ks >= 4: p1[ks-4]()
            if wv == 3 and GP == 2 and ks < 2: g_load1(6 + 4*ks + j)
            if wv == 3 and GP == 4 and ks >= 10 and 4*(ks-10)+j < 14: g_load1(4*(ks-10)+j)
        kloop(lambda ks, fr: [(lambda k=k: mf(vr(UAC+4*k), fr, wreg(nq+k, ks), ks == 0)) for k in range(len(ut))], exU)
        def p2():
            for c_ in range(2):
                for q in range(2):
                    a('buffer_load_dwordx4 %s, v3, s[40:43], s14 offen offset:%d sc1', vr(S0+4*q if c_ == 0 else S1[q]), 2048*c_+1024*q)
        if wv < 2:
            p2(); a.nop(4)
            UP = UAC
        else:
            a.nop(8)
        for k in range(len(ut)):
            a('v_cvt_pk_bf16_f32 v%d, v%d, v%d', UP+2*k, UAC+4*k, UAC+4*k+1)
            a('v_cvt_pk_bf16_f32 v%d, v%d, v%d', UP+2*k+1, UAC+4*k+2, UAC+4*k+3)
        a('s_mov_b64 exec, s[48:49]')
        for k in range(len(ut)):
            a('ds_write_b64 v%d, %s', UA+k, vr(UP+2*k,2))
        a('s_mov_b64 exec, -1')
        if wv >= 2:
            if wv == 3 and GP == 3:
                for ks in range(14): g_load1(ks)
            a('s_waitcnt lgkmcnt(0)')
            TS(3)
            a('s_barrier')
            if wv == 3:
                a('s_add_u32 s12, s52, 2'); gx_wait(LP, None)
                if not opt('nog') and GP == 0: g_loads()
            a('s_barrier')
            a('s_add_u32 s53, s53, 8192')
        else:
            TS(3)
            a('s_mov_b32 s62, 0')
            T2 = 84
            def chk1():
                a('v_max3_u32 v%d, v%d, v%d, v%d', T2, E, E+4, E+8); a('v_max3_u32 v%d, v%d, v%d, v%d', T2+1, E+12, E+16, E+20)
                a('v_max3_u32 v%d, v%d, v%d, v%d', T2, T2, E+24, E+28); a('v_max3_u32 v%d, v%d, v%d, v%d', T2+1, T2+1, ML, ML+2)
                a('v_max_u32 v%d, v%d, v%d', T2, T2, T2+1)
                a('v_cmp_eq_u32 vcc, -1, v%d', T2)
            a('s_waitcnt vmcnt(4)')
            chk1(); a('s_cbranch_vccz %s_p1d', LP)
            a.label(LP + '_p1')
            for f in p1: f()
            a('s_add_u32 s62, s62, 1'); a('s_cmp_gt_u32 s62, %d', SPIN); a('s_cbranch_scc1 ch_done')
            a('s_waitcnt vmcnt(0)')
            chk1(); a('s_cbranch_vccnz %s_p1', LP)
            a.label(LP + '_p1d')
            TS(7)
            a('s_waitcnt lgkmcnt(0)')
            a('v_max_f32 v%d, v%d, v%d', T+6, ML, ML+2)
            a('s_branch %s_p2c', LP)
            a.label(LP + '_p2')
            p2()
            a('s_add_u32 s62, s62, 1'); a('s_cmp_gt_u32 s62, %d', SPIN); a('s_cbranch_scc1 ch_done')
            a.label(LP + '_p2c')
            a('s_waitcnt vmcnt(0)')
            a('v_max3_u32 v%d, v%d, v%d, v%d', T2, S0, S0+4, S1[0]); a('v_max_u32 v%d, v%d, v%d', T2, T2, S1[1])
            a('v_cmp_eq_u32 vcc, -1, v%d', T2); a('s_cbranch_vccnz %s_p2', LP)
            TS(4); TV(13, 's62')
            for q in range(4): a('v_pk_add_f32 %s, %s, %s', vr(S0+2*q,2), vr(S0+2*q,2), vr(S1[q>>1]+2*(q&1),2))
            M_ = T+4
            a('v_max3_f32 v%d, v%d, v%d, v%d', M_, S0, S0+1, S0+2); a('v_max3_f32 v%d, v%d, v%d, v%d', M_+1, S0+3, S0+4, S0+5)
            a('v_max3_f32 v%d, v%d, v%d, v%d', M_, M_, S0+6, S0+7); a('v_max_f32 v%d, v%d, v%d', M_, M_, M_+1)
            a('v_mul_f32 v%d, s60, v%d', M_, M_); a('v_max_f32 v%d, v%d, v%d', M_, M_, T+6)
            a('v_sub_f32 v%d, v%d, v%d', T, ML, M_); a('v_sub_f32 v%d, v%d, v%d', T+1, ML+2, M_)
            for q in range(4):
                a('v_pk_fma_f32 %s, %s, s[60:61], %s op_sel_hi:[1,1,0] neg_lo:[0,0,1] neg_hi:[0,0,1]', vr(S0+2*q,2), vr(S0+2*q,2), vr(M_,2))
            a('v_exp_f32 v%d, v%d', T, T); a('v_exp_f32 v%d, v%d', T+1, T+1)
            for q in range(8): a('v_exp_f32 v%d, v%d', S0+q, S0+q)
            a('v_mul_f32 v%d, v%d, v%d', T+2, T, ML+1); a('v_fma_f32 v%d, v%d, v%d, v%d', T+2, T+1, ML+3, T+2)
            a('v_pk_add_f32 %s, %s, %s', vr(T+4,2), vr(S0,2), vr(S0+2,2)); a('v_pk_add_f32 %s, %s, %s', vr(T+6,2), vr(S0+4,2), vr(S0+6,2))
            a('v_pk_add_f32 %s, %s, %s', vr(T+4,2), vr(T+4,2), vr(T+6,2))
            a('v_add_f32 v%d, v%d, v%d', T+2, T+2, T+4); a('v_add_f32 v%d, v%d, v%d', T+2, T+2, T+5)
            a('v_rcp_f32 v%d, v%d', T+4, T+2); a('s_nop 0')
            a('v_pk_mul_f32 %s, %s, %s op_sel_hi:[1,0]', vr(T,2), vr(T,2), vr(T+4,2))
            a('s_nop 1')
            a('v_permlane32_swap_b32 v%d, v%d', T, T+1); a('s_nop 0')
            a('v_mov_b32 v%d, v%d', T+2, T); a('v_mov_b32 v%d, v%d', T+3, T+1)
            a('s_barrier')
            a('s_nop 0')
            a('v_permlane16_swap_b32 v%d, v%d', T, T+2); a('v_permlane16_swap_b32 v%d, v%d', T+1, T+3)
            for hh in range(2): a('ds_read_b128 %s, v3 offset:%d', vr(S1[hh]), L_ZM + (2*wv+hh)*1024)
            A1 = E+4; A2 = ML
            Fsel = [(T, 0), (T+2, 0), (T, 1), (T+2, 1)]
            for m in range(4):
                fb, hi = Fsel[m]
                for q in range(4):
                    a('v_pk_mul_f32 %s, %s, %s %s', vr(E+8*m+2*q,2), vr(E+8*m+2*q,2), vr(fb,2), 'op_sel:[0,1] op_sel_hi:[1,1]' if hi else 'op_sel_hi:[1,0]')
                for q in range(4):
                    a('v_cvt_pk_bf16_f32 v%d, v%d, v%d', E+8*m+q, E+8*m+2*q, E+8*m+2*q+1)
                if m == 3:
                    for q in range(4):
                        a('v_pk_mul_f32 %s, %s, %s op_sel_hi:[1,0]', vr(S0+2*q,2), vr(S0+2*q,2), vr(T+4,2))
                else:
                    a('s_nop 1')
                a('v_mfma_f32_16x16x32_bf16 %s, %s, %s, %s', vr(A1), ar(ZA+4*m), vr(E+8*m), '0' if m == 0 else vr(A1))
                a('v_mfma_f32_16x16x32_bf16 %s, %s, %s, %s', vr(A2), ar(ZA+16+4*m), vr(E+8*m), '0' if m == 0 else vr(A2))
            for q in range(4): a('v_cvt_pk_bf16_f32 v%d, v%d, v%d', S0+q, S0+2*q, S0+2*q+1)
            a('s_waitcnt lgkmcnt(0)'); a('s_nop 0')
            a('v_mfma_f32_16x16x32_bf16 %s, %s, %s, %s', vr(A1), vr(S1[0]), vr(S0), vr(A1))
            a('v_mfma_f32_16x16x32_bf16 %s, %s, %s, %s', vr(A2), vr(S1[1]), vr(S0), vr(A2))
            TS(5)
            a('s_add_u32 s53, s53, 8192'); a('s_add_u32 s58, s58, %d', 16*28672)
            a.nop(7)
            for r_ in range(4):
                a('v_add_f32_dpp v%d, v%d, v%d row_ror:8 row_mask:0xf bank_mask:0xf', A1+r_, A2+r_, A1+r_)
            if wv == 1:
                a('ds_write_b128 v3, %s offset:%d', vr(A1), L_RED2)
                a('s_waitcnt lgkmcnt(0)')
            a('s_barrier')
            if wv == 0:
                a('ds_read_b128 %s, v3 offset:%d', vr(A2), L_RED2)
                a('s_waitcnt lgkmcnt(0)')
                for r_ in range(4): a('v_add_f32 v%d, v%d, v%d', A1+r_, A1+r_, A2+r_)
                a('v_cvt_pk_bf16_f32 v%d, v%d, v%d', T, A1, A1+1); a('v_cvt_pk_bf16_f32 v%d, v%d, v%d', T+1, A1+2, A1+3)
                a('v_min_u32 v%d, 0xfffffffe, v%d', T, T)
                a('s_mov_b64 exec, s[46:47]')
                pub('buffer_store_dwordx2 %s, v14, s[36:39], s53 offen %s', vr(T,2))
                a('s_mov_b64 exec, -1')
            else:
                pass
            TS(6)
        a('s_add_u32 s52, s52, 1'); a('s_add_u32 s54, s54, %d', SBS); a('s_add_u32 s55, s55, 7168')
        a('s_branch %s', LP)
        a.label(LP + '_end')
        if wv == 2:
            a('s_waitcnt lgkmcnt(0)'); bc_st()
        a('s_waitcnt vmcnt(0)')
        a('s_branch ch_done')
    a.label('ch_done')
    RT(a, 2)
    a('s_endpgm')

NEG = 0xf149f2ca
def k_bfin(a):

    a('s_load_dwordx2 s[4:5], s[0:1], %d', KA['ws'])
    a('s_load_dwordx2 s[6:7], s[0:1], %d', KA['B_x'])
    a('s_load_dwordx2 s[8:9], s[0:1], %d', KA['out'])
    a('v_lshrrev_b32 v1, 6, v0'); a('v_and_b32 v2, 63, v0'); a('s_nop 0')
    a('v_readfirstlane_b32 s10, v1')
    a('v_and_b32 v3, 31, v2'); a('v_lshrrev_b32 v4, 5, v2')
    perm(a, 5, 3, 6)
    a('s_waitcnt lgkmcnt(0)')
    a.srd(12, 6, 7, 2048*896); a.srd(16, 4, 5, SZ_GX, WS_GX); a.srd(20, 4, 5, SZ_VW, WS_VW)
    a.srd(24, 4, 5, SZ_TM, WS_TM); a.srd(28, 4, 5, SZ_UT, WS_UT); a.srd(32, 8, 9, 2048*1792); a.srd(76, 4, 5, SZ_MF, WS_MF)
    a('s_lshl_b32 s11, s100, 5'); a('v_add_u32 v6, s11, v3'); a('v_mul_u32_u24 v6, 896, v6'); a('v_lshl_add_u32 v6, v4, 4, v6')
    for ks in range(28):
        a('buffer_load_dwordx4 %s, v6, s[12:15], 0 offen offset:%d', ar(4*ks), ks*32)
    a('v_lshrrev_b32 v7, 4, v5'); a('v_mul_u32_u24 v7, 14336, v7'); a('v_lshl_add_u32 v7, v4, 8, v7'); a('v_and_b32 v8, 15, v5'); a('v_lshl_add_u32 v7, v8, 4, v7')
    a('v_lshlrev_b32 v8, 5, v3'); a('v_lshl_add_u32 v8, v4, 4, v8')
    a('s_lshl_b32 s36, s100, 2'); a('s_add_u32 s36, s36, s10')
    a('s_mul_i32 s37, s36, 28672')
    a('s_mul_i32 s38, s36, %d', 4*28672)
    B0 = 16; B1A = 112; ACC = 128
    def buf(b, ks): return vr(B0+4*ks) if b == 0 else ar(B1A+4*ks)
    def ld(stream, b):
        for ks in range(28):
            if ks % 4 == 0:
                if stream == 0: a('s_add_u32 s39, s37, %d', ks*1024)
                else: a('s_add_u32 s39, s38, %d', (stream-1)*28672 + ks*512)
            if stream == 0: a('buffer_load_dwordx4 %s, v8, s[24:27], s39 offen offset:%d sc1', buf(b, ks), (ks%4)*1024)
            else: a('buffer_load_dwordx4 %s, v7, s[16:19], s39 offen offset:%d sc1', buf(b, ks), (ks%4)*512)
    a('v_lshlrev_b32 v9, 3, v4'); a('v_sub_u32 v9, v3, v9')
    for i in range(16):
        q, r_ = i >> 2, i & 3
        a('v_cmp_le_i32 s[%d:%d], %d, v9', 40+2*i, 41+2*i, 16*(q>>1) + 4*(q&1) + r_)
    a('s_mov_b32 s72, 0x%x', 0x3db8aa3b)
    a('v_mov_b32 v10, 0x%x', NEG)
    a('s_lshr_b32 s11, s100, 3'); a('s_lshl_b32 s11, s11, 10'); a('s_add_u32 s11, s11, %d', F_GX)
    flag_wait(a, 96, 's11', 224, 208, 74, 'wk_done')
    order = [1, 2, 3, 4, 0]
    ld(1, 0); ld(2, 1)
    for oi, st in enumerate(order):
        b = oi % 2
        a('s_waitcnt vmcnt(28)' if oi < 3 else 's_waitcnt vmcnt(0)')
        for ks in range(28):
            acc = vr(ACC+16*st, 16)
            a('v_mfma_f32_32x32x16_bf16 %s, %s, %s, %s', acc, buf(b, ks), ar(4*ks), '0' if ks == 0 else acc)
        if oi + 2 < 4:
            a('s_nop 0'); ld(order[oi+2], b)
        if oi == 3:
            a('s_lshl_b32 s11, s100, 9'); a('v_lshlrev_b32 v14, 3, v2'); a('s_mov_b32 s74, 0')
            a.label('bf_wm')
            a('buffer_load_dwordx2 v[12:13], v14, s[76:79], s11 offen sc1')
            a('s_add_u32 s74, s74, 1'); a('s_cmp_gt_u32 s74, %d', WSPIN); a('s_cbranch_scc1 wk_done')
            a('s_waitcnt vmcnt(0)'); a('v_max_u32 v12, v12, v13')
            a('v_cmp_eq_u32 vcc, -1, v12'); a('s_cbranch_vccz bf_m'); a('s_sleep 8'); a('s_branch bf_wm')
            a.label('bf_m')
            ld(0, 0)
    a.nop(16)
    a('v_lshlrev_b32 v11, 4, v2')
    a('s_lshl_b32 s11, s10, 13'); a('v_add_u32 v12, s11, v11')
    a('s_lshl_b32 s11, s10, 11'); a('v_add_u32 v13, s11, v11')
    T = 16; PMR = 40
    for hl in range(4):
        S = ACC + 16*(hl+1); Mm = ACC + 4*hl
        for i in range(16):
            a('v_cndmask_b32_e64 v%d, v10, v%d, s[%d:%d]', S+i, S+i, 40+2*i, 41+2*i)
        a('v_max3_f32 v%d, v%d, v%d, v%d', T, S, S+1, S+2)
        for i in range(6): a('v_max3_f32 v%d, v%d, v%d, v%d', T, T, S+3+2*i, S+4+2*i)
        a('v_max3_f32 v%d, v%d, v%d, v%d', T, T, S+15, Mm)
        a('v_max3_f32 v%d, v%d, v%d, v%d', T, T, Mm+1, Mm+2); a('v_max_f32 v%d, v%d, v%d', T, T, Mm+3)
        a('v_mov_b32 v%d, v%d', T+1, T); a('s_nop 1')
        a('v_permlane32_swap_b32 v%d, v%d', T, T+1); a('s_nop 1')
        a('v_max_f32 v%d, v%d, v%d', T, T, T+1)
        a('v_mul_f32 v%d, s72, v%d', T, T)
        for i in range(16): a('v_fma_f32 v%d, v%d, s72, -v%d', S+i, S+i, T)
        for i in range(4): a('v_fma_f32 v%d, v%d, s72, -v%d', Mm+i, Mm+i, T)
        for i in range(16): a('v_exp_f32 v%d, v%d', S+i, S+i)
        for i in range(4): a('v_exp_f32 v%d, v%d', Mm+i, Mm+i)
        a('s_nop 0')
        a('v_add_f32 v%d, v%d, v%d', T, S, S+1)
        for i in range(2, 16): a('v_add_f32 v%d, v%d, v%d', T, T, S+i)
        for i in range(4): a('v_add_f32 v%d, v%d, v%d', T, T, Mm+i)
        a('v_mov_b32 v%d, v%d', T+1, T); a('s_nop 1')
        a('v_permlane32_swap_b32 v%d, v%d', T, T+1); a('s_nop 1')
        a('v_add_f32 v%d, v%d, v%d', T, T, T+1)
        a('v_rcp_f32 v%d, v%d', T, T); a('s_nop 0')
        for i in range(16): a('v_mul_f32 v%d, v%d, v%d', S+i, S+i, T)
        for i in range(4): a('v_mul_f32 v%d, v%d, v%d', Mm+i, Mm+i, T)
        for i in range(8): a('v_cvt_pk_bf16_f32 v%d, v%d, v%d', T+8+i, S+2*i, S+2*i+1)
        for i in range(2): a('v_cvt_pk_bf16_f32 v%d, v%d, v%d', PMR+2*hl+i, Mm+2*i, Mm+2*i+1)
        a('ds_write_b128 v12, %s offset:%d', vr(T+8), hl*2048); a('ds_write_b128 v12, %s offset:%d', vr(T+12), hl*2048+1024)
        a('s_nop 1')
    for hp in range(2): a('ds_write_b128 v13, %s offset:%d', vr(PMR+4*hp), 32768 + hp*1024)
    a('s_waitcnt lgkmcnt(0)'); a('s_barrier')
    for i in range(40):
        a('ds_read_b128 %s, v11 offset:%d', ar(4*i), i*1024)
    a('s_mul_i32 s11, s100, %d', 16*448); a('s_lshl_b32 s36, s10, 5'); a('s_add_u32 s11, s11, s36')
    a('v_add_u32 v8, s11, v5')
    a('s_mul_i32 s37, s100, %d', 16*28672); a('v_add_u32 v6, s36, v5'); a('v_lshlrev_b32 v6, 4, v6'); a('v_add_u32 v6, s37, v6')
    a('v_mul_u32_u24 v7, 7168, v4'); a('v_add_u32 v6, v6, v7')
    a('v_lshlrev_b32 v7, 4, v8'); a('v_lshl_add_u32 v7, v4, 3, v7')
    a('s_lshl_b32 s11, s100, 5'); a('v_add_u32 v9, s11, v3'); a('v_mul_u32_u24 v9, 1792, v9'); a('v_lshl_add_u32 v9, v4, 4, v9')
    a('s_lshl_b32 s36, s10, 6'); a('s_add_u32 s36, s36, 896'); a('v_add_u32 v9, s36, v9')
    OB = [16, 96]; OA = 176; OT = 192
    def ld2(it, hh, b):
        for h8 in range(8):
            h = 8*hh + h8
            for k2 in range(2):
                a('s_mov_b32 s39, %d', h*28672 + it*2048 + k2*14336)
                a('buffer_load_dwordx4 %s, v6, s[20:23], s39 offen sc1', vr(OB[b]+8*h8+4*k2))
            a('s_mov_b32 s39, %d', h*448*16 + it*128*16)
            a('buffer_load_dwordx2 %s, v7, s[28:31], s39 offen sc1', vr(OB[b]+64+2*h8, 2))
    units = [(it, hh) for it in range(4) for hh in range(2)]
    ld2(0, 0, 0)
    a('s_waitcnt lgkmcnt(0)')
    for ui, (it, hh) in enumerate(units):
        b = ui % 2
        if it == 3 and hh == 0:
            a('s_cmp_ge_u32 s10, 2'); a('s_cbranch_scc1 wk_loop')
        if ui + 1 < len(units):
            ld2(units[ui+1][0], units[ui+1][1], 1-b); a('s_waitcnt vmcnt(24)')
        else:
            a('s_waitcnt vmcnt(0)')
        acc = vr(OA, 16)
        for h8 in range(8):
            h = 8*hh + h8
            for k2 in range(2):
                a('v_mfma_f32_32x32x16_bf16 %s, %s, %s, %s', acc, vr(OB[b]+8*h8+4*k2), ar(8*h+4*k2), '0' if (hh == 0 and h8 == 0 and k2 == 0) else acc)
        for hp in range(4):
            a('v_mfma_f32_32x32x16_bf16 %s, %s, %s, %s', acc, vr(OB[b]+64+4*hp), ar(128+4*(4*hh+hp)), acc)
        if hh == 1:
            a.nop(16)
            for i in range(8): a('v_cvt_pk_bf16_f32 v%d, v%d, v%d', OT+i, OA+2*i, OA+2*i+1)
            for qq in range(2):
                a('buffer_store_dwordx4 %s, v9, s[32:35], 0 offen offset:%d', vr(OT+4*qq), it*256 + qq*32)
            a('s_nop 1')
    a('s_branch wk_loop')

def k_fold(a):
    a('s_load_dwordx4 s[4:7], s[0:1], %d', KA['A_wqkv'])
    a('s_load_dwordx2 s[8:9], s[0:1], %d', KA['A_wo'])
    a('s_load_dwordx2 s[10:11], s[0:1], %d', KA['ws'])
    a('v_lshrrev_b32 v1, 6, v0'); a('v_and_b32 v2, 63, v0'); a('s_nop 0')
    a('v_readfirstlane_b32 s3, v1')
    a('v_and_b32 v3, 31, v2'); a('v_lshrrev_b32 v4, 5, v2')
    a('s_waitcnt lgkmcnt(0)')
    a.srd(12, 4, 5, 448*1344*2); a.srd(16, 6, 7, 16*784*2); a.srd(20, 8, 9, 448*448*2)
    a.srd(24, 10, 11, SZ_WA, WS_WA); a.srd(28, 10, 11, SZ_WOT, WS_WOT)
    a('v_mov_b32 v9, 0x7ffffff0')
    a('s_cmp_ge_u32 s100, 224'); a('s_cbranch_scc1 fo_wo')
    a('s_cmp_ge_u32 s100, 112'); a('s_cbranch_scc1 fo_v')
    a('s_lshl_b32 s32, s100, 2'); a('s_add_u32 s32, s32, s3')
    a('s_mul_i32 s33, s32, 4682'); a('s_lshr_b32 s33, s33, 16')
    a('s_mul_i32 s34, s33, 14'); a('s_sub_u32 s34, s32, s34')
    a('s_lshr_b32 s35, s33, 4'); a('s_and_b32 s36, s33, 15')
    perm(a, 5, 3, 6)
    a('s_lshl_b32 s37, s34, 5'); a('v_add_u32 v6, s37, v5'); a('v_mul_u32_u24 v6, 2688, v6')
    a('s_mul_i32 s37, s35, 896'); a('s_mul_i32 s38, s36, 56'); a('s_add_u32 s37, s37, s38'); a('v_add_u32 v6, s37, v6')
    a('v_lshl_add_u32 v6, v4, 4, v6')
    for ks in range(2):
        a('buffer_load_dwordx4 %s, v6, s[12:15], 0 offen offset:%d', vr(16+4*ks), ks*32)
    a('s_mul_i32 s37, s36, 1568'); a('v_lshlrev_b32 v7, 1, v3'); a('v_add_u32 v7, s37, v7')
    a('v_mul_u32_u24 v8, 448, v4'); a('v_add_u32 v7, v7, v8')
    a('v_cmp_gt_u32 vcc, 28, v3'); a('s_nop 1'); a('v_cndmask_b32 v7, v9, v7, vcc')
    a('v_cmp_eq_u32 vcc, 0, v4'); a('s_nop 1'); a('v_cndmask_b32 v8, v9, v7, vcc')
    for ks in range(2):
        for q in range(8):
            a('buffer_load_ushort v%d, v%d, s[16:19], 0 offen offset:%d', 32+8*ks+q, 8 if (ks == 1 and q >= 4) else 7, (16*ks+q)*56)
    a('s_waitcnt vmcnt(0)')
    for i in range(8): a('v_lshl_or_b32 v%d, v%d, 16, v%d', 24+i, 32+2*i+1, 32+2*i)
    a('s_nop 1')
    a('v_mfma_f32_32x32x16_bf16 %s, %s, %s, 0', vr(48,16), vr(16), vr(24))
    a('v_mfma_f32_32x32x16_bf16 %s, %s, %s, %s', vr(48,16), vr(20), vr(28), vr(48,16))
    a.nop(18)
    for i in range(8): a('v_cvt_pk_bf16_f32 v%d, v%d, v%d', 64+i, 48+2*i, 49+2*i)
    a('s_lshl_b32 s37, s33, 5'); a('v_add_u32 v6, s37, v3'); a('v_mul_u32_u24 v6, 896, v6')
    a('s_lshl_b32 s37, s34, 6'); a('v_add_u32 v6, s37, v6'); a('v_lshl_add_u32 v6, v4, 4, v6')
    for qq in range(2):
        a('buffer_store_dwordx4 %s, v6, s[24:27], 0 offen offset:%d sc1', vr(64+4*qq), qq*32)
    a('s_branch fo_done')
    a.label('fo_v')
    a('s_sub_u32 s32, s100, 112'); a('s_lshl_b32 s32, s32, 8'); a('v_add_u32 v5, s32, v0')
    a('v_and_b32 v6, 511, v5'); a('v_lshrrev_b32 v7, 9, v5')
    a('v_lshrrev_b32 v8, 5, v6'); a('v_mul_u32_u24 v8, 28, v8'); a('v_add_u32 v8, v8, v3')
    a('v_mul_u32_u24 v10, %d, v7', 8*1344); a('v_add_u32 v8, v8, v10'); a('v_add_u32 v8, 896, v8'); a('v_lshlrev_b32 v8, 1, v8')
    a('v_cmp_gt_u32 vcc, 28, v3'); a('s_nop 1'); a('v_cndmask_b32 v8, v9, v8, vcc')
    a('s_mov_b32 s33, 0')
    for q in range(8):
        a('buffer_load_ushort v%d, v8, s[12:15], s33 offen', 32+q)
        a('s_add_u32 s33, s33, 2688')
    a('v_add_u32 v6, 1024, v6'); a('v_mul_u32_u24 v6, 896, v6'); a('v_lshl_add_u32 v6, v7, 4, v6')
    a('s_waitcnt vmcnt(0)')
    for i in range(4): a('v_lshl_or_b32 v%d, v%d, 16, v%d', 24+i, 32+2*i+1, 32+2*i)
    a('buffer_store_dwordx4 %s, v6, s[24:27], 0 offen sc1', vr(24))
    a('s_branch fo_done')
    a.label('fo_wo')
    a('s_sub_u32 s32, s100, 224'); a('s_lshl_b32 s32, s32, 2'); a('s_add_u32 s32, s32, s3')
    a('s_mov_b32 s33, 0x24924925'); a('s_mul_hi_u32 s33, s32, s33')
    a('s_mul_i32 s34, s33, 7'); a('s_sub_u32 s34, s32, s34')
    a('s_lshr_b32 s35, s33, 2'); a('s_and_b32 s36, s33, 3')
    a('s_lshl_b32 s37, s34, 6'); a('v_add_u32 v5, s37, v2')
    a('s_mul_i32 s37, s35, 28'); a('s_lshl_b32 s38, s36, 3'); a('s_add_u32 s37, s37, s38'); a('s_mul_i32 s37, s37, 896')
    a('v_lshlrev_b32 v6, 1, v5'); a('v_add_u32 v6, s37, v6')
    a('s_cmp_eq_u32 s36, 3'); a('s_cselect_b64 vcc, -1, 0'); a('v_cndmask_b32 v7, v6, v9, vcc')
    a('s_movk_i32 s39, 3584')
    for q in range(8):
        a('buffer_load_ushort v%d, v%d, s[20:23], %s offen offset:%d', 32+q, 7 if q >= 4 else 6, 's39' if q >= 4 else '0', (q&3)*896)
    a('v_lshlrev_b32 v8, 10, v5'); a('s_lshl_b32 s37, s33, 4'); a('v_add_u32 v8, s37, v8')
    a('s_waitcnt vmcnt(0)')
    for i in range(4): a('v_lshl_or_b32 v%d, v%d, 16, v%d', 24+i, 32+2*i+1, 32+2*i)
    a('buffer_store_dwordx4 %s, v8, s[28:31], 0 offen sc1', vr(24))
    a.label('fo_done')
    flag_set(a, 96, F_FOLD, 's100', 12, 74, 'wk_done')
    a('s_branch wk_loop')

LOG2E = 0x3fb8aa3b
def k_a1(a):
    flag_wait(a, 96, F_FOLD, 336, 12, 74, 'wk_done')
    flag_wait(a, 96, F_M, 224, 12, 74, 'wk_done')
    a('s_load_dwordx2 s[4:5], s[0:1], %d', KA['ws'])
    a('s_load_dwordx2 s[6:7], s[0:1], %d', KA['A_x'])
    a('v_lshrrev_b32 v1, 6, v0'); a('v_and_b32 v2, 63, v0'); a('s_nop 0')
    a('v_readfirstlane_b32 s10, v1')
    a('v_and_b32 v3, 31, v2'); a('v_lshrrev_b32 v4, 5, v2')
    a('s_and_b32 s8, s100, 15'); a('s_lshr_b32 s9, s100, 4')
    a('s_waitcnt lgkmcnt(0)')
    a.srd(12, 6, 7, 2048*896); a.srd(16, 4, 5, SZ_WA, WS_WA); a.srd(20, 4, 5, SZ_KV, WS_KV)
    a('s_lshl_b32 s11, s9, 2'); a('s_add_u32 s11, s11, s10'); a('s_lshl_b32 s11, s11, 5')
    a('v_add_u32 v6, s11, v3'); a('v_mul_u32_u24 v6, 896, v6'); a('v_lshl_add_u32 v6, v4, 4, v6')
    a('s_lshl_b32 s11, s8, 5'); a('s_add_u32 s11, s11, 512'); a('v_add_u32 v7, s11, v3'); a('v_mul_u32_u24 v7, 896, v7'); a('v_lshl_add_u32 v7, v4, 4, v7')
    a('s_mov_b32 s24, %d', 512*896)
    XF = 16
    for ks in range(28):
        a('buffer_load_dwordx4 %s, v6, s[12:15], 0 offen offset:%d', vr(XF+4*ks), ks*32)
        a('buffer_load_dwordx4 %s, v7, s[16:19], 0 offen offset:%d sc1', ar(4*ks), ks*32)
        a('buffer_load_dwordx4 %s, v7, s[16:19], s24 offen offset:%d sc1', ar(112+4*ks), ks*32)
    P = 128; V = 144; MX = 160; MN = 176; T = 192; EP = 208; EN = 224
    a('v_cmp_gt_u32 s[26:27], 28, v3'); a('v_cmp_eq_u32 s[28:29], 28, v3')
    a('v_mov_b32 v8, 0x%x', NEG); a('v_mov_b32 v9, 0x%x', NEG ^ 0x80000000); a('s_mov_b32 s30, 0x%x', LOG2E)
    a('v_mov_b32 v10, 1.0'); a('v_mov_b32 v11, 0')
    for ks in range(28):
        if ks % 4 == 0: a('s_waitcnt vmcnt(%d)', min(63, max(0, 84 - 3*(ks+4))))
        a('v_mfma_f32_32x32x16_bf16 %s, %s, %s, %s', vr(P,16), vr(XF+4*ks), ar(4*ks), '0' if ks == 0 else vr(P,16))
        a('v_mfma_f32_32x32x16_bf16 %s, %s, %s, %s', vr(V,16), vr(XF+4*ks), ar(112+4*ks), '0' if ks == 0 else vr(V,16))
    a.nop(18)
    def allred(R, op):
        for sh in (8, 4, 2, 1):
            for i in range(16):
                a('%s_dpp v%d, v%d, v%d row_ror:%d row_mask:0xf bank_mask:0xf', op, R+i, R+i, R+i, sh)
        for i in range(16): a('v_mov_b32 v%d, v%d', T+i, R+i)
        for i in range(16): a('v_permlane16_swap_b32 v%d, v%d', R+i, T+i)
        for i in range(16): a('%s v%d, v%d, v%d', op, R+i, R+i, T+i)
    for i in range(16):
        a('v_cndmask_b32_e64 v%d, v8, v%d, s[26:27]', MX+i, P+i)
        a('v_cndmask_b32_e64 v%d, v9, v%d, s[26:27]', MN+i, P+i)
    allred(MX, 'v_max_f32'); allred(MN, 'v_min_f32')
    for i in range(16):
        a('v_sub_f32 v%d, v%d, v%d', EP+i, P+i, MX+i); a('v_sub_f32 v%d, v%d, v%d', EN+i, MN+i, P+i)
    for i in range(16):
        a('v_mul_f32 v%d, s30, v%d', EP+i, EP+i); a('v_mul_f32 v%d, s30, v%d', EN+i, EN+i)
    for i in range(16):
        a('v_exp_f32 v%d, v%d', EP+i, EP+i); a('v_exp_f32 v%d, v%d', EN+i, EN+i)
    for i in range(16):
        a('v_cndmask_b32_e64 v%d, v11, v%d, s[26:27]', EP+i, EP+i); a('v_cndmask_b32_e64 v%d, v11, v%d, s[26:27]', EN+i, EN+i)
    for i in range(16):
        a('v_mov_b32 v%d, v%d', MX+i, EP+i); a('v_mov_b32 v%d, v%d', MN+i, EN+i)
    allred(MX, 'v_add_f32'); allred(MN, 'v_add_f32')
    for i in range(16):
        a('v_rcp_f32 v%d, v%d', MX+i, MX+i); a('v_rcp_f32 v%d, v%d', MN+i, MN+i)
    for i in range(16):
        a('v_mul_f32 v%d, v%d, v%d', EP+i, EP+i, MX+i); a('v_mul_f32 v%d, v%d, v%d', EN+i, EN+i, MN+i)
        a('v_cndmask_b32_e64 v%d, v%d, v10, s[28:29]', V+i, V+i)
    FP = 16; FN = 24; FV = 32
    for i in range(8):
        a('v_cvt_pk_bf16_f32 v%d, v%d, v%d', FP+i, EP+2*i, EP+2*i+1)
        a('v_cvt_pk_bf16_f32 v%d, v%d, v%d', FN+i, EN+2*i, EN+2*i+1)
        a('v_cvt_pk_bf16_f32 v%d, v%d, v%d', FV+i, V+2*i, V+2*i+1)
    a('s_nop 1')
    K0 = 48
    for sg, F in enumerate((FP, FN)):
        for k2 in range(2):
            acc = vr(K0+16*sg, 16)
            a('v_mfma_f32_32x32x16_bf16 %s, %s, %s, %s', acc, vr(FV+4*k2), vr(F+4*k2), '0' if k2 == 0 else acc)
    a.nop(18)
    a('v_lshlrev_b32 v12, 4, v2'); a('s_lshl_b32 s11, s10, 10'); a('v_add_u32 v13, s11, v12')
    for rq in range(8): a('ds_write_b128 v13, %s offset:%d', vr(K0+4*rq), rq*4096)
    a('s_waitcnt lgkmcnt(0)'); a('s_barrier')
    a('s_lshl_b32 s11, s10, 13'); a('v_add_u32 v13, s11, v12')
    for e in range(2):
        for w in range(4): a('ds_read_b128 %s, v13 offset:%d', vr(80+16*e+4*w), e*4096 + w*1024)
    a('s_lshl_b32 s11, s8, 5'); a('s_and_b32 s24, s10, 1'); a('s_lshl_b32 s24, s24, 4'); a('s_add_u32 s11, s11, s24'); a('s_lshl_b32 s11, s11, 8')
    a('s_lshr_b32 s24, s10, 1'); a('s_lshl_b32 s24, s24, 7'); a('s_add_u32 s11, s11, s24')
    a('v_lshlrev_b32 v14, 10, v4'); a('v_lshl_add_u32 v14, v3, 2, v14'); a('v_add_u32 v14, s11, v14')
    a('s_waitcnt lgkmcnt(0)')
    for e in range(2):
        for r_ in range(4):
            b = 80+16*e+r_
            a('v_add_f32 v%d, v%d, v%d', b, b, b+4); a('v_add_f32 v%d, v%d, v%d', b+8, b+8, b+12); a('v_add_f32 v%d, v%d, v%d', b, b, b+8)
    for e in range(2):
        for r_ in range(4):
            a('buffer_atomic_add_f32 v%d, v14, s[20:23], 0 offen offset:%d sc1', 80+16*e+r_, (8*e+r_)*256)
    flag_set(a, 96, F_A1, 's100', 12, 74, 'wk_done')
    a('s_branch wk_loop')

def k_a2(a):
    flag_wait(a, 96, F_FOLD, 336, 12, 74, 'wk_done')
    a('s_load_dwordx2 s[4:5], s[0:1], %d', KA['ws'])
    a('s_load_dwordx2 s[6:7], s[0:1], %d', KA['A_x'])
    a('s_load_dwordx2 s[8:9], s[0:1], %d', KA['out'])
    a('v_lshrrev_b32 v1, 6, v0'); a('v_and_b32 v2, 63, v0'); a('s_nop 0')
    a('v_readfirstlane_b32 s10, v1')
    a('v_and_b32 v3, 31, v2'); a('v_lshrrev_b32 v4, 5, v2')
    perm(a, 5, 3, 6)
    a('s_waitcnt lgkmcnt(0)')
    a.srd(12, 6, 7, 2048*896); a.srd(16, 4, 5, SZ_WA, WS_WA); a.srd(20, 4, 5, SZ_KV, WS_KV)
    a.srd(24, 4, 5, SZ_WOT, WS_WOT); a.srd(32, 8, 9, 2048*1792)
    a('s_lshl_b32 s11, s100, 5'); a('v_add_u32 v6, s11, v3'); a('v_mul_u32_u24 v6, 896, v6'); a('v_lshl_add_u32 v6, v4, 4, v6')
    for ks in range(28):
        a('buffer_load_dwordx4 %s, v6, s[12:15], 0 offen offset:%d', ar(4*ks), ks*32)
    a('s_lshl_b32 s11, s10, 7'); a('v_add_u32 v8, s11, v5'); a('v_mul_u32_u24 v7, 896, v8'); a('v_lshl_add_u32 v7, v4, 4, v7')
    a('v_lshlrev_b32 v8, 8, v8'); a('v_lshl_add_u32 v8, v4, 5, v8')
    B0 = 16; B1A = 112; ACC = 128; KVF = 192
    def buf(b, ks): return vr(B0+4*ks) if b == 0 else ar(B1A+4*ks)
    def ld(hl, b):
        a('s_mov_b32 s39, %d', hl*32*896)
        for ks in range(28):
            a('buffer_load_dwordx4 %s, v7, s[16:19], s39 offen offset:%d sc1', buf(b, ks), ks*32)
    a('v_cmp_eq_u32 s[40:41], 0, v4')
    a('v_mov_b32 v9, 0x%x', NEG); a('v_mov_b32 v10, 0x%x', NEG ^ 0x80000000); a('s_mov_b32 s30, 0x%x', LOG2E); a('v_mov_b32 v11, 0')
    ld(0, 0); ld(1, 1)
    for hl in range(4):
        b = hl % 2
        a('s_waitcnt vmcnt(28)' if hl < 3 else 's_waitcnt vmcnt(0)')
        for ks in range(28):
            acc = vr(ACC+16*hl, 16)
            a('v_mfma_f32_32x32x16_bf16 %s, %s, %s, %s', acc, buf(b, ks), ar(4*ks), '0' if ks == 0 else acc)
        if hl + 2 < 4:
            a('s_nop 0'); ld(hl+2, b)
    a.nop(16)
    flag_wait(a, 96, F_A1, 256, 224, 74, 'wk_done')
    a('v_lshlrev_b32 v12, 4, v2'); a('s_lshl_b32 s11, s10, 13'); a('v_add_u32 v13, s11, v12')
    EP = 16; EN = 32; T = 48; FP = 56; FK = 72; O = 88; OF = 104
    for hl in range(4):
        S = ACC + 16*hl
        a('s_mov_b32 s39, %d', hl*32*256)
        for i in range(8):
            a('buffer_load_dwordx4 %s, v8, s[20:23], s39 offen offset:%d sc1', vr(KVF+4*i), (i>>1)*64 + (i&1)*16)
        for i in range(4):
            a('v_cndmask_b32_e64 v%d, v9, v%d, s[40:41]', T+i, S+12+i); a('v_cndmask_b32_e64 v%d, v10, v%d, s[40:41]', T+4+i, S+12+i)
        a('v_max3_f32 v%d, v%d, v%d, v%d', T, T, T+1, T+2); a('v_min3_f32 v%d, v%d, v%d, v%d', T+4, T+4, T+5, T+6)
        a('v_max_f32 v%d, v%d, v%d', T, T, T+3); a('v_min_f32 v%d, v%d, v%d', T+4, T+4, T+7)
        for i in range(6):
            a('v_max3_f32 v%d, v%d, v%d, v%d', T, T, S+2*i, S+2*i+1); a('v_min3_f32 v%d, v%d, v%d, v%d', T+4, T+4, S+2*i, S+2*i+1)
        a('v_mov_b32 v%d, v%d', T+1, T); a('v_mov_b32 v%d, v%d', T+5, T+4); a('s_nop 1')
        a('v_permlane32_swap_b32 v%d, v%d', T, T+1); a('v_permlane32_swap_b32 v%d, v%d', T+4, T+5); a('s_nop 1')
        a('v_max_f32 v%d, v%d, v%d', T, T, T+1); a('v_min_f32 v%d, v%d, v%d', T+4, T+4, T+5)
        for i in range(16):
            a('v_sub_f32 v%d, v%d, v%d', EP+i, S+i, T); a('v_sub_f32 v%d, v%d, v%d', EN+i, T+4, S+i)
        for i in range(16):
            a('v_mul_f32 v%d, s30, v%d', EP+i, EP+i); a('v_mul_f32 v%d, s30, v%d', EN+i, EN+i)
        for i in range(16):
            a('v_exp_f32 v%d, v%d', EP+i, EP+i); a('v_exp_f32 v%d, v%d', EN+i, EN+i)
        a('s_nop 0')
        for i in range(12, 16):
            a('v_cndmask_b32_e64 v%d, v11, v%d, s[40:41]', EP+i, EP+i); a('v_cndmask_b32_e64 v%d, v11, v%d, s[40:41]', EN+i, EN+i)
        a('v_add_f32 v%d, v%d, v%d', T, EP, EP+1); a('v_add_f32 v%d, v%d, v%d', T+4, EN, EN+1)
        for i in range(2, 16):
            a('v_add_f32 v%d, v%d, v%d', T, T, EP+i); a('v_add_f32 v%d, v%d, v%d', T+4, T+4, EN+i)
        a('v_mov_b32 v%d, v%d', T+1, T); a('v_mov_b32 v%d, v%d', T+5, T+4); a('s_nop 1')
        a('v_permlane32_swap_b32 v%d, v%d', T, T+1); a('v_permlane32_swap_b32 v%d, v%d', T+4, T+5); a('s_nop 1')
        a('v_add_f32 v%d, v%d, v%d', T, T, T+1); a('v_add_f32 v%d, v%d, v%d', T+4, T+4, T+5)
        a('v_rcp_f32 v%d, v%d', T, T); a('v_rcp_f32 v%d, v%d', T+4, T+4); a('s_nop 0')
        for i in range(16):
            a('v_mul_f32 v%d, v%d, v%d', EP+i, EP+i, T); a('v_mul_f32 v%d, v%d, v%d', EN+i, EN+i, T+4)
        for i in range(16): a('v_cvt_pk_bf16_f32 v%d, v%d, v%d', FP+i, EP+2*i, EP+2*i+1)
        a('s_waitcnt vmcnt(0)')
        for i in range(16): a('v_cvt_pk_bf16_f32 v%d, v%d, v%d', FK+i, KVF+2*i, KVF+2*i+1)
        a('s_nop 1')
        for k in range(4):
            a('v_mfma_f32_32x32x16_bf16 %s, %s, %s, %s', vr(O,16), vr(FK+4*k), vr(FP+4*k), '0' if k == 0 else vr(O,16))
        a.nop(18)
        a('v_mov_b32 v%d, v%d', T, O+12); a('v_mov_b32 v%d, v%d', T+1, O+12); a('s_nop 1')
        a('v_permlane32_swap_b32 v%d, v%d', T, T+1); a('s_nop 1')
        a('v_add_f32 v%d, 0x358637bd, v%d', T+1, T+1)
        a('v_rcp_f32 v%d, v%d', T+1, T+1); a('s_nop 0')
        for i in range(16): a('v_mul_f32 v%d, v%d, v%d', O+i, O+i, T+1)
        for i in range(8): a('v_cvt_pk_bf16_f32 v%d, v%d, v%d', OF+i, O+2*i, O+2*i+1)
        a('ds_write_b128 v13, %s offset:%d', vr(OF), hl*2048); a('ds_write_b128 v13, %s offset:%d', vr(OF+4), hl*2048+1024)
        a('s_nop 1')
    a('s_waitcnt lgkmcnt(0)'); a('s_barrier')
    for i in range(32): a('ds_read_b128 %s, v12 offset:%d', ar(4*i), i*1024)
    a('s_lshl_b32 s11, s10, 5'); a('v_add_u32 v6, s11, v5'); a('v_lshlrev_b32 v6, 10, v6'); a('v_lshl_add_u32 v6, v4, 4, v6')
    a('s_lshl_b32 s11, s100, 5'); a('v_add_u32 v9, s11, v3'); a('v_mul_u32_u24 v9, 1792, v9'); a('v_lshl_add_u32 v9, v4, 4, v9')
    a('s_lshl_b32 s36, s10, 6'); a('v_add_u32 v9, s36, v9')
    OB = [16, 80]; OA = 144; OT = 160
    def ld2(it, hh, b):
        a('s_mov_b32 s39, %d', it*128*1024)
        for kk in range(16):
            a('buffer_load_dwordx4 %s, v6, s[24:27], s39 offen offset:%d sc1', vr(OB[b]+4*kk), (16*hh+kk)*32)
    units = [(it, hh) for it in range(4) for hh in range(2)]
    ld2(0, 0, 0)
    a('s_waitcnt lgkmcnt(0)')
    for ui, (it, hh) in enumerate(units):
        b = ui % 2
        if it == 3 and hh == 0:
            a('s_cmp_ge_u32 s10, 2'); a('s_cbranch_scc1 wk_loop')
        if ui + 1 < len(units):
            ld2(units[ui+1][0], units[ui+1][1], 1-b); a('s_waitcnt vmcnt(16)')
        else:
            a('s_waitcnt vmcnt(0)')
        acc = vr(OA, 16)
        for kk in range(16):
            a('v_mfma_f32_32x32x16_bf16 %s, %s, %s, %s', acc, vr(OB[b]+4*kk), ar(4*(16*hh+kk)), '0' if (hh == 0 and kk == 0) else acc)
        if hh == 1:
            a.nop(16)
            for i in range(8): a('v_cvt_pk_bf16_f32 v%d, v%d, v%d', OT+i, OA+2*i, OA+2*i+1)
            for qq in range(2):
                a('buffer_store_dwordx4 %s, v9, s[32:35], 0 offen offset:%d', vr(OT+4*qq), it*256 + qq*32)
            a('s_nop 1')
    a('s_branch wk_loop')


TASKS = [('mg', 224), ('tu', 32), ('fold', 336), ('a1', 256), ('a2', 64), ('bfin', 64)]
def k_mega(a):
    n = 'mega_kernel'; a.begin(n)
    a('s_cmp_ge_u32 s2, 256'); a('s_cbranch_scc1 wk_done')
    a('s_and_b32 s3, s2, 7'); a('s_cmp_eq_u32 s3, 0'); a('s_cbranch_scc1 ch_entry')
    a('s_movk_i32 s101, 2000'); a('s_mov_b32 s93, 0')
    a('s_load_dwordx2 s[4:5], s[0:1], %d', KA['ws']); a('s_waitcnt lgkmcnt(0)')
    a.srd(96, 4, 5, SZ_FL, WS_FL)
    a.label('wk_loop')
    a('s_waitcnt vmcnt(0) lgkmcnt(0)'); a('s_barrier')
    RT(a, 7)
    dbg_srd(a, 80, 74)
    a('v_mov_b32 v1, 1'); a('v_mov_b32 v2, %d', C_TICKET*4); a('v_mov_b32 v3, %d', L_TK)
    a('v_cmp_eq_u32 vcc, 0, v0'); a('s_and_b64 exec, exec, vcc')
    a('buffer_atomic_add v1, v2, s[80:83], 0 offen sc0 sc1')
    a('s_waitcnt vmcnt(0)')
    a('ds_write_b32 v3, v1')
    a('s_mov_b64 exec, -1')
    a('s_waitcnt lgkmcnt(0)'); a('s_barrier')
    a('ds_read_b32 v1, v3'); a('s_waitcnt lgkmcnt(0)')
    a('v_readfirstlane_b32 s100, v1'); a('s_nop 3')
    a('s_mov_b32 s101, s100')
    RT(a, 0)
    tasks = [('mg', 224, t_mg), ('tu', 32, k_tu), ('fold', 336, k_fold), ('a1', 256, k_a1), ('a2', 64, k_a2), ('bfin', 64, k_bfin)]
    for (nm, cnt, fn) in tasks:
        a('s_cmp_lt_u32 s100, %d', cnt); a('s_cbranch_scc1 tk_%s', nm)
        a('s_sub_u32 s100, s100, %d', cnt)
    a.label('wk_done')
    a('s_endpgm')
    for (nm, cnt, fn) in tasks:
        a.label('tk_%s' % nm); fn(a)
    a.label('ch_entry')
    k_chain(a)
    a.end(n, 256, 256)

def main():
    global INSTR
    INSTR = len(sys.argv) > 2
    a = Asm()
    k_mega(a)
    launches = [('mega_kernel', 256, 256, LDS_TOT)]
    out = HDR
    for (k, g, b, lds) in launches:
        out += '; @launch kernel=%s grid=(%d,1,1) block=(%d,1,1) lds=%d\n' % (k, g, b, lds)
    out += '.amdgcn_target "amdgcn-amd-amdhsa--gfx950"\n' + '\n'.join(a.l) + '\n'
    open(sys.argv[1] if len(sys.argv) > 1 else 'cdna_kernels/%s.s' % NAME, 'w').write(out)
if __name__ == '__main__': main()
```

```python
import sys
NAME = 'concat_heads__linear_kernel_hedgehog__memory_aug_recurrent_mem_tr__prompt'
HDR = open('cdna_kernels/%s.s.ref' % NAME).read().split('; Override launch')[0]

KA = dict(A_x=0, A_wqkv=8, A_w_phi=16, A_wo=24, B_x=32, B_mem0=40, B_Wq=48, B_Wk=56, B_Wv=64, B_Wo=72, seg=80, out=88, dbg=96, ws=104)
RS = 896
def al(x, a=4096): return (x + a - 1) // a * a
WS_M = 0;                 SZ_M = 2*16*448*RS
WS_GX = al(WS_M+SZ_M);    SZ_GX = 64*16*32*896
WS_VW = al(WS_GX+SZ_GX);  SZ_VW = 64*16*448*64
WS_TM = al(WS_VW+SZ_VW);  SZ_TM = 64*16*8*896
WS_UT = al(WS_TM+SZ_TM);  SZ_UT = 64*16*448*16
WS_MB = al(WS_UT+SZ_UT);  SZ_MB = 65*8192
SBS = 18432
WS_SB = al(WS_MB+SZ_MB);  SZ_SB = 64*SBS
WS_M2 = al(WS_SB+SZ_SB);  SZ_M2 = 64*7168
WS_MF = al(WS_M2+SZ_M2);  SZ_MF = 64*512
WS_FL = al(WS_MF+SZ_MF);  SZ_FL = 16384
F_M = 0; F_FOLD = 1024; F_A1 = 3072; F_GX = 4096
WS_IN = WS_MB + 8192;     SZ_IN = WS_FL + SZ_FL - WS_IN
WS_P  = al(WS_FL+SZ_FL);  SZ_P = 128*4096 + 2048*64
WS_WA = al(WS_P+SZ_P);    SZ_WA = 1536*896
WS_WOT= al(WS_WA+SZ_WA);  SZ_WOT = 448*1024
WS_PQ = al(WS_WOT+SZ_WOT);SZ_PQ = 2048*16*128
WS_KV = al(WS_PQ+SZ_PQ);  SZ_KV = 16*64*32*4
WS_XF = al(WS_KV+SZ_KV);  SZ_XF = 2*64*28672
WS_END = al(WS_XF+SZ_XF)

class Asm:
    def __init__(self): self.l = []; self.uid = 0
    def __call__(self, s, *a):
        self.l.append('    ' + (s % a if a else s))
    def label(self, s): self.l.append(s + ':')
    def c(self, s): self.l.append('    ; ' + s)
    def newlabel(self, p='L'):
        self.uid += 1; return '%s_%d' % (p, self.uid)
    def nop(self, n):
        while n > 0:
            k = min(n, 16); self('s_nop %d', k-1); n -= k
    def srd(self, d, lo, hi, size, off=0):
        if off:
            self('s_add_u32 s%d, s%d, 0x%x', d, lo, off & 0xffffffff)
            self('s_addc_u32 s%d, s%d, 0x%x', d+1, hi, off >> 32)
        else:
            self('s_mov_b32 s%d, s%d', d, lo); self('s_mov_b32 s%d, s%d', d+1, hi)
        self('s_mov_b32 s%d, 0x%x', d+2, size)
        self('s_mov_b32 s%d, 0x00020000', d+3)
    def begin(self, name):
        self.l += ['.text', '.globl %s' % name, '.p2align 8', '.type %s,@function' % name, name + ':']
    def end(self, name, vgpr, agpr=0, sgpr=102):
        acc = (vgpr + 3)//4*4
        self.l += ['    s_endpgm', '.section .rodata,"a"', '.p2align 6', '.amdhsa_kernel %s' % name,
          '  .amdhsa_next_free_vgpr %d' % (acc + agpr if agpr else vgpr), '  .amdhsa_next_free_sgpr %d' % sgpr,
          '  .amdhsa_accum_offset %d' % acc, '  .amdhsa_group_segment_fixed_size 0', '  .amdhsa_kernarg_size 112',
          '  .amdhsa_user_sgpr_count 2', '  .amdhsa_user_sgpr_kernarg_segment_ptr 1', '  .amdhsa_system_sgpr_workgroup_id_x 1',
          '.end_amdhsa_kernel']
def perm(a, d, src, t):
    a('v_and_b32 v%d, 0x13, v%d', d, src)
    a('v_and_b32 v%d, 4, v%d', t, src); a('v_lshl_or_b32 v%d, v%d, 1, v%d', d, t, d)
    a('v_and_b32 v%d, 8, v%d', t, src); a('v_lshrrev_b32 v%d, 1, v%d', t, t); a('v_or_b32 v%d, v%d, v%d', d, t, d)
def vr(b, n=4): return 'v[%d:%d]' % (b, b+n-1)
def ar(b, n=4): return 'a[%d:%d]' % (b, b+n-1)


INSTR = False
import os
OPT = dict(kv.split('=') for kv in os.environ.get('OPT','').split(',') if kv)
def opt(k, d=0): return int(OPT.get(k, d))
C_TICKET = 0; C_M = 1; C_INIT = 2; C_FOLD = 3; C_A1 = 4; C_XCC = 5; C_XF = 6; C_GX = 8
L_KS = 57344; SZ_KS = 64*528
L_TK = L_KS + 2*SZ_KS
LDS_TOT = L_TK + 64
NINIT = 256
WSPIN = 3000000
def RT(a, slot, idreg='s101'):
    if not INSTR: return
    a('s_load_dwordx2 s[88:89], s[0:1], %d', KA['ws']); a('s_memrealtime s[94:95]'); a('s_waitcnt lgkmcnt(0)')
    a.srd(88, 88, 89, SZ_P, WS_P)
    a('s_lshl_b32 s92, %s, 6', idreg); a('s_add_u32 s92, s92, %d', 128*4096)
    a('v_mov_b32 v254, s94'); a('v_mov_b32 v255, 0')
    a('v_cmp_eq_u32 vcc, 0, v0'); a('s_and_b64 exec, exec, vcc')
    a('buffer_store_dword v254, v255, s[88:91], s92 offen offset:%d', slot*4)
    a('s_mov_b64 exec, -1')
def dbg_srd(a, d, t):
    a('s_load_dwordx2 s[%d:%d], s[0:1], %d', t, t+1, KA['dbg']); a('s_waitcnt lgkmcnt(0)')
    a.srd(d, t, t+1, 256)
def signal(a, d, cidx, vt, per_wave=False):
    a('s_waitcnt vmcnt(0)')
    if not per_wave: a('s_barrier')
    a('v_mov_b32 v%d, 1', vt); a('v_mov_b32 v%d, %d', vt+1, cidx*4)
    if per_wave: a('s_mov_b64 exec, 1')
    else:
        a('v_cmp_eq_u32 vcc, 0, v0'); a('s_and_b64 exec, exec, vcc')
    a('buffer_atomic_add v%d, v%d, s[%d:%d], 0 offen sc1', vt, vt+1, d, d+3)
    a('s_mov_b64 exec, -1')
def waitc(a, d, cidx, target, vt, st, fail, sleep=8):
    L = a.newlabel('wc')
    a('v_mov_b32 v%d, %d', vt+1, cidx*4); a('s_mov_b32 s%d, 0', st)
    a.label(L)
    a('buffer_load_dword v%d, v%d, s[%d:%d], 0 offen sc1', vt, vt+1, d, d+3)
    a('s_add_u32 s%d, s%d, 1', st, st); a('s_cmp_gt_u32 s%d, %d', st, WSPIN); a('s_cbranch_scc1 %s', fail)
    a('s_waitcnt vmcnt(0)')
    a('v_readfirstlane_b32 s%d, v%d', st+1, vt); a('s_nop 3')
    a('s_cmp_ge_u32 s%d, %d', st+1, target); a('s_cbranch_scc1 %s_ok', L)
    a('s_sleep %d', sleep); a('s_branch %s', L)
    a.label(L + '_ok')

def init_seen(a, vt, st, fail):
    L = a.newlabel('is')
    a('s_cmp_eq_u32 s93, 1'); a('s_cbranch_scc1 %s', L)
    a('s_mov_b32 s93, 1')
    a('v_readfirstlane_b32 s%d, v0', st); a('s_nop 3'); a('s_cmp_lt_u32 s%d, 64', st); a('s_cbranch_scc0 %s', L)
    dbg_srd(a, 84, st)
    waitc(a, 84, C_INIT, NINIT, vt, st, fail, 8)
    a.label(L)
def flag_set(a, d, base, idx, vt, st, fail, wait=True, chk=True):
    if chk: init_seen(a, vt, st, fail)
    if wait: a('s_waitcnt vmcnt(0)')
    a('s_barrier')
    a('v_mov_b32 v%d, 0', vt); a('s_lshl_b32 s%d, %s, 2', st, idx)
    if base >= 4096: a('s_add_u32 s%d, s%d, %d', st, st, base); base = 0
    a('v_cmp_eq_u32 vcc, 0, v0'); a('s_and_b64 exec, exec, vcc')
    a('buffer_store_dword v%d, v%d, s[%d:%d], s%d offen offset:%d sc1', vt, vt, d, d+3, st, base)
    a('s_mov_b64 exec, -1')
def flag_poll(a, d, base, count, vt, st, fail, sleep=8, lanev=None):
    L = a.newlabel('fw')
    nl = count // 4
    va = vt + 8
    a('v_and_b32 v%d, 63, v0', va); a('v_lshlrev_b32 v%d, 4, v%d', va, va)
    if isinstance(base, int): a('v_add_u32 v%d, %d, v%d', va, base, va)
    else: a('v_add_u32 v%d, %s, v%d', va, base, va)
    a('s_mov_b32 s%d, 0', st)
    for r_ in range(8): a('v_mov_b32 v%d, 0', vt+r_)
    a.label(L)
    def msk(n):
        a('s_mov_b32 exec_lo, 0x%x', 0xffffffff if n >= 32 else (1 << n) - 1); a('s_mov_b32 exec_hi, 0x%x', 0 if n <= 32 else (0xffffffff if n >= 64 else (1 << (n-32)) - 1))
    msk(nl)
    a('buffer_load_dwordx4 %s, v%d, s[%d:%d], 0 offen sc1', vr(vt), va, d, d+3)
    if nl > 64:
        msk(nl - 64)
        a('buffer_load_dwordx4 %s, v%d, s[%d:%d], 0 offen offset:1024 sc1', vr(vt+4), va, d, d+3)
    a('s_mov_b64 exec, -1')
    a('s_add_u32 s%d, s%d, 1', st, st); a('s_cmp_gt_u32 s%d, %d', st, WSPIN); a('s_cbranch_scc1 %s', fail)
    a('s_waitcnt vmcnt(0)')
    a('v_max3_u32 v%d, v%d, v%d, v%d', vt, vt, vt+1, vt+2); a('v_max3_u32 v%d, v%d, v%d, v%d', vt+4, vt+4, vt+5, vt+6)
    a('v_max3_u32 v%d, v%d, v%d, v%d', vt, vt, vt+3, vt+7); a('v_max_u32 v%d, v%d, v%d', vt, vt, vt+4)
    a('v_cmp_eq_u32 vcc, -1, v%d', vt); a('s_cbranch_vccz %s_ok', L)
    a('s_sleep %d', sleep); a('s_branch %s', L)
    a.label(L + '_ok')
def flag_wait(a, d, base, count, vt, st, fail, sleep=8, chk=True):
    L = a.newlabel('fx')
    if chk: init_seen(a, vt, st, fail)
    a('v_readfirstlane_b32 s%d, v0', st); a('s_nop 3'); a('s_cmp_lt_u32 s%d, 64', st); a('s_cbranch_scc0 %s', L)
    flag_poll(a, d, base, count, vt, st, fail, sleep)
    a.label(L)
    a('s_barrier')

def init1(a):
    a('s_load_dwordx2 s[80:81], s[0:1], %d', KA['ws']); a('s_load_dwordx2 s[82:83], s[0:1], %d', KA['B_x'])
    a('v_lshrrev_b32 v232, 6, v0'); a('v_and_b32 v233, 63, v0'); a('s_nop 0'); a('v_readfirstlane_b32 s3, v232')
    a('v_and_b32 v234, 31, v233'); a('v_lshrrev_b32 v235, 5, v233'); a('v_lshlrev_b32 v233, 4, v233')
    a('s_waitcnt lgkmcnt(0)')
    a.srd(68, 80, 81, SZ_XF, WS_XF); a.srd(72, 80, 81, SZ_IN, WS_IN); a.srd(76, 82, 83, 2048*896)
    a('s_lshl_b32 s80, s2, 2'); a('s_add_u32 s80, s80, s3')
    a('s_mul_i32 s81, s80, 4682'); a('s_lshr_b32 s81, s81, 16')
    a('s_mul_i32 s82, s81, 14'); a('s_sub_u32 s82, s80, s82')
    a('s_lshl_b32 s83, s81, 5'); a('v_add_u32 v234, s83, v234'); a('v_mul_u32_u24 v234, 896, v234'); a('v_lshl_add_u32 v234, v235, 4, v234')
    a('s_lshl_b32 s83, s82, 6'); a('v_add_u32 v234, s83, v234')
    for k in range(2): a('buffer_load_dwordx4 %s, v234, s[76:79], 0 offen offset:%d', vr(240+4*k), 32*k)
    a('s_mul_i32 s81, s81, 28672'); a('s_lshl_b32 s82, s82, 11'); a('s_add_u32 s81, s81, s82')
    a('s_cmp_lt_u32 s80, 896'); a('s_cselect_b32 s81, s81, 0x40000000')
    a('v_add_u32 v235, s81, v233')
    NI = (SZ_IN + 1048575) // 1048576
    assert NI <= 4
    a('s_mul_i32 s80, s80, %d', NI*1024); a('v_add_u32 v234, s80, v233')
    for i in range(4): a('v_mov_b32 v%d, -1', 236+i)
    a('s_mov_b32 s83, %d', 64*28672)
def init2(a, n):
    NI = (SZ_IN + 1048575) // 1048576
    if opt('noinit'): return
    for i in range(NI): a('buffer_store_dwordx4 %s, v234, s[72:75], 0 offen offset:%d sc1', vr(236), i*1024)
    a('s_waitcnt vmcnt(%d)', min(63, n))
    for k in range(2):
        R = 240+4*k; D = 248+4*k
        a('buffer_store_dwordx4 %s, v235, s[68:71], 0 offen offset:%d sc1', vr(R), k*1024)
        a('v_mov_b32 v%d, v%d', D, R); a('v_mov_b32 v%d, v%d', D+1, R+2); a('v_mov_b32 v%d, v%d', D+2, R+1); a('v_mov_b32 v%d, v%d', D+3, R+3)
    a('s_nop 1')
    for k in range(2):
        D = 248+4*k
        a('v_permlane32_swap_b32 v%d, v%d', D, D+2); a('v_permlane32_swap_b32 v%d, v%d', D+1, D+3)
    a('s_nop 1')
    for k in range(2): a('buffer_store_dwordx4 %s, v235, s[68:71], s83 offen offset:%d sc1', vr(248+4*k), k*1024)

def t_mg(a):
    a('s_load_dwordx4 s[4:7], s[0:1], %d', KA['B_Wq'])
    a('s_load_dwordx4 s[8:11], s[0:1], %d', KA['B_Wv'])
    a('s_load_dwordx2 s[12:13], s[0:1], %d', KA['ws'])
    a('s_load_dwordx2 s[44:45], s[0:1], %d', KA['B_x'])
    a('s_load_dwordx2 s[46:47], s[0:1], %d', KA['dbg'])
    a('s_mov_b32 s14, 0x24924925'); a('s_mul_hi_u32 s15, s100, s14')
    a('s_mul_i32 s16, s15, 7'); a('s_sub_u32 s16, s100, s16')
    a('s_lshr_b32 s17, s15, 4')
    a('s_and_b32 s18, s15, 15')
    a('v_lshrrev_b32 v1, 6, v0'); a('v_and_b32 v2, 63, v0'); a('s_nop 0')
    a('v_readfirstlane_b32 s19, v1')
    a('v_and_b32 v3, 31, v2'); a('v_lshrrev_b32 v4, 5, v2')
    perm(a, 10, 3, 11)
    a('s_and_b32 s20, s19, 1'); a('s_lshr_b32 s21, s19, 1')
    a('s_waitcnt lgkmcnt(0)')
    a('s_cmp_eq_u32 s17, 0')
    a('s_cselect_b32 s24, s4, s10'); a('s_cselect_b32 s25, s5, s11')
    a('s_mov_b32 s26, 3670016'); a('s_mov_b32 s27, 0x00020000')
    a('s_cselect_b32 s28, s6, s8'); a('s_cselect_b32 s29, s7, s9')
    a('s_mov_b32 s30, 3670016'); a('s_mov_b32 s31, 0x00020000')
    a.srd(32, 12, 13, SZ_M, WS_M)
    a.srd(48, 12, 13, SZ_XF//2, WS_XF); a.srd(52, 12, 13, SZ_GX, WS_GX); a.srd(56, 12, 13, SZ_VW, WS_VW)
    a.srd(60, 46, 47, 256); a.srd(64, 12, 13, SZ_KV, WS_KV)
    a('v_mov_b32 v11, 0'); a('s_lshl_b32 s22, s100, 10'); a('v_lshlrev_b32 v12, 2, v0'); a('v_add_u32 v12, s22, v12')
    a('buffer_store_dword v11, v12, s[64:67], 0 offen sc1')
    a('s_lshl_b32 s22, s16, 6'); a('s_lshl_b32 s23, s20, 5'); a('s_add_u32 s22, s22, s23')
    a('v_and_b32 v13, 0x19, v3'); a('v_and_b32 v14, 2, v3'); a('v_lshl_or_b32 v13, v14, 1, v13')
    a('v_and_b32 v14, 4, v3'); a('v_lshrrev_b32 v14, 1, v14'); a('v_or_b32 v13, v13, v14')
    a('s_cmp_eq_u32 s17, 0'); a('s_cselect_b64 vcc, -1, 0'); a('v_cndmask_b32 v13, v10, v13, vcc')
    a('v_add_u32 v5, s22, v13')
    a('s_mul_i32 s36, s21, 224'); a('s_lshl_b32 s37, s20, 4'); a('s_add_u32 s36, s36, s37'); a('v_add_u32 v6, s36, v4'); a('v_lshlrev_b32 v6, 13, v6')
    a('s_lshl_b32 s37, s18, 9'); a('v_add_u32 v6, s37, v6'); a('v_lshl_add_u32 v6, v3, 4, v6')
    a('s_lshl_b32 s38, s19, 4'); a('v_add_u32 v15, s38, v4'); a('v_mul_u32_u24 v15, 528, v15'); a('v_lshl_add_u32 v15, v3, 4, v15'); a('v_add_u32 v15, %d, v15', L_KS)
    JS = 16; KB = [80, 144]; ACC = 208; T = 224
    KD = opt('kd', 3)
    for i in range(7):
        a('s_add_u32 s%d, s16, %d', 4+i, i if opt('rot', 1) else 0); a('s_sub_u32 s11, s%d, 7', 4+i); a('s_cmp_ge_u32 s%d, 7', 4+i); a('s_cselect_b32 s%d, s11, s%d', 4+i, 4+i)
        if not opt('rot', 1): a('s_mov_b32 s%d, %d', 4+i, i)
    def ldk1(i):
        a('s_lshl_b32 s42, s%d, 18', 4+i)
        for m in range(8):
            a('s_add_u32 s43, s42, %d', 2*m*8192)
            a('buffer_load_dwordx4 %s, v6, s[28:31], s43 offen %s', ar(32*i+4*m), ['', 'nt', 'sc1'][opt('kmod')])
    def ldk():
        for i in range(KD): ldk1(i)
    def stk(i):
        for m in range(8): a('ds_write_b128 v15, %s offset:%d', ar(32*i+4*m), (i&1)*SZ_KS + m*1056)
    a('s_cmp_eq_u32 s17, 0'); a('s_cbranch_scc0 mm_mat1')
    a('s_lshl_b32 s39, s16, 6'); a('s_add_u32 s39, s39, s38'); a('v_add_u32 v7, s39, v4'); a('v_lshlrev_b32 v7, 13, v7')
    a('v_add_u32 v7, s37, v7'); a('v_lshl_add_u32 v7, v3, 4, v7')
    for m in range(8):
        a('s_mov_b32 s43, %d', 2*m*8192)
        a('buffer_load_dwordx4 %s, v7, s[24:27], s43 offen', vr(JS+4*m))
    ldk()
    init2(a, 8+8*KD)
    a('s_waitcnt vmcnt(%d)', 8*KD)
    for m in range(8): a('ds_write_b128 v15, %s offset:%d', vr(JS+4*m), SZ_KS + m*1056)
    a('s_waitcnt vmcnt(%d)', 8*KD-8)
    stk(0)
    a('s_waitcnt lgkmcnt(0)'); a('s_barrier')
    a('s_lshl_b32 s39, s20, 5'); a('v_add_u32 v7, s39, v13'); a('v_mul_u32_u24 v7, 528, v7'); a('v_lshl_add_u32 v7, v4, 4, v7'); a('v_add_u32 v7, %d, v7', L_KS + SZ_KS)
    for es in range(16): a('ds_read_b128 %s, v7 offset:%d', vr(JS+4*es), es*32)
    a('s_branch mm_go')
    a.label('mm_mat1')
    a('s_mul_i32 s38, s18, 229376'); a('s_lshl_b32 s39, s22, 1'); a('s_add_u32 s38, s38, s39')
    a('v_mul_u32_u24 v7, 896, v10'); a('v_add_u32 v7, s38, v7'); a('v_lshl_add_u32 v7, v4, 4, v7')
    for et in range(8):
        a('s_mov_b32 s39, %d', et*32*896)
        for ks in range(2):
            a('buffer_load_dwordx4 %s, v7, s[24:27], s39 offen offset:%d', vr(80+8*et+4*ks), ks*32)
    ldk()
    init2(a, 16+8*KD)
    a('v_lshlrev_b32 v8, 3, v4'); a('v_sub_u32 v8, v10, v8')
    a('v_mov_b32 v9, 0x3f80'); a('v_mov_b32 v11, 0x3f800000'); a('v_mov_b32 v12, 0')
    for ks in range(2):
        for q2 in range(4):
            r_ = 144 + 4*ks + q2
            a('v_cmp_eq_u32 vcc, %d, v8', 16*ks + 2*q2); a('v_cndmask_b32 v%d, v12, v9, vcc', r_)
            a('v_cmp_eq_u32 vcc, %d, v8', 16*ks + 2*q2 + 1); a('v_cndmask_b32 v%d, v%d, v11, vcc', r_, r_)
    a('s_waitcnt vmcnt(%d)', 8*KD)
    for et in range(8):
        ab = ACC if et % 2 == 0 else 160
        acc = vr(ab, 16)
        a('v_mfma_f32_32x32x16_bf16 %s, %s, %s, 0', acc, vr(80+8*et), vr(144))
        a('v_mfma_f32_32x32x16_bf16 %s, %s, %s, %s', acc, vr(80+8*et+4), vr(148), acc)
        if et > 0:
            pb = ACC if et % 2 == 1 else 160
            for i in range(8): a('v_cvt_pk_bf16_f32 v%d, v%d, v%d', JS+8*(et-1)+i, pb+2*i, pb+2*i+1)
        if et == 0: a.nop(8)
    a.nop(18)
    for i in range(8): a('v_cvt_pk_bf16_f32 v%d, v%d, v%d', JS+56+i, 160+2*i, 160+2*i+1)
    a('s_waitcnt vmcnt(%d)', 8*KD-8)
    stk(0)
    a('s_waitcnt lgkmcnt(0)'); a('s_barrier')
    a.label('mm_go')
    RT(a, 4)
    a('s_cmp_eq_u32 s17, 0'); a('s_cbranch_scc0 mm_a1')
    a('v_cmp_le_u32 vcc, 224, v5'); a('v_mov_b32 v8, 0'); a('v_mov_b32 v13, 0'); a('v_mov_b32 v9, 224'); a('v_mov_b32 v14, 1')
    a('v_cndmask_b32 v8, v8, v9, vcc'); a('v_cndmask_b32 v13, v13, v14, vcc')
    a('v_sub_u32 v8, v5, v8')
    a('s_lshl_b32 s40, s18, 1'); a('v_add_u32 v13, s40, v13')
    a('s_branch mm_a2')
    a.label('mm_a1')
    a('s_movk_i32 s40, 4682'); a('v_mul_u32_u24 v13, s40, v5'); a('v_lshrrev_b32 v13, 16, v13')
    a('v_mul_u32_u24 v8, 14, v13'); a('v_sub_u32 v8, v5, v8')
    a('s_mul_i32 s40, s18, 14'); a('s_add_u32 s40, s40, 224'); a('v_add_u32 v8, s40, v8')
    a.label('mm_a2')
    a('s_mov_b32 s40, 401408'); a('v_mul_lo_u32 v9, v13, s40')
    a('v_lshrrev_b32 v13, 4, v8'); a('v_mul_u32_u24 v13, 14336, v13'); a('v_add_u32 v9, v9, v13')
    a('v_and_b32 v8, 15, v8'); a('v_lshl_add_u32 v9, v8, 4, v9'); a('v_lshl_add_u32 v9, v4, 8, v9')
    a('s_mul_i32 s42, s21, 7168'); a('v_add_u32 v9, s42, v9'); a('v_add_u32 v8, 4096, v9')
    a('v_lshlrev_b32 v12, 4, v2')
    a('s_mul_i32 s40, s20, 28672'); a('s_mul_i32 s41, s21, 14336'); a('s_add_u32 s40, s40, s41'); a('v_add_u32 v11, s40, v12')
    a('s_lshl_b32 s39, s21, 5'); a('v_add_u32 v7, s39, v10'); a('v_mul_u32_u24 v7, 528, v7'); a('v_lshl_add_u32 v7, v4, 4, v7'); a('v_add_u32 v7, %d, v7', L_KS)
    pend = []
    def mst(i, t):
        a('s_lshl_b32 s43, s%d, 10', 4+i)
        for qq in range(2): a('buffer_store_dwordx4 %s, v9, s[32:35], s43 offen offset:%d sc1', vr(t+4*qq), qq*512)
    def lst(i, t):
        a('s_lshl_b32 s43, s%d, 11', 4+i); a('v_add_u32 v8, s43, v11')
        for qq in range(2): a('ds_write_b128 v8, %s offset:%d', vr(t+4*qq), qq*1024)
    for i in range(7):
        kb = KB[i&1]
        if i > 0: a('s_waitcnt lgkmcnt(0)'); a('s_barrier')
        if i == 3: RT(a, 5)
        if i == 6: RT(a, 6)
        if i == min(KD, 6):
            a('v_mov_b32 v13, 1'); a('v_mov_b32 v14, %d', C_INIT*4)
            a('v_cmp_eq_u32 vcc, 0, v0'); a('s_and_b64 exec, exec, vcc')
            a('buffer_atomic_add v13, v14, s[60:63], 0 offen sc1')
            a('s_mov_b64 exec, -1')
        for es in range(16): a('ds_read_b128 %s, v7 offset:%d', vr(kb+4*es), (i&1)*SZ_KS + es*32)
        if i + KD < 7: ldk1(i+KD)
        if i == 0: a('s_waitcnt lgkmcnt(0)'); a('s_barrier')
        Ti = T + 8*((i-1) % 3)
        if i > 0:
            for q in range(8): a('v_cvt_pk_bf16_f32 v%d, v%d, v%d', Ti+q, ACC+2*q, ACC+2*q+1)
            pend.append((i-1, Ti))
        for es in range(16):
            if i > 0 and es % 4 == 0: a('s_waitcnt lgkmcnt(%d)', 12-es)
            a('v_mfma_f32_32x32x16_bf16 %s, %s, %s, %s', vr(ACC,16), vr(kb+4*es), vr(JS+4*es), '0' if es == 0 else vr(ACC,16))
            if es == 12:
                if i > 0:
                    lst(i-1, Ti)
                if i < 6:
                    a('s_waitcnt vmcnt(%d)', 8*(min(6, i+KD) - (i+1)))
                    stk(i+1)
                if i != 4:
                    while pend: mst(*pend.pop(0))
    a.nop(18)
    Ti = T + 8*(6 % 3)
    for q in range(8): a('v_cvt_pk_bf16_f32 v%d, v%d, v%d', Ti+q, ACC+2*q, ACC+2*q+1)
    lst(6, Ti)
    mst(6, Ti)
    a('s_waitcnt lgkmcnt(0)')
    RT(a, 1)
    flag_set(a, 96, F_M, 's100', 13, 22, 'wk_done')
    RT(a, 2)
    for f in range(56):
        a('ds_read_b128 %s, v12 offset:%d', ar(4*f), f*1024)
    a('s_cmp_eq_u32 s17, 0'); a('s_cselect_b64 vcc, -1, 0')
    a('v_cndmask_b32 v14, v10, v3, vcc')
    a('s_mul_i32 s22, s19, 28672'); a('v_lshl_add_u32 v5, v4, 5, v14'); a('v_lshlrev_b32 v5, 4, v5'); a('v_add_u32 v5, s22, v5')
    XB = [16, 72, 128]; GA = 184; GT = 216
    a('s_mov_b32 s36, 0')
    a('s_mov_b32 s37, 0')
    a('s_mov_b32 s38, 0')
    def ldx(c, b):
        for k in range(14):
            ks = 14*c + k
            if k == 0 or ks % 4 == 0: a('s_add_u32 s39, s36, %d', (ks//4)*4096)
            if not opt('mgnold'): a('buffer_load_dwordx4 %s, v5, s[48:51], s39 offen offset:%d', vr(XB[b]+4*k), (ks%4)*1024)
        if c == 1: a('s_add_u32 s36, s36, %d', 4*28672)
    ldx(0, 0); ldx(1, 1)
    a('s_waitcnt lgkmcnt(0)')
    a('s_cmp_eq_u32 s17, 0'); a('s_cbranch_scc0 gx_m1')
    for mat in range(2):
        if mat == 1: a.label('gx_m1')
        a('s_lshl_b32 s22, s19, 4'); a('s_add_u32 s22, s22, s18')
        if mat == 0:
            a('s_mul_i32 s22, s22, 28672'); a('s_lshl_b32 s23, s16, 11'); a('s_add_u32 s22, s22, s23')
            a('v_lshrrev_b32 v6, 4, v3'); a('v_mul_u32_u24 v6, 14336, v6'); a('v_add_u32 v6, s22, v6'); a('v_lshl_add_u32 v6, v4, 10, v6')
            a('v_and_b32 v7, 15, v3'); a('v_lshl_add_u32 v6, v7, 4, v6')
        else:
            a('s_mul_i32 s22, s22, 28672'); a('s_lshl_b32 s23, s16, 10'); a('s_add_u32 s22, s22, s23')
            a('v_lshlrev_b32 v6, 4, v10'); a('v_add_u32 v6, s22, v6'); a('v_mul_u32_u24 v7, 7168, v4'); a('v_add_u32 v6, v6, v7')
            a('v_add_u32 v7, 14336, v6')
        def sig(blk):
            flag_set(a, 96, F_GX + 1024*blk, 's100', 13, 22, 'wk_done', wait=False, chk=False)
        for it in range(16):
            for c in range(2):
                ch = 2*it + c
                b = ch % 3
                if ch + 2 < 32:
                    ldx(c, (ch+2) % 3)
                    a('s_waitcnt vmcnt(28)')
                    if c == 1 and it % 2 == 0 and it > 0:
                        sig(it//2 - 1)
                        if it == 2: RT(a, 3)
                else:
                    a('s_waitcnt vmcnt(%d)', 14 if ch == 30 else 0)
                for k in range(14):
                    ks = 14*c + k
                    for j2 in range(2):
                        m = ar((j2*28+ks)*4); x = vr(XB[b]+4*k); acc = vr(GA+16*j2, 16)
                        A, B = (m, x) if mat == 0 else (x, m)
                        if not opt('mgnomf') or ks == 0: a('v_mfma_f32_32x32x16_bf16 %s, %s, %s, %s', acc, A, B, '0' if ks == 0 else acc)
            a.nop(18)
            for i in range(16): a('v_cvt_pk_bf16_f32 v%d, v%d, v%d', GT+i, GA+2*i, GA+2*i+1)
            for j2 in range(2):
                for qq in range(2):
                    off = j2*512 + qq*256 if mat == 0 else j2*512
                    if not opt('mgnost'): a('buffer_store_dwordx4 %s, v%d, s[%d:%d], s37 offen offset:%d sc1', vr(GT+8*j2+4*qq), 7 if (mat == 1 and qq == 1) else 6, 52+4*mat, 55+4*mat, off)
            a('s_add_u32 s37, s37, %d', 4*16*28672)
        a('s_waitcnt vmcnt(0)'); sig(7)
        a('s_branch wk_loop')

L_MEM = 0; L_ZM = L_MEM + 8192; L_TP = L_ZM + 4096
L_RED = L_TP + 4096; L_RED2 = L_RED + 2048; L_PHI = L_RED2 + 1024; L_DUM = L_PHI + 1024; L_CHAIN = L_DUM + 1024
QT = [[0,1,2,3],[4,5,6,7],[8,9,10,11],[12,13]]
UTL = [[0,1,2],[3,4,5],[6,7,8],[9,10,11,12,13]]
SPIN = 200000
FORCE_SLOW = False
PRETOUCH = True
GM = ['sc1', '', 'nt', 'sc0'][opt('gm', 0)]
def load_weights(a, units, wreg4):
    a('s_mul_i32 s13, s2, 401408')
    for u, (kind, t) in enumerate(units):
        un = t if kind == 'q' else 14 + t
        for ks in range(14):
            if ks % 4 == 0: a('s_add_u32 s12, s13, %d', un*14336 + ks*1024)
            a('buffer_load_dwordx4 %s, v3, s[16:19], s12 offen offset:%d', wreg4(u, ks), (ks%4)*1024)
def common_addrs(a):
    a('v_mul_u32_u24 v1, 912, v25'); a('v_lshl_add_u32 v1, v24, 5, v1')
    a('v_lshrrev_b32 v26, 3, v23'); a('v_lshl_add_u32 v1, v26, 4, v1')
    a('v_mov_b32 v4, 0x4444'); a('v_mov_b32 v26, 0xeeee'); a('v_cmp_gt_u32 vcc, 8, v23'); a('s_nop 1'); a('v_cndmask_b32 v4, v26, v4, vcc')
    a('v_and_b32 v26, 1, v24'); a('v_lshlrev_b32 v6, 3, v26'); a('v_lshrrev_b32 v26, 1, v24'); a('v_lshl_add_u32 v6, v26, 2, v6')
    a('v_lshl_add_u32 v6, v23, 4, v6'); a('v_add_u32 v6, %d, v6', L_ZM)
def SM(a, acc, fr, w8):
    a('v_smfmac_f32_16x16x64_bf16 %s, %s, %s, v4', vr(acc), vr(fr), w8)
def fold_ops(R, dst):
    return ['v_permlane32_swap_b32 v%d, v%d' % (R, R+2), 'v_permlane32_swap_b32 v%d, v%d' % (R+1, R+3), 's_nop 0',
            'v_add_f32 v%d, v%d, v%d' % (R, R, R+2), 'v_add_f32 v%d, v%d, v%d' % (R+1, R+1, R+3),
            'v_cvt_pk_bf16_f32 v%d, v%d, v%d' % (dst, R, R+1)]

NTU = opt('ntu', 2)
def k_tu(a):
    flag_wait(a, 96, F_M, 224, 12, 74, 'wk_done')
    a('s_and_b32 s2, s100, 31'); a('s_lshr_b32 s52, s100, 5')
    a('s_load_dwordx2 s[4:5], s[0:1], %d', KA['ws'])
    a('s_lshr_b32 s6, s2, 1'); a('s_and_b32 s7, s2, 1')
    a('v_lshrrev_b32 v1, 6, v0'); a('v_and_b32 v22, 63, v0'); a('s_nop 0')
    a('v_readfirstlane_b32 s8, v1')
    a('v_and_b32 v23, 15, v22'); a('v_lshrrev_b32 v24, 4, v22'); a('v_and_b32 v25, 7, v22')
    a('v_lshlrev_b32 v3, 4, v22')
    a('s_waitcnt lgkmcnt(0)')
    a.srd(16, 4, 5, SZ_M, WS_M); a.srd(28, 4, 5, SZ_TM, WS_TM); a.srd(32, 4, 5, SZ_UT, WS_UT)
    a.srd(36, 4, 5, SZ_M2, WS_M2); a.srd(40, 4, 5, SZ_MF, WS_MF)
    a('v_cmp_gt_u32 s[72:73], 14, v23')
    a('v_cmp_gt_u32 s[44:45], 32, v22')
    a('v_cmp_gt_u32 s[46:47], 56, v22')
    a('s_mul_i32 s9, s2, 14'); a('s_and_b32 s15, s6, 3')
    common_addrs(a)
    a('v_and_b32 v26, 1, v24'); a('v_lshlrev_b32 v5, 7, v26'); a('v_lshrrev_b32 v26, 1, v24'); a('v_lshl_add_u32 v5, v26, 6, v5')
    a('v_bfe_u32 v26, v23, 1, 1'); a('v_lshl_add_u32 v5, v26, 4, v5')
    a('v_lshrrev_b32 v26, 2, v23'); a('v_lshl_add_u32 v5, v26, 2, v5')
    a('v_and_b32 v26, 1, v23'); a('v_lshl_add_u32 v5, v26, 1, v5'); a('v_add_u32 v5, %d, v5', L_TP)
    a('s_mul_i32 s12, s8, 1792'); a('v_add_u32 v15, s12, v3')
    a('s_mul_i32 s12, s8, 1824'); a('v_add_u32 v16, s12, v3')
    a('s_lshl_b32 s12, s8, 10'); a('v_add_u32 v11, s12, v3')
    a('v_mul_u32_u24 v14, 224, v24'); a('v_lshl_add_u32 v14, v23, 4, v14'); a('s_mul_i32 s12, s8, 896'); a('v_add_u32 v14, s12, v14')
    a('s_lshr_b32 s12, s6, 2'); a('s_mul_i32 s12, s12, 28'); a('s_mul_i32 s13, s7, 14'); a('s_add_u32 s12, s12, s13'); a('s_lshl_b32 s12, s12, 10')
    a('s_lshl_b32 s13, s15, 8'); a('s_add_u32 s12, s12, s13'); a('s_lshl_b32 s13, s8, 12'); a('s_add_u32 s12, s12, s13')
    a('v_lshlrev_b32 v12, 10, v24'); a('v_lshl_add_u32 v12, v23, 4, v12'); a('v_add_u32 v12, s12, v12')
    a('v_mul_u32_u24 v13, 448, v24'); a('v_add_u32 v13, v13, v23'); a('v_add_u32 v13, s9, v13'); a('v_lshlrev_b32 v13, 4, v13')
    a('s_mul_i32 s12, s8, %d', 4*448*16); a('v_add_u32 v13, s12, v13')
    a('s_lshl_b32 s57, s2, 4'); a('s_lshl_b32 s12, s8, 2'); a('s_add_u32 s57, s57, s12')
    a('s_lshl_b32 s12, s52, 9'); a('s_add_u32 s57, s57, s12')
    a('s_mul_i32 s53, s52, 7168'); a('s_mul_i32 s55, s52, %d', 16*8*896); a('s_mul_i32 s56, s52, %d', 16*448*16)
    for wv in range(1, 4):
        a('s_cmp_eq_u32 s8, %d', wv); a('s_cbranch_scc1 tu_w%d', wv)
    FR = 20; ACC = 48; WV = 88; PL = 76
    for wv in range(4):
        a.label('tu_w%d' % wv)
        qt = QT[wv]; ut = UTL[wv]; nq = len(qt)
        units = [('q', t) for t in qt] + [('u', t) for t in ut]
        def wreg4(u, ks): return ar(u*56 + ks*4) if u < 4 else vr(WV + (u-4)*56 + ks*4)
        def wreg8(u, s): return ar(u*56 + s*8, 8) if u < 4 else vr(WV + (u-4)*56 + s*8, 8)
        load_weights(a, units, wreg4)
        for r_ in range(8): a('v_mov_b32 v%d, 0', PL+r_)
        LP = 'tu_loop%d' % wv
        a.label(LP)
        a('s_mov_b32 s62, 0')
        a.label(LP + '_p')
        a('s_mov_b64 exec, s[46:47]')
        for k in range(2): a('buffer_load_dwordx4 %s, v15, s[36:39], s53 offen offset:%d sc1', vr(PL+4*k), k*896)
        a('s_mov_b64 exec, -1')
        a('s_waitcnt vmcnt(0)')
        a('s_cmp_eq_u32 s62, 0'); a('s_cbranch_scc0 %s_nf', LP)
        a('s_cmp_lt_u32 s52, %d', NTU); a('s_cbranch_scc1 %s_nf', LP)
        a('s_mov_b64 exec, 1'); a('buffer_store_dword v3, v3, s[40:43], s57 offen sc1'); a('s_mov_b64 exec, -1')
        a('s_add_u32 s57, s57, %d', 512*NTU)
        a.label(LP + '_nf')
        a('s_add_u32 s62, s62, 1'); a('s_cmp_gt_u32 s62, %d', WSPIN); a('s_cbranch_scc1 wk_done')
        a('v_max_u32 v84, v%d, v%d', PL, PL+4); a('v_cmp_eq_u32 vcc, -1, v84'); a('s_cbranch_vccz %s_g', LP)
        a('s_sleep 2'); a('s_branch %s_p', LP)
        a.label(LP + '_g')
        a('s_mov_b64 exec, s[46:47]')
        for k in range(2): a('ds_write_b128 v16, %s offset:%d', vr(PL+4*k), L_MEM + k*912)
        a('s_mov_b64 exec, -1')
        for r_ in range(28): a('v_mov_b32 v%d, 0', ACC+r_)
        a('s_waitcnt lgkmcnt(0)'); a('s_barrier')
        for s in range(7): a('ds_read_b128 %s, v1 offset:%d', vr(FR+4*s), L_MEM + s*128)
        for s in range(7):
            a('s_waitcnt lgkmcnt(%d)', 6-s)
            for u in range(7): SM(a, ACC+4*u, FR+4*s, wreg8(u, s))
        a.nop(8)
        for u in range(7):
            for q in fold_ops(ACC+4*u, ACC+4*u): a(q)
        for u, t in enumerate(qt):
            a('ds_write_b16 v5, v%d offset:%d', ACC+4*u, 256*t); a('ds_write_b16_d16_hi v5, v%d offset:%d', ACC+4*u, 256*t+32)
        for k, t in enumerate(ut):
            a('ds_write_b32 v6, v%d offset:%d', ACC+4*(nq+k), 256*t)
        a('s_waitcnt lgkmcnt(0)'); a('s_barrier')
        a('ds_read_b128 %s, v11 offset:%d', vr(FR), L_TP); a('ds_read_b128 %s, v14 offset:%d', vr(FR+4), L_ZM)
        a('s_waitcnt lgkmcnt(1)')
        if wv == 3: a('s_mov_b64 exec, s[44:45]')
        a('buffer_store_dwordx4 %s, v12, s[28:31], s55 offen sc1', vr(FR))
        a('s_mov_b64 exec, s[72:73]'); a('s_waitcnt lgkmcnt(0)')
        a('buffer_store_dwordx4 %s, v13, s[32:35], s56 offen sc1', vr(FR+4))
        a('s_mov_b64 exec, -1')
        a('s_add_u32 s52, s52, %d', NTU); a('s_add_u32 s53, s53, %d', 7168*NTU); a('s_add_u32 s55, s55, %d', 16*8*896*NTU); a('s_add_u32 s56, s56, %d', 16*448*16*NTU)
        a('s_cmp_lt_u32 s52, 64'); a('s_cbranch_scc1 %s', LP)
        a('s_waitcnt vmcnt(0)')
        a('s_mov_b64 exec, 1'); a('buffer_store_dword v3, v3, s[40:43], s57 offen sc1'); a('s_mov_b64 exec, -1')
        a('s_branch wk_loop')

def k_chain(a):
    TSL = []
    def TS0(k):
        if not INSTR: return
        a('s_memrealtime s[64:65]' if opt('rt') else 's_memtime s[64:65]'); a('s_waitcnt lgkmcnt(0)')
        a('v_mov_b32 v63, s64')
        a('s_mov_b64 exec, 1')
        a('buffer_store_dword v63, v3, s[68:71], s67 offen offset:%d', 4*k)
        a('s_mov_b64 exec, -1')
    def TS(k):
        if not INSTR: return
        j = len(TSL); assert j < 7; TSL.append(k)
        a('%s s[%d:%d]', 's_memrealtime' if opt('rt') else 's_memtime', 88+2*j, 89+2*j)
    def TDUMP(extra=None):
        if not INSTR: return
        a('s_waitcnt lgkmcnt(0)')
        for j, k in enumerate(TSL): a('v_writelane_b32 v63, s%d, %d', 88+2*j, k)
        m = sum(1 << k for k in TSL)
        if extra:
            a('v_writelane_b32 v63, %s, 13', extra); m |= 1 << 13
        a('v_lshrrev_b32 v62, 2, v3')
        a('s_lshl_b32 s66, s52, 6'); a('s_add_u32 s66, s66, s67')
        a('s_mov_b64 exec, 0x%x', m)
        a('buffer_store_dword v63, v62, s[68:71], s66 offen')
        a('s_mov_b64 exec, -1'); a('s_nop 1')
        TSL.clear()
    def pub(fmt, *args):
        L = a.newlabel('pb')
        a('s_cmp_eq_u32 s63, 0'); a('s_cbranch_scc1 %s_s', L)
        a(fmt, *(args + ('',))); a('s_branch %s_d', L)
        a.label(L + '_s'); a(fmt, *(args + ('sc1',))); a.label(L + '_d')
    init2(a, 0)
    a('s_lshr_b32 s2, s2, 3')
    a('s_load_dwordx2 s[4:5], s[0:1], %d', KA['ws'])
    a('s_load_dwordx2 s[76:77], s[0:1], %d', KA['dbg'])
    a('s_load_dwordx2 s[78:79], s[0:1], %d', KA['B_mem0'])
    a('s_lshr_b32 s6, s2, 1'); a('s_and_b32 s7, s2, 1')
    a('v_lshrrev_b32 v1, 6, v0'); a('v_and_b32 v22, 63, v0'); a('s_nop 0')
    a('v_readfirstlane_b32 s8, v1')
    a('v_and_b32 v23, 15, v22'); a('v_lshrrev_b32 v24, 4, v22'); a('v_and_b32 v25, 7, v22')
    a('v_lshlrev_b32 v3, 4, v22')
    a('s_waitcnt lgkmcnt(0)')
    a.srd(16, 4, 5, SZ_M, WS_M); a.srd(20, 4, 5, SZ_GX, WS_GX); a.srd(24, 4, 5, SZ_VW, WS_VW)
    a.srd(28, 4, 5, SZ_M2, WS_M2); a.srd(32, 4, 5, SZ_IN, WS_IN); a.srd(36, 4, 5, SZ_MB, WS_MB); a.srd(40, 4, 5, SZ_SB, WS_SB)
    a.srd(80, 76, 77, 256); a.srd(84, 78, 79, 7168)
    a('s_mov_b32 s52, 0')
    if INSTR:
        a.srd(68, 4, 5, SZ_P, WS_P)
        a('s_lshl_b32 s67, s2, 2'); a('s_add_u32 s67, s67, s8'); a('s_lshl_b32 s67, s67, 12')
    TS0(8)
    a('s_add_u32 s101, s2, 1900'); RT(a, 0)
    a.srd(72, 4, 5, SZ_FL, WS_FL)
    a('v_mul_u32_u24 v8, 896, v0'); a('s_mul_i32 s12, s2, 28'); a('v_add_u32 v8, s12, v8')
    a('buffer_load_dwordx4 %s, v8, s[84:87], 0 offen', vr(40))
    a('buffer_load_dwordx3 %s, v8, s[84:87], 0 offen offset:16', vr(44,3))
    a('v_mov_b32 v47, 0'); a('v_lshlrev_b32 v9, 5, v0'); a('s_lshl_b32 s12, s2, 8'); a('v_add_u32 v9, s12, v9')
    a('s_getreg_b32 s12, hwreg(HW_REG_XCC_ID, 0, 4)'); a('s_lshl_b32 s12, 1, s12')
    a('v_mov_b32 v48, s12'); a('v_mov_b32 v49, %d', C_XCC*4)
    a('s_waitcnt vmcnt(0)')
    for i in range(7): a('v_min_u32 v%d, 0xfffffffe, v%d', 40+i, 40+i)
    a('v_cmp_gt_u32 vcc, 8, v0'); a('s_and_b64 exec, exec, vcc')
    a('buffer_store_dwordx4 %s, v9, s[36:39], 0 offen sc1', vr(40))
    a('buffer_store_dwordx4 %s, v9, s[36:39], 0 offen offset:16 sc1', vr(44))
    a('s_mov_b64 exec, -1')
    a('v_cmp_eq_u32 vcc, 0, v0'); a('s_and_b64 exec, exec, vcc')
    a('buffer_atomic_or v48, v49, s[80:83], 0 offen sc1')
    a('s_mov_b64 exec, -1')
    signal(a, 80, C_INIT, 36)
    a('s_cmp_eq_u32 s8, 0'); a('s_cbranch_scc0 ch_iw')
    waitc(a, 80, C_INIT, NINIT, 36, 12, 'ch_done', 8)
    a.label('ch_iw')
    a('s_barrier')
    a('buffer_load_dword v48, v49, s[80:83], 0 offen sc1'); a('s_waitcnt vmcnt(0)')
    a('v_readfirstlane_b32 s12, v48'); a('s_nop 3')
    a('s_bcnt1_i32_b32 s12, s12'); a('s_cmp_eq_u32 s12, 1'); a('s_cselect_b32 s63, 1, 0')
    if FORCE_SLOW: a('s_mov_b32 s63, 0')
    TS0(9)
    flag_wait(a, 72, F_M, 224, 36, 12, 'ch_done', 4, chk=False)
    a('s_mov_b32 s76, s72'); a('s_mov_b32 s77, s73'); a('s_mov_b32 s78, s74'); a('s_mov_b32 s79, s75')
    TS0(10)
    a('v_cmp_gt_u32 s[46:47], 8, v23')
    a('v_cmp_gt_u32 s[48:49], 2, v24')
    a('v_cmp_eq_u32 s[50:51], 0, v24')
    a('s_nop 1')
    a('s_and_b64 s[44:45], s[46:47], s[48:49]')
    a('s_and_b64 s[50:51], s[46:47], s[50:51]')
    a('s_xnor_b64 s[72:73], s[46:47], s[48:49]')
    a('s_mul_i32 s9, s2, 14')
    a('s_lshr_b32 s11, s6, 3'); a('s_bfe_u32 s14, s6, 0x10002'); a('s_and_b32 s15, s6, 3')
    common_addrs(a)
    a('v_mul_u32_u24 v2, 912, v25'); a('v_lshl_add_u32 v2, v24, 2, v2'); a('v_lshrrev_b32 v26, 3, v23'); a('v_lshl_add_u32 v2, v26, 5, v2')
    a('s_mul_i32 s12, s7, 448'); a('s_lshl_b32 s13, s8, 7'); a('s_add_u32 s12, s12, s13'); a('v_add_u32 v2, s12, v2')
    a('v_and_b32 v26, 1, v24'); a('v_lshlrev_b32 v5, 9, v26'); a('v_lshl_add_u32 v5, v25, 6, v5')
    a('v_lshrrev_b32 v27, 1, v24'); a('v_lshl_add_u32 v5, v27, 2, v5')
    a('s_lshr_b32 s12, s8, 1'); a('s_lshl_b32 s12, s12, 10'); a('s_and_b32 s13, s8, 1'); a('s_lshl_b32 s13, s13, 3'); a('s_add_u32 s12, s12, s13')
    a('s_add_u32 s12, s12, %d', L_RED); a('v_add_u32 v5, s12, v5')
    a('v_bfe_u32 v27, v23, 2, 1'); a('v_lshrrev_b32 v28, 3, v23'); a('v_and_b32 v29, 3, v23'); a('v_lshl_add_u32 v28, v28, 2, v29')
    a('v_mov_b32 v29, 64'); a('v_cmp_eq_u32 vcc, v26, v27'); a('s_nop 1'); a('v_cndmask_b32 v28, v29, v28, vcc')
    a('v_mov_b32 v26, 0x3f80'); a('v_mov_b32 v27, 0x3f800000'); a('v_mov_b32 v29, 0')
    for q in range(4):
        a('v_cmp_eq_u32 vcc, %d, v28', 2*q); a('s_nop 1'); a('v_cndmask_b32 v%d, v29, v26, vcc', 16+q)
        a('v_cmp_eq_u32 vcc, %d, v28', 2*q+1); a('s_nop 1'); a('v_cndmask_b32 v%d, v%d, v27, vcc', 16+q, 16+q)
    ID = 16
    a('s_mov_b32 s60, 0x%x', 0x3db8aa3b); a('s_mov_b32 s61, s60')
    for wv in range(1, 4):
        a('s_cmp_eq_u32 s8, %d', wv); a('s_cbranch_scc1 ch_w%d', wv)
    FR = 20; WV = 88; ZA = 224
    GW1 = opt('gw1', 4); PF = opt('pf', 0); PD = opt('pd', 2); PFP = opt('pfp', 0); B0 = opt('b0', 1); B3P = opt('b3p', 1); SDEL = opt('sdel', 2)
    for wv in range(4):
        a.label('ch_w%d' % wv)
        qt = QT[wv]; ut = UTL[wv]; nq = len(qt); nu = len(ut)
        units = [('q', t) for t in qt] + [('u', t) for t in ut]
        def wreg4(u, ks): return ar(u*56 + ks*4) if u < 4 else vr(WV + (u-4)*56 + ks*4)
        def wreg8(u, s): return ar(u*56 + s*8, 8) if u < 4 else vr(WV + (u-4)*56 + s*8, 8)
        def greg(f): return vr(64+4*f) if f < 6 else ar(ZA+4*(f-6))
        load_weights(a, units, wreg4)
        for r_ in range(53, 60): a('s_mov_b32 s%d, 0', r_)
        if wv < 2:
            a('v_lshlrev_b32 v7, 7, v24'); a('v_lshl_add_u32 v7, v25, 4, v7'); a('v_mov_b32 v26, 0x40000000')
            a('v_cndmask_b32_e64 v7, v26, v7, s[72:73]')
            a('v_add_u32 v8, s9, v23'); a('v_lshlrev_b32 v8, 4, v8'); a('v_mul_u32_u24 v26, 7168, v24'); a('v_add_u32 v8, v8, v26')
            a('v_mul_u32_u24 v9, 224, v24'); a('v_lshl_add_u32 v9, v23, 4, v9')
            a('v_lshlrev_b32 v10, 5, v25'); a('v_lshl_add_u32 v10, v24, 2, v10'); a('v_lshrrev_b32 v26, 3, v23'); a('v_lshl_add_u32 v10, v26, 4, v10')
            a('v_add_u32 v10, %d, v10', L_PHI + 512*wv)
            a('v_lshlrev_b32 v12, 5, v23')
            if wv == 0:
                a('s_lshl_b32 s12, s11, 1'); a('s_add_u32 s12, s12, s7'); a('s_lshl_b32 s12, s12, 11'); a('s_add_u32 s12, s12, 8192')
                a('s_lshl_b32 s13, s15, 8'); a('s_add_u32 s12, s12, s13'); a('s_lshl_b32 s13, s14, 7'); a('s_add_u32 s12, s12, s13')
                a('v_and_b32 v11, 31, v22'); a('v_lshlrev_b32 v11, 2, v11'); a('v_lshrrev_b32 v26, 5, v22'); a('v_lshl_add_u32 v11, v26, 10, v11'); a('v_add_u32 v11, s12, v11')
                a('v_lshlrev_b32 v14, 5, v23'); a('v_lshl_add_u32 v14, v24, 3, v14'); a('s_lshl_b32 s13, s2, 8'); a('v_add_u32 v14, s13, v14')
                a('s_mul_i32 s13, s2, %d', SBS//32); a('v_min_u32 v13, 4, v22'); a('v_lshlrev_b32 v13, 7, v13'); a('v_add_u32 v13, s13, v13')
            else:
                a('v_and_b32 v13, 1, v22'); a('v_lshlrev_b32 v13, 7, v13'); a('s_lshl_b32 s13, s2, 8'); a('v_add_u32 v13, s13, v13')
        else:
            a('v_lshrrev_b32 v26, 3, v22'); a('v_lshlrev_b32 v15, 8, v26'); a('v_lshl_add_u32 v15, v25, 4, v15'); a('v_add_u32 v15, %d, v15', (wv-2)*128)
            a('v_mul_u32_u24 v27, 7, v26'); a('v_and_b32 v28, 1, v22'); a('v_lshl_add_u32 v27, v28, 2, v27')
            a('v_bfe_u32 v26, v22, 1, 2'); a('v_mul_u32_u24 v26, 912, v26'); a('v_add_u32 v26, %d, v26', 4*(wv-2)*912)
            for q in range(4):
                a('v_add_u32 v29, %d, v27', q)
                a('v_and_b32 v30, 0xf8, v29'); a('v_and_b32 v31, 1, v29'); a('v_lshl_or_b32 v30, v31, 2, v30')
                a('v_bfe_u32 v31, v29, 1, 2'); a('v_or_b32 v30, v30, v31')
                a('v_lshl_add_u32 v%d, v30, 2, v26', 7+q)
            a('v_mov_b32 v29, %d', L_DUM); a('v_cmp_eq_u32 vcc, 1, v28'); a('s_nop 1'); a('v_cndmask_b32 v10, v10, v29, vcc')
            if wv == 2:
                a('s_lshr_b32 s12, s2, 2'); a('s_mul_i32 s12, s12, 912'); a('s_and_b32 s13, s2, 3'); a('s_mul_i32 s13, s13, 224'); a('s_add_u32 s12, s12, s13')
                a('v_add_u32 v11, s12, v3'); a('s_mul_i32 s12, s2, 224'); a('v_add_u32 v12, s12, v3')
                a('v_lshlrev_b32 v13, 7, v22'); a('s_mul_i32 s12, s2, 14336'); a('v_add_u32 v13, s12, v13'); a('v_add_u32 v14, 8192, v13')
                a('s_mov_b32 s57, %d', PD*16*28672)
            if wv == 3:
                a('v_lshrrev_b32 v26, 1, v24'); a('v_lshlrev_b32 v11, 7, v26'); a('v_lshl_add_u32 v11, v23, 4, v11')
                a('v_and_b32 v26, 1, v24'); a('v_lshl_add_u32 v11, v26, 3, v11'); a('s_lshl_b32 s12, s2, 8'); a('v_add_u32 v11, s12, v11')
                a('s_lshl_b32 s12, s11, 10'); a('s_add_u32 s12, s12, 16384')
                a('s_lshl_b32 s13, s15, 8'); a('s_add_u32 s12, s12, s13'); a('s_lshl_b32 s13, s14, 7'); a('s_add_u32 s12, s12, s13')
                a('s_lshl_b32 s13, s7, 3'); a('s_add_u32 s12, s12, s13')
                a('v_lshlrev_b32 v12, 4, v23'); a('v_add_u32 v12, s12, v12')
                a('s_mul_i32 s57, s2, 14336'); a('s_add_u32 s59, s57, %d', 63*16*28672)
        def gx_wait(L):
            a('s_and_b32 s13, s12, 7'); a('s_cmp_eq_u32 s13, 0'); a('s_cbranch_scc0 %s_ng', L)
            a('s_cmp_lt_u32 s12, 64'); a('s_cbranch_scc0 %s_ng', L)
            a('s_lshl_b32 s12, s12, 7'); a('s_add_u32 s12, s12, %d', F_GX)
            flag_poll(a, 76, 's12', 224, 20, 62, 'ch_done', 1)
            a.label(L + '_ng')
        def g_load1(f):
            a('buffer_load_dwordx4 %s, v3, s[20:23], s%d offen offset:%d %s', greg(f), 80 + f//4, (f%4)*1024, GM)
        def g_offs():
            for q in range(4): a('s_add_u32 s%d, s57, %d', 80+q, q*4096)
        def g_next():
            a('s_add_u32 s57, s57, %d', 16*28672); a('s_min_u32 s57, s57, s59'); g_offs()
        if wv < 2:
            for k in range(8): a('s_mov_b32 s%d, %d', 80+k, (8*wv+k)*28672)
        if wv == 3: g_offs()
        a('s_waitcnt vmcnt(0)')
        TS0(11)
        if wv == 3:
            a('s_mov_b32 s12, 0'); gx_wait('ch_pro')
            TS0(12)
            for f in range(14): g_load1(f)
            g_next()
        if wv == 0: RT(a, 1)
        if wv == 3: ACC = 56; UAC = 68; DA = 48; DB = 52; PC = 64; SAC = 60
        else: ACC = 48; UAC = 76; PC = 64; PK2 = 68; SAC = 72
        LP = 'ch_loop%d' % wv
        a.label(LP)
        for r_ in range(4*nq): a('v_mov_b32 v%d, 0', ACC+r_)
        if wv < 3:
            for r_ in range(4*nu): a('v_mov_b32 v%d, 0', UAC+r_)
        if wv == 0: a('s_add_u32 s12, s54, %d', SBS)
        if wv == 1: a('s_add_u32 s12, s53, 16384')
        if wv < 2: a('s_mov_b32 s75, 0')
        if wv >= 2:
            R = FR
            a('s_mov_b32 s62, 0'); a('s_add_u32 s56, s53, 4096')
            if opt('pms', 4): a('s_sleep %d', opt('pms', 4))
            TS(14)
            a.label(LP + '_pm')
            for k in range(4): a('buffer_load_dwordx4 %s, v15, s[36:39], %s offen offset:%d sc1', vr(R+4*k), 's53' if k < 2 else 's56', (k&1)*2048)
            a('s_add_u32 s62, s62, 1'); a('s_cmp_gt_u32 s62, %d', SPIN); a('s_cbranch_scc1 ch_done')
            a('s_waitcnt vmcnt(0)')
            a('v_max3_u32 v36, v%d, v%d, v%d', R, R+2, R+4); a('v_max3_u32 v37, v%d, v%d, v%d', R+6, R+8, R+10)
            a('v_max3_u32 v36, v36, v%d, v%d', R+12, R+14); a('v_max_u32 v36, v36, v37')
            a('v_cmp_eq_u32 vcc, -1, v36'); a('s_cbranch_vccnz %s_pm', LP)
            TS(0)
            if B0: a('s_barrier')
            for q in range(4):
                for k in (0, 2):
                    a('ds_write2_b32 v%d, v%d, v%d offset0:%d offset1:%d', 7+q, R+4*k+q, R+4*k+4+q, 56*k, 56*k+56)
            a('s_waitcnt lgkmcnt(0)')
        zl = []
        if wv < 2 and not opt('noz'):
            for k in range(8):
                zl.append('buffer_load_dwordx4 %s, v8, s[24:27], s%d offen %s' % (ar(ZA+4*k), 80+k, GM))
            if PRETOUCH:
                if wv == 0: zl.append('buffer_load_dword v15, v13, s[40:43], s12 offen sc1')
                else: zl.append('buffer_load_dword v15, v13, s[36:39], s12 offen sc1')
        if B0 and wv < 2:
            a('s_barrier')
            while zl: a(zl.pop(0))
        a('s_barrier')
        BC = 72
        def bc_st():
            a('v_min_u32 v%d, 0xfffffffe, v%d', BC, BC); a('s_mov_b64 exec, 0x3fff')
            a('buffer_store_dwordx4 %s, v12, s[28:31], s55 offen sc1', vr(BC)); a('s_mov_b64 exec, -1')
        nl = 0
        if wv == 2: a('ds_read_b128 %s, v11 offset:%d', vr(BC), L_MEM)
        a('s_cmp_eq_u32 s52, 63'); a('s_cbranch_scc1 %s_end', LP)
        for s in range(7): a('ds_read_b128 %s, v1 offset:%d', vr(FR+4*s), L_MEM + s*128)
        npc = 0
        if wv < 3:
            for pr in range(2): a('ds_read2_b32 %s, v2 offset0:%d offset1:%d', vr(PC+2*pr, 2), 16*pr, 16*pr+4)
            npc = 2
        TS(1)
        for _ in range(opt('zpre', 2)):
            if zl: a(zl.pop(0))
        def cvt2(d, s_): return ['v_cvt_pk_bf16_f32 v%d, v%d, v%d' % (d, s_, s_+1), 'v_cvt_pk_bf16_f32 v%d, v%d, v%d' % (d+1, s_+2, s_+3)]
        def tmf(b): return 'v_mfma_f32_16x16x32_bf16 %s, %s, %s, 0' % (vr(b+4), vr(b), vr(ID))
        ul = [(s, k) for s in range(7) for k in range(nu)]
        def US(n):
            for _ in range(n):
                s_, k = ul.pop(0); SM(a, UAC+4*k, FR+4*s_, wreg8(nq+k, s_))
        def pfx(j, z):
            if not (PF and wv == 2): return
            srd = 20 if j < 2 else 24
            if j & 1: a('s_mov_b32 exec_hi, 0xffff')
            a('buffer_atomic_or v%d, v%d, s[%d:%d], s57 offen %s', z, 13 + (j & 1), srd, srd+3, ['', 'sc1', 'nt'][opt('pfm', 0)])
            if j & 1: a('s_mov_b32 exec_hi, -1')
        def s_write():
            a('s_mov_b64 exec, s[72:73]')
            a('ds_write2_b32 v5, v%d, v%d offset0:0 offset1:4', SAC, SAC+1); a('ds_write2_b32 v5, v%d, v%d offset0:8 offset1:12', SAC+2, SAC+3)
            a('s_mov_b64 exec, -1')
        if wv < 3:
            for s in range(7):
                a('s_waitcnt lgkmcnt(%d)', 6-s+npc)
                SM(a, ACC, FR+4*s, wreg8(0, s))
                if wv == 2 and s == 0: bc_st()
                if zl: a(zl.pop(0))
                if PFP == 0 and 1 <= s <= 4: pfx(s-1, 87)
                if PFP == 3 and 1 <= s <= 2: pfx(s-1, 87)
                SM(a, ACC+4, FR+4*s, wreg8(1, s))
            assert not zl
            if opt('fts'): TS(8)
            f2 = [None, None] + cvt2(ACC, ACC) + cvt2(ACC+2, ACC+4) + [None]
            for s in range(7):
                SM(a, ACC+8, FR+4*s, wreg8(2, s))
                if f2[s]: a(f2[s])
            a(tmf(ACC))
            f3 = [None, None] + cvt2(PK2, ACC+4) + cvt2(ACC+8, ACC+8) + [None]
            for s in range(7):
                SM(a, ACC+12, FR+4*s, wreg8(3, s))
                if f3[s]: a(f3[s])
            US(2)
            for q in cvt2(ACC+10, ACC+12): a(q)
            a('s_nop 1'); a(tmf(ACC+8)); US(2)
            for q in cvt2(PK2+2, ACC+12): a(q)
            a('s_waitcnt lgkmcnt(0)'); a('s_nop 0')
            a('v_mfma_f32_16x16x32_bf16 %s, %s, %s, 0', vr(SAC), vr(PK2), vr(PC))
            US(2)
            if opt('fts'): TS(9)
            s_write()
            US(opt('ub2', 3))
        else:
            sp = ['v_mov_b32 v%d, 0' % (UAC+r_) for r_ in range(4*nu)]
            for s in range(7):
                a('s_waitcnt lgkmcnt(%d)', 6-s)
                for p in range(2):
                    f = 2*s+p; acc = vr(DA+4*p)
                    a('v_mfma_f32_16x16x32_bf16 %s, %s, %s, %s', acc, greg(f), vr(FR+4*s), '0' if s == 0 else acc)
                    if 6 <= f < 6+GW1: g_load1(f)
                    elif f >= 6: a(sp.pop(0))
                    if f >= 6: a(sp.pop(0))
            a('ds_read2_b32 %s, v2 offset0:0 offset1:4', vr(PC, 2))
            if opt('fts'): TS(8)
            ch = []
            def F(need, s, *ar_): ch.append((need, lambda: a(s, *ar_)))
            X = DA; Tm = DB
            for r_ in range(4): F(0, 'v_add_f32_dpp v%d, v%d, v%d row_ror:8 row_mask:0xf bank_mask:0xf', X+r_, DB+r_, DA+r_)
            F(0, 'v_max3_f32 v%d, v%d, v%d, v%d', Tm, X, X+1, X+2); F(0, 'v_max_f32 v%d, v%d, v%d', Tm, Tm, X+3)
            F(0, 'v_mov_b32 v%d, v%d', Tm+2, Tm)
            F(2, 'v_permlane32_swap_b32 v%d, v%d', Tm, Tm+2)
            F(2, 'v_max_f32 v%d, v%d, v%d', Tm, Tm, Tm+2)
            F(1, 'v_mov_b32 v%d, v%d', Tm+2, Tm)
            F(2, 'v_permlane16_swap_b32 v%d, v%d', Tm, Tm+2)
            F(2, 'v_max_f32 v%d, v%d, v%d', Tm, Tm, Tm+2)
            F(0, 'v_mul_f32 v%d, s60, v%d', Tm, Tm)
            for r_ in range(4): F(0, 'v_fma_f32 v%d, v%d, s60, -v%d', X+r_, X+r_, Tm)
            for r_ in range(4): F(0, 'v_exp_f32 v%d, v%d', X+r_, X+r_)
            for j_, q in enumerate(cvt2(PC+2, X)): F(1-j_, q)
            def st_e():
                a('s_mov_b64 exec, s[46:47]')
                pub('buffer_store_dwordx2 %s, v11, s[40:43], s54 offen %s', vr(PC+2, 2))
                a('s_mov_b64 exec, -1')
            F(0, 'v_add_f32 v%d, v%d, v%d', Tm+1, X, X+1)
            ch.append((0, st_e))
            F(0, 'v_add_f32 v%d, v%d, v%d', Tm+2, X+2, X+3)
            F(0, 'v_add_f32 v%d, v%d, v%d', Tm+1, Tm+1, Tm+2)
            F(1, 'v_mov_b32 v%d, v%d', Tm+2, Tm+1)
            F(2, 'v_permlane32_swap_b32 v%d, v%d', Tm+1, Tm+2)
            F(2, 'v_add_f32 v%d, v%d, v%d', Tm+1, Tm+1, Tm+2)
            F(1, 'v_mov_b32 v%d, v%d', Tm+2, Tm+1)
            F(2, 'v_permlane16_swap_b32 v%d, v%d', Tm+1, Tm+2)
            F(2, 'v_add_f32 v%d, v%d, v%d', Tm+1, Tm+1, Tm+2)
            F(0, 'v_min_u32 v%d, 0xfffffffe, v%d', Tm, Tm)
            def st_ml():
                a('s_mov_b64 exec, s[50:51]')
                pub('buffer_store_dwordx2 %s, v12, s[40:43], s54 offen %s', vr(Tm, 2))
                a('s_mov_b64 exec, -1')
            ch.append((0, st_ml))
            def CH(slots, sep):
                n = 0
                while n < slots:
                    if ch and ch[0][0] <= sep:
                        ch.pop(0)[1](); sep = 0
                    elif sp: a(sp.pop(0)); sep += 1
                    else: a('s_nop 0'); sep += 1
                    n += 1
                return sep
            c0 = cvt2(ACC, ACC)
            for u in range(2):
                for s in range(7):
                    SM(a, ACC+4*u, FR+4*s, wreg8(u, s))
                    k = 7*u + s
                    if k < 2: a(sp.pop(0))
                    elif k in (10, 11): a(c0.pop(0))
                    else: CH(opt('w3f', 1), 4)
            sep = CH(7, 0)
            for q in cvt2(ACC+2, ACC+4): a(q)
            sep = CH(2, sep+2); a(tmf(ACC)); sep = CH(8, sep+1)
            for q in cvt2(ACC, ACC+4): a(q)
            a('s_waitcnt lgkmcnt(0)'); sep = CH(1, sep+3)
            a('v_mfma_f32_16x16x16_bf16 %s, %s, %s, 0', vr(SAC), vr(ACC, 2), vr(PC, 2))
            sep = CH(8, sep+1)
            if opt('fts'): TS(9)
            s_write()
            while sp: a(sp.pop(0))
            a('s_nop 0')
            for _ in range(opt('ub2', 3)):
                US(1)
                if ch: CH(1, 4)
        a('s_waitcnt lgkmcnt(0)')
        a('s_barrier')
        if wv == 0:
            RD = ACC
            a('ds_read_b128 %s, v3 offset:%d', vr(RD), L_RED); a('ds_read_b128 %s, v3 offset:%d', vr(RD+4), L_RED+1024)
            US(opt('ub3', 4))
            a('s_waitcnt lgkmcnt(0)')
            for q in range(4): a('v_add_f32 v%d, v%d, v%d', RD+q, RD+q, RD+4+q)
            a('v_add_f32 v%d, v%d, v%d', RD, RD, RD+1); a('v_add_f32 v%d, v%d, v%d', RD+2, RD+2, RD+3); a('v_add_f32 v%d, v%d, v%d', RD, RD, RD+2)
            a('v_min_u32 v%d, 0xfffffffe, v%d', RD, RD)
            pub('buffer_store_dword v%d, v11, s[40:43], s54 offen %s', RD)
        TS(2)
        if PF and wv == 2:
            a('v_mov_b32 v48, 0')
            if PFP == 1:
                for j in range(4): US(1); pfx(j, 48)
        EO = 20; S0 = 56; S1 = 64; ML = 72; T = 76
        while ul:
            US(1)
            if wv == 3 and ch: CH(1, 4)
        assert wv < 3 or not ch
        def pE():
            for k in range(8):
                a('buffer_load_dwordx4 %s, v7, s[40:43], s74 offen offset:%d sc1', vr(EO+4+4*k), 512*k)
        def pS():
            a('buffer_load_dwordx4 %s, v3, s[40:43], s15 offen sc1', vr(ML))
            for c_ in range(2):
                for q in range(2):
                    a('buffer_load_dwordx4 %s, v3, s[40:43], s14 offen offset:%d sc1', vr((S0, S1)[c_]+4*q), 2048*c_+1024*q)
        if wv < 2:
            a('s_add_u32 s74, s54, %d', wv*4096)
            a('s_add_u32 s14, s54, %d', 8192 + wv*4096); a('s_add_u32 s15, s54, %d', 16384 + wv*1024)
            pE()
            if not SDEL: pS()
        else:
            a.nop(8)
        for k in range(nu):
            for q in fold_ops(UAC+4*k, UAC+4*k): a(q)
        for k, t in enumerate(ut):
            a('ds_write_b32 v6, v%d offset:%d', UAC+4*k, 256*t)
        if wv >= 2:
            a('s_waitcnt lgkmcnt(0)')
            TS(3)
            a('s_barrier')
            if PF and wv == 2:
                if PFP == 2:
                    for j in range(4): pfx(j, 48)
                if PFP == 3:
                    for j in range(2, 4): pfx(j, 48)
                a('s_add_u32 s57, s57, %d', 16*28672)
            if B3P: a('s_barrier')
            if wv == 3:
                for f in range(14):
                    if not (6 <= f < 6+GW1): g_load1(f)
                g_next()
            a('s_barrier')
            if wv == 3:
                a('s_add_u32 s12, s52, %d', PD+1 if PF else 2); gx_wait(LP)
            a('s_add_u32 s53, s53, 8192')
            TDUMP('s62')
        else:
            TS(3)
            a('s_mov_b32 s62, 0')
            T2 = 86
            def chkE():
                E = EO+4
                a('v_max3_u32 v%d, v%d, v%d, v%d', T2, E, E+2, E+4); a('v_max3_u32 v%d, v%d, v%d, v%d', T2+1, E+6, E+8, E+10)
                a('v_max3_u32 v%d, v%d, v%d, v%d', T2, T2, E+12, E+14); a('v_max3_u32 v%d, v%d, v%d, v%d', T2+1, T2+1, E+16, E+18)
                a('v_max3_u32 v%d, v%d, v%d, v%d', T2, T2, E+20, E+22); a('v_max3_u32 v%d, v%d, v%d, v%d', T2+1, T2+1, E+24, E+26)
                a('v_max3_u32 v%d, v%d, v%d, v%d', T2, T2, E+28, E+30); a('v_max_u32 v%d, v%d, v%d', T2, T2, T2+1)
                a('v_cmp_eq_u32 vcc, -1, v%d', T2)
            if SDEL == 1: pS()
            a('s_waitcnt vmcnt(%d)', 0 if SDEL == 2 else 5)
            chkE(); a('s_cbranch_vccz %s_p1d', LP)
            a.label(LP + '_p1')
            pE()
            a('s_add_u32 s62, s62, 256'); a('s_cmp_gt_u32 s62, %d', SPIN*256); a('s_cbranch_scc1 ch_done')
            a('s_waitcnt vmcnt(0)')
            chkE(); a('s_cbranch_vccnz %s_p1', LP)
            a.label(LP + '_p1d')
            TS(7)
            if SDEL == 2: pS()
            for k in range(8):
                a('v_mfma_f32_16x16x32_bf16 %s, %s, %s, 0', vr(EO+4*k), ar(ZA+4*k), vr(EO+4+4*k))
            a('s_waitcnt lgkmcnt(0)')
            a('s_barrier')
            for hh in range(2): a('ds_read_b128 %s, v9 offset:%d', ar(ZA+4*hh), L_ZM + (2*wv+hh)*896)
            a.label(LP + '_p2c')
            a('s_waitcnt vmcnt(0)')
            TS(4)
            for q in range(4): a('v_pk_add_f32 %s, %s, %s', vr(S0+2*q,2), vr(S0+2*q,2), vr(S1+2*q,2))
            a('v_max_f32 v%d, v%d, v%d', T+6, ML, ML+2)
            M_ = T+4
            a('v_max3_f32 v%d, v%d, v%d, v%d', M_, S0, S0+1, S0+2); a('v_max3_f32 v%d, v%d, v%d, v%d', M_+1, S0+3, S0+4, S0+5)
            a('v_max3_f32 v%d, v%d, v%d, v%d', M_, M_, S0+6, S0+7); a('v_max_f32 v%d, v%d, v%d', M_, M_, M_+1)
            a('v_mul_f32 v%d, s60, v%d', M_, M_); a('v_max_f32 v%d, v%d, v%d', M_, M_, T+6)
            a('v_sub_f32 v%d, v%d, v%d', T, ML, M_); a('v_sub_f32 v%d, v%d, v%d', T+1, ML+2, M_)
            for q in range(4):
                a('v_pk_fma_f32 %s, %s, s[60:61], %s op_sel_hi:[1,1,0] neg_lo:[0,0,1] neg_hi:[0,0,1]', vr(S0+2*q,2), vr(S0+2*q,2), vr(M_,2))
            a('v_exp_f32 v%d, v%d', T, T); a('v_exp_f32 v%d, v%d', T+1, T+1)
            for q in range(8): a('v_exp_f32 v%d, v%d', S0+q, S0+q)
            a('v_mul_f32 v%d, v%d, v%d', T+2, T, ML+1); a('v_fma_f32 v%d, v%d, v%d, v%d', T+2, T+1, ML+3, T+2)
            a('v_pk_add_f32 %s, %s, %s', vr(T+4,2), vr(S0,2), vr(S0+2,2)); a('v_pk_add_f32 %s, %s, %s', vr(T+6,2), vr(S0+4,2), vr(S0+6,2))
            a('v_pk_add_f32 %s, %s, %s', vr(T+4,2), vr(T+4,2), vr(T+6,2))
            a('v_add_f32 v%d, v%d, v%d', T+2, T+2, T+4); a('v_add_f32 v%d, v%d, v%d', T+2, T+2, T+5)
            a('v_cmp_u_f32 vcc, v%d, v%d', T+2, T+2)
            a('v_rcp_f32 v%d, v%d', T+2, T+2)
            a('s_cbranch_vccnz %s_sl', LP)
            a.label(LP + '_ok')
            if B3P: a('s_barrier')
            a('v_pk_mul_f32 %s, %s, %s op_sel_hi:[1,0]', vr(T,2), vr(T,2), vr(T+2,2))
            a('ds_write2_b32 v10, v%d, v%d offset0:0 offset1:64', T, T+1)
            FF = T+4
            for q in range(2): a('ds_read_b128 %s, v12 offset:%d', vr(FF+4*q), L_PHI + 512*wv + 16*q)
            for q in range(4):
                a('v_pk_mul_f32 %s, %s, %s op_sel_hi:[1,0]', vr(S0+2*q,2), vr(S0+2*q,2), vr(T+2,2))
            for q in range(4): a('v_cvt_pk_bf16_f32 v%d, v%d, v%d', S0+q, S0+2*q, S0+2*q+1)
            A1 = S0+4; A2 = ML; RR = EO+32
            a('s_waitcnt lgkmcnt(3)'); a('s_nop 0')
            a('v_mfma_f32_16x16x32_bf16 %s, %s, %s, 0', vr(A1), ar(ZA), vr(S0))
            a('v_mfma_f32_16x16x32_bf16 %s, %s, %s, 0', vr(A2), ar(ZA+4), vr(S0))
            a('s_add_u32 s53, s53, 8192')
            a('s_waitcnt lgkmcnt(0)')
            for k in range(8):
                for q in range(2):
                    sel = 'op_sel:[0,1,0] op_sel_hi:[1,1,1]' if k & 1 else 'op_sel_hi:[1,0,1]'
                    if k == 0: a('v_pk_mul_f32 %s, %s, %s op_sel_hi:[1,0]', vr(RR+2*q,2), vr(EO+2*q,2), vr(FF,2))
                    else: a('v_pk_fma_f32 %s, %s, %s, %s %s', vr(RR+2*q,2), vr(EO+4*k+2*q,2), vr(FF+(k&~1),2), vr(RR+2*q,2), sel)
            if not opt('fts'): TS(5)
            for r_ in range(4): a('v_cndmask_b32_e64 v%d, v%d, v%d, s[46:47]', A1+r_, A2+r_, A1+r_)
            for q in range(2): a('v_pk_add_f32 %s, %s, %s', vr(A1+2*q,2), vr(A1+2*q,2), vr(RR+2*q,2))
            a('s_nop 1')
            for r_ in range(4):
                a('v_add_f32_dpp v%d, v%d, v%d row_ror:8 row_mask:0xf bank_mask:0xf', A2+r_, A1+r_, A1+r_)
            if wv == 1:
                a('ds_write_b128 v3, %s offset:%d', vr(A2), L_RED2)
                a('s_waitcnt lgkmcnt(0)')
            a('s_barrier')
            if wv == 0:
                a('ds_read_b128 %s, v3 offset:%d', vr(A1), L_RED2)
                a('s_waitcnt lgkmcnt(0)')
                for q in range(2): a('v_pk_add_f32 %s, %s, %s', vr(A1+2*q,2), vr(A1+2*q,2), vr(A2+2*q,2))
                a('v_cvt_pk_bf16_f32 v%d, v%d, v%d', T, A1, A1+1); a('v_cvt_pk_bf16_f32 v%d, v%d, v%d', T+1, A1+2, A1+3)
                a('v_min_u32 v%d, 0xfffffffe, v%d', T, T)
                a('s_mov_b64 exec, s[46:47]')
                pub('buffer_store_dwordx2 %s, v14, s[36:39], s53 offen %s', vr(T,2))
                a('s_mov_b64 exec, -1')
            if not opt('fts'): TS(6)
            TDUMP('s62')
            for k in range(8): a('s_add_u32 s%d, s%d, %d', 80+k, 80+k, 16*28672)
        a('s_add_u32 s52, s52, 1'); a('s_add_u32 s54, s54, %d', SBS); a('s_add_u32 s55, s55, 7168')
        a('s_branch %s', LP)
        if wv < 2:
            a.label(LP + '_sl')
            if INSTR: a('s_lshl_b32 s13, s75, 6'); a('s_add_u32 s62, s62, s13')
            a('s_cmp_eq_u32 s75, 1'); a('s_cbranch_scc1 %s_ok', LP)
            a.label(LP + '_p2')
            pS()
            a('s_add_u32 s62, s62, 1'); a('s_cmp_gt_u32 s62, %d', SPIN*256); a('s_cbranch_scc1 ch_done')
            a('s_waitcnt vmcnt(0)')
            a('v_max3_u32 v%d, v%d, v%d, v%d', T2, ML, ML+2, S0)
            for q in range(7): a('v_max3_u32 v%d, v%d, v%d, v%d', T2, T2, S0+1+2*q, S0+2+2*q)
            a('v_max_u32 v%d, v%d, v%d', T2, T2, S0+15)
            a('v_cmp_eq_u32 vcc, -1, v%d', T2); a('s_cbranch_vccnz %s_p2', LP)
            a('s_mov_b32 s75, 1'); a('s_branch %s_p2c', LP)
        a.label(LP + '_end')
        if wv == 2:
            a('s_waitcnt lgkmcnt(0)'); bc_st()
        a('s_waitcnt vmcnt(0)')
        a('s_branch ch_done')
    a.label('ch_done')
    if INSTR: a('s_add_u32 s101, s2, 1900')
    RT(a, 2)
    a('s_endpgm')
NEG = 0xf149f2ca
def k_bfin(a):

    a('s_load_dwordx2 s[4:5], s[0:1], %d', KA['ws'])
    a('s_load_dwordx2 s[6:7], s[0:1], %d', KA['B_x'])
    a('s_load_dwordx2 s[8:9], s[0:1], %d', KA['out'])
    a('v_lshrrev_b32 v1, 6, v0'); a('v_and_b32 v2, 63, v0'); a('s_nop 0')
    a('v_readfirstlane_b32 s10, v1')
    a('v_and_b32 v3, 31, v2'); a('v_lshrrev_b32 v4, 5, v2')
    perm(a, 5, 3, 6)
    a('s_waitcnt lgkmcnt(0)')
    a.srd(12, 4, 5, SZ_XF//2, WS_XF + SZ_XF//2); a.srd(16, 4, 5, SZ_GX, WS_GX); a.srd(20, 4, 5, SZ_VW, WS_VW)
    a.srd(24, 4, 5, SZ_TM, WS_TM); a.srd(28, 4, 5, SZ_UT, WS_UT); a.srd(32, 8, 9, 2048*1792); a.srd(76, 4, 5, SZ_MF, WS_MF)
    init_seen(a, 12, 74, 'wk_done')
    a('s_mul_i32 s11, s100, 28672'); a('v_lshlrev_b32 v6, 4, v2')
    for ks in range(28):
        if ks % 4 == 0: a('s_add_u32 s39, s11, %d', ks*1024)
        a('buffer_load_dwordx4 %s, v6, s[12:15], s39 offen offset:%d', ar(4*ks), (ks%4)*1024)
    a('v_lshrrev_b32 v7, 4, v5'); a('v_mul_u32_u24 v7, 14336, v7'); a('v_lshl_add_u32 v7, v4, 10, v7'); a('v_and_b32 v8, 15, v5'); a('v_lshl_add_u32 v7, v8, 4, v7')
    a('v_lshlrev_b32 v8, 5, v3'); a('v_lshl_add_u32 v8, v4, 4, v8')
    a('s_lshl_b32 s36, s100, 2'); a('s_add_u32 s36, s36, s10')
    a('s_mul_i32 s37, s36, 28672')
    a('s_mul_i32 s38, s36, %d', 4*28672)
    B0 = 16; B1A = 112; ACC = 128
    def buf(b, ks): return vr(B0+4*ks) if b == 0 else ar(B1A+4*ks)
    def ld(stream, b):
        for ks in range(28):
            if ks % 4 == 0:
                if stream == 0: a('s_add_u32 s39, s37, %d', ks*1024)
                else: a('s_add_u32 s39, s38, %d', (stream-1)*28672 + ks*512)
            if stream == 0: a('buffer_load_dwordx4 %s, v8, s[24:27], s39 offen offset:%d sc1', buf(b, ks), (ks%4)*1024)
            else: a('buffer_load_dwordx4 %s, v7, s[16:19], s39 offen offset:%d sc1', buf(b, ks), (ks%4)*256)
    a('v_lshlrev_b32 v9, 3, v4'); a('v_sub_u32 v9, v3, v9')
    for i in range(16):
        q, r_ = i >> 2, i & 3
        a('v_cmp_le_i32 s[%d:%d], %d, v9', 40+2*i, 41+2*i, 16*(q>>1) + 4*(q&1) + r_)
    a('s_mov_b32 s72, 0x%x', 0x3db8aa3b)
    a('v_mov_b32 v10, 0x%x', NEG)
    a('s_lshr_b32 s11, s100, 3'); a('s_lshl_b32 s11, s11, 10'); a('s_add_u32 s11, s11, %d', F_GX)
    flag_wait(a, 96, 's11', 224, 208, 74, 'wk_done')
    order = [1, 2, 3, 4, 0]
    ld(1, 0); ld(2, 1)
    for oi, st in enumerate(order):
        b = oi % 2
        a('s_waitcnt vmcnt(28)' if oi < 3 else 's_waitcnt vmcnt(0)')
        for ks in range(28):
            acc = vr(ACC+16*st, 16)
            a('v_mfma_f32_32x32x16_bf16 %s, %s, %s, %s', acc, buf(b, ks), ar(4*ks), '0' if ks == 0 else acc)
        if oi + 2 < 4:
            a('s_nop 0'); ld(order[oi+2], b)
        if oi == 3:
            a('s_lshl_b32 s11, s100, 9'); a('v_lshlrev_b32 v14, 3, v2'); a('s_mov_b32 s74, 0')
            a.label('bf_wm')
            a('buffer_load_dwordx2 v[12:13], v14, s[76:79], s11 offen sc1')
            a('s_add_u32 s74, s74, 1'); a('s_cmp_gt_u32 s74, %d', WSPIN); a('s_cbranch_scc1 wk_done')
            a('s_waitcnt vmcnt(0)'); a('v_max_u32 v12, v12, v13')
            a('v_cmp_eq_u32 vcc, -1, v12'); a('s_cbranch_vccz bf_m'); a('s_sleep 8'); a('s_branch bf_wm')
            a.label('bf_m')
            RT(a, 1)
            ld(0, 0)
    a.nop(16)
    RT(a, 2)
    a('v_lshlrev_b32 v11, 4, v2')
    a('s_lshl_b32 s11, s10, 13'); a('v_add_u32 v12, s11, v11')
    a('s_lshl_b32 s11, s10, 11'); a('v_add_u32 v13, s11, v11')
    T = 16; PMR = 40
    for hl in range(4):
        S = ACC + 16*(hl+1); Mm = ACC + 4*hl
        for i in range(16):
            a('v_cndmask_b32_e64 v%d, v10, v%d, s[%d:%d]', S+i, S+i, 40+2*i, 41+2*i)
        a('v_max3_f32 v%d, v%d, v%d, v%d', T, S, S+1, S+2)
        for i in range(6): a('v_max3_f32 v%d, v%d, v%d, v%d', T, T, S+3+2*i, S+4+2*i)
        a('v_max3_f32 v%d, v%d, v%d, v%d', T, T, S+15, Mm)
        a('v_max3_f32 v%d, v%d, v%d, v%d', T, T, Mm+1, Mm+2); a('v_max_f32 v%d, v%d, v%d', T, T, Mm+3)
        a('v_mov_b32 v%d, v%d', T+1, T); a('s_nop 1')
        a('v_permlane32_swap_b32 v%d, v%d', T, T+1); a('s_nop 1')
        a('v_max_f32 v%d, v%d, v%d', T, T, T+1)
        a('v_mul_f32 v%d, s72, v%d', T, T)
        for i in range(16): a('v_fma_f32 v%d, v%d, s72, -v%d', S+i, S+i, T)
        for i in range(4): a('v_fma_f32 v%d, v%d, s72, -v%d', Mm+i, Mm+i, T)
        for i in range(16): a('v_exp_f32 v%d, v%d', S+i, S+i)
        for i in range(4): a('v_exp_f32 v%d, v%d', Mm+i, Mm+i)
        a('s_nop 0')
        a('v_add_f32 v%d, v%d, v%d', T, S, S+1)
        for i in range(2, 16): a('v_add_f32 v%d, v%d, v%d', T, T, S+i)
        for i in range(4): a('v_add_f32 v%d, v%d, v%d', T, T, Mm+i)
        a('v_mov_b32 v%d, v%d', T+1, T); a('s_nop 1')
        a('v_permlane32_swap_b32 v%d, v%d', T, T+1); a('s_nop 1')
        a('v_add_f32 v%d, v%d, v%d', T, T, T+1)
        a('v_rcp_f32 v%d, v%d', T, T); a('s_nop 0')
        for i in range(16): a('v_mul_f32 v%d, v%d, v%d', S+i, S+i, T)
        for i in range(4): a('v_mul_f32 v%d, v%d, v%d', Mm+i, Mm+i, T)
        for i in range(8): a('v_cvt_pk_bf16_f32 v%d, v%d, v%d', T+8+i, S+2*i, S+2*i+1)
        for i in range(2): a('v_cvt_pk_bf16_f32 v%d, v%d, v%d', PMR+2*hl+i, Mm+2*i, Mm+2*i+1)
        a('ds_write_b128 v12, %s offset:%d', vr(T+8), hl*2048); a('ds_write_b128 v12, %s offset:%d', vr(T+12), hl*2048+1024)
        a('s_nop 1')
    for hp in range(2): a('ds_write_b128 v13, %s offset:%d', vr(PMR+4*hp), 32768 + hp*1024)
    a('s_waitcnt lgkmcnt(0)'); a('s_barrier')
    RT(a, 3)
    for i in range(40):
        a('ds_read_b128 %s, v11 offset:%d', ar(4*i), i*1024)
    a('s_mul_i32 s11, s100, %d', 16*448); a('s_lshl_b32 s36, s10, 5'); a('s_add_u32 s11, s11, s36')
    a('v_add_u32 v8, s11, v5')
    a('s_mul_i32 s37, s100, %d', 16*28672); a('v_add_u32 v6, s36, v5'); a('v_lshlrev_b32 v6, 4, v6'); a('v_add_u32 v6, s37, v6')
    a('v_mul_u32_u24 v7, 7168, v4'); a('v_add_u32 v6, v6, v7')
    a('v_lshlrev_b32 v7, 4, v8'); a('v_lshl_add_u32 v7, v4, 3, v7')
    a('s_lshl_b32 s11, s100, 5'); a('v_add_u32 v9, s11, v3'); a('v_mul_u32_u24 v9, 1792, v9'); a('v_lshl_add_u32 v9, v4, 4, v9')
    a('s_lshl_b32 s36, s10, 6'); a('s_add_u32 s36, s36, 896'); a('v_add_u32 v9, s36, v9')
    OB = [16, 96]; OA = 176; OT = 192
    def ld2(it, hh, b):
        for h8 in range(8):
            h = 8*hh + h8
            for k2 in range(2):
                a('s_mov_b32 s39, %d', h*28672 + it*2048 + k2*14336)
                a('buffer_load_dwordx4 %s, v6, s[20:23], s39 offen sc1', vr(OB[b]+8*h8+4*k2))
            a('s_mov_b32 s39, %d', h*448*16 + it*128*16)
            a('buffer_load_dwordx2 %s, v7, s[28:31], s39 offen sc1', vr(OB[b]+64+2*h8, 2))
    units = [(it, hh) for it in range(4) for hh in range(2)]
    ld2(0, 0, 0)
    a('s_waitcnt lgkmcnt(0)')
    for ui, (it, hh) in enumerate(units):
        b = ui % 2
        if it == 3 and hh == 0:
            a('s_cmp_ge_u32 s10, 2'); a('s_cbranch_scc1 wk_loop')
        if ui + 1 < len(units):
            ld2(units[ui+1][0], units[ui+1][1], 1-b); a('s_waitcnt vmcnt(24)')
        else:
            a('s_waitcnt vmcnt(0)')
        acc = vr(OA, 16)
        for h8 in range(8):
            h = 8*hh + h8
            for k2 in range(2):
                a('v_mfma_f32_32x32x16_bf16 %s, %s, %s, %s', acc, vr(OB[b]+8*h8+4*k2), ar(8*h+4*k2), '0' if (hh == 0 and h8 == 0 and k2 == 0) else acc)
        for hp in range(4):
            a('v_mfma_f32_32x32x16_bf16 %s, %s, %s, %s', acc, vr(OB[b]+64+4*hp), ar(128+4*(4*hh+hp)), acc)
        if hh == 1:
            a.nop(16)
            for i in range(8): a('v_cvt_pk_bf16_f32 v%d, v%d, v%d', OT+i, OA+2*i, OA+2*i+1)
            for qq in range(2):
                a('buffer_store_dwordx4 %s, v9, s[32:35], 0 offen offset:%d', vr(OT+4*qq), it*256 + qq*32)
            a('s_nop 1')
    a('s_branch wk_loop')

def k_fold(a):
    a('s_load_dwordx4 s[4:7], s[0:1], %d', KA['A_wqkv'])
    a('s_load_dwordx2 s[8:9], s[0:1], %d', KA['A_wo'])
    a('s_load_dwordx2 s[10:11], s[0:1], %d', KA['ws'])
    a('v_lshrrev_b32 v1, 6, v0'); a('v_and_b32 v2, 63, v0'); a('s_nop 0')
    a('v_readfirstlane_b32 s3, v1')
    a('v_and_b32 v3, 31, v2'); a('v_lshrrev_b32 v4, 5, v2')
    a('s_waitcnt lgkmcnt(0)')
    a.srd(12, 4, 5, 448*1344*2); a.srd(16, 6, 7, 16*784*2); a.srd(20, 8, 9, 448*448*2)
    a.srd(24, 10, 11, SZ_WA, WS_WA); a.srd(28, 10, 11, SZ_WOT, WS_WOT)
    a('v_mov_b32 v9, 0x7ffffff0')
    a('s_cmp_ge_u32 s100, 224'); a('s_cbranch_scc1 fo_wo')
    a('s_cmp_ge_u32 s100, 112'); a('s_cbranch_scc1 fo_v')
    a('s_lshl_b32 s32, s100, 2'); a('s_add_u32 s32, s32, s3')
    a('s_mul_i32 s33, s32, 4682'); a('s_lshr_b32 s33, s33, 16')
    a('s_mul_i32 s34, s33, 14'); a('s_sub_u32 s34, s32, s34')
    a('s_lshr_b32 s35, s33, 4'); a('s_and_b32 s36, s33, 15')
    perm(a, 5, 3, 6)
    a('s_lshl_b32 s37, s34, 5'); a('v_add_u32 v6, s37, v5'); a('v_mul_u32_u24 v6, 2688, v6')
    a('s_mul_i32 s37, s35, 896'); a('s_mul_i32 s38, s36, 56'); a('s_add_u32 s37, s37, s38'); a('v_add_u32 v6, s37, v6')
    a('v_lshl_add_u32 v6, v4, 4, v6')
    for ks in range(2):
        a('buffer_load_dwordx4 %s, v6, s[12:15], 0 offen offset:%d', vr(16+4*ks), ks*32)
    a('s_mul_i32 s37, s36, 1568'); a('v_lshlrev_b32 v7, 1, v3'); a('v_add_u32 v7, s37, v7')
    a('v_mul_u32_u24 v8, 448, v4'); a('v_add_u32 v7, v7, v8')
    a('v_cmp_gt_u32 vcc, 28, v3'); a('s_nop 1'); a('v_cndmask_b32 v7, v9, v7, vcc')
    a('v_cmp_eq_u32 vcc, 0, v4'); a('s_nop 1'); a('v_cndmask_b32 v8, v9, v7, vcc')
    for ks in range(2):
        for q in range(8):
            a('buffer_load_ushort v%d, v%d, s[16:19], 0 offen offset:%d', 32+8*ks+q, 8 if (ks == 1 and q >= 4) else 7, (16*ks+q)*56)
    a('s_waitcnt vmcnt(0)')
    for i in range(8): a('v_lshl_or_b32 v%d, v%d, 16, v%d', 24+i, 32+2*i+1, 32+2*i)
    a('s_nop 1')
    a('v_mfma_f32_32x32x16_bf16 %s, %s, %s, 0', vr(48,16), vr(16), vr(24))
    a('v_mfma_f32_32x32x16_bf16 %s, %s, %s, %s', vr(48,16), vr(20), vr(28), vr(48,16))
    a.nop(18)
    for i in range(8): a('v_cvt_pk_bf16_f32 v%d, v%d, v%d', 64+i, 48+2*i, 49+2*i)
    a('s_lshl_b32 s37, s33, 5'); a('v_add_u32 v6, s37, v3'); a('v_mul_u32_u24 v6, 896, v6')
    a('s_lshl_b32 s37, s34, 6'); a('v_add_u32 v6, s37, v6'); a('v_lshl_add_u32 v6, v4, 4, v6')
    for qq in range(2):
        a('buffer_store_dwordx4 %s, v6, s[24:27], 0 offen offset:%d sc1', vr(64+4*qq), qq*32)
    a('s_branch fo_done')
    a.label('fo_v')
    a('s_sub_u32 s32, s100, 112'); a('s_lshl_b32 s32, s32, 8'); a('v_add_u32 v5, s32, v0')
    a('v_and_b32 v6, 511, v5'); a('v_lshrrev_b32 v7, 9, v5')
    a('v_lshrrev_b32 v8, 5, v6'); a('v_mul_u32_u24 v8, 28, v8'); a('v_add_u32 v8, v8, v3')
    a('v_mul_u32_u24 v10, %d, v7', 8*1344); a('v_add_u32 v8, v8, v10'); a('v_add_u32 v8, 896, v8'); a('v_lshlrev_b32 v8, 1, v8')
    a('v_cmp_gt_u32 vcc, 28, v3'); a('s_nop 1'); a('v_cndmask_b32 v8, v9, v8, vcc')
    a('s_mov_b32 s33, 0')
    for q in range(8):
        a('buffer_load_ushort v%d, v8, s[12:15], s33 offen', 32+q)
        a('s_add_u32 s33, s33, 2688')
    a('v_add_u32 v6, 1024, v6'); a('v_mul_u32_u24 v6, 896, v6'); a('v_lshl_add_u32 v6, v7, 4, v6')
    a('s_waitcnt vmcnt(0)')
    for i in range(4): a('v_lshl_or_b32 v%d, v%d, 16, v%d', 24+i, 32+2*i+1, 32+2*i)
    a('buffer_store_dwordx4 %s, v6, s[24:27], 0 offen sc1', vr(24))
    a('s_branch fo_done')
    a.label('fo_wo')
    a('s_sub_u32 s32, s100, 224'); a('s_lshl_b32 s32, s32, 2'); a('s_add_u32 s32, s32, s3')
    a('s_mov_b32 s33, 0x24924925'); a('s_mul_hi_u32 s33, s32, s33')
    a('s_mul_i32 s34, s33, 7'); a('s_sub_u32 s34, s32, s34')
    a('s_lshr_b32 s35, s33, 2'); a('s_and_b32 s36, s33, 3')
    a('s_lshl_b32 s37, s34, 6'); a('v_add_u32 v5, s37, v2')
    a('s_mul_i32 s37, s35, 28'); a('s_lshl_b32 s38, s36, 3'); a('s_add_u32 s37, s37, s38'); a('s_mul_i32 s37, s37, 896')
    a('v_lshlrev_b32 v6, 1, v5'); a('v_add_u32 v6, s37, v6')
    a('s_cmp_eq_u32 s36, 3'); a('s_cselect_b64 vcc, -1, 0'); a('v_cndmask_b32 v7, v6, v9, vcc')
    a('s_movk_i32 s39, 3584')
    for q in range(8):
        a('buffer_load_ushort v%d, v%d, s[20:23], %s offen offset:%d', 32+q, 7 if q >= 4 else 6, 's39' if q >= 4 else '0', (q&3)*896)
    a('v_lshlrev_b32 v8, 10, v5'); a('s_lshl_b32 s37, s33, 4'); a('v_add_u32 v8, s37, v8')
    a('s_waitcnt vmcnt(0)')
    for i in range(4): a('v_lshl_or_b32 v%d, v%d, 16, v%d', 24+i, 32+2*i+1, 32+2*i)
    a('buffer_store_dwordx4 %s, v8, s[28:31], 0 offen sc1', vr(24))
    a.label('fo_done')
    flag_set(a, 96, F_FOLD, 's100', 12, 74, 'wk_done')
    a('s_branch wk_loop')

LOG2E = 0x3fb8aa3b
def k_a1(a):
    flag_wait(a, 96, F_FOLD, 336, 12, 74, 'wk_done')
    flag_wait(a, 96, F_M, 224, 12, 74, 'wk_done')
    a('s_load_dwordx2 s[4:5], s[0:1], %d', KA['ws'])
    a('s_load_dwordx2 s[6:7], s[0:1], %d', KA['A_x'])
    a('v_lshrrev_b32 v1, 6, v0'); a('v_and_b32 v2, 63, v0'); a('s_nop 0')
    a('v_readfirstlane_b32 s10, v1')
    a('v_and_b32 v3, 31, v2'); a('v_lshrrev_b32 v4, 5, v2')
    a('s_and_b32 s8, s100, 15'); a('s_lshr_b32 s9, s100, 4')
    a('s_waitcnt lgkmcnt(0)')
    a.srd(12, 6, 7, 2048*896); a.srd(16, 4, 5, SZ_WA, WS_WA); a.srd(20, 4, 5, SZ_KV, WS_KV)
    a('s_lshl_b32 s11, s9, 2'); a('s_add_u32 s11, s11, s10'); a('s_lshl_b32 s11, s11, 5')
    a('v_add_u32 v6, s11, v3'); a('v_mul_u32_u24 v6, 896, v6'); a('v_lshl_add_u32 v6, v4, 4, v6')
    a('s_lshl_b32 s11, s8, 5'); a('s_add_u32 s11, s11, 512'); a('v_add_u32 v7, s11, v3'); a('v_mul_u32_u24 v7, 896, v7'); a('v_lshl_add_u32 v7, v4, 4, v7')
    a('s_mov_b32 s24, %d', 512*896)
    XF = 16
    for ks in range(28):
        a('buffer_load_dwordx4 %s, v6, s[12:15], 0 offen offset:%d', vr(XF+4*ks), ks*32)
        a('buffer_load_dwordx4 %s, v7, s[16:19], 0 offen offset:%d sc1', ar(4*ks), ks*32)
        a('buffer_load_dwordx4 %s, v7, s[16:19], s24 offen offset:%d sc1', ar(112+4*ks), ks*32)
    P = 128; V = 144; MX = 160; MN = 176; T = 192; EP = 208; EN = 224
    a('v_cmp_gt_u32 s[26:27], 28, v3'); a('v_cmp_eq_u32 s[28:29], 28, v3')
    a('v_mov_b32 v8, 0x%x', NEG); a('v_mov_b32 v9, 0x%x', NEG ^ 0x80000000); a('s_mov_b32 s30, 0x%x', LOG2E)
    a('v_mov_b32 v10, 1.0'); a('v_mov_b32 v11, 0')
    for ks in range(28):
        if ks % 4 == 0: a('s_waitcnt vmcnt(%d)', min(63, max(0, 84 - 3*(ks+4))))
        a('v_mfma_f32_32x32x16_bf16 %s, %s, %s, %s', vr(P,16), vr(XF+4*ks), ar(4*ks), '0' if ks == 0 else vr(P,16))
        a('v_mfma_f32_32x32x16_bf16 %s, %s, %s, %s', vr(V,16), vr(XF+4*ks), ar(112+4*ks), '0' if ks == 0 else vr(V,16))
    a.nop(18)
    def allred(R, op):
        for sh in (8, 4, 2, 1):
            for i in range(16):
                a('%s_dpp v%d, v%d, v%d row_ror:%d row_mask:0xf bank_mask:0xf', op, R+i, R+i, R+i, sh)
        for i in range(16): a('v_mov_b32 v%d, v%d', T+i, R+i)
        for i in range(16): a('v_permlane16_swap_b32 v%d, v%d', R+i, T+i)
        for i in range(16): a('%s v%d, v%d, v%d', op, R+i, R+i, T+i)
    for i in range(16):
        a('v_cndmask_b32_e64 v%d, v8, v%d, s[26:27]', MX+i, P+i)
        a('v_cndmask_b32_e64 v%d, v9, v%d, s[26:27]', MN+i, P+i)
    allred(MX, 'v_max_f32'); allred(MN, 'v_min_f32')
    for i in range(16):
        a('v_sub_f32 v%d, v%d, v%d', EP+i, P+i, MX+i); a('v_sub_f32 v%d, v%d, v%d', EN+i, MN+i, P+i)
    for i in range(16):
        a('v_mul_f32 v%d, s30, v%d', EP+i, EP+i); a('v_mul_f32 v%d, s30, v%d', EN+i, EN+i)
    for i in range(16):
        a('v_exp_f32 v%d, v%d', EP+i, EP+i); a('v_exp_f32 v%d, v%d', EN+i, EN+i)
    for i in range(16):
        a('v_cndmask_b32_e64 v%d, v11, v%d, s[26:27]', EP+i, EP+i); a('v_cndmask_b32_e64 v%d, v11, v%d, s[26:27]', EN+i, EN+i)
    for i in range(16):
        a('v_mov_b32 v%d, v%d', MX+i, EP+i); a('v_mov_b32 v%d, v%d', MN+i, EN+i)
    allred(MX, 'v_add_f32'); allred(MN, 'v_add_f32')
    for i in range(16):
        a('v_rcp_f32 v%d, v%d', MX+i, MX+i); a('v_rcp_f32 v%d, v%d', MN+i, MN+i)
    for i in range(16):
        a('v_mul_f32 v%d, v%d, v%d', EP+i, EP+i, MX+i); a('v_mul_f32 v%d, v%d, v%d', EN+i, EN+i, MN+i)
        a('v_cndmask_b32_e64 v%d, v%d, v10, s[28:29]', V+i, V+i)
    FP = 16; FN = 24; FV = 32
    for i in range(8):
        a('v_cvt_pk_bf16_f32 v%d, v%d, v%d', FP+i, EP+2*i, EP+2*i+1)
        a('v_cvt_pk_bf16_f32 v%d, v%d, v%d', FN+i, EN+2*i, EN+2*i+1)
        a('v_cvt_pk_bf16_f32 v%d, v%d, v%d', FV+i, V+2*i, V+2*i+1)
    a('s_nop 1')
    K0 = 48
    for sg, F in enumerate((FP, FN)):
        for k2 in range(2):
            acc = vr(K0+16*sg, 16)
            a('v_mfma_f32_32x32x16_bf16 %s, %s, %s, %s', acc, vr(FV+4*k2), vr(F+4*k2), '0' if k2 == 0 else acc)
    a.nop(18)
    a('v_lshlrev_b32 v12, 4, v2'); a('s_lshl_b32 s11, s10, 10'); a('v_add_u32 v13, s11, v12')
    for rq in range(8): a('ds_write_b128 v13, %s offset:%d', vr(K0+4*rq), rq*4096)
    a('s_waitcnt lgkmcnt(0)'); a('s_barrier')
    a('s_lshl_b32 s11, s10, 13'); a('v_add_u32 v13, s11, v12')
    for e in range(2):
        for w in range(4): a('ds_read_b128 %s, v13 offset:%d', vr(80+16*e+4*w), e*4096 + w*1024)
    a('s_lshl_b32 s11, s8, 5'); a('s_and_b32 s24, s10, 1'); a('s_lshl_b32 s24, s24, 4'); a('s_add_u32 s11, s11, s24'); a('s_lshl_b32 s11, s11, 8')
    a('s_lshr_b32 s24, s10, 1'); a('s_lshl_b32 s24, s24, 7'); a('s_add_u32 s11, s11, s24')
    a('v_lshlrev_b32 v14, 10, v4'); a('v_lshl_add_u32 v14, v3, 2, v14'); a('v_add_u32 v14, s11, v14')
    a('s_waitcnt lgkmcnt(0)')
    for e in range(2):
        for r_ in range(4):
            b = 80+16*e+r_
            a('v_add_f32 v%d, v%d, v%d', b, b, b+4); a('v_add_f32 v%d, v%d, v%d', b+8, b+8, b+12); a('v_add_f32 v%d, v%d, v%d', b, b, b+8)
    for e in range(2):
        for r_ in range(4):
            a('buffer_atomic_add_f32 v%d, v14, s[20:23], 0 offen offset:%d sc1', 80+16*e+r_, (8*e+r_)*256)
    flag_set(a, 96, F_A1, 's100', 12, 74, 'wk_done')
    a('s_branch wk_loop')

def k_a2(a):
    flag_wait(a, 96, F_FOLD, 336, 12, 74, 'wk_done')
    a('s_load_dwordx2 s[4:5], s[0:1], %d', KA['ws'])
    a('s_load_dwordx2 s[6:7], s[0:1], %d', KA['A_x'])
    a('s_load_dwordx2 s[8:9], s[0:1], %d', KA['out'])
    a('v_lshrrev_b32 v1, 6, v0'); a('v_and_b32 v2, 63, v0'); a('s_nop 0')
    a('v_readfirstlane_b32 s10, v1')
    a('v_and_b32 v3, 31, v2'); a('v_lshrrev_b32 v4, 5, v2')
    perm(a, 5, 3, 6)
    a('s_waitcnt lgkmcnt(0)')
    a.srd(12, 6, 7, 2048*896); a.srd(16, 4, 5, SZ_WA, WS_WA); a.srd(20, 4, 5, SZ_KV, WS_KV)
    a.srd(24, 4, 5, SZ_WOT, WS_WOT); a.srd(32, 8, 9, 2048*1792)
    a('s_lshl_b32 s11, s100, 5'); a('v_add_u32 v6, s11, v3'); a('v_mul_u32_u24 v6, 896, v6'); a('v_lshl_add_u32 v6, v4, 4, v6')
    for ks in range(28):
        a('buffer_load_dwordx4 %s, v6, s[12:15], 0 offen offset:%d', ar(4*ks), ks*32)
    a('s_lshl_b32 s11, s10, 7'); a('v_add_u32 v8, s11, v5'); a('v_mul_u32_u24 v7, 896, v8'); a('v_lshl_add_u32 v7, v4, 4, v7')
    a('v_lshlrev_b32 v8, 8, v8'); a('v_lshl_add_u32 v8, v4, 5, v8')
    B0 = 16; B1A = 112; ACC = 128; KVF = 192
    def buf(b, ks): return vr(B0+4*ks) if b == 0 else ar(B1A+4*ks)
    def ld(hl, b):
        a('s_mov_b32 s39, %d', hl*32*896)
        for ks in range(28):
            a('buffer_load_dwordx4 %s, v7, s[16:19], s39 offen offset:%d sc1', buf(b, ks), ks*32)
    a('v_cmp_eq_u32 s[40:41], 0, v4')
    a('v_mov_b32 v9, 0x%x', NEG); a('v_mov_b32 v10, 0x%x', NEG ^ 0x80000000); a('s_mov_b32 s30, 0x%x', LOG2E); a('v_mov_b32 v11, 0')
    ld(0, 0); ld(1, 1)
    for hl in range(4):
        b = hl % 2
        a('s_waitcnt vmcnt(28)' if hl < 3 else 's_waitcnt vmcnt(0)')
        for ks in range(28):
            acc = vr(ACC+16*hl, 16)
            a('v_mfma_f32_32x32x16_bf16 %s, %s, %s, %s', acc, buf(b, ks), ar(4*ks), '0' if ks == 0 else acc)
        if hl + 2 < 4:
            a('s_nop 0'); ld(hl+2, b)
    a.nop(16)
    flag_wait(a, 96, F_A1, 256, 224, 74, 'wk_done')
    a('v_lshlrev_b32 v12, 4, v2'); a('s_lshl_b32 s11, s10, 13'); a('v_add_u32 v13, s11, v12')
    EP = 16; EN = 32; T = 48; FP = 56; FK = 72; O = 88; OF = 104
    for hl in range(4):
        S = ACC + 16*hl
        a('s_mov_b32 s39, %d', hl*32*256)
        for i in range(8):
            a('buffer_load_dwordx4 %s, v8, s[20:23], s39 offen offset:%d sc1', vr(KVF+4*i), (i>>1)*64 + (i&1)*16)
        for i in range(4):
            a('v_cndmask_b32_e64 v%d, v9, v%d, s[40:41]', T+i, S+12+i); a('v_cndmask_b32_e64 v%d, v10, v%d, s[40:41]', T+4+i, S+12+i)
        a('v_max3_f32 v%d, v%d, v%d, v%d', T, T, T+1, T+2); a('v_min3_f32 v%d, v%d, v%d, v%d', T+4, T+4, T+5, T+6)
        a('v_max_f32 v%d, v%d, v%d', T, T, T+3); a('v_min_f32 v%d, v%d, v%d', T+4, T+4, T+7)
        for i in range(6):
            a('v_max3_f32 v%d, v%d, v%d, v%d', T, T, S+2*i, S+2*i+1); a('v_min3_f32 v%d, v%d, v%d, v%d', T+4, T+4, S+2*i, S+2*i+1)
        a('v_mov_b32 v%d, v%d', T+1, T); a('v_mov_b32 v%d, v%d', T+5, T+4); a('s_nop 1')
        a('v_permlane32_swap_b32 v%d, v%d', T, T+1); a('v_permlane32_swap_b32 v%d, v%d', T+4, T+5); a('s_nop 1')
        a('v_max_f32 v%d, v%d, v%d', T, T, T+1); a('v_min_f32 v%d, v%d, v%d', T+4, T+4, T+5)
        for i in range(16):
            a('v_sub_f32 v%d, v%d, v%d', EP+i, S+i, T); a('v_sub_f32 v%d, v%d, v%d', EN+i, T+4, S+i)
        for i in range(16):
            a('v_mul_f32 v%d, s30, v%d', EP+i, EP+i); a('v_mul_f32 v%d, s30, v%d', EN+i, EN+i)
        for i in range(16):
            a('v_exp_f32 v%d, v%d', EP+i, EP+i); a('v_exp_f32 v%d, v%d', EN+i, EN+i)
        a('s_nop 0')
        for i in range(12, 16):
            a('v_cndmask_b32_e64 v%d, v11, v%d, s[40:41]', EP+i, EP+i); a('v_cndmask_b32_e64 v%d, v11, v%d, s[40:41]', EN+i, EN+i)
        a('v_add_f32 v%d, v%d, v%d', T, EP, EP+1); a('v_add_f32 v%d, v%d, v%d', T+4, EN, EN+1)
        for i in range(2, 16):
            a('v_add_f32 v%d, v%d, v%d', T, T, EP+i); a('v_add_f32 v%d, v%d, v%d', T+4, T+4, EN+i)
        a('v_mov_b32 v%d, v%d', T+1, T); a('v_mov_b32 v%d, v%d', T+5, T+4); a('s_nop 1')
        a('v_permlane32_swap_b32 v%d, v%d', T, T+1); a('v_permlane32_swap_b32 v%d, v%d', T+4, T+5); a('s_nop 1')
        a('v_add_f32 v%d, v%d, v%d', T, T, T+1); a('v_add_f32 v%d, v%d, v%d', T+4, T+4, T+5)
        a('v_rcp_f32 v%d, v%d', T, T); a('v_rcp_f32 v%d, v%d', T+4, T+4); a('s_nop 0')
        for i in range(16):
            a('v_mul_f32 v%d, v%d, v%d', EP+i, EP+i, T); a('v_mul_f32 v%d, v%d, v%d', EN+i, EN+i, T+4)
        for i in range(16): a('v_cvt_pk_bf16_f32 v%d, v%d, v%d', FP+i, EP+2*i, EP+2*i+1)
        a('s_waitcnt vmcnt(0)')
        for i in range(16): a('v_cvt_pk_bf16_f32 v%d, v%d, v%d', FK+i, KVF+2*i, KVF+2*i+1)
        a('s_nop 1')
        for k in range(4):
            a('v_mfma_f32_32x32x16_bf16 %s, %s, %s, %s', vr(O,16), vr(FK+4*k), vr(FP+4*k), '0' if k == 0 else vr(O,16))
        a.nop(18)
        a('v_mov_b32 v%d, v%d', T, O+12); a('v_mov_b32 v%d, v%d', T+1, O+12); a('s_nop 1')
        a('v_permlane32_swap_b32 v%d, v%d', T, T+1); a('s_nop 1')
        a('v_add_f32 v%d, 0x358637bd, v%d', T+1, T+1)
        a('v_rcp_f32 v%d, v%d', T+1, T+1); a('s_nop 0')
        for i in range(16): a('v_mul_f32 v%d, v%d, v%d', O+i, O+i, T+1)
        for i in range(8): a('v_cvt_pk_bf16_f32 v%d, v%d, v%d', OF+i, O+2*i, O+2*i+1)
        a('ds_write_b128 v13, %s offset:%d', vr(OF), hl*2048); a('ds_write_b128 v13, %s offset:%d', vr(OF+4), hl*2048+1024)
        a('s_nop 1')
    a('s_waitcnt lgkmcnt(0)'); a('s_barrier')
    for i in range(32): a('ds_read_b128 %s, v12 offset:%d', ar(4*i), i*1024)
    a('s_lshl_b32 s11, s10, 5'); a('v_add_u32 v6, s11, v5'); a('v_lshlrev_b32 v6, 10, v6'); a('v_lshl_add_u32 v6, v4, 4, v6')
    a('s_lshl_b32 s11, s100, 5'); a('v_add_u32 v9, s11, v3'); a('v_mul_u32_u24 v9, 1792, v9'); a('v_lshl_add_u32 v9, v4, 4, v9')
    a('s_lshl_b32 s36, s10, 6'); a('v_add_u32 v9, s36, v9')
    OB = [16, 80]; OA = 144; OT = 160
    def ld2(it, hh, b):
        a('s_mov_b32 s39, %d', it*128*1024)
        for kk in range(16):
            a('buffer_load_dwordx4 %s, v6, s[24:27], s39 offen offset:%d sc1', vr(OB[b]+4*kk), (16*hh+kk)*32)
    units = [(it, hh) for it in range(4) for hh in range(2)]
    ld2(0, 0, 0)
    a('s_waitcnt lgkmcnt(0)')
    for ui, (it, hh) in enumerate(units):
        b = ui % 2
        if it == 3 and hh == 0:
            a('s_cmp_ge_u32 s10, 2'); a('s_cbranch_scc1 wk_loop')
        if ui + 1 < len(units):
            ld2(units[ui+1][0], units[ui+1][1], 1-b); a('s_waitcnt vmcnt(16)')
        else:
            a('s_waitcnt vmcnt(0)')
        acc = vr(OA, 16)
        for kk in range(16):
            a('v_mfma_f32_32x32x16_bf16 %s, %s, %s, %s', acc, vr(OB[b]+4*kk), ar(4*(16*hh+kk)), '0' if (hh == 0 and kk == 0) else acc)
        if hh == 1:
            a.nop(16)
            for i in range(8): a('v_cvt_pk_bf16_f32 v%d, v%d, v%d', OT+i, OA+2*i, OA+2*i+1)
            for qq in range(2):
                a('buffer_store_dwordx4 %s, v9, s[32:35], 0 offen offset:%d', vr(OT+4*qq), it*256 + qq*32)
            a('s_nop 1')
    a('s_branch wk_loop')


TASKS = [('mg', 224), ('tu', 32*NTU), ('fold', 336), ('a1', 256), ('a2', 64), ('bfin', 64)]
def k_mega(a):
    n = 'mega_kernel'; a.begin(n)
    a('s_cmp_ge_u32 s2, 256'); a('s_cbranch_scc1 wk_done')
    init1(a)
    a('s_and_b32 s3, s2, 7'); a('s_cmp_eq_u32 s3, 0'); a('s_cbranch_scc1 ch_entry')
    a('s_movk_i32 s101, 2000'); a('s_mov_b32 s93, 0')
    a('s_load_dwordx2 s[4:5], s[0:1], %d', KA['ws']); a('s_waitcnt lgkmcnt(0)')
    a.srd(96, 4, 5, SZ_FL, WS_FL)
    if True:
        a('s_sub_u32 s100, s3, 1'); a('s_lshl_b32 s100, s100, 5'); a('s_lshr_b32 s3, s2, 3'); a('s_add_u32 s100, s100, s3')
        a('s_mov_b32 s101, s100')
        RT(a, 0)
        a('s_branch tk_mg')
    a.label('wk_loop')
    a('s_waitcnt vmcnt(0) lgkmcnt(0)'); a('s_barrier')
    RT(a, 7)
    dbg_srd(a, 80, 74)
    a('v_mov_b32 v1, 1'); a('v_mov_b32 v2, %d', C_TICKET*4); a('v_mov_b32 v3, %d', L_TK)
    a('v_cmp_eq_u32 vcc, 0, v0'); a('s_and_b64 exec, exec, vcc')
    a('buffer_atomic_add v1, v2, s[80:83], 0 offen sc0 sc1')
    a('s_waitcnt vmcnt(0)')
    a('ds_write_b32 v3, v1')
    a('s_mov_b64 exec, -1')
    a('s_waitcnt lgkmcnt(0)'); a('s_barrier')
    a('ds_read_b32 v1, v3'); a('s_waitcnt lgkmcnt(0)')
    a('v_readfirstlane_b32 s100, v1'); a('s_nop 3')
    a('s_add_u32 s101, s100, 224')
    RT(a, 0)
    tasks = [('mg', 224, t_mg), ('tu', 32*NTU, k_tu), ('fold', 336, k_fold), ('a1', 256, k_a1), ('a2', 64, k_a2), ('bfin', 64, k_bfin)]
    for (nm, cnt, fn) in tasks[1:]:
        a('s_cmp_lt_u32 s100, %d', cnt); a('s_cbranch_scc1 tk_%s', nm)
        a('s_sub_u32 s100, s100, %d', cnt)
    a.label('wk_done')
    a('s_endpgm')
    for (nm, cnt, fn) in tasks:
        a.label('tk_%s' % nm); fn(a)
    a.label('ch_entry')
    k_chain(a)
    a.end(n, 256, 256)

def main():
    global INSTR
    INSTR = len(sys.argv) > 2
    a = Asm()
    k_mega(a)
    launches = [('mega_kernel', 256, 256, LDS_TOT)]
    out = HDR
    for (k, g, b, lds) in launches:
        out += '; @launch kernel=%s grid=(%d,1,1) block=(%d,1,1) lds=%d\n' % (k, g, b, lds)
    out += '.amdgcn_target "amdgcn-amd-amdhsa--gfx950"\n' + '\n'.join(a.l) + '\n'
    open(sys.argv[1] if len(sys.argv) > 1 else 'cdna_kernels/%s.s' % NAME, 'w').write(out)
if __name__ == '__main__': main()
```

```python
import sys
NAME = 'concat_heads__linear_kernel_hedgehog__memory_aug_recurrent_mem_tr__prompt'
HDR = open('cdna_kernels/%s.s.ref' % NAME).read().split('; Override launch')[0]

KA = dict(A_x=0, A_wqkv=8, A_w_phi=16, A_wo=24, B_x=32, B_mem0=40, B_Wq=48, B_Wk=56, B_Wv=64, B_Wo=72, seg=80, out=88, dbg=96, ws=104)
RS = 896
def al(x, a=4096): return (x + a - 1) // a * a
WS_M = 0;                 SZ_M = 2*16*448*RS
WS_GX = al(WS_M+SZ_M);    SZ_GX = 64*16*32*896
WS_VW = al(WS_GX+SZ_GX);  SZ_VW = 64*16*448*64
WS_TM = al(WS_VW+SZ_VW);  SZ_TM = 64*16*8*896
WS_UT = al(WS_TM+SZ_TM);  SZ_UT = 64*16*448*16
MBS = 14336
WS_MB = al(WS_UT+SZ_UT);  SZ_MB = 65*MBS
SBS = 10240
WS_SB = al(WS_MB+SZ_MB);  SZ_SB = 64*SBS
WS_M2 = al(WS_SB+SZ_SB);  SZ_M2 = 64*7168
WS_MF = al(WS_M2+SZ_M2);  SZ_MF = 64*512
WS_FL = al(WS_MF+SZ_MF);  SZ_FL = 16384
F_M = 0; F_FOLD = 1024; F_A1 = 3072; F_GX = 4096
WS_IN = WS_MB;     SZ_IN = WS_FL + SZ_FL - WS_IN
WS_P  = al(WS_FL+SZ_FL);  SZ_P = 128*4096 + 2048*64
WS_WA = al(WS_P+SZ_P);    SZ_WA = 1536*896
WS_WOT= al(WS_WA+SZ_WA);  SZ_WOT = 448*1024
WS_PQ = al(WS_WOT+SZ_WOT);SZ_PQ = 2048*16*128
WS_KV = al(WS_PQ+SZ_PQ);  SZ_KV = 16*64*32*4
WS_XF = al(WS_KV+SZ_KV);  SZ_X1 = 64*28672; SZ_XP = 64*32768; SZ_XF = 2*SZ_X1 + SZ_XP
WS_MQ = al(WS_XF+SZ_XF);  SZ_MQ = 16*401408
WS_END = al(WS_MQ+SZ_MQ)

class Asm:
    def __init__(self): self.l = []; self.uid = 0
    def __call__(self, s, *a):
        self.l.append('    ' + (s % a if a else s))
    def label(self, s): self.l.append(s + ':')
    def c(self, s): self.l.append('    ; ' + s)
    def newlabel(self, p='L'):
        self.uid += 1; return '%s_%d' % (p, self.uid)
    def nop(self, n):
        while n > 0:
            k = min(n, 16); self('s_nop %d', k-1); n -= k
    def srd(self, d, lo, hi, size, off=0):
        if off:
            self('s_add_u32 s%d, s%d, 0x%x', d, lo, off & 0xffffffff)
            self('s_addc_u32 s%d, s%d, 0x%x', d+1, hi, off >> 32)
        else:
            self('s_mov_b32 s%d, s%d', d, lo); self('s_mov_b32 s%d, s%d', d+1, hi)
        self('s_mov_b32 s%d, 0x%x', d+2, size)
        self('s_mov_b32 s%d, 0x00020000', d+3)
    def begin(self, name):
        self.l += ['.text', '.globl %s' % name, '.p2align 8', '.type %s,@function' % name, name + ':']
    def end(self, name, vgpr, agpr=0, sgpr=102):
        acc = (vgpr + 3)//4*4
        self.l += ['    s_endpgm', '.section .rodata,"a"', '.p2align 6', '.amdhsa_kernel %s' % name,
          '  .amdhsa_next_free_vgpr %d' % (acc + agpr if agpr else vgpr), '  .amdhsa_next_free_sgpr %d' % sgpr,
          '  .amdhsa_accum_offset %d' % acc, '  .amdhsa_group_segment_fixed_size 0', '  .amdhsa_kernarg_size 112',
          '  .amdhsa_user_sgpr_count 2', '  .amdhsa_user_sgpr_kernarg_segment_ptr 1', '  .amdhsa_system_sgpr_workgroup_id_x 1',
          '.end_amdhsa_kernel']
def perm(a, d, src, t):
    a('v_and_b32 v%d, 0x13, v%d', d, src)
    a('v_and_b32 v%d, 4, v%d', t, src); a('v_lshl_or_b32 v%d, v%d, 1, v%d', d, t, d)
    a('v_and_b32 v%d, 8, v%d', t, src); a('v_lshrrev_b32 v%d, 1, v%d', t, t); a('v_or_b32 v%d, v%d, v%d', d, t, d)
def vr(b, n=4): return 'v[%d:%d]' % (b, b+n-1)
def ar(b, n=4): return 'a[%d:%d]' % (b, b+n-1)


INSTR = False
import os
OPT = dict(kv.split('=') for kv in os.environ.get('OPT','').split(',') if kv)
def opt(k, d=0): return int(OPT.get(k, d))
C_TICKET = 0; C_M = 1; C_INIT = 2; C_FOLD = 3; C_A1 = 4; C_XCC = 5; C_XF = 6; C_GX = 8
L_KS = 57344; SZ_KS = 64*528
L_TK = L_KS + 2*SZ_KS
LDS_TOT = L_TK + 64
NINIT = 256
WSPIN = 3000000
def RT(a, slot, idreg='s101', vt=254):
    if not INSTR: return
    a('s_load_dwordx2 s[88:89], s[0:1], %d', KA['ws']); a('s_memrealtime s[94:95]'); a('s_waitcnt lgkmcnt(0)')
    a.srd(88, 88, 89, SZ_P, WS_P)
    a('s_lshl_b32 s92, %s, 6', idreg); a('s_add_u32 s92, s92, %d', 128*4096)
    a('v_mov_b32 v%d, s94', vt); a('v_mov_b32 v%d, 0', vt+1)
    a('v_cmp_eq_u32 vcc, 0, v0'); a('s_and_b64 exec, exec, vcc')
    a('buffer_store_dword v%d, v%d, s[88:91], s92 offen offset:%d', vt, vt+1, slot*4)
    a('s_mov_b64 exec, -1')
def dbg_srd(a, d, t):
    a('s_load_dwordx2 s[%d:%d], s[0:1], %d', t, t+1, KA['dbg']); a('s_waitcnt lgkmcnt(0)')
    a.srd(d, t, t+1, 256)
def signal(a, d, cidx, vt, per_wave=False):
    a('s_waitcnt vmcnt(0)')
    if not per_wave: a('s_barrier')
    a('v_mov_b32 v%d, 1', vt); a('v_mov_b32 v%d, %d', vt+1, cidx*4)
    if per_wave: a('s_mov_b64 exec, 1')
    else:
        a('v_cmp_eq_u32 vcc, 0, v0'); a('s_and_b64 exec, exec, vcc')
    a('buffer_atomic_add v%d, v%d, s[%d:%d], 0 offen sc1', vt, vt+1, d, d+3)
    a('s_mov_b64 exec, -1')
def waitc(a, d, cidx, target, vt, st, fail, sleep=8):
    L = a.newlabel('wc')
    a('v_mov_b32 v%d, %d', vt+1, cidx*4); a('s_mov_b32 s%d, 0', st)
    a.label(L)
    a('buffer_load_dword v%d, v%d, s[%d:%d], 0 offen sc1', vt, vt+1, d, d+3)
    a('s_add_u32 s%d, s%d, 1', st, st); a('s_cmp_gt_u32 s%d, %d', st, WSPIN); a('s_cbranch_scc1 %s', fail)
    a('s_waitcnt vmcnt(0)')
    a('v_readfirstlane_b32 s%d, v%d', st+1, vt); a('s_nop 3')
    a('s_cmp_ge_u32 s%d, %d', st+1, target); a('s_cbranch_scc1 %s_ok', L)
    a('s_sleep %d', sleep); a('s_branch %s', L)
    a.label(L + '_ok')

def init_seen(a, vt, st, fail):
    L = a.newlabel('is')
    a('s_cmp_eq_u32 s93, 1'); a('s_cbranch_scc1 %s', L)
    a('s_mov_b32 s93, 1')
    a('v_readfirstlane_b32 s%d, v0', st); a('s_nop 3'); a('s_cmp_lt_u32 s%d, 64', st); a('s_cbranch_scc0 %s', L)
    dbg_srd(a, 84, st)
    waitc(a, 84, C_INIT, NINIT, vt, st, fail, 8)
    a.label(L)
def flag_set(a, d, base, idx, vt, st, fail, wait=True, chk=True):
    if chk: init_seen(a, vt, st, fail)
    if wait: a('s_waitcnt vmcnt(0)')
    a('s_barrier')
    a('v_mov_b32 v%d, 0', vt); a('s_lshl_b32 s%d, %s, 2', st, idx)
    if base >= 4096: a('s_add_u32 s%d, s%d, %d', st, st, base); base = 0
    a('v_cmp_eq_u32 vcc, 0, v0'); a('s_and_b64 exec, exec, vcc')
    a('buffer_store_dword v%d, v%d, s[%d:%d], s%d offen offset:%d sc1', vt, vt, d, d+3, st, base)
    a('s_mov_b64 exec, -1')
def flag_poll(a, d, base, count, vt, st, fail, sleep=8, lanev=None):
    L = a.newlabel('fw')
    nl = count // 4
    va = vt + 8
    a('v_and_b32 v%d, 63, v0', va); a('v_lshlrev_b32 v%d, 4, v%d', va, va)
    if isinstance(base, int): a('v_add_u32 v%d, %d, v%d', va, base, va)
    else: a('v_add_u32 v%d, %s, v%d', va, base, va)
    a('s_mov_b32 s%d, 0', st)
    for r_ in range(8): a('v_mov_b32 v%d, 0', vt+r_)
    a.label(L)
    def msk(n):
        a('s_mov_b32 exec_lo, 0x%x', 0xffffffff if n >= 32 else (1 << n) - 1); a('s_mov_b32 exec_hi, 0x%x', 0 if n <= 32 else (0xffffffff if n >= 64 else (1 << (n-32)) - 1))
    msk(nl)
    a('buffer_load_dwordx4 %s, v%d, s[%d:%d], 0 offen sc1', vr(vt), va, d, d+3)
    if nl > 64:
        msk(nl - 64)
        a('buffer_load_dwordx4 %s, v%d, s[%d:%d], 0 offen offset:1024 sc1', vr(vt+4), va, d, d+3)
    a('s_mov_b64 exec, -1')
    a('s_add_u32 s%d, s%d, 1', st, st); a('s_cmp_gt_u32 s%d, %d', st, WSPIN); a('s_cbranch_scc1 %s', fail)
    a('s_waitcnt vmcnt(0)')
    a('v_max3_u32 v%d, v%d, v%d, v%d', vt, vt, vt+1, vt+2); a('v_max3_u32 v%d, v%d, v%d, v%d', vt+4, vt+4, vt+5, vt+6)
    a('v_max3_u32 v%d, v%d, v%d, v%d', vt, vt, vt+3, vt+7); a('v_max_u32 v%d, v%d, v%d', vt, vt, vt+4)
    a('v_cmp_eq_u32 vcc, -1, v%d', vt); a('s_cbranch_vccz %s_ok', L)
    a('s_sleep %d', sleep); a('s_branch %s', L)
    a.label(L + '_ok')
def flag_wait(a, d, base, count, vt, st, fail, sleep=8, chk=True):
    L = a.newlabel('fx')
    if chk: init_seen(a, vt, st, fail)
    a('v_readfirstlane_b32 s%d, v0', st); a('s_nop 3'); a('s_cmp_lt_u32 s%d, 64', st); a('s_cbranch_scc0 %s', L)
    flag_poll(a, d, base, count, vt, st, fail, sleep)
    a.label(L)
    a('s_barrier')

def init1(a):
    a('s_load_dwordx2 s[80:81], s[0:1], %d', KA['ws']); a('s_load_dwordx2 s[82:83], s[0:1], %d', KA['B_x'])
    a('v_lshrrev_b32 v232, 6, v0'); a('v_and_b32 v233, 63, v0'); a('s_nop 0'); a('v_readfirstlane_b32 s3, v232')
    a('v_and_b32 v234, 31, v233'); a('v_lshrrev_b32 v235, 5, v233'); a('v_lshlrev_b32 v233, 4, v233')
    a('s_waitcnt lgkmcnt(0)')
    a.srd(68, 80, 81, SZ_XF, WS_XF); a.srd(72, 80, 81, SZ_IN, WS_IN); a.srd(76, 82, 83, 2048*896)
    a('s_lshl_b32 s80, s2, 2'); a('s_add_u32 s80, s80, s3')
    a('s_mul_i32 s81, s80, 4682'); a('s_lshr_b32 s81, s81, 16')
    a('s_mul_i32 s82, s81, 14'); a('s_sub_u32 s82, s80, s82')
    a('s_lshl_b32 s83, s81, 5'); a('v_add_u32 v234, s83, v234'); a('v_mul_u32_u24 v234, 896, v234'); a('v_lshl_add_u32 v234, v235, 4, v234')
    a('s_lshl_b32 s83, s82, 6'); a('v_add_u32 v234, s83, v234')
    for k in range(2): a('buffer_load_dwordx4 %s, v234, s[76:79], 0 offen offset:%d', vr(240+4*k), 32*k)
    a('v_and_b32 v232, 15, v0'); a('s_lshr_b32 s83, s80, 4'); a('s_lshl_b32 s83, s83, 1'); a('s_and_b32 s3, s80, 1'); a('s_add_u32 s83, s83, s3'); a('s_lshl_b32 s83, s83, 4')
    a('v_add_u32 v232, s83, v232'); a('v_mul_u32_u24 v232, 896, v232'); a('v_bfe_u32 v234, v0, 5, 1'); a('v_lshl_add_u32 v232, v234, 3, v232'); a('v_bfe_u32 v234, v0, 4, 1'); a('v_lshl_add_u32 v232, v234, 6, v232')
    a('s_bfe_u32 s83, s80, 0x20002'); a('s_mul_i32 s83, s83, 224'); a('s_bfe_u32 s3, s80, 0x10001'); a('s_lshl_b32 s3, s3, 7'); a('s_add_u32 s83, s83, s3')
    a('v_add_u32 v232, s83, v232')
    for hf in range(2):
        for dw in range(4): a('buffer_load_dword v%d, v232, s[76:79], 0 offen offset:%d', 224+4*hf+dw, (dw&1)*32 + hf*16 + (dw>>1)*4)
    a('s_lshl_b32 s83, s80, 11'); a('s_add_u32 s83, s83, %d', 2*SZ_X1); a('v_add_u32 v232, s83, v233')
    a('s_mul_i32 s81, s81, 28672'); a('s_lshl_b32 s82, s82, 11'); a('s_add_u32 s81, s81, s82')
    a('s_cmp_lt_u32 s80, 896'); a('s_cselect_b32 s81, s81, 0x40000000')
    a('v_add_u32 v235, s81, v233')
    NI = (SZ_IN + 1048575) // 1048576
    assert NI <= 4
    a('s_mul_i32 s80, s80, %d', NI*1024); a('v_add_u32 v234, s80, v233')
    for i in range(4): a('v_mov_b32 v%d, -1', 236+i)
    a('s_mov_b32 s83, %d', 64*28672)
def init2(a, n):
    NI = (SZ_IN + 1048575) // 1048576
    if opt('noinit'): return
    for i in range(NI): a('buffer_store_dwordx4 %s, v234, s[72:75], 0 offen offset:%d sc1', vr(236), i*1024)
    a('s_waitcnt vmcnt(%d)', min(63, n))
    for ab in range(2): a('buffer_store_dwordx4 %s, v232, s[68:71], 0 offen offset:%d sc1', vr(224+4*ab), ab*1024)
    for k in range(2):
        R = 240+4*k; D = 248+4*k
        a('buffer_store_dwordx4 %s, v235, s[68:71], 0 offen offset:%d sc1', vr(R), k*1024)
        a('v_mov_b32 v%d, v%d', D, R); a('v_mov_b32 v%d, v%d', D+1, R+2); a('v_mov_b32 v%d, v%d', D+2, R+1); a('v_mov_b32 v%d, v%d', D+3, R+3)
    a('s_nop 1')
    for k in range(2):
        D = 248+4*k
        a('v_permlane32_swap_b32 v%d, v%d', D, D+2); a('v_permlane32_swap_b32 v%d, v%d', D+1, D+3)
    a('s_nop 1')
    for k in range(2): a('buffer_store_dwordx4 %s, v235, s[68:71], s83 offen offset:%d sc1', vr(248+4*k), k*1024)

def t_mg(a):
    a('s_load_dwordx4 s[4:7], s[0:1], %d', KA['B_Wq'])
    a('s_load_dwordx4 s[8:11], s[0:1], %d', KA['B_Wv'])
    a('s_load_dwordx2 s[12:13], s[0:1], %d', KA['ws'])
    a('s_load_dwordx2 s[44:45], s[0:1], %d', KA['B_x'])
    a('s_load_dwordx2 s[46:47], s[0:1], %d', KA['dbg'])
    a('s_mov_b32 s14, 0x24924925'); a('s_mul_hi_u32 s15, s100, s14')
    a('s_mul_i32 s16, s15, 7'); a('s_sub_u32 s16, s100, s16')
    a('s_lshr_b32 s17, s15, 4')
    a('s_and_b32 s18, s15, 15')
    a('v_lshrrev_b32 v1, 6, v0'); a('v_and_b32 v2, 63, v0'); a('s_nop 0')
    a('v_readfirstlane_b32 s19, v1')
    a('v_and_b32 v3, 31, v2'); a('v_lshrrev_b32 v4, 5, v2')
    perm(a, 10, 3, 11)
    a('s_and_b32 s20, s19, 1'); a('s_lshr_b32 s21, s19, 1')
    a('s_waitcnt lgkmcnt(0)')
    a('s_cmp_eq_u32 s17, 0')
    a('s_cselect_b32 s24, s4, s10'); a('s_cselect_b32 s25, s5, s11')
    a('s_mov_b32 s26, 3670016'); a('s_mov_b32 s27, 0x00020000')
    a('s_cselect_b32 s28, s6, s8'); a('s_cselect_b32 s29, s7, s9')
    a('s_mov_b32 s30, 3670016'); a('s_mov_b32 s31, 0x00020000')
    a.srd(32, 12, 13, SZ_M, WS_M)
    a.srd(48, 12, 13, SZ_X1, WS_XF); a.srd(52, 12, 13, SZ_GX, WS_GX); a.srd(56, 12, 13, SZ_VW, WS_VW)
    a.srd(60, 46, 47, 256); a.srd(64, 12, 13, SZ_KV, WS_KV); a.srd(44, 12, 13, SZ_MQ, WS_MQ)
    a('v_mov_b32 v11, 0'); a('s_lshl_b32 s22, s100, 10'); a('v_lshlrev_b32 v12, 2, v0'); a('v_add_u32 v12, s22, v12')
    a('buffer_store_dword v11, v12, s[64:67], 0 offen sc1')
    a('s_lshl_b32 s22, s16, 6'); a('s_lshl_b32 s23, s20, 5'); a('s_add_u32 s22, s22, s23')
    a('v_and_b32 v13, 0x19, v3'); a('v_and_b32 v14, 2, v3'); a('v_lshl_or_b32 v13, v14, 1, v13')
    a('v_and_b32 v14, 4, v3'); a('v_lshrrev_b32 v14, 1, v14'); a('v_or_b32 v13, v13, v14')
    a('s_cmp_eq_u32 s17, 0'); a('s_cselect_b64 vcc, -1, 0'); a('v_cndmask_b32 v13, v10, v13, vcc')
    a('v_add_u32 v5, s22, v13')
    a('s_mul_i32 s36, s21, 224'); a('s_lshl_b32 s37, s20, 4'); a('s_add_u32 s36, s36, s37'); a('v_add_u32 v6, s36, v4'); a('v_lshlrev_b32 v6, 13, v6')
    a('s_lshl_b32 s37, s18, 9'); a('v_add_u32 v6, s37, v6'); a('v_lshl_add_u32 v6, v3, 4, v6')
    a('s_lshl_b32 s38, s19, 4'); a('v_add_u32 v15, s38, v4'); a('v_mul_u32_u24 v15, 528, v15'); a('v_lshl_add_u32 v15, v3, 4, v15'); a('v_add_u32 v15, %d, v15', L_KS)
    JS = 16; KB = [80, 144]; ACC = 208; T = 224
    KD = opt('kd', 3)
    for i in range(7):
        a('s_add_u32 s%d, s16, %d', 4+i, i if opt('rot', 1) else 0); a('s_sub_u32 s11, s%d, 7', 4+i); a('s_cmp_ge_u32 s%d, 7', 4+i); a('s_cselect_b32 s%d, s11, s%d', 4+i, 4+i)
        if not opt('rot', 1): a('s_mov_b32 s%d, %d', 4+i, i)
    def ldk1(i):
        a('s_lshl_b32 s42, s%d, 18', 4+i)
        for m in range(8):
            a('s_add_u32 s43, s42, %d', 2*m*8192)
            a('buffer_load_dwordx4 %s, v6, s[28:31], s43 offen %s', ar(32*i+4*m), ['', 'nt', 'sc1'][opt('kmod')])
    def ldk():
        for i in range(KD): ldk1(i)
    def stk(i):
        for m in range(8): a('ds_write_b128 v15, %s offset:%d', ar(32*i+4*m), (i&1)*SZ_KS + m*1056)
    a('s_cmp_eq_u32 s17, 0'); a('s_cbranch_scc0 mm_mat1')
    a('s_lshl_b32 s39, s16, 6'); a('s_add_u32 s39, s39, s38'); a('v_add_u32 v7, s39, v4'); a('v_lshlrev_b32 v7, 13, v7')
    a('v_add_u32 v7, s37, v7'); a('v_lshl_add_u32 v7, v3, 4, v7')
    for m in range(8):
        a('s_mov_b32 s43, %d', 2*m*8192)
        a('buffer_load_dwordx4 %s, v7, s[24:27], s43 offen', vr(JS+4*m))
    ldk()
    init2(a, 8+8*KD)
    a('s_waitcnt vmcnt(%d)', 8*KD)
    for m in range(8): a('ds_write_b128 v15, %s offset:%d', vr(JS+4*m), SZ_KS + m*1056)
    a('s_waitcnt vmcnt(%d)', 8*KD-8)
    stk(0)
    a('s_waitcnt lgkmcnt(0)'); a('s_barrier')
    a('s_lshl_b32 s39, s20, 5'); a('v_add_u32 v7, s39, v13'); a('v_mul_u32_u24 v7, 528, v7'); a('v_lshl_add_u32 v7, v4, 4, v7'); a('v_add_u32 v7, %d, v7', L_KS + SZ_KS)
    for es in range(16): a('ds_read_b128 %s, v7 offset:%d', vr(JS+4*es), es*32)
    a('s_branch mm_go')
    a.label('mm_mat1')
    a('s_mul_i32 s38, s18, 229376'); a('s_lshl_b32 s39, s22, 1'); a('s_add_u32 s38, s38, s39')
    a('v_mul_u32_u24 v7, 896, v10'); a('v_add_u32 v7, s38, v7'); a('v_lshl_add_u32 v7, v4, 4, v7')
    for et in range(8):
        a('s_mov_b32 s39, %d', et*32*896)
        for ks in range(2):
            a('buffer_load_dwordx4 %s, v7, s[24:27], s39 offen offset:%d', vr(80+8*et+4*ks), ks*32)
    ldk()
    init2(a, 16+8*KD)
    a('v_lshlrev_b32 v8, 3, v4'); a('v_sub_u32 v8, v10, v8')
    a('v_mov_b32 v9, 0x3f80'); a('v_mov_b32 v11, 0x3f800000'); a('v_mov_b32 v12, 0')
    for ks in range(2):
        for q2 in range(4):
            r_ = 144 + 4*ks + q2
            a('v_cmp_eq_u32 vcc, %d, v8', 16*ks + 2*q2); a('v_cndmask_b32 v%d, v12, v9, vcc', r_)
            a('v_cmp_eq_u32 vcc, %d, v8', 16*ks + 2*q2 + 1); a('v_cndmask_b32 v%d, v%d, v11, vcc', r_, r_)
    a('s_waitcnt vmcnt(%d)', 8*KD)
    for et in range(8):
        ab = ACC if et % 2 == 0 else 160
        acc = vr(ab, 16)
        a('v_mfma_f32_32x32x16_bf16 %s, %s, %s, 0', acc, vr(80+8*et), vr(144))
        a('v_mfma_f32_32x32x16_bf16 %s, %s, %s, %s', acc, vr(80+8*et+4), vr(148), acc)
        if et > 0:
            pb = ACC if et % 2 == 1 else 160
            for i in range(8): a('v_cvt_pk_bf16_f32 v%d, v%d, v%d', JS+8*(et-1)+i, pb+2*i, pb+2*i+1)
        if et == 0: a.nop(8)
    a.nop(18)
    for i in range(8): a('v_cvt_pk_bf16_f32 v%d, v%d, v%d', JS+56+i, 160+2*i, 160+2*i+1)
    a('s_waitcnt vmcnt(%d)', 8*KD-8)
    stk(0)
    a('s_waitcnt lgkmcnt(0)'); a('s_barrier')
    a.label('mm_go')
    RT(a, 4)
    a('s_cmp_eq_u32 s17, 0'); a('s_cbranch_scc0 mm_a1')
    a('v_cmp_le_u32 vcc, 224, v5'); a('v_mov_b32 v8, 0'); a('v_mov_b32 v13, 0'); a('v_mov_b32 v9, 224'); a('v_mov_b32 v14, 1')
    a('v_cndmask_b32 v8, v8, v9, vcc'); a('v_cndmask_b32 v13, v13, v14, vcc')
    a('v_sub_u32 v8, v5, v8')
    a('s_lshl_b32 s40, s18, 1'); a('v_add_u32 v13, s40, v13')
    a('s_branch mm_a2')
    a.label('mm_a1')
    a('s_movk_i32 s40, 4682'); a('v_mul_u32_u24 v13, s40, v5'); a('v_lshrrev_b32 v13, 16, v13')
    a('v_mul_u32_u24 v8, 14, v13'); a('v_sub_u32 v8, v5, v8')
    a('s_mul_i32 s40, s18, 14'); a('s_add_u32 s40, s40, 224'); a('v_add_u32 v8, s40, v8')
    a.label('mm_a2')
    a('s_mov_b32 s40, 401408'); a('v_mul_lo_u32 v9, v13, s40')
    a('v_lshrrev_b32 v13, 4, v8'); a('v_mul_u32_u24 v13, 14336, v13'); a('v_add_u32 v9, v9, v13')
    a('v_and_b32 v8, 15, v8'); a('v_lshl_add_u32 v9, v8, 4, v9'); a('v_lshl_add_u32 v9, v4, 8, v9')
    a('s_mul_i32 s42, s21, 7168'); a('v_add_u32 v9, s42, v9'); a('v_add_u32 v8, 4096, v9')
    a('v_lshlrev_b32 v12, 4, v2')
    a('s_mul_i32 s40, s20, 28672'); a('s_mul_i32 s41, s21, 14336'); a('s_add_u32 s40, s40, s41'); a('v_add_u32 v11, s40, v12')
    a('s_mul_i32 s40, s18, 401408'); a('s_mul_i32 s41, s21, %d', 14*14336); a('s_add_u32 s40, s40, s41')
    a('s_lshl_b32 s41, s16, 11'); a('s_add_u32 s40, s40, s41'); a('s_lshl_b32 s41, s20, 10'); a('s_add_u32 s40, s40, s41')
    a('v_lshrrev_b32 v1, 4, v10'); a('v_mul_u32_u24 v1, 14336, v1'); a('v_add_u32 v1, s40, v1'); a('v_lshl_add_u32 v1, v4, 8, v1')
    a('v_and_b32 v13, 15, v10'); a('v_lshl_add_u32 v1, v13, 4, v1')
    a('s_lshl_b32 s39, s21, 5'); a('v_add_u32 v7, s39, v10'); a('v_mul_u32_u24 v7, 528, v7'); a('v_lshl_add_u32 v7, v4, 4, v7'); a('v_add_u32 v7, %d, v7', L_KS)
    pend = []
    AC2 = 144; T2 = 160
    def m0(fn):
        L = a.newlabel('m0'); a('s_cmp_eq_u32 s17, 0'); a('s_cbranch_scc0 %s', L); fn(); a.label(L)
    def mst(i, t):
        a('s_lshl_b32 s43, s%d, 10', 4+i)
        for qq in range(2): a('buffer_store_dwordx4 %s, v9, s[32:35], s43 offen offset:%d sc1', vr(T+t+4*qq), qq*512)
        def f():
            a('s_mul_i32 s43, s%d, 28672', 4+i)
            for qq in range(2): a('buffer_store_dwordx4 %s, v1, s[44:47], s43 offen offset:%d sc1', vr(T2+t+4*qq), qq*512)
        m0(f)
    def lst(i, t):
        a('s_lshl_b32 s43, s%d, 11', 4+i); a('v_add_u32 v8, s43, v11')
        for qq in range(2): a('ds_write_b128 v8, %s offset:%d', vr(T+t+4*qq), qq*1024)
    def cvts(t):
        for q in range(8): a('v_cvt_pk_bf16_f32 v%d, v%d, v%d', T+t+q, ACC+2*q, ACC+2*q+1)
        for q in range(8): a('v_cvt_pk_bf16_f32 v%d, v%d, v%d', T2+t+q, AC2+2*q, AC2+2*q+1)
    kb = KB[0]
    for i in range(7):
        if i > 0: a('s_waitcnt lgkmcnt(0)'); a('s_barrier')
        if i == 3: RT(a, 5)
        if i == 6: RT(a, 6)
        if i == min(KD, 6):
            a('v_mov_b32 v13, 1'); a('v_mov_b32 v14, %d', C_INIT*4)
            a('v_cmp_eq_u32 vcc, 0, v0'); a('s_and_b64 exec, exec, vcc')
            a('buffer_atomic_add v13, v14, s[60:63], 0 offen sc1')
            a('s_mov_b64 exec, -1')
        for es in range(16): a('ds_read_b128 %s, v7 offset:%d', vr(kb+4*es), (i&1)*SZ_KS + es*32)
        if i + KD < 7: ldk1(i+KD)
        if i == 0: a('s_waitcnt lgkmcnt(0)'); a('s_barrier')
        Ti = 8*((i-1) % 3)
        if i > 0:
            a.nop(4); cvts(Ti)
            pend.append((i-1, Ti))
        for es in range(16):
            if i > 0 and es % 4 == 0: a('s_waitcnt lgkmcnt(%d)', 12-es)
            a('v_mfma_f32_32x32x16_bf16 %s, %s, %s, %s', vr(ACC,16), vr(kb+4*es), vr(JS+4*es), '0' if es == 0 else vr(ACC,16))
            if es == 12:
                if i > 0: lst(i-1, Ti)
                if i < 6:
                    a('s_waitcnt vmcnt(%d)', 8*(min(6, i+KD) - (i+1)))
                    stk(i+1)
                if i != 4:
                    while pend: mst(*pend.pop(0))
        def f2():
            for es in range(16):
                a('v_mfma_f32_32x32x16_bf16 %s, %s, %s, %s', vr(AC2,16), vr(JS+4*es), vr(kb+4*es), '0' if es == 0 else vr(AC2,16))
        m0(f2)
    a.nop(18)
    Ti = 8*(6 % 3)
    cvts(Ti)
    lst(6, Ti)
    mst(6, Ti)
    a('s_waitcnt lgkmcnt(0)')
    RT(a, 1)
    flag_set(a, 96, F_M, 's100', 13, 22, 'wk_done')
    RT(a, 2)
    for f in range(56):
        a('ds_read_b128 %s, v12 offset:%d', ar(4*f), f*1024)
    a('s_cmp_eq_u32 s17, 0'); a('s_cselect_b64 vcc, -1, 0')
    a('v_cndmask_b32 v14, v10, v3, vcc')
    a('s_mul_i32 s22, s19, 28672'); a('v_lshl_add_u32 v5, v4, 5, v14'); a('v_lshlrev_b32 v5, 4, v5'); a('v_add_u32 v5, s22, v5')
    XB = [16, 72, 128]; GA = 184; GT = 216
    a('s_mov_b32 s36, 0')
    a('s_mov_b32 s37, 0')
    a('s_mov_b32 s38, 0')
    def ldx(c, b):
        for k in range(14):
            ks = 14*c + k
            if k == 0 or ks % 4 == 0: a('s_add_u32 s39, s36, %d', (ks//4)*4096)
            if not opt('mgnold'): a('buffer_load_dwordx4 %s, v5, s[48:51], s39 offen offset:%d', vr(XB[b]+4*k), (ks%4)*1024)
        if c == 1: a('s_add_u32 s36, s36, %d', 4*28672)
    ldx(0, 0); ldx(1, 1)
    a('s_waitcnt lgkmcnt(0)')
    a('s_cmp_eq_u32 s17, 0'); a('s_cbranch_scc0 gx_m1')
    for mat in range(2):
        if mat == 1: a.label('gx_m1')
        a('s_lshl_b32 s22, s19, 4'); a('s_add_u32 s22, s22, s18')
        if mat == 0:
            a('s_mul_i32 s22, s22, 28672'); a('s_lshl_b32 s23, s16, 11'); a('s_add_u32 s22, s22, s23')
            a('v_lshrrev_b32 v6, 4, v3'); a('v_mul_u32_u24 v6, 14336, v6'); a('v_add_u32 v6, s22, v6'); a('v_lshl_add_u32 v6, v4, 10, v6')
            a('v_and_b32 v7, 15, v3'); a('v_lshl_add_u32 v6, v7, 4, v6')
        else:
            a('s_mul_i32 s22, s22, 28672'); a('s_lshl_b32 s23, s16, 10'); a('s_add_u32 s22, s22, s23')
            a('v_lshlrev_b32 v6, 4, v10'); a('v_add_u32 v6, s22, v6'); a('v_mul_u32_u24 v7, 7168, v4'); a('v_add_u32 v6, v6, v7')
            a('v_add_u32 v7, 14336, v6')
        def sig(blk):
            flag_set(a, 96, F_GX + 1024*blk, 's100', 13, 22, 'wk_done', wait=False, chk=False)
        for it in range(16):
            for c in range(2):
                ch = 2*it + c
                b = ch % 3
                if ch + 2 < 32:
                    ldx(c, (ch+2) % 3)
                    a('s_waitcnt vmcnt(28)')
                    if c == 1 and it % 2 == 0 and it > 0:
                        sig(it//2 - 1)
                        if it == 2: RT(a, 3)
                else:
                    a('s_waitcnt vmcnt(%d)', 14 if ch == 30 else 0)
                for k in range(14):
                    ks = 14*c + k
                    for j2 in range(2):
                        m = ar((j2*28+ks)*4); x = vr(XB[b]+4*k); acc = vr(GA+16*j2, 16)
                        A, B = (m, x) if mat == 0 else (x, m)
                        if not opt('mgnomf') or ks == 0: a('v_mfma_f32_32x32x16_bf16 %s, %s, %s, %s', acc, A, B, '0' if ks == 0 else acc)
            a.nop(18)
            for i in range(16): a('v_cvt_pk_bf16_f32 v%d, v%d, v%d', GT+i, GA+2*i, GA+2*i+1)
            for j2 in range(2):
                for qq in range(2):
                    off = j2*512 + qq*256 if mat == 0 else j2*512
                    if not opt('mgnost'): a('buffer_store_dwordx4 %s, v%d, s[%d:%d], s37 offen offset:%d sc1', vr(GT+8*j2+4*qq), 7 if (mat == 1 and qq == 1) else 6, 52+4*mat, 55+4*mat, off)
            a('s_add_u32 s37, s37, %d', 4*16*28672)
        a('s_waitcnt vmcnt(0)'); sig(7)
        a('s_branch wk_loop')

L_MEM = 0; L_ZM = L_MEM + 8192; L_TP = L_ZM + 4096
L_RED = L_TP + 4096; L_RED2 = L_RED + 2048; L_PHI = L_RED2 + 1024; L_DUM = L_PHI + 1024; L_CHAIN = L_DUM + 1024
QT = [[0,1,2,3],[4,5,6,7],[8,9,10,11],[12,13]]
UTL = [[0,1,2],[3,4,5],[6,7,8],[9,10,11,12,13]]
SPIN = 200000
FORCE_SLOW = False
PRETOUCH = True
GM = ['sc1', '', 'nt', 'sc0'][opt('gm', 0)]
def load_weights(a, units, wreg4):
    a('s_mul_i32 s13, s2, 401408')
    for u, (kind, t) in enumerate(units):
        un = t if kind == 'q' else 14 + t
        for ks in range(14):
            if ks % 4 == 0: a('s_add_u32 s12, s13, %d', un*14336 + ks*1024)
            a('buffer_load_dwordx4 %s, v3, s[16:19], s12 offen offset:%d', wreg4(u, ks), (ks%4)*1024)
def common_addrs(a):
    a('v_mul_u32_u24 v1, 912, v25'); a('v_lshl_add_u32 v1, v24, 5, v1')
    a('v_lshrrev_b32 v26, 3, v23'); a('v_lshl_add_u32 v1, v26, 4, v1')
    a('v_mov_b32 v4, 0x4444'); a('v_mov_b32 v26, 0xeeee'); a('v_cmp_gt_u32 vcc, 8, v23'); a('s_nop 1'); a('v_cndmask_b32 v4, v26, v4, vcc')
    a('v_and_b32 v26, 1, v24'); a('v_lshlrev_b32 v6, 3, v26'); a('v_lshrrev_b32 v26, 1, v24'); a('v_lshl_add_u32 v6, v26, 2, v6')
    a('v_lshl_add_u32 v6, v23, 4, v6'); a('v_add_u32 v6, %d, v6', L_ZM)
def SM(a, acc, fr, w8):
    a('v_smfmac_f32_16x16x64_bf16 %s, %s, %s, v4', vr(acc), vr(fr), w8)
def fold_ops(R, dst):
    return ['v_permlane32_swap_b32 v%d, v%d' % (R, R+2), 'v_permlane32_swap_b32 v%d, v%d' % (R+1, R+3), 's_nop 0',
            'v_add_f32 v%d, v%d, v%d' % (R, R, R+2), 'v_add_f32 v%d, v%d, v%d' % (R+1, R+1, R+3),
            'v_cvt_pk_bf16_f32 v%d, v%d, v%d' % (dst, R, R+1)]

NTU = opt('ntu', 2)
def k_tu(a):
    flag_wait(a, 96, F_M, 224, 12, 74, 'wk_done')
    a('s_and_b32 s2, s100, 31'); a('s_lshr_b32 s52, s100, 5')
    a('s_load_dwordx2 s[4:5], s[0:1], %d', KA['ws'])
    a('s_lshr_b32 s6, s2, 1'); a('s_and_b32 s7, s2, 1')
    a('v_lshrrev_b32 v1, 6, v0'); a('v_and_b32 v22, 63, v0'); a('s_nop 0')
    a('v_readfirstlane_b32 s8, v1')
    a('v_and_b32 v23, 15, v22'); a('v_lshrrev_b32 v24, 4, v22'); a('v_and_b32 v25, 7, v22')
    a('v_lshlrev_b32 v3, 4, v22')
    a('s_waitcnt lgkmcnt(0)')
    a.srd(16, 4, 5, SZ_M, WS_M); a.srd(28, 4, 5, SZ_TM, WS_TM); a.srd(32, 4, 5, SZ_UT, WS_UT)
    a.srd(36, 4, 5, SZ_M2, WS_M2); a.srd(40, 4, 5, SZ_MF, WS_MF)
    a('v_cmp_gt_u32 s[72:73], 14, v23')
    a('v_cmp_gt_u32 s[44:45], 32, v22')
    a('v_cmp_gt_u32 s[46:47], 56, v22')
    a('s_mul_i32 s9, s2, 14'); a('s_and_b32 s15, s6, 3')
    common_addrs(a)
    a('v_and_b32 v26, 1, v24'); a('v_lshlrev_b32 v5, 7, v26'); a('v_lshrrev_b32 v26, 1, v24'); a('v_lshl_add_u32 v5, v26, 6, v5')
    a('v_bfe_u32 v26, v23, 1, 1'); a('v_lshl_add_u32 v5, v26, 4, v5')
    a('v_lshrrev_b32 v26, 2, v23'); a('v_lshl_add_u32 v5, v26, 2, v5')
    a('v_and_b32 v26, 1, v23'); a('v_lshl_add_u32 v5, v26, 1, v5'); a('v_add_u32 v5, %d, v5', L_TP)
    a('s_mul_i32 s12, s8, 1792'); a('v_add_u32 v15, s12, v3')
    a('s_mul_i32 s12, s8, 1824'); a('v_add_u32 v16, s12, v3')
    a('s_lshl_b32 s12, s8, 10'); a('v_add_u32 v11, s12, v3')
    a('v_mul_u32_u24 v14, 224, v24'); a('v_lshl_add_u32 v14, v23, 4, v14'); a('s_mul_i32 s12, s8, 896'); a('v_add_u32 v14, s12, v14')
    a('s_lshr_b32 s12, s6, 2'); a('s_mul_i32 s12, s12, 28'); a('s_mul_i32 s13, s7, 14'); a('s_add_u32 s12, s12, s13'); a('s_lshl_b32 s12, s12, 10')
    a('s_lshl_b32 s13, s15, 8'); a('s_add_u32 s12, s12, s13'); a('s_lshl_b32 s13, s8, 12'); a('s_add_u32 s12, s12, s13')
    a('v_lshlrev_b32 v12, 10, v24'); a('v_lshl_add_u32 v12, v23, 4, v12'); a('v_add_u32 v12, s12, v12')
    a('v_mul_u32_u24 v13, 448, v24'); a('v_add_u32 v13, v13, v23'); a('v_add_u32 v13, s9, v13'); a('v_lshlrev_b32 v13, 4, v13')
    a('s_mul_i32 s12, s8, %d', 4*448*16); a('v_add_u32 v13, s12, v13')
    a('s_lshl_b32 s57, s2, 4'); a('s_lshl_b32 s12, s8, 2'); a('s_add_u32 s57, s57, s12')
    a('s_lshl_b32 s12, s52, 9'); a('s_add_u32 s57, s57, s12')
    a('s_mul_i32 s53, s52, 7168'); a('s_mul_i32 s55, s52, %d', 16*8*896); a('s_mul_i32 s56, s52, %d', 16*448*16)
    for wv in range(1, 4):
        a('s_cmp_eq_u32 s8, %d', wv); a('s_cbranch_scc1 tu_w%d', wv)
    FR = 20; ACC = 48; WV = 88; PL = 76
    for wv in range(4):
        a.label('tu_w%d' % wv)
        qt = QT[wv]; ut = UTL[wv]; nq = len(qt)
        units = [('q', t) for t in qt] + [('u', t) for t in ut]
        def wreg4(u, ks): return ar(u*56 + ks*4) if u < 4 else vr(WV + (u-4)*56 + ks*4)
        def wreg8(u, s): return ar(u*56 + s*8, 8) if u < 4 else vr(WV + (u-4)*56 + s*8, 8)
        load_weights(a, units, wreg4)
        for r_ in range(8): a('v_mov_b32 v%d, 0', PL+r_)
        LP = 'tu_loop%d' % wv
        a.label(LP)
        a('s_mov_b32 s62, 0')
        a.label(LP + '_p')
        a('s_mov_b64 exec, s[46:47]')
        for k in range(2): a('buffer_load_dwordx4 %s, v15, s[36:39], s53 offen offset:%d sc1', vr(PL+4*k), k*896)
        a('s_mov_b64 exec, -1')
        a('s_waitcnt vmcnt(0)')
        a('s_cmp_eq_u32 s62, 0'); a('s_cbranch_scc0 %s_nf', LP)
        a('s_cmp_lt_u32 s52, %d', NTU); a('s_cbranch_scc1 %s_nf', LP)
        a('s_mov_b64 exec, 1'); a('buffer_store_dword v3, v3, s[40:43], s57 offen sc1'); a('s_mov_b64 exec, -1')
        a('s_add_u32 s57, s57, %d', 512*NTU)
        a.label(LP + '_nf')
        a('s_add_u32 s62, s62, 1'); a('s_cmp_gt_u32 s62, %d', WSPIN); a('s_cbranch_scc1 wk_done')
        a('v_max3_u32 v84, v%d, v%d, v%d', PL, PL+1, PL+2); a('v_max3_u32 v85, v%d, v%d, v%d', PL+3, PL+4, PL+5); a('v_max3_u32 v84, v84, v%d, v%d', PL+6, PL+7)
        a('v_max_u32 v84, v84, v85'); a('v_cmp_eq_u32 vcc, -1, v84'); a('s_cbranch_vccz %s_g', LP)
        a('s_sleep 2'); a('s_branch %s_p', LP)
        a.label(LP + '_g')
        a('s_mov_b64 exec, s[46:47]')
        for k in range(2): a('ds_write_b128 v16, %s offset:%d', vr(PL+4*k), L_MEM + k*912)
        a('s_mov_b64 exec, -1')
        for r_ in range(28): a('v_mov_b32 v%d, 0', ACC+r_)
        a('s_waitcnt lgkmcnt(0)'); a('s_barrier')
        for s in range(7): a('ds_read_b128 %s, v1 offset:%d', vr(FR+4*s), L_MEM + s*128)
        for s in range(7):
            a('s_waitcnt lgkmcnt(%d)', 6-s)
            for u in range(7): SM(a, ACC+4*u, FR+4*s, wreg8(u, s))
        a.nop(8)
        for u in range(7):
            for q in fold_ops(ACC+4*u, ACC+4*u): a(q)
        for u, t in enumerate(qt):
            a('ds_write_b16 v5, v%d offset:%d', ACC+4*u, 256*t); a('ds_write_b16_d16_hi v5, v%d offset:%d', ACC+4*u, 256*t+32)
        for k, t in enumerate(ut):
            a('ds_write_b32 v6, v%d offset:%d', ACC+4*(nq+k), 256*t)
        a('s_waitcnt lgkmcnt(0)'); a('s_barrier')
        a('ds_read_b128 %s, v11 offset:%d', vr(FR), L_TP); a('ds_read_b128 %s, v14 offset:%d', vr(FR+4), L_ZM)
        a('s_waitcnt lgkmcnt(1)')
        if wv == 3: a('s_mov_b64 exec, s[44:45]')
        a('buffer_store_dwordx4 %s, v12, s[28:31], s55 offen sc1', vr(FR))
        a('s_mov_b64 exec, s[72:73]'); a('s_waitcnt lgkmcnt(0)')
        a('buffer_store_dwordx4 %s, v13, s[32:35], s56 offen sc1', vr(FR+4))
        a('s_mov_b64 exec, -1')
        a('s_add_u32 s52, s52, %d', NTU); a('s_add_u32 s53, s53, %d', 7168*NTU); a('s_add_u32 s55, s55, %d', 16*8*896*NTU); a('s_add_u32 s56, s56, %d', 16*448*16*NTU)
        a('s_cmp_lt_u32 s52, 64'); a('s_cbranch_scc1 %s', LP)
        a('s_waitcnt vmcnt(0)')
        a('s_mov_b64 exec, 1'); a('buffer_store_dword v3, v3, s[40:43], s57 offen sc1'); a('s_mov_b64 exec, -1')
        a('s_branch wk_loop')

def k_chain(a):
    TSL = []
    def TS0(k):
        if not INSTR: return
        a('s_memrealtime s[64:65]' if opt('rt') else 's_memtime s[64:65]'); a('s_waitcnt lgkmcnt(0)')
        a('v_mov_b32 v63, s64')
        a('s_mov_b64 exec, 1')
        a('buffer_store_dword v63, v3, s[68:71], s67 offen offset:%d', 4*k)
        a('s_mov_b64 exec, -1')
    def TS(k):
        if not INSTR: return
        j = len(TSL); assert j < 7; TSL.append(k)
        a('%s s[%d:%d]', 's_memrealtime' if opt('rt') else 's_memtime', 88+2*j, 89+2*j)
    def TDUMP(extra=None):
        if not INSTR: return
        a('s_waitcnt lgkmcnt(0)')
        for j, k in enumerate(TSL): a('v_writelane_b32 v63, s%d, %d', 88+2*j, k)
        m = sum(1 << k for k in TSL)
        if extra:
            a('v_writelane_b32 v63, %s, 13', extra); m |= 1 << 13
        a('v_lshrrev_b32 v62, 2, v3')
        a('s_lshl_b32 s66, s52, 6'); a('s_add_u32 s66, s66, s67')
        a('s_mov_b64 exec, 0x%x', m)
        a('buffer_store_dword v63, v62, s[68:71], s66 offen')
        a('s_mov_b64 exec, -1'); a('s_nop 1')
        TSL.clear()
    def pub(fmt, *args):
        L = a.newlabel('pb')
        a('s_cmp_eq_u32 s63, 0'); a('s_cbranch_scc1 %s_s', L)
        a(fmt, *(args + ('',))); a('s_branch %s_d', L)
        a.label(L + '_s'); a(fmt, *(args + ('sc1',))); a.label(L + '_d')
    L_S = L_TP; L_R2 = L_TP; L_DM = L_TP + 6144
    LZ = 8192; L_S = 16384; L_R2 = 16384; L_DM = 16384 + 6144
    init2(a, 0)
    a('s_lshr_b32 s2, s2, 3')
    a('s_load_dwordx2 s[4:5], s[0:1], %d', KA['ws'])
    a('s_load_dwordx2 s[76:77], s[0:1], %d', KA['dbg'])
    a('s_load_dwordx2 s[78:79], s[0:1], %d', KA['B_mem0'])
    a('s_and_b32 s6, s2, 15')
    a('v_lshrrev_b32 v1, 6, v0'); a('v_and_b32 v22, 63, v0'); a('s_nop 0')
    a('v_readfirstlane_b32 s8, v1')
    a('v_and_b32 v23, 15, v22'); a('v_lshrrev_b32 v24, 4, v22'); a('v_and_b32 v25, 7, v22')
    a('v_lshlrev_b32 v3, 4, v22')
    a('s_waitcnt lgkmcnt(0)')
    a.srd(20, 4, 5, SZ_XF, WS_XF); a.srd(24, 4, 5, SZ_VW, WS_VW)
    a.srd(28, 4, 5, SZ_M2, WS_M2); a.srd(36, 4, 5, SZ_MB, WS_MB); a.srd(40, 4, 5, SZ_SB, WS_SB)
    a.srd(80, 76, 77, 256); a.srd(84, 78, 79, 7168)
    a('s_mov_b32 s52, 0')
    if INSTR:
        a.srd(68, 4, 5, SZ_P, WS_P)
        a('s_lshl_b32 s67, s2, 2'); a('s_add_u32 s67, s67, s8'); a('s_lshl_b32 s67, s67, 12')
    TS0(8)
    a('s_add_u32 s101, s2, 1900'); RT(a, 0)
    a.srd(72, 4, 5, SZ_FL, WS_FL)
    for r_ in range(4): a('v_mov_b32 v%d, 0', 40+r_)
    a('v_lshlrev_b32 v9, 5, v0')
    a('ds_write_b128 v9, %s', vr(40)); a('ds_write_b128 v9, %s offset:16', vr(40))
    a('v_lshrrev_b32 v26, 3, v23'); a('v_mul_u32_u24 v26, 7, v26'); a('v_lshl_add_u32 v26, v24, 1, v26'); a('s_mul_i32 s12, s6, 14'); a('v_add_u32 v26, s12, v26')
    a('v_mul_u32_u24 v27, 896, v25')
    a('v_lshl_add_u32 v8, v26, 2, v27')
    a('buffer_load_dwordx2 %s, v8, s[84:87], 0 offen', vr(18, 2))
    for e, (vu, vq) in enumerate(((11, 13), (12, 2))):
        a('v_add_u32 v28, %d, v26', e)
        a('v_lshrrev_b32 v29, 3, v28'); a('v_lshl_add_u32 v29, v29, 5, v27')
        a('v_and_b32 v30, 1, v28'); a('v_bfe_u32 v31, v28, 1, 2'); a('v_lshl_add_u32 v31, v30, 2, v31'); a('v_lshl_add_u32 v%d, v31, 2, v29', vu)
        a('v_bfe_u32 v31, v28, 2, 1'); a('v_lshl_add_u32 v31, v30, 1, v31'); a('v_bfe_u32 v30, v28, 1, 1'); a('v_lshl_add_u32 v31, v30, 2, v31')
        a('v_lshl_add_u32 v%d, v31, 2, v29', vq); a('v_add_u32 v%d, 7168, v%d', vq, vq)
    a('v_mov_b32 v28, 0x40000000'); a('v_cmp_eq_u32 vcc, 3, v24'); a('s_nop 1')
    a('v_cndmask_b32 v12, v12, v28, vcc'); a('v_cndmask_b32 v2, v2, v28, vcc')
    a('s_getreg_b32 s12, hwreg(HW_REG_XCC_ID, 0, 4)'); a('s_lshl_b32 s12, 1, s12')
    a('v_mov_b32 v48, s12'); a('v_mov_b32 v49, %d', C_XCC*4)
    a('v_cmp_eq_u32 vcc, 0, v0'); a('s_and_b64 exec, exec, vcc')
    a('buffer_atomic_or v48, v49, s[80:83], 0 offen sc1')
    a('s_mov_b64 exec, -1')
    signal(a, 80, C_INIT, 36)
    a('s_cmp_eq_u32 s8, 0'); a('s_cbranch_scc0 ch_iw')
    waitc(a, 80, C_INIT, NINIT, 36, 12, 'ch_done', 8)
    a.label('ch_iw')
    a('s_barrier')
    a('buffer_load_dword v48, v49, s[80:83], 0 offen sc1'); a('s_waitcnt vmcnt(0)')
    a('v_readfirstlane_b32 s12, v48'); a('s_nop 3')
    a('s_bcnt1_i32_b32 s12, s12'); a('s_cmp_eq_u32 s12, 1'); a('s_cselect_b32 s63, 1, 0')
    if FORCE_SLOW: a('s_mov_b32 s63, 0')
    def mpub(T, so, s2o):
        L = a.newlabel('mp')
        a('v_min_u32 v%d, 0xfffffffe, v%d', T, T); a('v_min_u32 v%d, 0xfffffffe, v%d', T+1, T+1)
        a('s_cmp_eq_u32 s63, 0'); a('s_cbranch_scc1 %s_s', L)
        for m in ('', 'sc1'):
            if m: a.label(L + '_s')
            for d, va in ((T, 13), (T+1, 2), (T, 11), (T+1, 12)): a('buffer_store_dword v%d, v%d, s[36:39], %s offen %s', d, va, so, m)
            if not m: a('s_branch %s_d', L)
        a.label(L + '_d')
    def m2l(T): return ['buffer_store_dword v%d, v%d, s[28:31], s55 offen sc1' % (d, va) for d, va in ((T, 11), (T+1, 12))] + ['s_add_u32 s55, s55, 7168']
    a('s_cmp_lt_u32 s2, 16'); a('s_cbranch_scc1 ch_nm0'); a('s_cmp_eq_u32 s8, 0'); a('s_cbranch_scc0 ch_nm0')
    mpub(18, '0', '0')
    a.label('ch_nm0')
    TS0(9)
    flag_wait(a, 72, F_M, 224, 36, 12, 'ch_done', 4, chk=False)
    a('s_mov_b32 s76, s72'); a('s_mov_b32 s77, s73'); a('s_mov_b32 s78, s74'); a('s_mov_b32 s79, s75')
    TS0(10)
    a('v_cmp_gt_u32 s[46:47], 56, v22')
    common_addrs(a)
    a('s_mul_i32 s12, s8, 1792'); a('v_add_u32 v15, s12, v3')
    a('s_mul_i32 s12, s8, 1824'); a('v_add_u32 v14, s12, v3')
    a('s_mov_b32 s53, 0'); a('s_mov_b32 s54, 0'); a('s_mov_b32 s55, 0'); a('s_mov_b32 s59, %d', MBS)
    FR = 20; WV = 88; ZA = 224; ID = 16
    def wreg4(u, ks): return ar(u*56 + ks*4) if u < 4 else vr(WV + (u-4)*56 + ks*4)
    def wreg8(u, s): return ar(u*56 + s*8, 8) if u < 4 else vr(WV + (u-4)*56 + s*8, 8)
    def ldw():
        for u in range(7):
            for ks in range(14):
                if ks % 4 == 0: a('s_add_u32 s12, s13, %d', u*14336 + ks*1024)
                a('buffer_load_dwordx4 %s, v3, s[16:19], s12 offen offset:%d', wreg4(u, ks), (ks%4)*1024)
    def poll_mem(LP, slp, pipe=0, R=20):
        a('s_mov_b32 s62, 0')
        if slp: a('s_sleep %d', slp)
        if not opt('fts'): TS(14)
        a('s_mov_b64 exec, s[46:47]')
        def ld(R):
            for k in range(2): a('buffer_load_dwordx4 %s, v15, s[36:39], s53 offen offset:%d sc1', vr(R+4*k), k*896)
        def ck(R):
            a('v_max3_u32 v36, v%d, v%d, v%d', R, R+1, R+2); a('v_max3_u32 v37, v%d, v%d, v%d', R+3, R+4, R+5)
            a('v_max3_u32 v36, v36, v%d, v%d', R+6, R+7); a('v_max_u32 v36, v36, v37')
            a('v_cmp_eq_u32 vcc, -1, v36')
        def wr(R):
            for k in range(2): a('ds_write_b128 v14, %s offset:%d', vr(R+4*k), L_MEM + k*912)
        if not pipe:
            a.label(LP + '_pm')
            ld(R)
            a('s_add_u32 s62, s62, 1'); a('s_cmp_gt_u32 s62, %d', SPIN); a('s_cbranch_scc1 ch_done')
            a('s_waitcnt vmcnt(0)')
            ck(R); a('s_cbranch_vccnz %s_pm', LP)
            wr(R)
        else:
            ld(R); a('s_sleep %d', pipe)
            a.label(LP + '_pm')
            ld(R+8)
            a('s_add_u32 s62, s62, 1'); a('s_cmp_gt_u32 s62, %d', SPIN); a('s_cbranch_scc1 ch_done')
            a('s_waitcnt vmcnt(2)')
            ck(R); a('s_cbranch_vccz %s_pa', LP)
            ld(R)
            a('s_waitcnt vmcnt(2)')
            ck(R+8); a('s_cbranch_vccnz %s_pm', LP)
            wr(R+8); a('s_branch %s_pb', LP)
            a.label(LP + '_pa')
            wr(R)
            a.label(LP + '_pb')
        a('s_mov_b64 exec, -1')
        TS(0)
        a('s_waitcnt lgkmcnt(0)')
        a('s_barrier')
        for s in range(7): a('ds_read_b128 %s, v1 offset:%d', vr(FR+4*s), L_MEM + s*128)
        TS(1)
    def cv(d, s_): return 'v_cvt_pk_bf16_f32 v%d, v%d, v%d' % (d, s_, s_+1)
    def tmf(b): return 'v_mfma_f32_16x16x32_bf16 %s, %s, %s, 0' % (vr(b+4), vr(b), vr(ID))
    def zz(r_): return 'v_mov_b32 v%d, 0' % r_
    def step_end(LP, fin=[]):
        a('s_add_u32 s52, s52, 1'); a('s_add_u32 s53, s53, %d', MBS); a('s_add_u32 s54, s54, %d', SBS)
        a('s_cmp_lt_u32 s52, 63'); a('s_cbranch_scc1 %s', LP)
        for q in fin: a(q)
        a('s_waitcnt vmcnt(0)')
        a('s_branch ch_done')
    def gx_wait(L):
        a('s_and_b32 s13, s12, 7'); a('s_cmp_eq_u32 s13, 0'); a('s_cbranch_scc0 %s_ng', L)
        a('s_cmp_lt_u32 s12, 64'); a('s_cbranch_scc0 %s_ng', L)
        a('s_cmp_eq_u32 s8, 3'); a('s_cbranch_scc0 %s_ng', L)
        a('s_lshl_b32 s12, s12, 7'); a('s_add_u32 s12, s12, %d', F_GX)
        flag_poll(a, 76, 's12', 224, 20, 62, 'ch_done', 1)
        a.label(L + '_ng')
    a('s_cmp_ge_u32 s2, 16'); a('s_cbranch_scc1 ch_u')
    a.srd(16, 4, 5, SZ_MQ, WS_MQ)
    a('s_mul_i32 s13, s6, 401408'); a('s_mul_i32 s12, s8, %d', 7*14336); a('s_add_u32 s13, s13, s12')
    ldw()
    a('v_add_u32 v15, 7168, v15')
    a('v_and_b32 v26, 1, v24'); a('v_lshrrev_b32 v27, 1, v24')
    a('v_mul_u32_u24 v2, 912, v25'); a('v_lshl_add_u32 v2, v26, 6, v2'); a('v_lshl_add_u32 v2, v27, 4, v2'); a('s_mul_i32 s12, s8, 224'); a('v_add_u32 v2, s12, v2')
    a('v_lshl_add_u32 v28, v26, 1, v27'); a('v_mul_u32_u24 v28, 1360, v28'); a('s_lshl_b32 s12, s8, 2'); a('s_add_u32 s12, s12, %d', L_S); a('v_add_u32 v28, s12, v28')
    a('v_and_b32 v29, 3, v23'); a('v_mul_u32_u24 v29, 272, v29'); a('v_add_u32 v5, v28, v29'); a('v_lshrrev_b32 v29, 2, v23'); a('v_lshl_add_u32 v5, v29, 5, v5')
    a('v_lshl_add_u32 v7, v23, 5, v28'); a('v_add_u32 v7, 1088, v7'); a('v_lshlrev_b32 v29, 2, v22'); a('v_add_u32 v29, %d, v29', L_DM)
    a('v_cmp_gt_u32 vcc, 8, v23'); a('s_nop 1'); a('v_cndmask_b32 v7, v29, v7, vcc')
    a('v_lshrrev_b32 v28, 3, v22'); a('v_lshrrev_b32 v29, 4, v22'); a('v_mul_u32_u24 v8, 1360, v29'); a('v_lshl_add_u32 v8, v25, 5, v8')
    a('v_and_b32 v29, 1, v28'); a('v_lshl_add_u32 v8, v29, 4, v8'); a('v_add_u32 v8, %d, v8', L_S)
    a('v_lshrrev_b32 v29, 1, v25'); a('v_lshlrev_b32 v9, 7, v29'); a('v_lshl_add_u32 v9, v28, 4, v9'); a('v_and_b32 v30, 1, v25'); a('v_lshl_add_u32 v9, v30, 3, v9')
    a('s_lshl_b32 s12, s6, 9'); a('v_add_u32 v9, s12, v9')
    a('v_lshlrev_b32 v10, 4, v28'); a('v_lshl_add_u32 v10, v29, 2, v10'); a('s_lshl_b32 s12, s6, 7'); a('s_add_u32 s12, s12, 8192'); a('v_add_u32 v10, s12, v10')
    a('v_mov_b32 v29, 0x40000000'); a('v_cmp_eq_u32 vcc, 1, v30'); a('s_nop 1'); a('v_cndmask_b32 v10, v10, v29, vcc')
    a('v_lshlrev_b32 v11, 7, v23'); a('s_lshl_b32 s12, s6, 11'); a('v_add_u32 v11, s12, v11')
    a('v_min_u32 v12, 4, v22'); a('v_lshlrev_b32 v12, 7, v12'); a('s_mul_i32 s12, s6, 640'); a('v_add_u32 v12, s12, v12')
    a('v_bfe_u32 v27, v23, 2, 1'); a('v_lshrrev_b32 v28, 3, v23'); a('v_and_b32 v29, 3, v23'); a('v_lshl_add_u32 v28, v28, 2, v29')
    a('v_mov_b32 v29, 64'); a('v_cmp_eq_u32 vcc, v26, v27'); a('s_nop 1'); a('v_cndmask_b32 v28, v29, v28, vcc')
    a('v_mov_b32 v26, 0x3f80'); a('v_mov_b32 v27, 0x3f800000'); a('v_mov_b32 v29, 0')
    for q in range(4):
        a('v_cmp_eq_u32 vcc, %d, v28', 2*q); a('s_nop 1'); a('v_cndmask_b32 v%d, v29, v26, vcc', 16+q)
        a('v_cmp_eq_u32 vcc, %d, v28', 2*q+1); a('s_nop 1'); a('v_cndmask_b32 v%d, v%d, v27, vcc', 16+q, 16+q)
    a('s_mov_b32 s60, 0x%x', 0x3db8aa3b)
    a('s_lshl_b32 s56, s8, 13'); a('s_add_u32 s56, s56, %d', 2*SZ_X1); a('s_add_u32 s57, s56, 4096'); a('s_mov_b32 s58, %d', 2*SZ_X1 + 32768)
    def xp_loads():
        for f in range(8):
            a('buffer_load_dwordx4 %s, v3, s[20:23], s%d offen offset:%d %s', ar(ZA+4*f), 56 + f//4, (f%4)*1024, ['sc1', '', 'nt'][opt('xm', 0)])
            if opt('xsl', 1) and f < 7: a('s_sleep %d', opt('xsl', 1))
        a('s_add_u32 s56, s56, 32768'); a('s_add_u32 s57, s57, 32768')
    XE = opt('xe', 0); ZPF = opt('zpf', 2); M2Q = opt('m2q', 2)
    a('s_mul_i32 s12, s6, 28672'); a('s_sub_u32 s13, s8, 1'); a('s_mul_i32 s14, s13, 7168'); a('s_add_u32 s12, s12, s14')
    a('s_cmp_lt_u32 s13, %d', ZPF); a('s_cselect_b32 s12, s12, 0x40000000')
    a('v_lshlrev_b32 v6, 7, v22'); a('v_add_u32 v6, s12, v6'); a('v_mov_b32 v29, 0x40000000')
    a('v_cndmask_b32_e64 v6, v29, v6, s[46:47]'); a('s_mov_b32 s61, %d', 16*28672)
    a('s_mul_i32 s12, s6, 448'); a('v_add_u32 v10, s12, v3') if False else None
    a('s_mul_i32 s14, s6, 448'); a('s_cmp_eq_u32 s8, 2'); a('s_cselect_b32 s48, 0xfffffff, 0'); a('s_mov_b32 s49, 0')
    if ZPF: a('s_mov_b32 s12, 0'); gx_wait('ch_proq')
    if XE != 1:
        xp_loads()
        a('buffer_load_dword v13, v11, s[20:23], s58 offen sc1'); a('s_add_u32 s58, s58, 32768')
    a('s_waitcnt vmcnt(0)')
    TS0(11)
    RT(a, 1, vt=62)
    a('s_cmp_eq_u32 s8, 0'); a('s_cbranch_scc0 ch_q1')
    UA = {0: 48, 1: 52, 2: 56, 3: 60, 4: 72, 5: 76, 6: 80}
    M8 = 80; XM = 48; X0 = 52; X1 = 56
    for wv in range(2):
        LP = 'ch_q%d' % wv
        a.label(LP)
        for r_ in list(range(48, 64)) + list(range(80 if opt('pipe', 0) else 72, 84)): a(zz(r_))
        poll_mem(LP, opt('pmq', 4), opt('pipe', 0), 64 if opt('pipe', 0) else 20)
        def ptouch(LP):
            if wv != 1: return
            a('s_add_u32 s12, s54, %d', SBS)
            a('s_cmp_eq_u32 s8, 1'); a('s_cbranch_scc0 %s_n1', LP)
            a('buffer_load_dword v13, v11, s[20:23], s58 offen sc1'); a('s_add_u32 s58, s58, 32768')
            a('buffer_load_dword v13, v12, s[40:43], s12 offen sc1')
            a.label(LP + '_n1')
        xl = ['buffer_load_dwordx4 %s, v3, s[20:23], s%d offen offset:%d sc1' % (ar(ZA+4*f), 56 + f//4, (f%4)*1024) for f in range(8)] if XE == 1 else []
        for _ in range(opt('xpre', 2)):
            if xl: a(xl.pop(0))
        order = [(6, s) for s in range(7)] + [(u, s) for s in range(7) for u in (0, 1)] + [(u, s) for s in range(7) for u in (2, 3)] + [(4, s) for s in range(7)] + [(5, s) for s in range(7)]
        def m8(q, r_): return 'ds_read2_b32 %s, v2 offset0:%d offset1:%d' % (vr(M8+2*r_, 2), 32*q + (r_>>1) + 2*(r_&1), 32*q + (r_>>1) + 2*(r_&1) + 8)
        def SC(acc, q, b8): return 'v_smfmac_f32_16x16x64_bf16 %s, %s, %s, v4' % (vr(acc), vr(64+4*q), b8)
        def xb(q, t): return ar(ZA + (2*q+t)*8, 8)
        fl = {9: [cv(80, 80)], 10: [cv(81, 82)], 12: ['v_mfma_f32_16x16x16_bf16 %s, %s, %s, 0' % (vr(84), vr(80, 2), vr(ID, 2))], 15: [cv(70, 84)], 16: [cv(71, 86)],
              17: [m8(0, 0)], 18: [m8(0, 1)], 19: [m8(0, 2)], 20: [m8(0, 3)],
              23: [cv(48, 48)], 24: [cv(49, 50)], 25: [cv(50, 52)], 26: [cv(51, 54)], 28: [tmf(48)], 30: [zz(48)], 31: [cv(64, 52)], 32: [cv(65, 54)],
              33: [zz(49)], 34: [zz(50)], 35: [zz(51)], 36: [zz(52)],
              37: [cv(56, 56)], 38: [cv(57, 58)], 39: [cv(58, 60)], 40: [cv(59, 62)], 41: [tmf(56), zz(53), zz(54)], 42: [zz(55)], 43: [zz(56)],
              44: [cv(66, 60)], 45: [cv(67, 62), cv(72, 72)], 46: [SC(XM, 0, vr(M8, 8)), cv(73, 74)], 47: [zz(57), m8(1, 0), m8(1, 1)], 48: [m8(1, 2), m8(1, 3), zz(58), zz(59)]}
        if opt('tri', 1):
            order = [(u, s) for s in range(7) for u in (6, 0, 1)] + order[21:]
            t16 = fl[12]
            for k in list(fl):
                if k < 37: del fl[k]
            fl.update({21: [cv(80, 80)], 22: [cv(81, 82)], 23: [cv(48, 48)], 24: t16 + [cv(49, 50), cv(50, 52)], 25: [cv(51, 54)], 27: [tmf(48), cv(70, 84), cv(71, 86)],
                       28: [m8(0, 0)], 29: [m8(0, 1), zz(48)], 30: [cv(64, 52)], 31: [cv(65, 54)], 32: [m8(0, 2)], 33: [m8(0, 3), zz(49)], 34: [zz(50)], 35: [zz(51)], 36: [zz(52)]})
        if opt('pipe', 0):
            for r_ in range(8): fl[12+r_] = [zz(72+r_)]
            fl[12].insert(0, 's_waitcnt vmcnt(0)')
        seen = set()
        for k, (u, s) in enumerate(order):
            if s not in seen: a('s_waitcnt lgkmcnt(%d)', 6-s); seen.add(s)
            if k == 46: a('s_waitcnt lgkmcnt(0)')
            SM(a, UA[u], FR+4*s, wreg8(u, s))
            for q in fl.get(k, []): a(q)
            if xl and k not in fl: a(xl.pop(0))
            if ZPF and wv == 1 and k == opt('zk', 18): a('buffer_load_dword v13, v6, s[24:27], s61 offen sc1'); a('s_add_u32 s61, s61, %d', 16*28672)
            if M2Q == 2 and wv == 1:
                if k == 1: a('s_add_u32 s12, s53, s14'); a('s_add_u32 s13, s55, s14'); a('s_mov_b32 s33, 0')
                if k == 2: a('s_mov_b64 exec, s[48:49]'); a('buffer_load_dwordx4 %s, v3, s[36:39], s12 offen sc1', vr(84)); a('s_mov_b64 exec, -1')
                if k == 15: a('s_waitcnt vmcnt(0)'); a('v_max3_u32 v13, v84, v85, v86')
                if k == 16: a('v_max_u32 v13, v13, v87')
                if k == 17:
                    a('s_mov_b64 exec, s[48:49]'); a('v_cmp_eq_u32 vcc, -1, v13'); a('s_cbranch_vccnz %s_n3', LP)
                    a('buffer_store_dwordx4 %s, v3, s[28:31], s13 offen sc1', vr(84)); a('s_mov_b32 s33, 1'); a('s_add_u32 s55, s55, 7168')
                    a.label(LP + '_n3'); a('s_mov_b64 exec, -1')
            if XE == 1 and k == 13: ptouch(LP)
            if XE == 1 and k == 22: a('s_add_u32 s56, s56, 32768'); a('s_add_u32 s57, s57, 32768')
        if XE == 1: a('s_waitcnt vmcnt(0)')
        a(SC(X0, 0, xb(0, 0))); a('s_nop 0')
        a(cv(74, 76)); a(cv(75, 78)); a('s_nop 1'); a(tmf(72)); a(SC(X1, 0, xb(0, 1))); a('s_nop 4')
        a(cv(68, 76)); a(cv(69, 78)); a('s_nop 1')
        a(SC(X0, 1, xb(1, 0))); a(SC(X1, 1, xb(1, 1))); a('s_waitcnt lgkmcnt(0)'); a(SC(XM, 1, vr(M8, 8))); a('s_nop 1')
        def sw(R): a('v_permlane32_swap_b32 v%d, v%d', R, R+2); a('v_permlane32_swap_b32 v%d, v%d', R+1, R+3)
        def ad(R): a('v_add_f32 v%d, v%d, v%d', R, R, R+2); a('v_add_f32 v%d, v%d, v%d', R+1, R+1, R+3)
        sw(X0); a('s_nop 1'); sw(X1); ad(X0); a('ds_write2_b32 v5, v%d, v%d offset0:0 offset1:4', X0, X0+1)
        ad(X1); sw(XM); a('ds_write2_b32 v5, v%d, v%d offset0:32 offset1:36', X1, X1+1); a('s_nop 0')
        ad(XM); a('ds_write2_b32 v7, v%d, v%d offset0:0 offset1:4', XM, XM+1)
        TS(9)
        a('s_waitcnt lgkmcnt(0)')
        a('s_barrier')
        if wv == 0:
            RD = 48; EE = 72; L_ = 78; Tm = 80
            for j in range(5): a('ds_read_b128 %s, v8 offset:%d', vr(RD+4*j), 272*j)
            TS(2)
            for j in range(5):
                a('s_waitcnt lgkmcnt(%d)', 4-j)
                a('v_pk_add_f32 %s, %s, %s', vr(RD+4*j, 2), vr(RD+4*j, 2), vr(RD+4*j+2, 2))
                a('v_add_f32 v%d, v%d, v%d', RD+4*j, RD+4*j, RD+4*j+1); a('v_mul_f32 v%d, s60, v%d', RD+4*j, RD+4*j)
                a('v_exp_f32 v%d, v%d', EE+j, RD+4*j)
            def red(op, r_):
                for d in ('quad_perm:[1,0,3,2]', 'quad_perm:[2,3,0,1]', 'row_half_mirror'):
                    a('s_nop 1'); a('%s_dpp v%d, v%d, v%d %s row_mask:0xf bank_mask:0xf', op, r_, r_, r_, d)
            def sums():
                a('v_add_f32 v%d, v%d, v%d', L_, EE, EE+1); a('v_add_f32 v%d, v%d, v%d', L_+1, EE+2, EE+3)
                a('v_add_f32 v%d, v%d, v%d', L_, L_, L_+1); a('v_add_f32 v%d, v%d, v%d', L_, L_, EE+4)
                a('v_mov_b32_dpp v%d, v%d quad_perm:[1,0,3,2] row_mask:0xf bank_mask:0xf', EE+5, EE+4)
                red('v_add_f32', L_)
                a('v_rcp_f32 v%d, v%d', L_+1, L_)
            sums()
            a('v_subrev_u32 v%d, 0x21800000, v%d', Tm, L_); a('v_cmp_lt_u32 vcc, 0x3c000000, v%d', Tm); a('s_cbranch_vccnz %s_fb', LP)
            a.label(LP + '_ok')
            for q in range(3): a('v_pk_mul_f32 %s, %s, %s op_sel:[0,1] op_sel_hi:[1,1]', vr(EE+2*q, 2), vr(EE+2*q, 2), vr(L_, 2))
            for q in range(3): a(cv(EE+q, EE+2*q))
            a('v_min_u32 v%d, 0xfffffffe, v%d', EE, EE); a('v_min_u32 v%d, 0xfffffffe, v%d', EE+2, EE+2)
            L = a.newlabel('pp')
            a('s_cmp_eq_u32 s63, 0'); a('s_cbranch_scc1 %s_s', L)
            for m in ('', 'sc1'):
                if m: a.label(L + '_s')
                a('buffer_store_dwordx2 %s, v9, s[40:43], s54 offen %s', vr(EE, 2), m); a('buffer_store_dword v%d, v10, s[40:43], s54 offen %s', EE+2, m)
                if not m: a('s_branch %s_d', L)
            a.label(L + '_d')
            TS(3)
        if XE != 1:
            if XE == 0: a('s_barrier')
            if opt('xpd'): a('s_sleep %d', opt('xpd'))
            if wv == 1 and M2Q:
                a('s_cmp_eq_u32 s8, 2'); a('s_cbranch_scc0 %s_n2', LP)
                if M2Q == 2: a('s_cmp_eq_u32 s33, 1'); a('s_cbranch_scc1 %s_n2', LP)
                a('s_add_u32 s12, s53, s14'); a('s_add_u32 s13, s55, s14'); a('s_mov_b32 s15, 0')
                a('s_mov_b64 exec, 0xfffffff')
                a.label(LP + '_m2')
                a('buffer_load_dwordx4 %s, v3, s[36:39], s12 offen sc1', vr(20))
                a('s_add_u32 s15, s15, 1'); a('s_cmp_gt_u32 s15, %d', SPIN); a('s_cbranch_scc1 ch_done')
                a('s_waitcnt vmcnt(0)')
                a('v_max3_u32 v24, v20, v21, v22'); a('v_max_u32 v24, v24, v23'); a('v_cmp_eq_u32 vcc, -1, v24'); a('s_cbranch_vccnz %s_m2', LP)
                a('buffer_store_dwordx4 %s, v3, s[28:31], s13 offen sc1', vr(20))
                a('s_mov_b64 exec, -1'); a('s_add_u32 s55, s55, 7168')
                a.label(LP + '_n2')
            xp_loads()
            ptouch(LP)
            if ZPF and wv == 1: a('s_add_u32 s12, s52, 2'); gx_wait(LP)
        TDUMP('s62')
        step_end(LP)
        if wv == 0:
            a.label(LP + '_fb')
            a('v_max3_f32 v%d, v%d, v%d, v%d', Tm, RD, RD+4, RD+8); a('v_max3_f32 v%d, v%d, v%d, v%d', Tm, Tm, RD+12, RD+16)
            red('v_max_f32', Tm)
            for j in range(5): a('v_sub_f32 v%d, v%d, v%d', EE+j, RD+4*j, Tm)
            for j in range(5): a('v_exp_f32 v%d, v%d', EE+j, EE+j)
            a('s_nop 1'); sums(); a('s_nop 1')
            a('s_branch %s_ok', LP)
    a.label('ch_u')
    a.srd(16, 4, 5, SZ_M, WS_M)
    a('s_lshr_b32 s14, s8, 1'); a('s_and_b32 s15, s8, 1')
    a('s_lshl_b32 s13, s6, 1'); a('s_add_u32 s13, s13, s14'); a('s_mul_i32 s13, s13, 401408'); a('s_mul_i32 s12, s15, %d', 7*14336); a('s_add_u32 s13, s13, s12')
    a('s_add_u32 s13, s13, %d', 14*14336)
    ldw()
    a('s_mul_i32 s12, s8, 1792'); a('v_add_u32 v6, s12, v6')
    a('s_mul_i32 s12, s6, 28'); a('v_add_u32 v8, s12, v23'); a('v_lshlrev_b32 v8, 4, v8'); a('v_mul_u32_u24 v26, 7168, v24'); a('v_add_u32 v8, v8, v26')
    a('v_mul_u32_u24 v9, 224, v24'); a('v_lshl_add_u32 v9, v23, 4, v9'); a('s_mul_i32 s12, s8, 896'); a('s_add_u32 s12, s12, %d', LZ); a('v_add_u32 v9, s12, v9')
    a('v_lshrrev_b32 v26, 3, v23'); a('v_lshlrev_b32 v7, 9, v26'); a('v_lshl_add_u32 v7, v24, 7, v7'); a('v_lshl_add_u32 v7, v25, 4, v7'); a('s_lshl_b32 s12, s8, 11'); a('v_add_u32 v7, s12, v7')
    a('v_lshlrev_b32 v10, 7, v24'); a('v_lshl_add_u32 v10, v25, 4, v10'); a('s_lshl_b32 s12, s8, 9'); a('s_add_u32 s12, s12, 8192'); a('v_add_u32 v10, s12, v10')
    a('v_min_u32 v5, 6, v22'); a('v_lshlrev_b32 v5, 7, v5'); a('s_mul_i32 s12, s6, 896'); a('v_add_u32 v5, s12, v5')
    a('s_lshl_b32 s12, s8, 10'); a('s_add_u32 s12, s12, %d', L_R2 - 1024); a('v_add_u32 v16, s12, v3')
    a('s_mul_i32 s80, s8, %d', 4*28672)
    for k in range(1, 4): a('s_add_u32 s%d, s80, %d', 80+k, k*28672)
    a('s_waitcnt vmcnt(0)')
    TS0(11)
    a('s_mov_b32 s12, 0'); gx_wait('ch_pro')
    ZE = opt('ze', 0)
    def zxl(): return ['buffer_load_dwordx4 %s, v8, s[24:27], s%d offen offset:%d sc1' % (ar(ZA+(2*k+t)*4), 80+k, 224*t) for k in range(4) for t in range(2)]
    if ZE:
        a('s_barrier')
        for q in zxl(): a(q)
    RT(a, 1, vt=62)
    a('s_cmp_eq_u32 s8, 0'); a('s_cbranch_scc0 ch_u1')
    UAC = 48; P = 76; AA = 48; AB = 56; ZM = 64; RR = 72
    for wv in range(2):
        LP = 'ch_u%d' % wv
        a.label(LP)
        for r_ in range(28): a(zz(UAC+r_))
        a('s_add_u32 s12, s53, %d', 2*MBS)
        poll_mem(LP, opt('pmu', 0))
        zl = [] if ZE else zxl()
        if wv == 0: zl = ([] if M2Q else m2l(18)) + zl + ['buffer_load_dword v17, v5, s[36:39], s12 offen sc1']
        for _ in range(opt('zpre', 2)):
            if zl: a(zl.pop(0))
        for s in range(7):
            a('s_waitcnt lgkmcnt(%d)', 6-s)
            for k in range(7):
                SM(a, UAC+4*k, FR+4*s, wreg8(k, s))
                if zl: a(zl.pop(0))
        a.nop(4)
        for k in range(7):
            for q in fold_ops(UAC+4*k, UAC+4*k): a(q)
            a('ds_write_b32 v6, v%d offset:%d', UAC+4*k, 256*k)
        for k in range(4): a('s_add_u32 s%d, s%d, %d', 80+k, 80+k, 0 if opt('hotz') else 16*28672)
        a('s_waitcnt lgkmcnt(0)')
        TS(3)
        a('s_barrier')
        for t in range(2): a('ds_read_b128 %s, v9 offset:%d', vr(ZM+4*t), 3584*t)
        if opt('pps', 4): a('s_sleep %d', opt('pps', 4))
        a('s_waitcnt lgkmcnt(0)')
        def ldp(P):
            a('buffer_load_dwordx4 %s, v7, s[40:43], s54 offen sc1', vr(P)); a('buffer_load_dwordx4 %s, v7, s[40:43], s54 offen offset:1024 sc1', vr(P+4))
            a('buffer_load_dwordx4 %s, v10, s[40:43], s54 offen sc1', vr(P+8))
        def PV(P, fail):
            ckl = ['v_max3_u32 v44, v%d, v%d, v%d' % (P, P+2, P+4), 'v_max3_u32 v45, v%d, v%d, v%d' % (P+6, P+8, P+9), 'v_max3_u32 v44, v44, v%d, v%d' % (P+10, P+11),
                   'v_max_u32 v44, v44, v45', 'v_cmp_eq_u32 vcc, -1, v44', 's_cbranch_vccnz %s' % fail]
            if not opt('spv', 1):
                while ckl: a(ckl.pop(0))
            def MF(acc, A, B, first):
                a('v_mfma_f32_16x16x32_bf16 %s, %s, %s, %s', vr(acc), A, vr(B), '0' if first else vr(acc))
                for _ in range(2):
                    if ckl: a(ckl.pop(0))
            for t in range(2): MF(AB+4*t, ar(ZA+(2+t)*4), P, True)
            for t in range(2): MF(AA+4*t, ar(ZA+t*4), P, True)
            for t in range(2): MF(AB+4*t, ar(ZA+(6+t)*4), P+4, False)
            for t in range(2): MF(AA+4*t, ar(ZA+(4+t)*4), P+4, False)
            a('s_nop 1')
            for t in range(2): MF(AA+4*t, vr(ZM+4*t), P+8, False)
        def cnt(): a('s_add_u32 s62, s62, 256'); a('s_cmp_gt_u32 s62, %d', SPIN*256); a('s_cbranch_scc1 ch_done')
        if not opt('ppi', 2):
            if opt('fts'): a('s_waitcnt vmcnt(0)'); TS(7)
            a.label(LP + '_pp')
            ldp(P); cnt(); a('s_waitcnt vmcnt(0)')
            if opt('fts'): TS(8)
            PV(P, LP + '_pp')
        else:
            PB = 32
            ldp(P); a('s_sleep %d', opt('ppi', 2))
            a.label(LP + '_pp')
            ldp(PB); cnt(); a('s_waitcnt vmcnt(3)')
            PV(P, LP + '_pq'); a('s_branch %s_pd', LP)
            a.label(LP + '_pq')
            ldp(P); a('s_waitcnt vmcnt(3)')
            PV(PB, LP + '_pp')
            a.label(LP + '_pd')
        TS(4)
        a('s_nop 4')
        for r_ in range(4): a('v_add_f32_dpp v%d, v%d, v%d row_ror:8 row_mask:0xf bank_mask:0x3', RR+r_, AB+r_, AA+r_)
        for r_ in range(4): a('v_add_f32_dpp v%d, v%d, v%d row_ror:8 row_mask:0xf bank_mask:0xc', RR+r_, AA+4+r_, AB+4+r_)
        if wv == 1:
            a('ds_write_b128 v16, %s', vr(RR)); a('s_waitcnt lgkmcnt(0)')
        if not opt('fts'): TS(5)
        a('s_barrier')
        if wv == 0:
            for k in range(3): a('ds_read_b128 %s, v3 offset:%d', vr(AA+4*k), L_R2 + 1024*k)
            a('s_waitcnt lgkmcnt(1)')
            for q in range(2): a('v_pk_add_f32 %s, %s, %s', vr(RR+2*q, 2), vr(RR+2*q, 2), vr(AA+2*q, 2))
            a('s_waitcnt lgkmcnt(0)')
            for q in range(2): a('v_pk_add_f32 %s, %s, %s', vr(AA+4+2*q, 2), vr(AA+4+2*q, 2), vr(AA+8+2*q, 2))
            for q in range(2): a('v_pk_add_f32 %s, %s, %s', vr(RR+2*q, 2), vr(RR+2*q, 2), vr(AA+4+2*q, 2))
            a(cv(18, RR)); a(cv(19, RR+2))
            mpub(18, 's59', 's55')
            a('s_add_u32 s59, s59, %d', MBS)
            TS(6)
        TDUMP('s62')
        if wv == 1:
            a('s_add_u32 s12, s52, 1'); gx_wait(LP)
        if ZE:
            a('s_barrier')
            if opt('zsl'): a('s_sleep %d', opt('zsl'))
            for q in zxl(): a(q)
        step_end(LP, (['s_mov_b32 s55, %d' % (63*7168)] + m2l(18)) if wv == 0 else [])
    a.label('ch_done')
    if INSTR: a('s_add_u32 s101, s2, 1900')
    a('s_mov_b64 exec, -1')
    RT(a, 2)
    a('s_endpgm')
NEG = 0xf149f2ca
NSP = opt('nsp', 7)
def k_bf4(a): k_bfin(a, True)
def k_bfin(a, sp=False):
    SX = '4' if sp else ''
    if sp:
        a('s_and_b32 s73, s100, 3'); a('s_lshr_b32 s100, s100, 2'); a('s_add_u32 s100, s100, %d', 64-NSP)
    a('s_load_dwordx2 s[4:5], s[0:1], %d', KA['ws'])
    a('s_load_dwordx2 s[6:7], s[0:1], %d', KA['B_x'])
    a('s_load_dwordx2 s[8:9], s[0:1], %d', KA['out'])
    a('v_lshrrev_b32 v1, 6, v0'); a('v_and_b32 v2, 63, v0'); a('s_nop 0')
    a('v_readfirstlane_b32 s10, v1')
    a('v_and_b32 v3, 31, v2'); a('v_lshrrev_b32 v4, 5, v2')
    perm(a, 5, 3, 6)
    a('s_waitcnt lgkmcnt(0)')
    a.srd(12, 4, 5, SZ_X1, WS_XF + SZ_X1); a.srd(16, 4, 5, SZ_GX, WS_GX); a.srd(20, 4, 5, SZ_VW, WS_VW)
    a.srd(24, 4, 5, SZ_TM, WS_TM); a.srd(28, 4, 5, SZ_UT, WS_UT); a.srd(32, 8, 9, 2048*1792); a.srd(76, 4, 5, SZ_MF, WS_MF)
    init_seen(a, 12, 74, 'wk_done')
    a('s_mul_i32 s11, s100, 28672'); a('v_lshlrev_b32 v6, 4, v2')
    for ks in range(28):
        if ks % 4 == 0: a('s_add_u32 s39, s11, %d', ks*1024)
        a('buffer_load_dwordx4 %s, v6, s[12:15], s39 offen offset:%d', ar(4*ks), (ks%4)*1024)
    a('v_lshrrev_b32 v7, 4, v5'); a('v_mul_u32_u24 v7, 14336, v7'); a('v_lshl_add_u32 v7, v4, 10, v7'); a('v_and_b32 v8, 15, v5'); a('v_lshl_add_u32 v7, v8, 4, v7')
    a('v_lshlrev_b32 v8, 5, v3'); a('v_lshl_add_u32 v8, v4, 4, v8')
    a('s_lshl_b32 s36, s100, 2'); a('s_add_u32 s36, s36, s10')
    a('s_mul_i32 s37, s36, 28672')
    a('s_mul_i32 s38, s36, %d', 4*28672)
    B0 = 16; B1A = 112; ACC = 128
    def buf(b, ks): return vr(B0+4*ks) if b == 0 else ar(B1A+4*ks)
    def ld(stream, b):
        for ks in range(28):
            if ks % 4 == 0:
                if stream == 0: a('s_add_u32 s39, s37, %d', ks*1024)
                else: a('s_add_u32 s39, s38, %d', (stream-1)*28672 + ks*512)
            if stream == 0: a('buffer_load_dwordx4 %s, v8, s[24:27], s39 offen offset:%d sc1', buf(b, ks), (ks%4)*1024)
            else: a('buffer_load_dwordx4 %s, v7, s[16:19], s39 offen offset:%d sc1', buf(b, ks), (ks%4)*256)
    def out_addrs(vb):
        V6, V7, V9, V8 = (6, 7, 9, 8) if vb is None else (vb, vb+1, vb+2, vb+3)
        a('s_mul_i32 s11, s100, %d', 16*448); a('s_lshl_b32 s75, s10, 5')
        if vb is not None: a('s_lshl_b32 s39, s73, 7'); a('s_add_u32 s75, s75, s39')
        a('s_add_u32 s11, s11, s75')
        a('v_add_u32 v%d, s11, v5', V8)
        a('s_mul_i32 s39, s100, %d', 16*28672); a('v_add_u32 v%d, s75, v5', V6); a('v_lshlrev_b32 v%d, 4, v%d', V6, V6); a('v_add_u32 v%d, s39, v%d', V6, V6)
        a('v_mul_u32_u24 v%d, 7168, v4', V7); a('v_add_u32 v%d, v%d, v%d', V6, V6, V7)
        a('v_lshlrev_b32 v%d, 4, v%d', V7, V8); a('v_lshl_add_u32 v%d, v4, 3, v%d', V7, V7)
        a('s_lshl_b32 s11, s100, 5'); a('v_add_u32 v%d, s11, v3', V9); a('v_mul_u32_u24 v%d, 1792, v%d', V9, V9); a('v_lshl_add_u32 v%d, v4, 4, v%d', V9, V9)
        a('s_lshl_b32 s75, s75, 1'); a('s_add_u32 s75, s75, 896'); a('v_add_u32 v%d, s75, v%d', V9, V9)
    a('v_lshlrev_b32 v9, 3, v4'); a('v_sub_u32 v9, v3, v9')
    for i in range(16):
        q, r_ = i >> 2, i & 3
        a('v_cmp_le_i32 s[%d:%d], %d, v9', 40+2*i, 41+2*i, 16*(q>>1) + 4*(q&1) + r_)
    a('s_mov_b32 s72, 0x%x', 0x3db8aa3b)
    a('v_mov_b32 v10, 0x%x', NEG)
    a('s_lshr_b32 s11, s100, 3'); a('s_lshl_b32 s11, s11, 10'); a('s_add_u32 s11, s11, %d', F_GX)
    flag_wait(a, 96, 's11', 224, 208, 74, 'wk_done')
    order = [1, 2, 3, 4, 0]
    ld(1, 0); ld(2, 1)
    for oi, st in enumerate(order):
        b = oi % 2
        if oi < 4: a('s_waitcnt vmcnt(28)' if oi < 3 else 's_waitcnt vmcnt(0)')
        for ks in range(28):
            acc = vr(ACC+16*st, 16)
            if oi == 4 and ks % 2 == 0: a('s_waitcnt vmcnt(%d)', (16 if sp else 0) + 26 - ks)
            a('v_mfma_f32_32x32x16_bf16 %s, %s, %s, %s', acc, buf(b, ks), ar(4*ks), '0' if ks == 0 else acc)
        if oi + 2 < 4:
            a('s_nop 0'); ld(order[oi+2], b)
        if oi == 3:
            if sp:
                out_addrs(208); a('s_nop 4')
                for h in range(16):
                    for k2 in range(2):
                        a('s_mov_b32 s39, %d', h*28672 + k2*14336)
                        a('buffer_load_dwordx4 %s, v208, s[20:23], s39 offen sc1', ar(112+8*h+4*k2))
            a.nop(16)
            for hl in range(4):
                S = ACC + 16*(hl+1); T = 16; XM = 244 + 2*hl
                for i in range(16): a('v_cndmask_b32_e64 v%d, v10, v%d, s[%d:%d]', S+i, S+i, 40+2*i, 41+2*i)
                a('v_max3_f32 v%d, v%d, v%d, v%d', T, S, S+1, S+2)
                for i in range(6): a('v_max3_f32 v%d, v%d, v%d, v%d', T, T, S+3+2*i, S+4+2*i)
                a('v_max_f32 v%d, v%d, v%d', T, T, S+15)
                a('v_mov_b32 v%d, v%d', T+1, T); a('s_nop 1')
                a('v_permlane32_swap_b32 v%d, v%d', T, T+1); a('s_nop 1')
                a('v_max_f32 v%d, v%d, v%d', T, T, T+1)
                a('v_mul_f32 v%d, s72, v%d', XM, T)
                for i in range(16): a('v_fma_f32 v%d, v%d, s72, -v%d', S+i, S+i, XM)
                for i in range(16): a('v_exp_f32 v%d, v%d', S+i, S+i)
                a('s_nop 0')
                a('v_add_f32 v%d, v%d, v%d', XM+1, S, S+1)
                for i in range(2, 16): a('v_add_f32 v%d, v%d, v%d', XM+1, XM+1, S+i)
            a('s_lshl_b32 s11, s100, 9'); a('v_lshlrev_b32 v14, 3, v2'); a('s_mov_b32 s74, 0')
            a.label('bf_wm' + SX)
            a('buffer_load_dwordx2 v[12:13], v14, s[76:79], s11 offen sc1')
            a('s_add_u32 s74, s74, 1'); a('s_cmp_gt_u32 s74, %d', WSPIN); a('s_cbranch_scc1 wk_done')
            a('s_waitcnt vmcnt(0)'); a('v_max_u32 v12, v12, v13')
            a('v_cmp_eq_u32 vcc, -1, v12'); a('s_cbranch_vccz bf_m' + SX); a('s_sleep %d', opt('bfs', 2) if sp else 8); a('s_branch bf_wm' + SX)
            a.label('bf_m' + SX)
            RT(a, 1)
            ld(0, 0)
            if sp:
                for h in range(16):
                    a('s_mov_b32 s39, %d', h*448*16)
                    a('buffer_load_dwordx2 %s, v209, s[28:31], s39 offen sc1', vr(212+2*h, 2))
    a.nop(16)
    RT(a, 2)
    a('v_lshlrev_b32 v11, 4, v2')
    a('s_lshl_b32 s11, s10, 13'); a('v_add_u32 v12, s11, v11')
    a('s_lshl_b32 s11, s10, 11'); a('v_add_u32 v13, s11, v11')
    T = 16; PMR = 40
    TT = [48+4*hl for hl in range(4)]
    def each(fn):
        for hl in range(4): fn(hl, ACC + 16*(hl+1), ACC + 4*hl, TT[hl], 244 + 2*hl)
    each(lambda hl, S, Mm, t, XM: a('v_max3_f32 v%d, v%d, v%d, v%d', t, Mm, Mm+1, Mm+2))
    each(lambda hl, S, Mm, t, XM: a('v_max_f32 v%d, v%d, v%d', t, t, Mm+3))
    each(lambda hl, S, Mm, t, XM: a('v_mov_b32 v%d, v%d', t+1, t))
    each(lambda hl, S, Mm, t, XM: a('v_permlane32_swap_b32 v%d, v%d', t, t+1))
    each(lambda hl, S, Mm, t, XM: a('v_max_f32 v%d, v%d, v%d', t, t, t+1))
    each(lambda hl, S, Mm, t, XM: a('v_mul_f32 v%d, s72, v%d', t, t))
    each(lambda hl, S, Mm, t, XM: a('v_max_f32 v%d, v%d, v%d', t, t, XM))
    each(lambda hl, S, Mm, t, XM: a('v_sub_f32 v%d, v%d, v%d', t+2, XM, t))
    each(lambda hl, S, Mm, t, XM: [a('v_fma_f32 v%d, v%d, s72, -v%d', Mm+i, Mm+i, t) for i in range(4)])
    each(lambda hl, S, Mm, t, XM: a('v_exp_f32 v%d, v%d', t+2, t+2))
    each(lambda hl, S, Mm, t, XM: [a('v_exp_f32 v%d, v%d', Mm+i, Mm+i) for i in range(4)])
    each(lambda hl, S, Mm, t, XM: a('v_fma_f32 v%d, v%d, v%d, v%d', t, t+2, XM+1, Mm))
    for i in range(1, 4): each(lambda hl, S, Mm, t, XM: a('v_add_f32 v%d, v%d, v%d', t, t, Mm+i))
    each(lambda hl, S, Mm, t, XM: a('v_mov_b32 v%d, v%d', t+1, t))
    each(lambda hl, S, Mm, t, XM: a('v_permlane32_swap_b32 v%d, v%d', t, t+1))
    each(lambda hl, S, Mm, t, XM: a('v_add_f32 v%d, v%d, v%d', t, t, t+1))
    each(lambda hl, S, Mm, t, XM: a('v_rcp_f32 v%d, v%d', t, t))
    each(lambda hl, S, Mm, t, XM: a('v_mul_f32 v%d, v%d, v%d', t+2, t+2, t))
    for hl in range(4):
        S = ACC + 16*(hl+1); Mm = ACC + 4*hl; t = TT[hl]; TO = 64 + 8*hl
        for i in range(8): a('v_pk_mul_f32 %s, %s, %s op_sel_hi:[1,0]', vr(S+2*i, 2), vr(S+2*i, 2), vr(t+2, 2))
        for i in range(2): a('v_pk_mul_f32 %s, %s, %s op_sel_hi:[1,0]', vr(Mm+2*i, 2), vr(Mm+2*i, 2), vr(t, 2))
        for i in range(8): a('v_cvt_pk_bf16_f32 v%d, v%d, v%d', TO+i, S+2*i, S+2*i+1)
        for i in range(2): a('v_cvt_pk_bf16_f32 v%d, v%d, v%d', PMR+2*hl+i, Mm+2*i, Mm+2*i+1)
        a('ds_write_b128 v12, %s offset:%d', vr(TO), hl*2048); a('ds_write_b128 v12, %s offset:%d', vr(TO+4), hl*2048+1024)
    a('s_nop 1')
    for hp in range(2): a('ds_write_b128 v13, %s offset:%d', vr(PMR+4*hp), 32768 + hp*1024)
    a('s_waitcnt lgkmcnt(0)'); a('s_barrier')
    RT(a, 3)
    if sp:
        OA = 176; OT = 192
        def pf(i): return ar(4*i) if i < 28 else vr(64+4*(i-28))
        a('s_cmp_lt_u32 s73, 3'); a('s_cbranch_scc1 bf4_go'); a('s_cmp_ge_u32 s10, 2'); a('s_cbranch_scc1 wk_loop')
        a.label('bf4_go')
        for i in range(40): a('ds_read_b128 %s, v11 offset:%d', pf(i), i*1024)
        for i in range(32):
            acc = vr(OA+16*(i&1), 16)
            if i % 4 == 0: a('s_waitcnt lgkmcnt(%d)', min(15, 36-i))
            a('v_mfma_f32_32x32x16_bf16 %s, %s, %s, %s', acc, ar(112+4*i), pf(i), '0' if i < 2 else acc)
        a('s_waitcnt vmcnt(0) lgkmcnt(0)')
        for hp in range(8):
            acc = vr(OA+16*(hp&1), 16)
            a('v_mfma_f32_32x32x16_bf16 %s, %s, %s, %s', acc, vr(212+4*hp), pf(32+hp), acc)
        a.nop(18)
        for i in range(8): a('v_pk_add_f32 %s, %s, %s', vr(OA+2*i, 2), vr(OA+2*i, 2), vr(OA+16+2*i, 2))
        for i in range(8): a('v_cvt_pk_bf16_f32 v%d, v%d, v%d', 16+i, OA+2*i, OA+2*i+1)
        for qq in range(2): a('buffer_store_dwordx4 %s, v210, s[32:35], 0 offen offset:%d', vr(16+4*qq), qq*32)
        a('s_branch wk_loop')
        return
    for i in range(40):
        a('ds_read_b128 %s, v11 offset:%d', ar(4*i), i*1024)
    out_addrs(None)
    OB = [16, 96]; OA = 176; OT = 192
    def ld2(it, hh, b):
        for h8 in range(8):
            h = 8*hh + h8
            for k2 in range(2):
                a('s_mov_b32 s39, %d', h*28672 + it*2048 + k2*14336)
                a('buffer_load_dwordx4 %s, v6, s[20:23], s39 offen sc1', vr(OB[b]+8*h8+4*k2))
            a('s_mov_b32 s39, %d', h*448*16 + it*128*16)
            a('buffer_load_dwordx2 %s, v7, s[28:31], s39 offen sc1', vr(OB[b]+64+2*h8, 2))
    units = [(it, hh) for it in range(4) for hh in range(2)]
    ld2(0, 0, 0)
    a('s_waitcnt lgkmcnt(0)')
    for ui, (it, hh) in enumerate(units):
        b = ui % 2
        if it == 3 and hh == 0:
            a('s_cmp_ge_u32 s10, 2'); a('s_cbranch_scc1 wk_loop')
        if ui + 1 < len(units):
            ld2(units[ui+1][0], units[ui+1][1], 1-b); a('s_waitcnt vmcnt(24)')
        else:
            a('s_waitcnt vmcnt(0)')
        acc = vr(OA, 16)
        for h8 in range(8):
            h = 8*hh + h8
            for k2 in range(2):
                a('v_mfma_f32_32x32x16_bf16 %s, %s, %s, %s', acc, vr(OB[b]+8*h8+4*k2), ar(8*h+4*k2), '0' if (hh == 0 and h8 == 0 and k2 == 0) else acc)
        for hp in range(4):
            a('v_mfma_f32_32x32x16_bf16 %s, %s, %s, %s', acc, vr(OB[b]+64+4*hp), ar(128+4*(4*hh+hp)), acc)
        if hh == 1:
            a.nop(16)
            for i in range(8): a('v_cvt_pk_bf16_f32 v%d, v%d, v%d', OT+i, OA+2*i, OA+2*i+1)
            for qq in range(2):
                a('buffer_store_dwordx4 %s, v9, s[32:35], 0 offen offset:%d', vr(OT+4*qq), it*256 + qq*32)
            a('s_nop 1')
    a('s_branch wk_loop')

def k_fold(a):
    a('s_load_dwordx4 s[4:7], s[0:1], %d', KA['A_wqkv'])
    a('s_load_dwordx2 s[8:9], s[0:1], %d', KA['A_wo'])
    a('s_load_dwordx2 s[10:11], s[0:1], %d', KA['ws'])
    a('v_lshrrev_b32 v1, 6, v0'); a('v_and_b32 v2, 63, v0'); a('s_nop 0')
    a('v_readfirstlane_b32 s3, v1')
    a('v_and_b32 v3, 31, v2'); a('v_lshrrev_b32 v4, 5, v2')
    a('s_waitcnt lgkmcnt(0)')
    a.srd(12, 4, 5, 448*1344*2); a.srd(16, 6, 7, 16*784*2); a.srd(20, 8, 9, 448*448*2)
    a.srd(24, 10, 11, SZ_WA, WS_WA); a.srd(28, 10, 11, SZ_WOT, WS_WOT)
    a('v_mov_b32 v9, 0x7ffffff0')
    a('s_cmp_ge_u32 s100, 224'); a('s_cbranch_scc1 fo_wo')
    a('s_cmp_ge_u32 s100, 112'); a('s_cbranch_scc1 fo_v')
    a('s_lshl_b32 s32, s100, 2'); a('s_add_u32 s32, s32, s3')
    a('s_mul_i32 s33, s32, 4682'); a('s_lshr_b32 s33, s33, 16')
    a('s_mul_i32 s34, s33, 14'); a('s_sub_u32 s34, s32, s34')
    a('s_lshr_b32 s35, s33, 4'); a('s_and_b32 s36, s33, 15')
    perm(a, 5, 3, 6)
    a('s_lshl_b32 s37, s34, 5'); a('v_add_u32 v6, s37, v5'); a('v_mul_u32_u24 v6, 2688, v6')
    a('s_mul_i32 s37, s35, 896'); a('s_mul_i32 s38, s36, 56'); a('s_add_u32 s37, s37, s38'); a('v_add_u32 v6, s37, v6')
    a('v_lshl_add_u32 v6, v4, 4, v6')
    for ks in range(2):
        a('buffer_load_dwordx4 %s, v6, s[12:15], 0 offen offset:%d', vr(16+4*ks), ks*32)
    a('s_mul_i32 s37, s36, 1568'); a('v_lshlrev_b32 v7, 1, v3'); a('v_add_u32 v7, s37, v7')
    a('v_mul_u32_u24 v8, 448, v4'); a('v_add_u32 v7, v7, v8')
    a('v_cmp_gt_u32 vcc, 28, v3'); a('s_nop 1'); a('v_cndmask_b32 v7, v9, v7, vcc')
    a('v_cmp_eq_u32 vcc, 0, v4'); a('s_nop 1'); a('v_cndmask_b32 v8, v9, v7, vcc')
    for ks in range(2):
        for q in range(8):
            a('buffer_load_ushort v%d, v%d, s[16:19], 0 offen offset:%d', 32+8*ks+q, 8 if (ks == 1 and q >= 4) else 7, (16*ks+q)*56)
    a('s_waitcnt vmcnt(0)')
    for i in range(8): a('v_lshl_or_b32 v%d, v%d, 16, v%d', 24+i, 32+2*i+1, 32+2*i)
    a('s_nop 1')
    a('v_mfma_f32_32x32x16_bf16 %s, %s, %s, 0', vr(48,16), vr(16), vr(24))
    a('v_mfma_f32_32x32x16_bf16 %s, %s, %s, %s', vr(48,16), vr(20), vr(28), vr(48,16))
    a.nop(18)
    for i in range(8): a('v_cvt_pk_bf16_f32 v%d, v%d, v%d', 64+i, 48+2*i, 49+2*i)
    a('s_lshl_b32 s37, s33, 5'); a('v_add_u32 v6, s37, v3'); a('v_mul_u32_u24 v6, 896, v6')
    a('s_lshl_b32 s37, s34, 6'); a('v_add_u32 v6, s37, v6'); a('v_lshl_add_u32 v6, v4, 4, v6')
    for qq in range(2):
        a('buffer_store_dwordx4 %s, v6, s[24:27], 0 offen offset:%d sc1', vr(64+4*qq), qq*32)
    a('s_branch fo_done')
    a.label('fo_v')
    a('s_sub_u32 s32, s100, 112'); a('s_lshl_b32 s32, s32, 8'); a('v_add_u32 v5, s32, v0')
    a('v_and_b32 v6, 511, v5'); a('v_lshrrev_b32 v7, 9, v5')
    a('v_lshrrev_b32 v8, 5, v6'); a('v_mul_u32_u24 v8, 28, v8'); a('v_add_u32 v8, v8, v3')
    a('v_mul_u32_u24 v10, %d, v7', 8*1344); a('v_add_u32 v8, v8, v10'); a('v_add_u32 v8, 896, v8'); a('v_lshlrev_b32 v8, 1, v8')
    a('v_cmp_gt_u32 vcc, 28, v3'); a('s_nop 1'); a('v_cndmask_b32 v8, v9, v8, vcc')
    a('s_mov_b32 s33, 0')
    for q in range(8):
        a('buffer_load_ushort v%d, v8, s[12:15], s33 offen', 32+q)
        a('s_add_u32 s33, s33, 2688')
    a('v_add_u32 v6, 1024, v6'); a('v_mul_u32_u24 v6, 896, v6'); a('v_lshl_add_u32 v6, v7, 4, v6')
    a('s_waitcnt vmcnt(0)')
    for i in range(4): a('v_lshl_or_b32 v%d, v%d, 16, v%d', 24+i, 32+2*i+1, 32+2*i)
    a('buffer_store_dwordx4 %s, v6, s[24:27], 0 offen sc1', vr(24))
    a('s_branch fo_done')
    a.label('fo_wo')
    a('s_sub_u32 s32, s100, 224'); a('s_lshl_b32 s32, s32, 2'); a('s_add_u32 s32, s32, s3')
    a('s_mov_b32 s33, 0x24924925'); a('s_mul_hi_u32 s33, s32, s33')
    a('s_mul_i32 s34, s33, 7'); a('s_sub_u32 s34, s32, s34')
    a('s_lshr_b32 s35, s33, 2'); a('s_and_b32 s36, s33, 3')
    a('s_lshl_b32 s37, s34, 6'); a('v_add_u32 v5, s37, v2')
    a('s_mul_i32 s37, s35, 28'); a('s_lshl_b32 s38, s36, 3'); a('s_add_u32 s37, s37, s38'); a('s_mul_i32 s37, s37, 896')
    a('v_lshlrev_b32 v6, 1, v5'); a('v_add_u32 v6, s37, v6')
    a('s_cmp_eq_u32 s36, 3'); a('s_cselect_b64 vcc, -1, 0'); a('v_cndmask_b32 v7, v6, v9, vcc')
    a('s_movk_i32 s39, 3584')
    for q in range(8):
        a('buffer_load_ushort v%d, v%d, s[20:23], %s offen offset:%d', 32+q, 7 if q >= 4 else 6, 's39' if q >= 4 else '0', (q&3)*896)
    a('v_lshlrev_b32 v8, 10, v5'); a('s_lshl_b32 s37, s33, 4'); a('v_add_u32 v8, s37, v8')
    a('s_waitcnt vmcnt(0)')
    for i in range(4): a('v_lshl_or_b32 v%d, v%d, 16, v%d', 24+i, 32+2*i+1, 32+2*i)
    a('buffer_store_dwordx4 %s, v8, s[28:31], 0 offen sc1', vr(24))
    a.label('fo_done')
    flag_set(a, 96, F_FOLD, 's100', 12, 74, 'wk_done')
    a('s_branch wk_loop')

LOG2E = 0x3fb8aa3b
def k_a1(a):
    flag_wait(a, 96, F_FOLD, 336, 12, 74, 'wk_done')
    flag_wait(a, 96, F_M, 224, 12, 74, 'wk_done')
    a('s_load_dwordx2 s[4:5], s[0:1], %d', KA['ws'])
    a('s_load_dwordx2 s[6:7], s[0:1], %d', KA['A_x'])
    a('v_lshrrev_b32 v1, 6, v0'); a('v_and_b32 v2, 63, v0'); a('s_nop 0')
    a('v_readfirstlane_b32 s10, v1')
    a('v_and_b32 v3, 31, v2'); a('v_lshrrev_b32 v4, 5, v2')
    a('s_and_b32 s8, s100, 15'); a('s_lshr_b32 s9, s100, 4')
    a('s_waitcnt lgkmcnt(0)')
    a.srd(12, 6, 7, 2048*896); a.srd(16, 4, 5, SZ_WA, WS_WA); a.srd(20, 4, 5, SZ_KV, WS_KV)
    a('s_lshl_b32 s11, s9, 2'); a('s_add_u32 s11, s11, s10'); a('s_lshl_b32 s11, s11, 5')
    a('v_add_u32 v6, s11, v3'); a('v_mul_u32_u24 v6, 896, v6'); a('v_lshl_add_u32 v6, v4, 4, v6')
    a('s_lshl_b32 s11, s8, 5'); a('s_add_u32 s11, s11, 512'); a('v_add_u32 v7, s11, v3'); a('v_mul_u32_u24 v7, 896, v7'); a('v_lshl_add_u32 v7, v4, 4, v7')
    a('s_mov_b32 s24, %d', 512*896)
    XF = 16
    for ks in range(28):
        a('buffer_load_dwordx4 %s, v6, s[12:15], 0 offen offset:%d', vr(XF+4*ks), ks*32)
        a('buffer_load_dwordx4 %s, v7, s[16:19], 0 offen offset:%d sc1', ar(4*ks), ks*32)
        a('buffer_load_dwordx4 %s, v7, s[16:19], s24 offen offset:%d sc1', ar(112+4*ks), ks*32)
    P = 128; V = 144; MX = 160; MN = 176; T = 192; EP = 208; EN = 224
    a('v_cmp_gt_u32 s[26:27], 28, v3'); a('v_cmp_eq_u32 s[28:29], 28, v3')
    a('v_mov_b32 v8, 0x%x', NEG); a('v_mov_b32 v9, 0x%x', NEG ^ 0x80000000); a('s_mov_b32 s30, 0x%x', LOG2E)
    a('v_mov_b32 v10, 1.0'); a('v_mov_b32 v11, 0')
    for ks in range(28):
        if ks % 4 == 0: a('s_waitcnt vmcnt(%d)', min(63, max(0, 84 - 3*(ks+4))))
        a('v_mfma_f32_32x32x16_bf16 %s, %s, %s, %s', vr(P,16), vr(XF+4*ks), ar(4*ks), '0' if ks == 0 else vr(P,16))
        a('v_mfma_f32_32x32x16_bf16 %s, %s, %s, %s', vr(V,16), vr(XF+4*ks), ar(112+4*ks), '0' if ks == 0 else vr(V,16))
    a.nop(18)
    def allred(R, op):
        for sh in (8, 4, 2, 1):
            for i in range(16):
                a('%s_dpp v%d, v%d, v%d row_ror:%d row_mask:0xf bank_mask:0xf', op, R+i, R+i, R+i, sh)
        for i in range(16): a('v_mov_b32 v%d, v%d', T+i, R+i)
        for i in range(16): a('v_permlane16_swap_b32 v%d, v%d', R+i, T+i)
        for i in range(16): a('%s v%d, v%d, v%d', op, R+i, R+i, T+i)
    for i in range(16):
        a('v_cndmask_b32_e64 v%d, v8, v%d, s[26:27]', MX+i, P+i)
        a('v_cndmask_b32_e64 v%d, v9, v%d, s[26:27]', MN+i, P+i)
    allred(MX, 'v_max_f32'); allred(MN, 'v_min_f32')
    for i in range(16):
        a('v_sub_f32 v%d, v%d, v%d', EP+i, P+i, MX+i); a('v_sub_f32 v%d, v%d, v%d', EN+i, MN+i, P+i)
    for i in range(16):
        a('v_mul_f32 v%d, s30, v%d', EP+i, EP+i); a('v_mul_f32 v%d, s30, v%d', EN+i, EN+i)
    for i in range(16):
        a('v_exp_f32 v%d, v%d', EP+i, EP+i); a('v_exp_f32 v%d, v%d', EN+i, EN+i)
    for i in range(16):
        a('v_cndmask_b32_e64 v%d, v11, v%d, s[26:27]', EP+i, EP+i); a('v_cndmask_b32_e64 v%d, v11, v%d, s[26:27]', EN+i, EN+i)
    for i in range(16):
        a('v_mov_b32 v%d, v%d', MX+i, EP+i); a('v_mov_b32 v%d, v%d', MN+i, EN+i)
    allred(MX, 'v_add_f32'); allred(MN, 'v_add_f32')
    for i in range(16):
        a('v_rcp_f32 v%d, v%d', MX+i, MX+i); a('v_rcp_f32 v%d, v%d', MN+i, MN+i)
    for i in range(16):
        a('v_mul_f32 v%d, v%d, v%d', EP+i, EP+i, MX+i); a('v_mul_f32 v%d, v%d, v%d', EN+i, EN+i, MN+i)
        a('v_cndmask_b32_e64 v%d, v%d, v10, s[28:29]', V+i, V+i)
    FP = 16; FN = 24; FV = 32
    for i in range(8):
        a('v_cvt_pk_bf16_f32 v%d, v%d, v%d', FP+i, EP+2*i, EP+2*i+1)
        a('v_cvt_pk_bf16_f32 v%d, v%d, v%d', FN+i, EN+2*i, EN+2*i+1)
        a('v_cvt_pk_bf16_f32 v%d, v%d, v%d', FV+i, V+2*i, V+2*i+1)
    a('s_nop 1')
    K0 = 48
    for sg, F in enumerate((FP, FN)):
        for k2 in range(2):
            acc = vr(K0+16*sg, 16)
            a('v_mfma_f32_32x32x16_bf16 %s, %s, %s, %s', acc, vr(FV+4*k2), vr(F+4*k2), '0' if k2 == 0 else acc)
    a.nop(18)
    a('v_lshlrev_b32 v12, 4, v2'); a('s_lshl_b32 s11, s10, 10'); a('v_add_u32 v13, s11, v12')
    for rq in range(8): a('ds_write_b128 v13, %s offset:%d', vr(K0+4*rq), rq*4096)
    a('s_waitcnt lgkmcnt(0)'); a('s_barrier')
    a('s_lshl_b32 s11, s10, 13'); a('v_add_u32 v13, s11, v12')
    for e in range(2):
        for w in range(4): a('ds_read_b128 %s, v13 offset:%d', vr(80+16*e+4*w), e*4096 + w*1024)
    a('s_lshl_b32 s11, s8, 5'); a('s_and_b32 s24, s10, 1'); a('s_lshl_b32 s24, s24, 4'); a('s_add_u32 s11, s11, s24'); a('s_lshl_b32 s11, s11, 8')
    a('s_lshr_b32 s24, s10, 1'); a('s_lshl_b32 s24, s24, 7'); a('s_add_u32 s11, s11, s24')
    a('v_lshlrev_b32 v14, 10, v4'); a('v_lshl_add_u32 v14, v3, 2, v14'); a('v_add_u32 v14, s11, v14')
    a('s_waitcnt lgkmcnt(0)')
    for e in range(2):
        for r_ in range(4):
            b = 80+16*e+r_
            a('v_add_f32 v%d, v%d, v%d', b, b, b+4); a('v_add_f32 v%d, v%d, v%d', b+8, b+8, b+12); a('v_add_f32 v%d, v%d, v%d', b, b, b+8)
    for e in range(2):
        for r_ in range(4):
            a('buffer_atomic_add_f32 v%d, v14, s[20:23], 0 offen offset:%d sc1', 80+16*e+r_, (8*e+r_)*256)
    flag_set(a, 96, F_A1, 's100', 12, 74, 'wk_done')
    a('s_branch wk_loop')

def k_a2(a):
    flag_wait(a, 96, F_FOLD, 336, 12, 74, 'wk_done')
    a('s_load_dwordx2 s[4:5], s[0:1], %d', KA['ws'])
    a('s_load_dwordx2 s[6:7], s[0:1], %d', KA['A_x'])
    a('s_load_dwordx2 s[8:9], s[0:1], %d', KA['out'])
    a('v_lshrrev_b32 v1, 6, v0'); a('v_and_b32 v2, 63, v0'); a('s_nop 0')
    a('v_readfirstlane_b32 s10, v1')
    a('v_and_b32 v3, 31, v2'); a('v_lshrrev_b32 v4, 5, v2')
    perm(a, 5, 3, 6)
    a('s_waitcnt lgkmcnt(0)')
    a.srd(12, 6, 7, 2048*896); a.srd(16, 4, 5, SZ_WA, WS_WA); a.srd(20, 4, 5, SZ_KV, WS_KV)
    a.srd(24, 4, 5, SZ_WOT, WS_WOT); a.srd(32, 8, 9, 2048*1792)
    a('s_lshl_b32 s11, s100, 5'); a('v_add_u32 v6, s11, v3'); a('v_mul_u32_u24 v6, 896, v6'); a('v_lshl_add_u32 v6, v4, 4, v6')
    for ks in range(28):
        a('buffer_load_dwordx4 %s, v6, s[12:15], 0 offen offset:%d', ar(4*ks), ks*32)
    a('s_lshl_b32 s11, s10, 7'); a('v_add_u32 v8, s11, v5'); a('v_mul_u32_u24 v7, 896, v8'); a('v_lshl_add_u32 v7, v4, 4, v7')
    a('v_lshlrev_b32 v8, 8, v8'); a('v_lshl_add_u32 v8, v4, 5, v8')
    B0 = 16; B1A = 112; ACC = 128; KVF = 192
    def buf(b, ks): return vr(B0+4*ks) if b == 0 else ar(B1A+4*ks)
    def ld(hl, b):
        a('s_mov_b32 s39, %d', hl*32*896)
        for ks in range(28):
            a('buffer_load_dwordx4 %s, v7, s[16:19], s39 offen offset:%d sc1', buf(b, ks), ks*32)
    a('v_cmp_eq_u32 s[40:41], 0, v4')
    a('v_mov_b32 v9, 0x%x', NEG); a('v_mov_b32 v10, 0x%x', NEG ^ 0x80000000); a('s_mov_b32 s30, 0x%x', LOG2E); a('v_mov_b32 v11, 0')
    ld(0, 0); ld(1, 1)
    for hl in range(4):
        b = hl % 2
        a('s_waitcnt vmcnt(28)' if hl < 3 else 's_waitcnt vmcnt(0)')
        for ks in range(28):
            acc = vr(ACC+16*hl, 16)
            a('v_mfma_f32_32x32x16_bf16 %s, %s, %s, %s', acc, buf(b, ks), ar(4*ks), '0' if ks == 0 else acc)
        if hl + 2 < 4:
            a('s_nop 0'); ld(hl+2, b)
    a.nop(16)
    flag_wait(a, 96, F_A1, 256, 224, 74, 'wk_done')
    a('v_lshlrev_b32 v12, 4, v2'); a('s_lshl_b32 s11, s10, 13'); a('v_add_u32 v13, s11, v12')
    EP = 16; EN = 32; T = 48; FP = 56; FK = 72; O = 88; OF = 104
    for hl in range(4):
        S = ACC + 16*hl
        a('s_mov_b32 s39, %d', hl*32*256)
        for i in range(8):
            a('buffer_load_dwordx4 %s, v8, s[20:23], s39 offen offset:%d sc1', vr(KVF+4*i), (i>>1)*64 + (i&1)*16)
        for i in range(4):
            a('v_cndmask_b32_e64 v%d, v9, v%d, s[40:41]', T+i, S+12+i); a('v_cndmask_b32_e64 v%d, v10, v%d, s[40:41]', T+4+i, S+12+i)
        a('v_max3_f32 v%d, v%d, v%d, v%d', T, T, T+1, T+2); a('v_min3_f32 v%d, v%d, v%d, v%d', T+4, T+4, T+5, T+6)
        a('v_max_f32 v%d, v%d, v%d', T, T, T+3); a('v_min_f32 v%d, v%d, v%d', T+4, T+4, T+7)
        for i in range(6):
            a('v_max3_f32 v%d, v%d, v%d, v%d', T, T, S+2*i, S+2*i+1); a('v_min3_f32 v%d, v%d, v%d, v%d', T+4, T+4, S+2*i, S+2*i+1)
        a('v_mov_b32 v%d, v%d', T+1, T); a('v_mov_b32 v%d, v%d', T+5, T+4); a('s_nop 1')
        a('v_permlane32_swap_b32 v%d, v%d', T, T+1); a('v_permlane32_swap_b32 v%d, v%d', T+4, T+5); a('s_nop 1')
        a('v_max_f32 v%d, v%d, v%d', T, T, T+1); a('v_min_f32 v%d, v%d, v%d', T+4, T+4, T+5)
        for i in range(16):
            a('v_sub_f32 v%d, v%d, v%d', EP+i, S+i, T); a('v_sub_f32 v%d, v%d, v%d', EN+i, T+4, S+i)
        for i in range(16):
            a('v_mul_f32 v%d, s30, v%d', EP+i, EP+i); a('v_mul_f32 v%d, s30, v%d', EN+i, EN+i)
        for i in range(16):
            a('v_exp_f32 v%d, v%d', EP+i, EP+i); a('v_exp_f32 v%d, v%d', EN+i, EN+i)
        a('s_nop 0')
        for i in range(12, 16):
            a('v_cndmask_b32_e64 v%d, v11, v%d, s[40:41]', EP+i, EP+i); a('v_cndmask_b32_e64 v%d, v11, v%d, s[40:41]', EN+i, EN+i)
        a('v_add_f32 v%d, v%d, v%d', T, EP, EP+1); a('v_add_f32 v%d, v%d, v%d', T+4, EN, EN+1)
        for i in range(2, 16):
            a('v_add_f32 v%d, v%d, v%d', T, T, EP+i); a('v_add_f32 v%d, v%d, v%d', T+4, T+4, EN+i)
        a('v_mov_b32 v%d, v%d', T+1, T); a('v_mov_b32 v%d, v%d', T+5, T+4); a('s_nop 1')
        a('v_permlane32_swap_b32 v%d, v%d', T, T+1); a('v_permlane32_swap_b32 v%d, v%d', T+4, T+5); a('s_nop 1')
        a('v_add_f32 v%d, v%d, v%d', T, T, T+1); a('v_add_f32 v%d, v%d, v%d', T+4, T+4, T+5)
        a('v_rcp_f32 v%d, v%d', T, T); a('v_rcp_f32 v%d, v%d', T+4, T+4); a('s_nop 0')
        for i in range(16):
            a('v_mul_f32 v%d, v%d, v%d', EP+i, EP+i, T); a('v_mul_f32 v%d, v%d, v%d', EN+i, EN+i, T+4)
        for i in range(16): a('v_cvt_pk_bf16_f32 v%d, v%d, v%d', FP+i, EP+2*i, EP+2*i+1)
        a('s_waitcnt vmcnt(0)')
        for i in range(16): a('v_cvt_pk_bf16_f32 v%d, v%d, v%d', FK+i, KVF+2*i, KVF+2*i+1)
        a('s_nop 1')
        for k in range(4):
            a('v_mfma_f32_32x32x16_bf16 %s, %s, %s, %s', vr(O,16), vr(FK+4*k), vr(FP+4*k), '0' if k == 0 else vr(O,16))
        a.nop(18)
        a('v_mov_b32 v%d, v%d', T, O+12); a('v_mov_b32 v%d, v%d', T+1, O+12); a('s_nop 1')
        a('v_permlane32_swap_b32 v%d, v%d', T, T+1); a('s_nop 1')
        a('v_add_f32 v%d, 0x358637bd, v%d', T+1, T+1)
        a('v_rcp_f32 v%d, v%d', T+1, T+1); a('s_nop 0')
        for i in range(16): a('v_mul_f32 v%d, v%d, v%d', O+i, O+i, T+1)
        for i in range(8): a('v_cvt_pk_bf16_f32 v%d, v%d, v%d', OF+i, O+2*i, O+2*i+1)
        a('ds_write_b128 v13, %s offset:%d', vr(OF), hl*2048); a('ds_write_b128 v13, %s offset:%d', vr(OF+4), hl*2048+1024)
        a('s_nop 1')
    a('s_waitcnt lgkmcnt(0)'); a('s_barrier')
    for i in range(32): a('ds_read_b128 %s, v12 offset:%d', ar(4*i), i*1024)
    a('s_lshl_b32 s11, s10, 5'); a('v_add_u32 v6, s11, v5'); a('v_lshlrev_b32 v6, 10, v6'); a('v_lshl_add_u32 v6, v4, 4, v6')
    a('s_lshl_b32 s11, s100, 5'); a('v_add_u32 v9, s11, v3'); a('v_mul_u32_u24 v9, 1792, v9'); a('v_lshl_add_u32 v9, v4, 4, v9')
    a('s_lshl_b32 s36, s10, 6'); a('v_add_u32 v9, s36, v9')
    OB = [16, 80]; OA = 144; OT = 160
    def ld2(it, hh, b):
        a('s_mov_b32 s39, %d', it*128*1024)
        for kk in range(16):
            a('buffer_load_dwordx4 %s, v6, s[24:27], s39 offen offset:%d sc1', vr(OB[b]+4*kk), (16*hh+kk)*32)
    units = [(it, hh) for it in range(4) for hh in range(2)]
    ld2(0, 0, 0)
    a('s_waitcnt lgkmcnt(0)')
    for ui, (it, hh) in enumerate(units):
        b = ui % 2
        if it == 3 and hh == 0:
            a('s_cmp_ge_u32 s10, 2'); a('s_cbranch_scc1 wk_loop')
        if ui + 1 < len(units):
            ld2(units[ui+1][0], units[ui+1][1], 1-b); a('s_waitcnt vmcnt(16)')
        else:
            a('s_waitcnt vmcnt(0)')
        acc = vr(OA, 16)
        for kk in range(16):
            a('v_mfma_f32_32x32x16_bf16 %s, %s, %s, %s', acc, vr(OB[b]+4*kk), ar(4*(16*hh+kk)), '0' if (hh == 0 and kk == 0) else acc)
        if hh == 1:
            a.nop(16)
            for i in range(8): a('v_cvt_pk_bf16_f32 v%d, v%d, v%d', OT+i, OA+2*i, OA+2*i+1)
            for qq in range(2):
                a('buffer_store_dwordx4 %s, v9, s[32:35], 0 offen offset:%d', vr(OT+4*qq), it*256 + qq*32)
            a('s_nop 1')
    a('s_branch wk_loop')


TASKS = [('mg', 224), ('tu', 32*NTU), ('fold', 336), ('a1', 256), ('a2', 64), ('bfin', 64-NSP), ('bf4', 4*NSP)]
def k_mega(a):
    n = 'mega_kernel'; a.begin(n)
    a('s_cmp_ge_u32 s2, 256'); a('s_cbranch_scc1 wk_done')
    init1(a)
    a('s_and_b32 s3, s2, 7'); a('s_cmp_eq_u32 s3, 0'); a('s_cbranch_scc1 ch_entry')
    a('s_movk_i32 s101, 2000'); a('s_mov_b32 s93, 0')
    a('s_load_dwordx2 s[4:5], s[0:1], %d', KA['ws']); a('s_waitcnt lgkmcnt(0)')
    a.srd(96, 4, 5, SZ_FL, WS_FL)
    if True:
        a('s_sub_u32 s100, s3, 1'); a('s_lshl_b32 s100, s100, 5'); a('s_lshr_b32 s3, s2, 3'); a('s_add_u32 s100, s100, s3')
        a('s_mov_b32 s101, s100')
        RT(a, 0)
        a('s_branch tk_mg')
    a.label('wk_loop')
    a('s_waitcnt vmcnt(0) lgkmcnt(0)'); a('s_barrier')
    RT(a, 7)
    dbg_srd(a, 80, 74)
    a('v_mov_b32 v1, 1'); a('v_mov_b32 v2, %d', C_TICKET*4); a('v_mov_b32 v3, %d', L_TK)
    a('v_cmp_eq_u32 vcc, 0, v0'); a('s_and_b64 exec, exec, vcc')
    a('buffer_atomic_add v1, v2, s[80:83], 0 offen sc0 sc1')
    a('s_waitcnt vmcnt(0)')
    a('ds_write_b32 v3, v1')
    a('s_mov_b64 exec, -1')
    a('s_waitcnt lgkmcnt(0)'); a('s_barrier')
    a('ds_read_b32 v1, v3'); a('s_waitcnt lgkmcnt(0)')
    a('v_readfirstlane_b32 s100, v1'); a('s_nop 3')
    a('s_add_u32 s101, s100, 224')
    RT(a, 0)
    tasks = [('mg', 224, t_mg), ('tu', 32*NTU, k_tu), ('fold', 336, k_fold), ('a1', 256, k_a1), ('a2', 64, k_a2), ('bfin', 64-NSP, k_bfin), ('bf4', 4*NSP, k_bf4)]
    for (nm, cnt, fn) in tasks[1:]:
        a('s_cmp_lt_u32 s100, %d', cnt); a('s_cbranch_scc1 tk_%s', nm)
        a('s_sub_u32 s100, s100, %d', cnt)
    a.label('wk_done')
    a('s_endpgm')
    for (nm, cnt, fn) in tasks:
        a.label('tk_%s' % nm); fn(a)
    a.label('ch_entry')
    k_chain(a)
    a.end(n, 256, 256)

def main():
    global INSTR
    INSTR = len(sys.argv) > 2
    a = Asm()
    k_mega(a)
    launches = [('mega_kernel', 256, 256, LDS_TOT)]
    out = HDR
    for (k, g, b, lds) in launches:
        out += '; @launch kernel=%s grid=(%d,1,1) block=(%d,1,1) lds=%d\n' % (k, g, b, lds)
    out += '.amdgcn_target "amdgcn-amd-amdhsa--gfx950"\n' + '\n'.join(a.l) + '\n'
    open(sys.argv[1] if len(sys.argv) > 1 else 'cdna_kernels/%s.s' % NAME, 'w').write(out)
if __name__ == '__main__': main()
```

```python
import sys
NAME = 'concat_heads__linear_kernel_hedgehog__memory_aug_recurrent_mem_tr__prompt'
HDR = open('cdna_kernels/%s.s.ref' % NAME).read().split('; Override launch')[0]

KA = dict(A_x=0, A_wqkv=8, A_w_phi=16, A_wo=24, B_x=32, B_mem0=40, B_Wq=48, B_Wk=56, B_Wv=64, B_Wo=72, seg=80, out=88, dbg=96, ws=104)
RS = 896
def al(x, a=4096): return (x + a - 1) // a * a
WS_M = 0;                 SZ_M = 2*16*448*RS
WS_GX = al(WS_M+SZ_M);    SZ_GX = 64*16*32*896
WS_VW = al(WS_GX+SZ_GX);  SZ_VW = 64*16*448*64
WS_TM = al(WS_VW+SZ_VW);  SZ_TM = 64*16*8*896
WS_UT = al(WS_TM+SZ_TM);  SZ_UT = 64*16*448*16
MBS = 14336
WS_MB = al(WS_UT+SZ_UT);  SZ_MB = 65*MBS
SBS = 10240
WS_SB = al(WS_MB+SZ_MB);  SZ_SB = 64*SBS
WS_M2 = al(WS_SB+SZ_SB);  SZ_M2 = 64*7168
WS_MF = al(WS_M2+SZ_M2);  SZ_MF = 64*512
WS_FL = al(WS_MF+SZ_MF);  SZ_FL = 16384
F_M = 0; F_FOLD = 1024; F_A1 = 3072; F_GX = 4096
WS_IN = WS_MB;     SZ_IN = WS_FL + SZ_FL - WS_IN
WS_P  = al(WS_FL+SZ_FL);  SZ_P = 128*4096 + 2048*64
WS_WA = al(WS_P+SZ_P);    SZ_WA = 1536*896
WS_WOT= al(WS_WA+SZ_WA);  SZ_WOT = 448*1024
WS_PQ = al(WS_WOT+SZ_WOT);SZ_PQ = 2048*16*128
WS_KV = al(WS_PQ+SZ_PQ);  SZ_KV = 16*64*32*4
WS_XF = al(WS_KV+SZ_KV);  SZ_X1 = 64*28672; SZ_XP = 64*32768; SZ_XF = 2*SZ_X1 + SZ_XP
WS_MQ = al(WS_XF+SZ_XF);  SZ_MQ = 16*401408
WS_PG = al(WS_MQ+SZ_MQ);  SZ_PG = 4096
WS_END = al(WS_PG+SZ_PG)

class Asm:
    def __init__(self): self.l = []; self.uid = 0
    def __call__(self, s, *a):
        self.l.append('    ' + (s % a if a else s))
    def label(self, s): self.l.append(s + ':')
    def c(self, s): self.l.append('    ; ' + s)
    def newlabel(self, p='L'):
        self.uid += 1; return '%s_%d' % (p, self.uid)
    def nop(self, n):
        while n > 0:
            k = min(n, 16); self('s_nop %d', k-1); n -= k
    def srd(self, d, lo, hi, size, off=0):
        if off:
            self('s_add_u32 s%d, s%d, 0x%x', d, lo, off & 0xffffffff)
            self('s_addc_u32 s%d, s%d, 0x%x', d+1, hi, off >> 32)
        else:
            self('s_mov_b32 s%d, s%d', d, lo); self('s_mov_b32 s%d, s%d', d+1, hi)
        self('s_mov_b32 s%d, 0x%x', d+2, size)
        self('s_mov_b32 s%d, 0x00020000', d+3)
    def begin(self, name):
        self.l += ['.text', '.globl %s' % name, '.p2align 8', '.type %s,@function' % name, name + ':']
    def end(self, name, vgpr, agpr=0, sgpr=102):
        acc = (vgpr + 3)//4*4
        self.l += ['    s_endpgm', '.section .rodata,"a"', '.p2align 6', '.amdhsa_kernel %s' % name,
          '  .amdhsa_next_free_vgpr %d' % (acc + agpr if agpr else vgpr), '  .amdhsa_next_free_sgpr %d' % sgpr,
          '  .amdhsa_accum_offset %d' % acc, '  .amdhsa_group_segment_fixed_size 0', '  .amdhsa_kernarg_size 112',
          '  .amdhsa_user_sgpr_count 2', '  .amdhsa_user_sgpr_kernarg_segment_ptr 1', '  .amdhsa_system_sgpr_workgroup_id_x 1',
          '.end_amdhsa_kernel']
def perm(a, d, src, t):
    a('v_and_b32 v%d, 0x13, v%d', d, src)
    a('v_and_b32 v%d, 4, v%d', t, src); a('v_lshl_or_b32 v%d, v%d, 1, v%d', d, t, d)
    a('v_and_b32 v%d, 8, v%d', t, src); a('v_lshrrev_b32 v%d, 1, v%d', t, t); a('v_or_b32 v%d, v%d, v%d', d, t, d)
def vr(b, n=4): return 'v[%d:%d]' % (b, b+n-1)
def ar(b, n=4): return 'a[%d:%d]' % (b, b+n-1)


INSTR = False
import os
OPT = dict(kv.split('=') for kv in os.environ.get('OPT','').split(',') if kv)
def opt(k, d=0): return int(OPT.get(k, d))
C_TICKET = 0; C_M = 1; C_INIT = 2; C_XCC = 3; C_P0 = 4; C_FOLD = 5; C_XF = 6; C_GX = 8
L_KS = 57344; SZ_KS = 64*528
L_TK = L_KS + 2*SZ_KS
LDS_TOT = L_TK + 64
NINIT = 256
WSPIN = 3000000
def RT(a, slot, idreg='s101', vt=254):
    if not INSTR: return
    a('s_load_dwordx2 s[88:89], s[0:1], %d', KA['ws']); a('s_memrealtime s[94:95]'); a('s_waitcnt lgkmcnt(0)')
    a.srd(88, 88, 89, SZ_P, WS_P)
    a('s_lshl_b32 s92, %s, 6', idreg); a('s_add_u32 s92, s92, %d', 128*4096)
    a('v_mov_b32 v%d, s94', vt); a('v_mov_b32 v%d, 0', vt+1)
    a('v_cmp_eq_u32 vcc, 0, v0'); a('s_and_b64 exec, exec, vcc')
    a('buffer_store_dword v%d, v%d, s[88:91], s92 offen offset:%d', vt, vt+1, slot*4)
    a('s_mov_b64 exec, -1')
def dbg_srd(a, d, t):
    a('s_load_dwordx2 s[%d:%d], s[0:1], %d', t, t+1, KA['dbg']); a('s_waitcnt lgkmcnt(0)')
    a.srd(d, t, t+1, 256)
def signal(a, d, cidx, vt, per_wave=False):
    a('s_waitcnt vmcnt(0)')
    if not per_wave: a('s_barrier')
    a('v_mov_b32 v%d, 1', vt); a('v_mov_b32 v%d, %d', vt+1, cidx*4)
    if per_wave: a('s_mov_b64 exec, 1')
    else:
        a('v_cmp_eq_u32 vcc, 0, v0'); a('s_and_b64 exec, exec, vcc')
    a('buffer_atomic_add v%d, v%d, s[%d:%d], 0 offen sc1', vt, vt+1, d, d+3)
    a('s_mov_b64 exec, -1')
def waitc(a, d, cidx, target, vt, st, fail, sleep=8, x2=False):
    L = a.newlabel('wc')
    a('v_mov_b32 v%d, %d', vt+1, cidx*4); a('s_mov_b32 s%d, 0', st)
    a.label(L)
    if x2: a('buffer_load_dwordx2 %s, v%d, s[%d:%d], 0 offen sc1', vr(vt+2, 2), vt+1, d, d+3); vt += 2
    else: a('buffer_load_dword v%d, v%d, s[%d:%d], 0 offen sc1', vt, vt+1, d, d+3)
    a('s_add_u32 s%d, s%d, 1', st, st); a('s_cmp_gt_u32 s%d, %d', st, WSPIN); a('s_cbranch_scc1 %s', fail)
    a('s_waitcnt vmcnt(0)')
    a('v_readfirstlane_b32 s%d, v%d', st+1, vt); a('s_nop 3')
    a('s_cmp_ge_u32 s%d, %d', st+1, target); a('s_cbranch_scc1 %s_ok', L)
    a('s_sleep %d', sleep); a('s_branch %s', L)
    a.label(L + '_ok')

def init_seen(a, vt, st, fail):
    L = a.newlabel('is')
    a('s_cmp_eq_u32 s93, 1'); a('s_cbranch_scc1 %s', L)
    a('s_mov_b32 s93, 1')
    a('v_readfirstlane_b32 s%d, v0', st); a('s_nop 3'); a('s_cmp_lt_u32 s%d, 64', st); a('s_cbranch_scc0 %s', L)
    dbg_srd(a, 84, st)
    waitc(a, 84, C_INIT, NINIT, vt, st, fail, 8)
    a.label(L)
def flag_set(a, d, base, idx, vt, st, fail, wait=True, chk=True):
    if chk: init_seen(a, vt, st, fail)
    if wait: a('s_waitcnt vmcnt(0)')
    a('s_barrier')
    a('v_mov_b32 v%d, 0', vt); a('s_lshl_b32 s%d, %s, 2', st, idx)
    if base >= 4096: a('s_add_u32 s%d, s%d, %d', st, st, base); base = 0
    a('v_cmp_eq_u32 vcc, 0, v0'); a('s_and_b64 exec, exec, vcc')
    a('buffer_store_dword v%d, v%d, s[%d:%d], s%d offen offset:%d sc1', vt, vt, d, d+3, st, base)
    a('s_mov_b64 exec, -1')
def flag_poll(a, d, base, count, vt, st, fail, sleep=8, lanev=None):
    L = a.newlabel('fw')
    nl = count // 4
    va = vt + 8
    a('v_and_b32 v%d, 63, v0', va); a('v_lshlrev_b32 v%d, 4, v%d', va, va)
    if isinstance(base, int): a('v_add_u32 v%d, %d, v%d', va, base, va)
    else: a('v_add_u32 v%d, %s, v%d', va, base, va)
    a('s_mov_b32 s%d, 0', st)
    for r_ in range(8): a('v_mov_b32 v%d, 0', vt+r_)
    a.label(L)
    def msk(n):
        a('s_mov_b32 exec_lo, 0x%x', 0xffffffff if n >= 32 else (1 << n) - 1); a('s_mov_b32 exec_hi, 0x%x', 0 if n <= 32 else (0xffffffff if n >= 64 else (1 << (n-32)) - 1))
    msk(nl)
    a('buffer_load_dwordx4 %s, v%d, s[%d:%d], 0 offen sc1', vr(vt), va, d, d+3)
    if nl > 64:
        msk(nl - 64)
        a('buffer_load_dwordx4 %s, v%d, s[%d:%d], 0 offen offset:1024 sc1', vr(vt+4), va, d, d+3)
    a('s_mov_b64 exec, -1')
    a('s_add_u32 s%d, s%d, 1', st, st); a('s_cmp_gt_u32 s%d, %d', st, WSPIN); a('s_cbranch_scc1 %s', fail)
    a('s_waitcnt vmcnt(0)')
    a('v_max3_u32 v%d, v%d, v%d, v%d', vt, vt, vt+1, vt+2); a('v_max3_u32 v%d, v%d, v%d, v%d', vt+4, vt+4, vt+5, vt+6)
    a('v_max3_u32 v%d, v%d, v%d, v%d', vt, vt, vt+3, vt+7); a('v_max_u32 v%d, v%d, v%d', vt, vt, vt+4)
    a('v_cmp_eq_u32 vcc, -1, v%d', vt); a('s_cbranch_vccz %s_ok', L)
    a('s_sleep %d', sleep); a('s_branch %s', L)
    a.label(L + '_ok')
def flag_wait(a, d, base, count, vt, st, fail, sleep=8, chk=True):
    L = a.newlabel('fx')
    if chk: init_seen(a, vt, st, fail)
    a('v_readfirstlane_b32 s%d, v0', st); a('s_nop 3'); a('s_cmp_lt_u32 s%d, 64', st); a('s_cbranch_scc0 %s', L)
    flag_poll(a, d, base, count, vt, st, fail, sleep)
    a.label(L)
    a('s_barrier')

def init1(a):
    a('s_load_dwordx2 s[80:81], s[0:1], %d', KA['ws']); a('s_load_dwordx2 s[82:83], s[0:1], %d', KA['B_x'])
    a('v_lshrrev_b32 v232, 6, v0'); a('v_and_b32 v233, 63, v0'); a('s_nop 0'); a('v_readfirstlane_b32 s3, v232')
    a('v_and_b32 v234, 31, v233'); a('v_lshrrev_b32 v235, 5, v233'); a('v_lshlrev_b32 v233, 4, v233')
    a('s_waitcnt lgkmcnt(0)')
    a.srd(68, 80, 81, SZ_XF, WS_XF); a.srd(72, 80, 81, SZ_IN, WS_IN); a.srd(76, 82, 83, 2048*896)
    a('s_lshl_b32 s80, s2, 2'); a('s_add_u32 s80, s80, s3')
    a('s_mul_i32 s81, s80, 4682'); a('s_lshr_b32 s81, s81, 16')
    a('s_mul_i32 s82, s81, 14'); a('s_sub_u32 s82, s80, s82')
    a('s_lshl_b32 s83, s81, 5'); a('v_add_u32 v234, s83, v234'); a('v_mul_u32_u24 v234, 896, v234'); a('v_lshl_add_u32 v234, v235, 4, v234')
    a('s_lshl_b32 s83, s82, 6'); a('v_add_u32 v234, s83, v234')
    for k in range(2): a('buffer_load_dwordx4 %s, v234, s[76:79], 0 offen offset:%d', vr(240+4*k), 32*k)
    a('v_and_b32 v232, 15, v0'); a('s_lshr_b32 s83, s80, 4'); a('s_lshl_b32 s83, s83, 1'); a('s_and_b32 s3, s80, 1'); a('s_add_u32 s83, s83, s3'); a('s_lshl_b32 s83, s83, 4')
    a('v_add_u32 v232, s83, v232'); a('v_mul_u32_u24 v232, 896, v232'); a('v_bfe_u32 v234, v0, 5, 1'); a('v_lshl_add_u32 v232, v234, 3, v232'); a('v_bfe_u32 v234, v0, 4, 1'); a('v_lshl_add_u32 v232, v234, 6, v232')
    a('s_bfe_u32 s83, s80, 0x20002'); a('s_mul_i32 s83, s83, 224'); a('s_bfe_u32 s3, s80, 0x10001'); a('s_lshl_b32 s3, s3, 7'); a('s_add_u32 s83, s83, s3')
    a('v_add_u32 v232, s83, v232')
    for hf in range(2):
        for dw in range(4): a('buffer_load_dword v%d, v232, s[76:79], 0 offen offset:%d', 224+4*hf+dw, (dw&1)*32 + hf*16 + (dw>>1)*4)
    a('s_lshl_b32 s83, s80, 11'); a('s_add_u32 s83, s83, %d', 2*SZ_X1); a('v_add_u32 v232, s83, v233')
    a('s_mul_i32 s81, s81, 28672'); a('s_lshl_b32 s82, s82, 11'); a('s_add_u32 s81, s81, s82')
    a('s_cmp_lt_u32 s80, 896'); a('s_cselect_b32 s81, s81, 0x40000000')
    a('v_add_u32 v235, s81, v233')
    NI = (SZ_IN + 1048575) // 1048576
    assert NI <= 4
    a('s_mul_i32 s80, s80, %d', NI*1024); a('v_add_u32 v234, s80, v233')
    for i in range(4): a('v_mov_b32 v%d, -1', 236+i)
    a('s_mov_b32 s83, %d', 64*28672)
def init2(a, n):
    NI = (SZ_IN + 1048575) // 1048576
    if opt('noinit'): return
    for i in range(NI): a('buffer_store_dwordx4 %s, v234, s[72:75], 0 offen offset:%d sc1', vr(236), i*1024)
    a('s_waitcnt vmcnt(%d)', min(63, n + (NI if opt('exw', 1) else 0)))
    for ab in range(2): a('buffer_store_dwordx4 %s, v232, s[68:71], 0 offen offset:%d sc1', vr(224+4*ab), ab*1024)
    for k in range(2):
        R = 240+4*k; D = 248+4*k
        a('buffer_store_dwordx4 %s, v235, s[68:71], 0 offen offset:%d sc1', vr(R), k*1024)
        a('v_mov_b32 v%d, v%d', D, R); a('v_mov_b32 v%d, v%d', D+1, R+2); a('v_mov_b32 v%d, v%d', D+2, R+1); a('v_mov_b32 v%d, v%d', D+3, R+3)
    a('s_nop 1')
    for k in range(2):
        D = 248+4*k
        a('v_permlane32_swap_b32 v%d, v%d', D, D+2); a('v_permlane32_swap_b32 v%d, v%d', D+1, D+3)
    a('s_nop 1')
    for k in range(2): a('buffer_store_dwordx4 %s, v235, s[68:71], s83 offen offset:%d sc1', vr(248+4*k), k*1024)

def t_mg(a):
    a('s_load_dwordx4 s[4:7], s[0:1], %d', KA['B_Wq'])
    a('s_load_dwordx4 s[8:11], s[0:1], %d', KA['B_Wv'])
    a('s_load_dwordx2 s[12:13], s[0:1], %d', KA['ws'])
    a('s_load_dwordx2 s[44:45], s[0:1], %d', KA['B_x'])
    a('s_load_dwordx2 s[46:47], s[0:1], %d', KA['dbg'])
    a('s_mov_b32 s14, 0x24924925'); a('s_mul_hi_u32 s15, s100, s14')
    a('s_mul_i32 s16, s15, 7'); a('s_sub_u32 s16, s100, s16')
    a('s_lshr_b32 s17, s15, 4')
    a('s_and_b32 s18, s15, 15')
    a('v_lshrrev_b32 v1, 6, v0'); a('v_and_b32 v2, 63, v0'); a('s_nop 0')
    a('v_readfirstlane_b32 s19, v1')
    a('v_and_b32 v3, 31, v2'); a('v_lshrrev_b32 v4, 5, v2')
    perm(a, 10, 3, 11)
    a('s_and_b32 s20, s19, 1'); a('s_lshr_b32 s21, s19, 1')
    a('s_waitcnt lgkmcnt(0)')
    a('s_cmp_eq_u32 s17, 0')
    a('s_cselect_b32 s24, s4, s10'); a('s_cselect_b32 s25, s5, s11')
    a('s_mov_b32 s26, 3670016'); a('s_mov_b32 s27, 0x00020000')
    a('s_cselect_b32 s28, s6, s8'); a('s_cselect_b32 s29, s7, s9')
    a('s_mov_b32 s30, 3670016'); a('s_mov_b32 s31, 0x00020000')
    a.srd(32, 12, 13, SZ_M, WS_M)
    a.srd(48, 12, 13, SZ_X1, WS_XF); a.srd(52, 12, 13, SZ_GX, WS_GX); a.srd(56, 12, 13, SZ_VW, WS_VW)
    a.srd(60, 46, 47, 256); a.srd(64, 12, 13, SZ_KV, WS_KV); a.srd(44, 12, 13, WS_PG + SZ_PG - WS_MQ, WS_MQ)
    a('v_mov_b32 v11, 0'); a('s_lshl_b32 s22, s100, 10'); a('v_lshlrev_b32 v12, 2, v0'); a('v_add_u32 v12, s22, v12')
    a('buffer_store_dword v11, v12, s[64:67], 0 offen sc1')
    def prog(val, vt=13):
        a('v_mov_b32 v%d, %d', vt, val); a('s_lshl_b32 s23, s100, 2'); a('s_add_u32 s23, s23, %d', WS_PG - WS_MQ); a('v_mov_b32 v%d, s23', vt+1)
        a('v_cmp_eq_u32 vcc, 0, v0'); a('s_and_b64 exec, exec, vcc')
        a('buffer_store_dword v%d, v%d, s[44:47], 0 offen sc1', vt, vt+1)
        a('s_mov_b64 exec, -1')
    prog(0)
    CI = opt('ci', 2); LG = opt('lg', 2); lastp = [0]; XL = opt('xl', 1)
    def cov(i): return i-1 if i <= LG else i-2
    NI2 = 0 if opt('noinit') else (SZ_IN + 1048575) // 1048576 + 6
    if not opt('exw', 1): NI2 = 0
    a('s_lshl_b32 s22, s16, 6'); a('s_lshl_b32 s23, s20, 5'); a('s_add_u32 s22, s22, s23')
    a('v_and_b32 v13, 0x19, v3'); a('v_and_b32 v14, 2, v3'); a('v_lshl_or_b32 v13, v14, 1, v13')
    a('v_and_b32 v14, 4, v3'); a('v_lshrrev_b32 v14, 1, v14'); a('v_or_b32 v13, v13, v14')
    a('s_cmp_eq_u32 s17, 0'); a('s_cselect_b64 vcc, -1, 0'); a('v_cndmask_b32 v13, v10, v13, vcc')
    a('v_add_u32 v5, s22, v13')
    a('s_mul_i32 s36, s21, 224'); a('s_lshl_b32 s37, s20, 4'); a('s_add_u32 s36, s36, s37'); a('v_add_u32 v6, s36, v4'); a('v_lshlrev_b32 v6, 13, v6')
    a('s_lshl_b32 s37, s18, 9'); a('v_add_u32 v6, s37, v6'); a('v_lshl_add_u32 v6, v3, 4, v6')
    a('s_lshl_b32 s38, s19, 4'); a('v_add_u32 v15, s38, v4'); a('v_mul_u32_u24 v15, 528, v15'); a('v_lshl_add_u32 v15, v3, 4, v15'); a('v_add_u32 v15, %d, v15', L_KS)
    JS = 16; KB = [80, 144]; ACC = 208; T = 224
    KD = opt('kd', 3)
    for i in range(7):
        a('s_add_u32 s%d, s16, %d', 4+i, i if opt('rot', 1) else 0); a('s_sub_u32 s11, s%d, 7', 4+i); a('s_cmp_ge_u32 s%d, 7', 4+i); a('s_cselect_b32 s%d, s11, s%d', 4+i, 4+i)
        if not opt('rot', 1): a('s_mov_b32 s%d, %d', 4+i, i)
    def ldk1(i):
        a('s_lshl_b32 s42, s%d, 18', 4+i)
        for m in range(8):
            a('s_add_u32 s43, s42, %d', 2*m*8192)
            a('buffer_load_dwordx4 %s, v6, s[28:31], s43 offen %s', ar(32*i+4*m), ['', 'nt', 'sc1'][opt('kmod')])
    I2P = opt('i2p', 2); WOC = opt('woc', 1)
    Qv = []
    def wt(tags):
        p_ = max(k for k, q in enumerate(Qv) if (q[0], q[1]) in tags)
        c0 = sum(q[2] for q in Qv[p_+1:]); c1 = sum(q[3] for q in Qv[p_+1:])
        a('s_waitcnt vmcnt(%d)', min(63, c0))
        if c1 < min(63, c0):
            L = a.newlabel('w1'); a('s_cmp_eq_u32 s17, 0'); a('s_cbranch_scc1 %s', L); a('s_waitcnt vmcnt(%d)', c1); a.label(L)
    def do_init2():
        init2(a, sum(min(q[2], q[3]) for q in Qv)); Qv.append(('in', 0, NI2, NI2)); RT(a, 10)
    def ldk(nj):
        del Qv[:]; Qv.append(('js', 0, nj, nj))
        for i in range(KD):
            ldk1(i); Qv.append(('ld', i, 8, 8))
            if (I2P == 1 and i == 0) or (I2P == 0 and i == KD-1): do_init2()
    def stk(i):
        for m in range(8): a('ds_write_b128 v15, %s offset:%d', ar(32*i+4*m), (i&1)*SZ_KS + m*1056)
    a('s_cmp_eq_u32 s17, 0'); a('s_cbranch_scc0 mm_mat1')
    a('s_lshl_b32 s39, s16, 6'); a('s_add_u32 s39, s39, s38'); a('v_add_u32 v7, s39, v4'); a('v_lshlrev_b32 v7, 13, v7')
    a('v_add_u32 v7, s37, v7'); a('v_lshl_add_u32 v7, v3, 4, v7')
    for m in range(8):
        a('s_mov_b32 s43, %d', 2*m*8192)
        a('buffer_load_dwordx4 %s, v7, s[24:27], s43 offen', vr(JS+4*m))
    ldk(8)
    wt([('js', 0)])
    a('v_mov_b32 v252, 1'); a('v_mov_b32 v253, %d', C_P0*4)
    a('v_cmp_eq_u32 vcc, 0, v0'); a('s_and_b64 exec, exec, vcc')
    a('buffer_atomic_add v252, v253, s[60:63], 0 offen sc1')
    a('s_mov_b64 exec, -1')
    for m in range(8): a('ds_write_b128 v15, %s offset:%d', vr(JS+4*m), SZ_KS + m*1056)
    wt([('ld', 0)])
    stk(0)
    a('s_waitcnt lgkmcnt(0)'); a('s_barrier')
    a('s_lshl_b32 s39, s20, 5'); a('v_add_u32 v7, s39, v13'); a('v_mul_u32_u24 v7, 528, v7'); a('v_lshl_add_u32 v7, v4, 4, v7'); a('v_add_u32 v7, %d, v7', L_KS + SZ_KS)
    for es in range(16): a('ds_read_b128 %s, v7 offset:%d', vr(JS+4*es), es*32)
    a('s_branch mm_go')
    a.label('mm_mat1')
    if WOC:
        a('s_mul_i32 s38, s18, 229376'); a('s_lshl_b32 s39, s16, 7'); a('s_add_u32 s38, s38, s39'); a('s_mul_i32 s39, s19, %d', 64*896); a('s_add_u32 s38, s38, s39')
        a('v_lshrrev_b32 v8, 3, v2'); a('v_and_b32 v9, 7, v2'); a('v_mul_u32_u24 v7, 896, v8'); a('v_add_u32 v7, s38, v7'); a('v_lshl_add_u32 v7, v9, 4, v7')
        for m in range(8):
            a('s_mov_b32 s39, %d', m*8*896)
            a('buffer_load_dwordx4 %s, v7, s[24:27], s39 offen', vr(JS+4*m))
        ldk(8)
        a('v_mul_u32_u24 v1, 144, v8'); a('v_lshl_add_u32 v1, v9, 4, v1'); a('s_mul_i32 s39, s19, %d', 64*144); a('v_add_u32 v1, s39, v1')
        a('v_mul_u32_u24 v7, 144, v10'); a('v_lshl_add_u32 v7, v4, 4, v7'); a('s_lshl_b32 s39, s20, 6'); a('v_add_u32 v7, s39, v7')
    else:
        a('s_mul_i32 s38, s18, 229376'); a('s_lshl_b32 s39, s22, 1'); a('s_add_u32 s38, s38, s39')
        a('v_mul_u32_u24 v7, 896, v10'); a('v_add_u32 v7, s38, v7'); a('v_lshl_add_u32 v7, v4, 4, v7')
        for et in range(8):
            a('s_mov_b32 s39, %d', et*32*896)
            for ks in range(2):
                a('buffer_load_dwordx4 %s, v7, s[24:27], s39 offen offset:%d', vr(80+8*et+4*ks), ks*32)
        ldk(16)
    a('v_lshlrev_b32 v8, 3, v4'); a('v_sub_u32 v8, v10, v8')
    a('v_mov_b32 v9, 0x3f80'); a('v_mov_b32 v11, 0x3f800000'); a('v_mov_b32 v12, 0')
    for ks in range(2):
        for q2 in range(4):
            r_ = 144 + 4*ks + q2
            a('v_cmp_eq_u32 vcc, %d, v8', 16*ks + 2*q2); a('v_cndmask_b32 v%d, v12, v9, vcc', r_)
            a('v_cmp_eq_u32 vcc, %d, v8', 16*ks + 2*q2 + 1); a('v_cndmask_b32 v%d, v%d, v11, vcc', r_, r_)
    wt([('js', 0)])
    a('v_mov_b32 v252, 1'); a('v_mov_b32 v253, %d', C_P0*4)
    a('v_cmp_eq_u32 vcc, 0, v0'); a('s_and_b64 exec, exec, vcc')
    a('buffer_atomic_add v252, v253, s[60:63], 0 offen sc1')
    a('s_mov_b64 exec, -1')
    if WOC:
        for m in range(8): a('ds_write_b128 v1, %s offset:%d', vr(JS+4*m), m*8*144)
        a('s_waitcnt lgkmcnt(0)'); a('s_barrier')
        for et in range(8):
            for ks in range(2): a('ds_read_b128 %s, v7 offset:%d', vr(80+8*et+4*ks), et*32*144 + ks*32)
    for et in range(8):
        ab = ACC if et % 2 == 0 else 160
        acc = vr(ab, 16)
        if WOC: a('s_waitcnt lgkmcnt(%d)', 14-2*et)
        a('v_mfma_f32_32x32x16_bf16 %s, %s, %s, 0', acc, vr(80+8*et), vr(144))
        a('v_mfma_f32_32x32x16_bf16 %s, %s, %s, %s', acc, vr(80+8*et+4), vr(148), acc)
        if et > 0:
            pb = ACC if et % 2 == 1 else 160
            for i in range(8): a('v_cvt_pk_bf16_f32 v%d, v%d, v%d', JS+8*(et-1)+i, pb+2*i, pb+2*i+1)
        if et == 0: a.nop(8)
    a.nop(18)
    for i in range(8): a('v_cvt_pk_bf16_f32 v%d, v%d, v%d', JS+56+i, 160+2*i, 160+2*i+1)
    wt([('ld', 0)])
    stk(0)
    a('s_waitcnt lgkmcnt(0)'); a('s_barrier')
    a.label('mm_go')
    RT(a, 4)
    Qv[0] = ('js', 0, 8, 8)
    if I2P == 3: do_init2()
    a('s_cmp_eq_u32 s17, 0'); a('s_cbranch_scc0 mm_a1')
    a('v_cmp_le_u32 vcc, 224, v5'); a('v_mov_b32 v8, 0'); a('v_mov_b32 v13, 0'); a('v_mov_b32 v9, 224'); a('v_mov_b32 v14, 1')
    a('v_cndmask_b32 v8, v8, v9, vcc'); a('v_cndmask_b32 v13, v13, v14, vcc')
    a('v_sub_u32 v8, v5, v8')
    a('s_lshl_b32 s40, s18, 1'); a('v_add_u32 v13, s40, v13')
    a('s_branch mm_a2')
    a.label('mm_a1')
    a('s_movk_i32 s40, 4682'); a('v_mul_u32_u24 v13, s40, v5'); a('v_lshrrev_b32 v13, 16, v13')
    a('v_mul_u32_u24 v8, 14, v13'); a('v_sub_u32 v8, v5, v8')
    a('s_mul_i32 s40, s18, 14'); a('s_add_u32 s40, s40, 224'); a('v_add_u32 v8, s40, v8')
    a.label('mm_a2')
    a('s_mov_b32 s40, 401408'); a('v_mul_lo_u32 v9, v13, s40')
    a('v_lshrrev_b32 v13, 4, v8'); a('v_mul_u32_u24 v13, 14336, v13'); a('v_add_u32 v9, v9, v13')
    a('v_and_b32 v8, 15, v8'); a('v_lshl_add_u32 v9, v8, 4, v9'); a('v_lshl_add_u32 v9, v4, 8, v9')
    a('s_mul_i32 s42, s21, 7168'); a('v_add_u32 v9, s42, v9'); a('v_add_u32 v8, 4096, v9')
    a('v_lshlrev_b32 v12, 4, v2')
    a('s_mul_i32 s40, s20, 28672'); a('s_mul_i32 s41, s21, 14336'); a('s_add_u32 s40, s40, s41'); a('v_add_u32 v11, s40, v12')
    a('s_mul_i32 s40, s18, 401408'); a('s_mul_i32 s41, s21, %d', 14*14336); a('s_add_u32 s40, s40, s41')
    a('s_lshl_b32 s41, s16, 11'); a('s_add_u32 s40, s40, s41'); a('s_lshl_b32 s41, s20, 10'); a('s_add_u32 s40, s40, s41')
    a('v_lshrrev_b32 v1, 4, v10'); a('v_mul_u32_u24 v1, 14336, v1'); a('v_add_u32 v1, s40, v1'); a('v_lshl_add_u32 v1, v4, 8, v1')
    a('v_and_b32 v13, 15, v10'); a('v_lshl_add_u32 v1, v13, 4, v1')
    a('s_lshl_b32 s39, s21, 5'); a('v_add_u32 v7, s39, v10'); a('v_mul_u32_u24 v7, 528, v7'); a('v_lshl_add_u32 v7, v4, 4, v7'); a('v_add_u32 v7, %d, v7', L_KS)
    pend = []
    AC2 = 144; T2 = 160
    def m0(fn):
        L = a.newlabel('m0'); a('s_cmp_eq_u32 s17, 0'); a('s_cbranch_scc0 %s', L); fn(); a.label(L)
    def mst(i, t):
        a('s_lshl_b32 s43, s%d, 10', 4+i)
        for qq in range(2): a('buffer_store_dwordx4 %s, v9, s[32:35], s43 offen offset:%d sc1', vr(T+t+4*qq), qq*512)
        def f():
            a('s_mul_i32 s43, s%d, 28672', 4+i)
            for qq in range(2): a('buffer_store_dwordx4 %s, v1, s[44:47], s43 offen offset:%d sc1', vr(T2+t+4*qq), qq*512)
        m0(f)
    def lst(i, t):
        a('s_lshl_b32 s43, s%d, 11', 4+i); a('v_add_u32 v8, s43, v11')
        for qq in range(2): a('ds_write_b128 v8, %s offset:%d', vr(T+t+4*qq), qq*1024)
    def cvts(t):
        for q in range(8): a('v_cvt_pk_bf16_f32 v%d, v%d, v%d', T+t+q, ACC+2*q, ACC+2*q+1)
        for q in range(8): a('v_cvt_pk_bf16_f32 v%d, v%d, v%d', T2+t+q, AC2+2*q, AC2+2*q+1)
    kb = KB[0]
    assert KD == 3
    for i in range(7):
        if i > 0: a('s_waitcnt lgkmcnt(0)'); a('s_barrier')
        if i == 3: RT(a, 5)
        if i == 1: RT(a, 8)
        if i == 2: RT(a, 9)
        if i == 6: RT(a, 6)
        if i == CI:
            a('v_mov_b32 v13, 1'); a('v_mov_b32 v14, %d', C_INIT*4)
            a('v_cmp_eq_u32 vcc, 0, v0'); a('s_and_b64 exec, exec, vcc')
            a('buffer_atomic_add v13, v14, s[60:63], 0 offen sc1')
            a('s_mov_b64 exec, -1')
        if i >= 2 and cov(i-1) + 1 > lastp[0]: lastp[0] = cov(i-1) + 1; prog(lastp[0])
        for es in range(16): a('ds_read_b128 %s, v7 offset:%d', vr(kb+4*es), (i&1)*SZ_KS + es*32)
        Ti = 8*((i-1) % 3)
        if i > 0:
            a.nop(4); cvts(Ti)
            mst(i-1, Ti); Qv.append(('st', i-1, 4, 2))
        if i + KD < 7: ldk1(i+KD); Qv.append(('ld', i+KD, 8, 8))
        if i == 0: a('s_waitcnt lgkmcnt(0)'); a('s_barrier')
        for es in range(16):
            if i > 0 and es % 4 == 0: a('s_waitcnt lgkmcnt(%d)', 12-es)
            a('v_mfma_f32_32x32x16_bf16 %s, %s, %s, %s', vr(ACC,16), vr(kb+4*es), vr(JS+4*es), '0' if es == 0 else vr(ACC,16))
            if es == 12:
                if i > 0: lst(i-1, Ti)
                if i < 6:
                    wt([('ld', i+1), ('st', cov(i))] + ([('in', 0)] if i == CI-1 else []))
                    stk(i+1)
                if i == 0 and I2P == 2: do_init2()
                if i == 6 and XL and lastp[0] < 5: wt([('st', 4)]); a('s_barrier'); prog(5)
        def f2():
            for es in range(16):
                a('v_mfma_f32_32x32x16_bf16 %s, %s, %s, %s', vr(AC2,16), vr(JS+4*es), vr(kb+4*es), '0' if es == 0 else vr(AC2,16))
        m0(f2)
    a.nop(18)
    Ti = 8*(6 % 3)
    cvts(Ti)
    lst(6, Ti)
    mst(6, Ti); Qv.append(('st', 6, 4, 2))
    if XL: wt([('st', 5)]); a('s_barrier'); prog(6)
    a('s_waitcnt lgkmcnt(0)')
    RT(a, 1)
    if opt('fm', 1):
        init_seen(a, 13, 22, 'wk_done')
        a('s_waitcnt vmcnt(0)'); a('s_barrier'); prog(8)
        flag_set(a, 96, F_M, 's100', 13, 22, 'wk_done', wait=False, chk=False)
    else:
        a('s_waitcnt vmcnt(0)'); a('s_barrier'); prog(8)
        flag_set(a, 96, F_M, 's100', 13, 22, 'wk_done')
    RT(a, 2)
    for f in range(56):
        a('ds_read_b128 %s, v12 offset:%d', ar(4*f), f*1024)
    a('s_cmp_eq_u32 s17, 0'); a('s_cselect_b64 vcc, -1, 0')
    a('v_cndmask_b32 v14, v10, v3, vcc')
    a('s_mul_i32 s22, s19, 28672'); a('v_lshl_add_u32 v5, v4, 5, v14'); a('v_lshlrev_b32 v5, 4, v5'); a('v_add_u32 v5, s22, v5')
    XB = [16, 72, 128]; GA = 184; GT = 216
    a('s_mov_b32 s36, 0')
    a('s_mov_b32 s37, 0')
    a('s_mov_b32 s38, 0')
    def ldx(c, b):
        for k in range(14):
            ks = 14*c + k
            if k == 0 or ks % 4 == 0: a('s_add_u32 s39, s36, %d', (ks//4)*4096)
            if not opt('mgnold'): a('buffer_load_dwordx4 %s, v5, s[48:51], s39 offen offset:%d', vr(XB[b]+4*k), (ks%4)*1024)
        if c == 1: a('s_add_u32 s36, s36, %d', 4*28672)
    ldx(0, 0); ldx(1, 1)
    a('s_waitcnt lgkmcnt(0)')
    a('s_cmp_eq_u32 s17, 0'); a('s_cbranch_scc0 gx_m1')
    for mat in range(2):
        if mat == 1: a.label('gx_m1')
        a('s_lshl_b32 s22, s19, 4'); a('s_add_u32 s22, s22, s18')
        if mat == 0:
            a('s_mul_i32 s22, s22, 28672'); a('s_lshl_b32 s23, s16, 11'); a('s_add_u32 s22, s22, s23')
            a('v_lshrrev_b32 v6, 4, v3'); a('v_mul_u32_u24 v6, 14336, v6'); a('v_add_u32 v6, s22, v6'); a('v_lshl_add_u32 v6, v4, 10, v6')
            a('v_and_b32 v7, 15, v3'); a('v_lshl_add_u32 v6, v7, 4, v6')
        else:
            a('s_mul_i32 s22, s22, 28672'); a('s_lshl_b32 s23, s16, 10'); a('s_add_u32 s22, s22, s23')
            a('v_lshlrev_b32 v6, 4, v10'); a('v_add_u32 v6, s22, v6'); a('v_mul_u32_u24 v7, 7168, v4'); a('v_add_u32 v6, v6, v7')
            a('v_add_u32 v7, 14336, v6')
        def sig(blk):
            flag_set(a, 96, F_GX + 1024*blk, 's100', 13, 22, 'wk_done', wait=False, chk=False)
        for it in range(16):
            for c in range(2):
                ch = 2*it + c
                b = ch % 3
                if ch + 2 < 32:
                    ldx(c, (ch+2) % 3)
                    a('s_waitcnt vmcnt(28)')
                    if c == 1 and it == 1 and opt('ge', 1): sig(8)
                    if c == 1 and it % 2 == 0 and it > 0:
                        sig(it//2 - 1)
                        if it == 2: RT(a, 3)
                else:
                    a('s_waitcnt vmcnt(%d)', 14 if ch == 30 else 0)
                for k in range(14):
                    ks = 14*c + k
                    for j2 in range(2):
                        m = ar((j2*28+ks)*4); x = vr(XB[b]+4*k); acc = vr(GA+16*j2, 16)
                        A, B = (m, x) if mat == 0 else (x, m)
                        if not opt('mgnomf') or ks == 0: a('v_mfma_f32_32x32x16_bf16 %s, %s, %s, %s', acc, A, B, '0' if ks == 0 else acc)
            a.nop(18)
            for i in range(16): a('v_cvt_pk_bf16_f32 v%d, v%d, v%d', GT+i, GA+2*i, GA+2*i+1)
            for j2 in range(2):
                for qq in range(2):
                    off = j2*512 + qq*256 if mat == 0 else j2*512
                    if not opt('mgnost'): a('buffer_store_dwordx4 %s, v%d, s[%d:%d], s37 offen offset:%d sc1', vr(GT+8*j2+4*qq), 7 if (mat == 1 and qq == 1) else 6, 52+4*mat, 55+4*mat, off)
            a('s_add_u32 s37, s37, %d', 4*16*28672)
        a('s_waitcnt vmcnt(0)'); sig(7)
        a('s_branch wk_loop')

L_MEM = 0; L_ZM = L_MEM + 8192; L_TP = L_ZM + 4096
L_RED = L_TP + 4096; L_RED2 = L_RED + 2048; L_PHI = L_RED2 + 1024; L_DUM = L_PHI + 1024; L_CHAIN = L_DUM + 1024
QT = [[0,1,2,3],[4,5,6,7],[8,9,10,11],[12,13]]
UTL = [[0,1,2],[3,4,5],[6,7,8],[9,10,11,12,13]]
SPIN = 200000
FORCE_SLOW = False
PRETOUCH = True
GM = ['sc1', '', 'nt', 'sc0'][opt('gm', 0)]
def load_weights(a, units, wreg4):
    a('s_mul_i32 s13, s2, 401408')
    for u, (kind, t) in enumerate(units):
        un = t if kind == 'q' else 14 + t
        for ks in range(14):
            if ks % 4 == 0: a('s_add_u32 s12, s13, %d', un*14336 + ks*1024)
            a('buffer_load_dwordx4 %s, v3, s[16:19], s12 offen offset:%d', wreg4(u, ks), (ks%4)*1024)
def common_addrs(a):
    a('v_mul_u32_u24 v1, 912, v25'); a('v_lshl_add_u32 v1, v24, 5, v1')
    a('v_lshrrev_b32 v26, 3, v23'); a('v_lshl_add_u32 v1, v26, 4, v1')
    a('v_mov_b32 v4, 0x4444'); a('v_mov_b32 v26, 0xeeee'); a('v_cmp_gt_u32 vcc, 8, v23'); a('s_nop 1'); a('v_cndmask_b32 v4, v26, v4, vcc')
    a('v_and_b32 v26, 1, v24'); a('v_lshlrev_b32 v6, 3, v26'); a('v_lshrrev_b32 v26, 1, v24'); a('v_lshl_add_u32 v6, v26, 2, v6')
    a('v_lshl_add_u32 v6, v23, 4, v6'); a('v_add_u32 v6, %d, v6', L_ZM)
def SM(a, acc, fr, w8):
    a('v_smfmac_f32_16x16x64_bf16 %s, %s, %s, v4', vr(acc), vr(fr), w8)
def fold_ops(R, dst):
    return ['v_permlane32_swap_b32 v%d, v%d' % (R, R+2), 'v_permlane32_swap_b32 v%d, v%d' % (R+1, R+3), 's_nop 0',
            'v_add_f32 v%d, v%d, v%d' % (R, R, R+2), 'v_add_f32 v%d, v%d, v%d' % (R+1, R+1, R+3),
            'v_cvt_pk_bf16_f32 v%d, v%d, v%d' % (dst, R, R+1)]

NTU = opt('ntu', 2)
def k_tu(a):
    flag_wait(a, 96, F_M, 224, 12, 74, 'wk_done')
    a('s_and_b32 s2, s100, 31'); a('s_lshr_b32 s52, s100, 5')
    a('s_load_dwordx2 s[4:5], s[0:1], %d', KA['ws'])
    a('s_lshr_b32 s6, s2, 1'); a('s_and_b32 s7, s2, 1')
    a('v_lshrrev_b32 v1, 6, v0'); a('v_and_b32 v22, 63, v0'); a('s_nop 0')
    a('v_readfirstlane_b32 s8, v1')
    a('v_and_b32 v23, 15, v22'); a('v_lshrrev_b32 v24, 4, v22'); a('v_and_b32 v25, 7, v22')
    a('v_lshlrev_b32 v3, 4, v22')
    a('s_waitcnt lgkmcnt(0)')
    a.srd(16, 4, 5, SZ_M, WS_M); a.srd(28, 4, 5, SZ_TM, WS_TM); a.srd(32, 4, 5, SZ_UT, WS_UT)
    a.srd(36, 4, 5, SZ_M2, WS_M2); a.srd(40, 4, 5, SZ_MF, WS_MF)
    a('v_cmp_gt_u32 s[72:73], 14, v23')
    a('v_cmp_gt_u32 s[44:45], 32, v22')
    a('v_cmp_gt_u32 s[46:47], 56, v22')
    a('s_mul_i32 s9, s2, 14'); a('s_and_b32 s15, s6, 3')
    common_addrs(a)
    a('v_and_b32 v26, 1, v24'); a('v_lshlrev_b32 v5, 7, v26'); a('v_lshrrev_b32 v26, 1, v24'); a('v_lshl_add_u32 v5, v26, 6, v5')
    a('v_bfe_u32 v26, v23, 1, 1'); a('v_lshl_add_u32 v5, v26, 4, v5')
    a('v_lshrrev_b32 v26, 2, v23'); a('v_lshl_add_u32 v5, v26, 2, v5')
    a('v_and_b32 v26, 1, v23'); a('v_lshl_add_u32 v5, v26, 1, v5'); a('v_add_u32 v5, %d, v5', L_TP)
    a('s_mul_i32 s12, s8, 1792'); a('v_add_u32 v15, s12, v3')
    a('s_mul_i32 s12, s8, 1824'); a('v_add_u32 v16, s12, v3')
    a('s_lshl_b32 s12, s8, 10'); a('v_add_u32 v11, s12, v3')
    a('v_mul_u32_u24 v14, 224, v24'); a('v_lshl_add_u32 v14, v23, 4, v14'); a('s_mul_i32 s12, s8, 896'); a('v_add_u32 v14, s12, v14')
    a('s_lshr_b32 s12, s6, 2'); a('s_mul_i32 s12, s12, 28'); a('s_mul_i32 s13, s7, 14'); a('s_add_u32 s12, s12, s13'); a('s_lshl_b32 s12, s12, 10')
    a('s_lshl_b32 s13, s15, 8'); a('s_add_u32 s12, s12, s13'); a('s_lshl_b32 s13, s8, 12'); a('s_add_u32 s12, s12, s13')
    a('v_lshlrev_b32 v12, 10, v24'); a('v_lshl_add_u32 v12, v23, 4, v12'); a('v_add_u32 v12, s12, v12')
    a('v_mul_u32_u24 v13, 448, v24'); a('v_add_u32 v13, v13, v23'); a('v_add_u32 v13, s9, v13'); a('v_lshlrev_b32 v13, 4, v13')
    a('s_mul_i32 s12, s8, %d', 4*448*16); a('v_add_u32 v13, s12, v13')
    a('s_lshl_b32 s57, s2, 4'); a('s_lshl_b32 s12, s8, 2'); a('s_add_u32 s57, s57, s12')
    a('s_lshl_b32 s12, s52, 9'); a('s_add_u32 s57, s57, s12')
    a('s_mul_i32 s53, s52, 7168'); a('s_mul_i32 s55, s52, %d', 16*8*896); a('s_mul_i32 s56, s52, %d', 16*448*16)
    for wv in range(1, 4):
        a('s_cmp_eq_u32 s8, %d', wv); a('s_cbranch_scc1 tu_w%d', wv)
    FR = 20; ACC = 48; WV = 88; PL = 76
    for wv in range(4):
        a.label('tu_w%d' % wv)
        qt = QT[wv]; ut = UTL[wv]; nq = len(qt)
        units = [('q', t) for t in qt] + [('u', t) for t in ut]
        def wreg4(u, ks): return ar(u*56 + ks*4) if u < 4 else vr(WV + (u-4)*56 + ks*4)
        def wreg8(u, s): return ar(u*56 + s*8, 8) if u < 4 else vr(WV + (u-4)*56 + s*8, 8)
        load_weights(a, units, wreg4)
        for r_ in range(8): a('v_mov_b32 v%d, 0', PL+r_)
        LP = 'tu_loop%d' % wv
        a.label(LP)
        a('s_mov_b32 s62, 0')
        a.label(LP + '_p')
        a('s_mov_b64 exec, s[46:47]')
        for k in range(2): a('buffer_load_dwordx4 %s, v15, s[36:39], s53 offen offset:%d sc1', vr(PL+4*k), k*896)
        a('s_mov_b64 exec, -1')
        a('s_waitcnt vmcnt(0)')
        a('s_cmp_eq_u32 s62, 0'); a('s_cbranch_scc0 %s_nf', LP)
        a('s_cmp_lt_u32 s52, %d', NTU); a('s_cbranch_scc1 %s_nf', LP)
        a('s_mov_b64 exec, 1'); a('buffer_store_dword v3, v3, s[40:43], s57 offen sc1'); a('s_mov_b64 exec, -1')
        a('s_add_u32 s57, s57, %d', 512*NTU)
        a.label(LP + '_nf')
        a('s_add_u32 s62, s62, 1'); a('s_cmp_gt_u32 s62, %d', WSPIN); a('s_cbranch_scc1 wk_done')
        a('v_max3_u32 v84, v%d, v%d, v%d', PL, PL+1, PL+2); a('v_max3_u32 v85, v%d, v%d, v%d', PL+3, PL+4, PL+5); a('v_max3_u32 v84, v84, v%d, v%d', PL+6, PL+7)
        a('v_max_u32 v84, v84, v85'); a('v_cmp_eq_u32 vcc, -1, v84'); a('s_cbranch_vccz %s_g', LP)
        a('s_sleep 2'); a('s_branch %s_p', LP)
        a.label(LP + '_g')
        a('s_mov_b64 exec, s[46:47]')
        for k in range(2): a('ds_write_b128 v16, %s offset:%d', vr(PL+4*k), L_MEM + k*912)
        a('s_mov_b64 exec, -1')
        for r_ in range(28): a('v_mov_b32 v%d, 0', ACC+r_)
        a('s_waitcnt lgkmcnt(0)'); a('s_barrier')
        for s in range(7): a('ds_read_b128 %s, v1 offset:%d', vr(FR+4*s), L_MEM + s*128)
        for s in range(7):
            a('s_waitcnt lgkmcnt(%d)', 6-s)
            for u in range(7): SM(a, ACC+4*u, FR+4*s, wreg8(u, s))
        a.nop(8)
        for u in range(7):
            for q in fold_ops(ACC+4*u, ACC+4*u): a(q)
        for u, t in enumerate(qt):
            a('ds_write_b16 v5, v%d offset:%d', ACC+4*u, 256*t); a('ds_write_b16_d16_hi v5, v%d offset:%d', ACC+4*u, 256*t+32)
        for k, t in enumerate(ut):
            a('ds_write_b32 v6, v%d offset:%d', ACC+4*(nq+k), 256*t)
        a('s_waitcnt lgkmcnt(0)'); a('s_barrier')
        a('ds_read_b128 %s, v11 offset:%d', vr(FR), L_TP); a('ds_read_b128 %s, v14 offset:%d', vr(FR+4), L_ZM)
        a('s_waitcnt lgkmcnt(1)')
        if wv == 3: a('s_mov_b64 exec, s[44:45]')
        a('buffer_store_dwordx4 %s, v12, s[28:31], s55 offen sc1', vr(FR))
        a('s_mov_b64 exec, s[72:73]'); a('s_waitcnt lgkmcnt(0)')
        a('buffer_store_dwordx4 %s, v13, s[32:35], s56 offen sc1', vr(FR+4))
        a('s_mov_b64 exec, -1')
        a('s_add_u32 s52, s52, %d', NTU); a('s_add_u32 s53, s53, %d', 7168*NTU); a('s_add_u32 s55, s55, %d', 16*8*896*NTU); a('s_add_u32 s56, s56, %d', 16*448*16*NTU)
        a('s_cmp_lt_u32 s52, 64'); a('s_cbranch_scc1 %s', LP)
        a('s_waitcnt vmcnt(0)')
        a('s_mov_b64 exec, 1'); a('buffer_store_dword v3, v3, s[40:43], s57 offen sc1'); a('s_mov_b64 exec, -1')
        a('s_branch wk_loop')

def k_chain(a):
    TSL = []
    def TS0(k):
        if not INSTR: return
        a('s_memrealtime s[64:65]' if opt('rt') else 's_memtime s[64:65]'); a('s_waitcnt lgkmcnt(0)')
        a('v_mov_b32 v63, s64')
        a('s_mov_b64 exec, 1')
        a('buffer_store_dword v63, v3, s[68:71], s67 offen offset:%d', 4*k)
        a('s_mov_b64 exec, -1')
    def TS(k):
        if not INSTR: return
        j = len(TSL); assert j < 7; TSL.append(k)
        a('%s s[%d:%d]', 's_memrealtime' if opt('rt') else 's_memtime', 88+2*j, 89+2*j)
    def TDUMP(extra=None):
        if not INSTR: return
        a('s_waitcnt lgkmcnt(0)')
        for j, k in enumerate(TSL): a('v_writelane_b32 v63, s%d, %d', 88+2*j, k)
        m = sum(1 << k for k in TSL)
        if extra:
            a('v_writelane_b32 v63, %s, 13', extra); m |= 1 << 13
        a('v_lshrrev_b32 v62, 2, v3')
        a('s_lshl_b32 s66, s52, 6'); a('s_add_u32 s66, s66, s67')
        a('s_mov_b64 exec, 0x%x', m)
        a('buffer_store_dword v63, v62, s[68:71], s66 offen')
        a('s_mov_b64 exec, -1'); a('s_nop 1')
        TSL.clear()
    def pub(fmt, *args):
        L = a.newlabel('pb')
        a('s_cmp_eq_u32 s63, 0'); a('s_cbranch_scc1 %s_s', L)
        a(fmt, *(args + ('',))); a('s_branch %s_d', L)
        a.label(L + '_s'); a(fmt, *(args + ('sc1',))); a.label(L + '_d')
    L_S = L_TP; L_R2 = L_TP; L_DM = L_TP + 6144
    LZ = 8192; L_S = 16384; L_R2 = 16384; L_DM = 16384 + 6144
    init2(a, 0)
    a('s_lshr_b32 s2, s2, 3')
    a('s_load_dwordx2 s[4:5], s[0:1], %d', KA['ws'])
    a('s_load_dwordx2 s[76:77], s[0:1], %d', KA['dbg'])
    a('s_load_dwordx2 s[78:79], s[0:1], %d', KA['B_mem0'])
    a('s_and_b32 s6, s2, 15')
    a('v_lshrrev_b32 v1, 6, v0'); a('v_and_b32 v22, 63, v0'); a('s_nop 0')
    a('v_readfirstlane_b32 s8, v1')
    a('v_and_b32 v23, 15, v22'); a('v_lshrrev_b32 v24, 4, v22'); a('v_and_b32 v25, 7, v22')
    a('v_lshlrev_b32 v3, 4, v22')
    a('s_waitcnt lgkmcnt(0)')
    a.srd(20, 4, 5, SZ_XF, WS_XF); a.srd(24, 4, 5, SZ_VW, WS_VW)
    a.srd(28, 4, 5, SZ_M2, WS_M2); a.srd(36, 4, 5, SZ_MB, WS_MB); a.srd(40, 4, 5, SZ_SB, WS_SB)
    a.srd(80, 76, 77, 256); a.srd(84, 78, 79, 7168)
    a('s_mov_b32 s52, 0')
    if INSTR:
        a.srd(68, 4, 5, SZ_P, WS_P)
        a('s_lshl_b32 s67, s2, 2'); a('s_add_u32 s67, s67, s8'); a('s_lshl_b32 s67, s67, 12')
    TS0(8)
    a('s_add_u32 s101, s2, 1900'); RT(a, 0)
    a.srd(72, 4, 5, SZ_FL, WS_FL)
    for r_ in range(4): a('v_mov_b32 v%d, 0', 40+r_)
    a('v_lshlrev_b32 v9, 5, v0')
    a('ds_write_b128 v9, %s', vr(40)); a('ds_write_b128 v9, %s offset:16', vr(40))
    a('v_lshrrev_b32 v26, 3, v23'); a('v_mul_u32_u24 v26, 7, v26'); a('v_lshl_add_u32 v26, v24, 1, v26'); a('s_mul_i32 s12, s6, 14'); a('v_add_u32 v26, s12, v26')
    a('v_mul_u32_u24 v27, 896, v25')
    a('v_lshl_add_u32 v8, v26, 2, v27')
    a('buffer_load_dwordx2 %s, v8, s[84:87], 0 offen', vr(18, 2))
    for e, (vu, vq) in enumerate(((11, 13), (12, 2))):
        a('v_add_u32 v28, %d, v26', e)
        a('v_lshrrev_b32 v29, 3, v28'); a('v_lshl_add_u32 v29, v29, 5, v27')
        a('v_and_b32 v30, 1, v28'); a('v_bfe_u32 v31, v28, 1, 2'); a('v_lshl_add_u32 v31, v30, 2, v31'); a('v_lshl_add_u32 v%d, v31, 2, v29', vu)
        a('v_bfe_u32 v31, v28, 2, 1'); a('v_lshl_add_u32 v31, v30, 1, v31'); a('v_bfe_u32 v30, v28, 1, 1'); a('v_lshl_add_u32 v31, v30, 2, v31')
        a('v_lshl_add_u32 v%d, v31, 2, v29', vq); a('v_add_u32 v%d, 7168, v%d', vq, vq)
    a('v_mov_b32 v28, 0x40000000'); a('v_cmp_eq_u32 vcc, 3, v24'); a('s_nop 1')
    a('v_cndmask_b32 v12, v12, v28, vcc'); a('v_cndmask_b32 v2, v2, v28, vcc')
    a('s_getreg_b32 s12, hwreg(HW_REG_XCC_ID, 0, 4)'); a('s_lshl_b32 s12, 1, s12')
    a('v_mov_b32 v48, s12'); a('v_mov_b32 v49, %d', C_XCC*4)
    a('v_cmp_eq_u32 vcc, 0, v0'); a('s_and_b64 exec, exec, vcc')
    a('buffer_atomic_or v48, v49, s[80:83], 0 offen sc1')
    a('s_mov_b64 exec, -1')
    signal(a, 80, C_INIT, 36)
    a('v_mov_b32 v50, %d', L_TK)
    a('s_cmp_eq_u32 s8, 0'); a('s_cbranch_scc0 ch_iw')
    waitc(a, 80, C_P0, 224, 36, 12, 'ch_done', opt('cis', 8))
    a.label('ch_iw')
    a('s_barrier')
    def s63_from(v):
        a('v_readfirstlane_b32 s12, v%d', v); a('s_nop 3')
        a('s_bcnt1_i32_b32 s12, s12'); a('s_cmp_eq_u32 s12, 1'); a('s_cselect_b32 s63, 1, 0')
        if FORCE_SLOW: a('s_mov_b32 s63, 0')
    def mpub(T, so, s2o):
        L = a.newlabel('mp')
        a('v_min_u32 v%d, 0xfffffffe, v%d', T, T); a('v_min_u32 v%d, 0xfffffffe, v%d', T+1, T+1)
        a('s_cmp_eq_u32 s63, 0'); a('s_cbranch_scc1 %s_s', L)
        for m in ('', 'sc1'):
            if m: a.label(L + '_s')
            for d, va in ((T, 13), (T+1, 2), (T, 11), (T+1, 12)): a('buffer_store_dword v%d, v%d, s[36:39], %s offen %s', d, va, so, m)
            if not m: a('s_branch %s_d', L)
        a.label(L + '_d')
    def m2l(T): return ['buffer_store_dword v%d, v%d, s[28:31], s55 offen sc1' % (d, va) for d, va in ((T, 11), (T+1, 12))] + ['s_add_u32 s55, s55, 7168']
    def after_init(isu):
        L = a.newlabel('ai')
        a('s_cmp_eq_u32 s8, 0'); a('s_cbranch_scc0 %s', L)
        waitc(a, 80, C_INIT, NINIT, 36, 12, 'ch_done', 8, x2=True)
        a('ds_write_b32 v50, v39')
        if isu:
            s63_from(39)
            mpub(18, '0', '0')
        a.label(L)
    def after_ldw():
        a('s_waitcnt lgkmcnt(0)'); a('s_barrier')
        a('ds_read_b32 v48, v50'); a('s_waitcnt lgkmcnt(0)')
        s63_from(48)
    TS0(9)
    PG = opt('pg', 1)
    assert PG
    a.srd(32, 4, 5, SZ_PG, WS_PG)
    a('s_mov_b32 s76, s72'); a('s_mov_b32 s77, s73'); a('s_mov_b32 s78, s74'); a('s_mov_b32 s79, s75')
    TS0(10)
    a('v_cmp_gt_u32 s[46:47], 56, v22')
    common_addrs(a)
    a('s_mul_i32 s12, s8, 1792'); a('v_add_u32 v15, s12, v3')
    a('s_mul_i32 s12, s8, 1824'); a('v_add_u32 v14, s12, v3')
    a('s_mov_b32 s53, 0'); a('s_mov_b32 s54, 0'); a('s_mov_b32 s55, 0'); a('s_mov_b32 s59, %d', MBS)
    FR = 20; WV = 88; ZA = 224; ID = 16
    def wreg4(u, ks): return ar(u*56 + ks*4) if u < 4 else vr(WV + (u-4)*56 + ks*4)
    def wreg8(u, s): return ar(u*56 + s*8, 8) if u < 4 else vr(WV + (u-4)*56 + s*8, 8)
    def ldw():
        for u in range(7):
            for ks in range(14):
                if ks % 4 == 0: a('s_add_u32 s12, s13, %d', u*14336 + ks*1024)
                a('buffer_load_dwordx4 %s, v3, s[16:19], s12 offen offset:%d', wreg4(u, ks), (ks%4)*1024)
    def ldw_pg(L, rounds, isu):
        for u in range(7): a('s_add_u32 s%d, s13, %d', 88+u, u*14336)
        a('v_add_u32 v43, 4096, v3'); a('v_add_u32 v44, 8192, v3'); a('v_add_u32 v45, 12288, v3')
        def ld(u, ks): a('buffer_load_dwordx4 %s, v%d, s[16:19], s%d offen offset:%d', wreg4(u, ks), [3, 43, 44, 45][ks//4], 88+u, (ks%4)*1024)
        def pl(): a('buffer_load_dword v42, v40, s[32:35], 0 offen sc1')
        def ck(): a('v_sub_u32 v42, v42, v41'); a('v_cmp_gt_i32 vcc, %d, v42', th)
        a('s_mov_b32 s62, 0')
        for r_, th in enumerate((1, 2, 3, 4, 5, 6, 7)):
            if r_ > 0:
                for j, (u, ks) in enumerate(rounds[r_-1]):
                    if j == 4: pl()
                    ld(u, ks)
                a('s_waitcnt vmcnt(10)'); ck(); a('s_cbranch_vccz %s_k%d', L, r_)
            a.label('%s_s%d' % (L, r_))
            pl()
            a('s_add_u32 s62, s62, 1'); a('s_cmp_gt_u32 s62, %d', WSPIN); a('s_cbranch_scc1 ch_done')
            a('s_waitcnt vmcnt(0)'); ck(); a('s_cbranch_vccz %s_k%d', L, r_)
            a('s_sleep 4'); a('s_branch %s_s%d', L, r_)
            a.label('%s_k%d' % (L, r_))
            if opt('pgt') and r_ < 4: TS0([12, 15, 7, 8][r_])
            if r_ == opt('air', 2): after_init(isu)
        for rr in rounds[6:]:
            for (u, ks) in rr: ld(u, ks)
    def poll_mem(LP, slp, pipe=0, R=20):
        a('s_mov_b32 s62, 0')
        if slp: a('s_sleep %d', slp)
        if not opt('fts'): TS(14)
        a('s_mov_b64 exec, s[46:47]')
        def ld(R):
            for k in range(2): a('buffer_load_dwordx4 %s, v15, s[36:39], s53 offen offset:%d sc1', vr(R+4*k), k*896)
        def ck(R):
            a('v_max3_u32 v36, v%d, v%d, v%d', R, R+1, R+2); a('v_max3_u32 v37, v%d, v%d, v%d', R+3, R+4, R+5)
            a('v_max3_u32 v36, v36, v%d, v%d', R+6, R+7); a('v_max_u32 v36, v36, v37')
            a('v_cmp_eq_u32 vcc, -1, v36')
        def wr(R):
            for k in range(2): a('ds_write_b128 v14, %s offset:%d', vr(R+4*k), L_MEM + k*912)
        if not pipe:
            a.label(LP + '_pm')
            ld(R)
            a('s_add_u32 s62, s62, 1'); a('s_cmp_gt_u32 s62, %d', SPIN); a('s_cbranch_scc1 ch_done')
            a('s_waitcnt vmcnt(0)')
            ck(R); a('s_cbranch_vccnz %s_pm', LP)
            wr(R)
        else:
            ld(R); a('s_sleep %d', pipe)
            a.label(LP + '_pm')
            ld(R+8)
            a('s_add_u32 s62, s62, 1'); a('s_cmp_gt_u32 s62, %d', SPIN); a('s_cbranch_scc1 ch_done')
            a('s_waitcnt vmcnt(2)')
            ck(R); a('s_cbranch_vccz %s_pa', LP)
            ld(R)
            a('s_waitcnt vmcnt(2)')
            ck(R+8); a('s_cbranch_vccnz %s_pm', LP)
            wr(R+8); a('s_branch %s_pb', LP)
            a.label(LP + '_pa')
            wr(R)
            a.label(LP + '_pb')
        a('s_mov_b64 exec, -1')
        TS(0)
        a('s_waitcnt lgkmcnt(0)')
        a('s_barrier')
        for s in range(7): a('ds_read_b128 %s, v1 offset:%d', vr(FR+4*s), L_MEM + s*128)
        TS(1)
    def cv(d, s_): return 'v_cvt_pk_bf16_f32 v%d, v%d, v%d' % (d, s_, s_+1)
    def tmf(b): return 'v_mfma_f32_16x16x32_bf16 %s, %s, %s, 0' % (vr(b+4), vr(b), vr(ID))
    def zz(r_): return 'v_mov_b32 v%d, 0' % r_
    def step_end(LP, fin=[]):
        a('s_add_u32 s52, s52, 1'); a('s_add_u32 s53, s53, %d', MBS); a('s_add_u32 s54, s54, %d', SBS)
        a('s_cmp_lt_u32 s52, 63'); a('s_cbranch_scc1 %s', LP)
        for q in fin: a(q)
        a('s_waitcnt vmcnt(0)')
        a('s_branch ch_done')
    def gx_wait(L, pro=False):
        if pro: a('s_mov_b32 s12, %d', 64 if opt('ge', 1) else 0)
        else:
            if opt('ge', 1): a('s_cmp_eq_u32 s12, 4'); a('s_cselect_b32 s12, 0, s12')
            a('s_and_b32 s13, s12, 7'); a('s_cmp_eq_u32 s13, 0'); a('s_cbranch_scc0 %s_ng', L)
            a('s_cmp_lt_u32 s12, 64'); a('s_cbranch_scc0 %s_ng', L)
        a('s_cmp_eq_u32 s8, 3'); a('s_cbranch_scc0 %s_ng', L)
        a('s_lshl_b32 s12, s12, 7'); a('s_add_u32 s12, s12, %d', F_GX)
        flag_poll(a, 76, 's12', 224, 20, 62, 'ch_done', 1)
        a.label(L + '_ng')
    a('s_cmp_ge_u32 s2, 16'); a('s_cbranch_scc1 ch_u')
    a.srd(16, 4, 5, SZ_MQ, WS_MQ)
    a('s_mul_i32 s13, s6, 401408'); a('s_mul_i32 s12, s8, %d', 7*14336); a('s_add_u32 s13, s13, s12')
    if PG:
        a('v_min_u32 v40, 6, v22'); a('s_mul_i32 s12, s6, 7'); a('v_add_u32 v40, s12, v40'); a('v_lshlrev_b32 v40, 2, v40'); a('v_mov_b32 v41, 0')
        a('s_and_b32 s12, s8, 1'); a('s_cmp_eq_u32 s12, 1'); a('s_cbranch_scc1 qw_1')
        for pv in range(2):
            a.label('qw_%d' % pv)
            ldw_pg('qw%d' % pv, [[(u, 2*((((7*pv+u)>>1) - r_) % 7) + e) for u in range(7) for e in range(2)] for r_ in range(7)], False)
            a('s_branch qw_d')
        a.label('qw_d')
        after_ldw()
    else: ldw()
    a('v_add_u32 v15, 7168, v15')
    a('v_and_b32 v26, 1, v24'); a('v_lshrrev_b32 v27, 1, v24')
    a('v_mul_u32_u24 v2, 912, v25'); a('v_lshl_add_u32 v2, v26, 6, v2'); a('v_lshl_add_u32 v2, v27, 4, v2'); a('s_mul_i32 s12, s8, 224'); a('v_add_u32 v2, s12, v2')
    a('v_lshl_add_u32 v28, v26, 1, v27'); a('v_mul_u32_u24 v28, 1360, v28'); a('s_lshl_b32 s12, s8, 2'); a('s_add_u32 s12, s12, %d', L_S); a('v_add_u32 v28, s12, v28')
    a('v_and_b32 v29, 3, v23'); a('v_mul_u32_u24 v29, 272, v29'); a('v_add_u32 v5, v28, v29'); a('v_lshrrev_b32 v29, 2, v23'); a('v_lshl_add_u32 v5, v29, 5, v5')
    a('v_lshl_add_u32 v7, v23, 5, v28'); a('v_add_u32 v7, 1088, v7'); a('v_lshlrev_b32 v29, 2, v22'); a('v_add_u32 v29, %d, v29', L_DM)
    a('v_cmp_gt_u32 vcc, 8, v23'); a('s_nop 1'); a('v_cndmask_b32 v7, v29, v7, vcc')
    a('v_lshrrev_b32 v28, 3, v22'); a('v_lshrrev_b32 v29, 4, v22'); a('v_mul_u32_u24 v8, 1360, v29'); a('v_lshl_add_u32 v8, v25, 5, v8')
    a('v_and_b32 v29, 1, v28'); a('v_lshl_add_u32 v8, v29, 4, v8'); a('v_add_u32 v8, %d, v8', L_S)
    a('v_lshrrev_b32 v29, 1, v25'); a('v_lshlrev_b32 v9, 7, v29'); a('v_lshl_add_u32 v9, v28, 4, v9'); a('v_and_b32 v30, 1, v25'); a('v_lshl_add_u32 v9, v30, 3, v9')
    a('s_lshl_b32 s12, s6, 9'); a('v_add_u32 v9, s12, v9')
    a('v_lshlrev_b32 v10, 4, v28'); a('v_lshl_add_u32 v10, v29, 2, v10'); a('s_lshl_b32 s12, s6, 7'); a('s_add_u32 s12, s12, 8192'); a('v_add_u32 v10, s12, v10')
    a('v_mov_b32 v29, 0x40000000'); a('v_cmp_eq_u32 vcc, 1, v30'); a('s_nop 1'); a('v_cndmask_b32 v10, v10, v29, vcc')
    a('v_lshlrev_b32 v11, 7, v23'); a('s_lshl_b32 s12, s6, 11'); a('v_add_u32 v11, s12, v11')
    a('v_min_u32 v12, 4, v22'); a('v_lshlrev_b32 v12, 7, v12'); a('s_mul_i32 s12, s6, 640'); a('v_add_u32 v12, s12, v12')
    a('v_bfe_u32 v27, v23, 2, 1'); a('v_lshrrev_b32 v28, 3, v23'); a('v_and_b32 v29, 3, v23'); a('v_lshl_add_u32 v28, v28, 2, v29')
    a('v_mov_b32 v29, 64'); a('v_cmp_eq_u32 vcc, v26, v27'); a('s_nop 1'); a('v_cndmask_b32 v28, v29, v28, vcc')
    a('v_mov_b32 v26, 0x3f80'); a('v_mov_b32 v27, 0x3f800000'); a('v_mov_b32 v29, 0')
    for q in range(4):
        a('v_cmp_eq_u32 vcc, %d, v28', 2*q); a('s_nop 1'); a('v_cndmask_b32 v%d, v29, v26, vcc', 16+q)
        a('v_cmp_eq_u32 vcc, %d, v28', 2*q+1); a('s_nop 1'); a('v_cndmask_b32 v%d, v%d, v27, vcc', 16+q, 16+q)
    a('s_mov_b32 s60, 0x%x', 0x3db8aa3b)
    a('s_lshl_b32 s56, s8, 13'); a('s_add_u32 s56, s56, %d', 2*SZ_X1); a('s_add_u32 s57, s56, 4096'); a('s_mov_b32 s58, %d', 2*SZ_X1 + 32768)
    def xp_loads():
        for f in range(8):
            a('buffer_load_dwordx4 %s, v3, s[20:23], s%d offen offset:%d %s', ar(ZA+4*f), 56 + f//4, (f%4)*1024, ['sc1', '', 'nt'][opt('xm', 0)])
            if opt('xsl', 1) and f < 7: a('s_sleep %d', opt('xsl', 1))
        a('s_add_u32 s56, s56, 32768'); a('s_add_u32 s57, s57, 32768')
    XE = opt('xe', 0); ZPF = opt('zpf', 2); M2Q = opt('m2q', 2)
    a('s_mul_i32 s12, s6, 28672'); a('s_sub_u32 s13, s8, 1'); a('s_mul_i32 s14, s13, 7168'); a('s_add_u32 s12, s12, s14')
    a('s_cmp_lt_u32 s13, %d', ZPF); a('s_cselect_b32 s12, s12, 0x40000000')
    a('v_lshlrev_b32 v6, 7, v22'); a('v_add_u32 v6, s12, v6'); a('v_mov_b32 v29, 0x40000000')
    a('v_cndmask_b32_e64 v6, v29, v6, s[46:47]'); a('s_mov_b32 s61, %d', 16*28672)
    a('s_mul_i32 s12, s6, 448'); a('v_add_u32 v10, s12, v3') if False else None
    a('s_mul_i32 s14, s6, 448'); a('s_cmp_eq_u32 s8, 2'); a('s_cselect_b32 s48, 0xfffffff, 0'); a('s_mov_b32 s49, 0')
    if ZPF: gx_wait('ch_proq', True)
    if XE != 1:
        xp_loads()
        a('buffer_load_dword v13, v11, s[20:23], s58 offen sc1'); a('s_add_u32 s58, s58, 32768')
    a('s_waitcnt vmcnt(0)')
    TS0(11)
    RT(a, 1, vt=62)
    a('s_cmp_eq_u32 s8, 0'); a('s_cbranch_scc0 ch_q1')
    UA = {0: 48, 1: 52, 2: 56, 3: 60, 4: 72, 5: 76, 6: 80}
    M8 = 80; XM = 48; X0 = 52; X1 = 56
    for wv in range(2):
        LP = 'ch_q%d' % wv
        a.label(LP)
        for r_ in list(range(48, 64)) + list(range(80 if opt('pipe', 0) else 72, 84)): a(zz(r_))
        poll_mem(LP, opt('pmq', 4), opt('pipe', 0), 64 if opt('pipe', 0) else 20)
        def ptouch(LP):
            if wv != 1: return
            a('s_add_u32 s12, s54, %d', SBS)
            a('s_cmp_eq_u32 s8, 1'); a('s_cbranch_scc0 %s_n1', LP)
            a('buffer_load_dword v13, v11, s[20:23], s58 offen sc1'); a('s_add_u32 s58, s58, 32768')
            a('buffer_load_dword v13, v12, s[40:43], s12 offen sc1')
            a.label(LP + '_n1')
        xl = ['buffer_load_dwordx4 %s, v3, s[20:23], s%d offen offset:%d sc1' % (ar(ZA+4*f), 56 + f//4, (f%4)*1024) for f in range(8)] if XE == 1 else []
        for _ in range(opt('xpre', 2)):
            if xl: a(xl.pop(0))
        order = [(6, s) for s in range(7)] + [(u, s) for s in range(7) for u in (0, 1)] + [(u, s) for s in range(7) for u in (2, 3)] + [(4, s) for s in range(7)] + [(5, s) for s in range(7)]
        def m8(q, r_): return 'ds_read2_b32 %s, v2 offset0:%d offset1:%d' % (vr(M8+2*r_, 2), 32*q + (r_>>1) + 2*(r_&1), 32*q + (r_>>1) + 2*(r_&1) + 8)
        def SC(acc, q, b8): return 'v_smfmac_f32_16x16x64_bf16 %s, %s, %s, v4' % (vr(acc), vr(64+4*q), b8)
        def xb(q, t): return ar(ZA + (2*q+t)*8, 8)
        fl = {9: [cv(80, 80)], 10: [cv(81, 82)], 12: ['v_mfma_f32_16x16x16_bf16 %s, %s, %s, 0' % (vr(84), vr(80, 2), vr(ID, 2))], 15: [cv(70, 84)], 16: [cv(71, 86)],
              17: [m8(0, 0)], 18: [m8(0, 1)], 19: [m8(0, 2)], 20: [m8(0, 3)],
              23: [cv(48, 48)], 24: [cv(49, 50)], 25: [cv(50, 52)], 26: [cv(51, 54)], 28: [tmf(48)], 30: [zz(48)], 31: [cv(64, 52)], 32: [cv(65, 54)],
              33: [zz(49)], 34: [zz(50)], 35: [zz(51)], 36: [zz(52)],
              37: [cv(56, 56)], 38: [cv(57, 58)], 39: [cv(58, 60)], 40: [cv(59, 62)], 41: [tmf(56), zz(53), zz(54)], 42: [zz(55)], 43: [zz(56)],
              44: [cv(66, 60)], 45: [cv(67, 62), cv(72, 72)], 46: [SC(XM, 0, vr(M8, 8)), cv(73, 74)], 47: [zz(57), m8(1, 0), m8(1, 1)], 48: [m8(1, 2), m8(1, 3), zz(58), zz(59)]}
        if opt('tri', 1):
            order = [(u, s) for s in range(7) for u in (6, 0, 1)] + order[21:]
            t16 = fl[12]
            for k in list(fl):
                if k < 37: del fl[k]
            fl.update({21: [cv(80, 80)], 22: [cv(81, 82)], 23: [cv(48, 48)], 24: t16 + [cv(49, 50), cv(50, 52)], 25: [cv(51, 54)], 27: [tmf(48), cv(70, 84), cv(71, 86)],
                       28: [m8(0, 0)], 29: [m8(0, 1), zz(48)], 30: [cv(64, 52)], 31: [cv(65, 54)], 32: [m8(0, 2)], 33: [m8(0, 3), zz(49)], 34: [zz(50)], 35: [zz(51)], 36: [zz(52)]})
        if opt('pipe', 0):
            for r_ in range(8): fl[12+r_] = [zz(72+r_)]
            fl[12].insert(0, 's_waitcnt vmcnt(0)')
        seen = set()
        for k, (u, s) in enumerate(order):
            if s not in seen: a('s_waitcnt lgkmcnt(%d)', 6-s); seen.add(s)
            if k == 46: a('s_waitcnt lgkmcnt(0)')
            SM(a, UA[u], FR+4*s, wreg8(u, s))
            for q in fl.get(k, []): a(q)
            if xl and k not in fl: a(xl.pop(0))
            if ZPF and wv == 1 and k == opt('zk', 18): a('buffer_load_dword v13, v6, s[24:27], s61 offen sc1'); a('s_add_u32 s61, s61, %d', 16*28672)
            if M2Q == 2 and wv == 1:
                if k == 1: a('s_add_u32 s12, s53, s14'); a('s_add_u32 s13, s55, s14'); a('s_mov_b32 s33, 0')
                if k == 2: a('s_mov_b64 exec, s[48:49]'); a('buffer_load_dwordx4 %s, v3, s[36:39], s12 offen sc1', vr(84)); a('s_mov_b64 exec, -1')
                if k == 15: a('s_waitcnt vmcnt(0)'); a('v_max3_u32 v13, v84, v85, v86')
                if k == 16: a('v_max_u32 v13, v13, v87')
                if k == 17:
                    a('s_mov_b64 exec, s[48:49]'); a('v_cmp_eq_u32 vcc, -1, v13'); a('s_cbranch_vccnz %s_n3', LP)
                    a('buffer_store_dwordx4 %s, v3, s[28:31], s13 offen sc1', vr(84)); a('s_mov_b32 s33, 1'); a('s_add_u32 s55, s55, 7168')
                    a.label(LP + '_n3'); a('s_mov_b64 exec, -1')
            if XE == 1 and k == 13: ptouch(LP)
            if XE == 1 and k == 22: a('s_add_u32 s56, s56, 32768'); a('s_add_u32 s57, s57, 32768')
        if XE == 1: a('s_waitcnt vmcnt(0)')
        a(SC(X0, 0, xb(0, 0))); a('s_nop 0')
        a(cv(74, 76)); a(cv(75, 78)); a('s_nop 1'); a(tmf(72)); a(SC(X1, 0, xb(0, 1))); a('s_nop 4')
        a(cv(68, 76)); a(cv(69, 78)); a('s_nop 1')
        a(SC(X0, 1, xb(1, 0))); a(SC(X1, 1, xb(1, 1))); a('s_waitcnt lgkmcnt(0)'); a(SC(XM, 1, vr(M8, 8))); a('s_nop 1')
        def sw(R): a('v_permlane32_swap_b32 v%d, v%d', R, R+2); a('v_permlane32_swap_b32 v%d, v%d', R+1, R+3)
        def ad(R): a('v_add_f32 v%d, v%d, v%d', R, R, R+2); a('v_add_f32 v%d, v%d, v%d', R+1, R+1, R+3)
        sw(X0); a('s_nop 1'); sw(X1); ad(X0); a('ds_write2_b32 v5, v%d, v%d offset0:0 offset1:4', X0, X0+1)
        ad(X1); sw(XM); a('ds_write2_b32 v5, v%d, v%d offset0:32 offset1:36', X1, X1+1); a('s_nop 0')
        ad(XM); a('ds_write2_b32 v7, v%d, v%d offset0:0 offset1:4', XM, XM+1)
        TS(9)
        a('s_waitcnt lgkmcnt(0)')
        a('s_barrier')
        if wv == 0:
            RD = 48; EE = 72; L_ = 78; Tm = 80
            for j in range(5): a('ds_read_b128 %s, v8 offset:%d', vr(RD+4*j), 272*j)
            TS(2)
            for j in range(5):
                a('s_waitcnt lgkmcnt(%d)', 4-j)
                a('v_pk_add_f32 %s, %s, %s', vr(RD+4*j, 2), vr(RD+4*j, 2), vr(RD+4*j+2, 2))
                a('v_add_f32 v%d, v%d, v%d', RD+4*j, RD+4*j, RD+4*j+1); a('v_mul_f32 v%d, s60, v%d', RD+4*j, RD+4*j)
                a('v_exp_f32 v%d, v%d', EE+j, RD+4*j)
            def red(op, r_):
                for d in ('quad_perm:[1,0,3,2]', 'quad_perm:[2,3,0,1]', 'row_half_mirror'):
                    a('s_nop 1'); a('%s_dpp v%d, v%d, v%d %s row_mask:0xf bank_mask:0xf', op, r_, r_, r_, d)
            def sums():
                a('v_add_f32 v%d, v%d, v%d', L_, EE, EE+1); a('v_add_f32 v%d, v%d, v%d', L_+1, EE+2, EE+3)
                a('v_add_f32 v%d, v%d, v%d', L_, L_, L_+1); a('v_add_f32 v%d, v%d, v%d', L_, L_, EE+4)
                a('v_mov_b32_dpp v%d, v%d quad_perm:[1,0,3,2] row_mask:0xf bank_mask:0xf', EE+5, EE+4)
                red('v_add_f32', L_)
                a('v_rcp_f32 v%d, v%d', L_+1, L_)
            sums()
            a('v_subrev_u32 v%d, 0x21800000, v%d', Tm, L_); a('v_cmp_lt_u32 vcc, 0x3c000000, v%d', Tm); a('s_cbranch_vccnz %s_fb', LP)
            a.label(LP + '_ok')
            for q in range(3): a('v_pk_mul_f32 %s, %s, %s op_sel:[0,1] op_sel_hi:[1,1]', vr(EE+2*q, 2), vr(EE+2*q, 2), vr(L_, 2))
            for q in range(3): a(cv(EE+q, EE+2*q))
            a('v_min_u32 v%d, 0xfffffffe, v%d', EE, EE); a('v_min_u32 v%d, 0xfffffffe, v%d', EE+2, EE+2)
            L = a.newlabel('pp')
            a('s_cmp_eq_u32 s63, 0'); a('s_cbranch_scc1 %s_s', L)
            for m in ('', 'sc1'):
                if m: a.label(L + '_s')
                a('buffer_store_dwordx2 %s, v9, s[40:43], s54 offen %s', vr(EE, 2), m); a('buffer_store_dword v%d, v10, s[40:43], s54 offen %s', EE+2, m)
                if not m: a('s_branch %s_d', L)
            a.label(L + '_d')
            TS(3)
        if XE != 1:
            if XE == 0: a('s_barrier')
            if opt('xpd'): a('s_sleep %d', opt('xpd'))
            if wv == 1 and M2Q:
                a('s_cmp_eq_u32 s8, 2'); a('s_cbranch_scc0 %s_n2', LP)
                if M2Q == 2: a('s_cmp_eq_u32 s33, 1'); a('s_cbranch_scc1 %s_n2', LP)
                a('s_add_u32 s12, s53, s14'); a('s_add_u32 s13, s55, s14'); a('s_mov_b32 s15, 0')
                a('s_mov_b64 exec, 0xfffffff')
                a.label(LP + '_m2')
                a('buffer_load_dwordx4 %s, v3, s[36:39], s12 offen sc1', vr(20))
                a('s_add_u32 s15, s15, 1'); a('s_cmp_gt_u32 s15, %d', SPIN); a('s_cbranch_scc1 ch_done')
                a('s_waitcnt vmcnt(0)')
                a('v_max3_u32 v24, v20, v21, v22'); a('v_max_u32 v24, v24, v23'); a('v_cmp_eq_u32 vcc, -1, v24'); a('s_cbranch_vccnz %s_m2', LP)
                a('buffer_store_dwordx4 %s, v3, s[28:31], s13 offen sc1', vr(20))
                a('s_mov_b64 exec, -1'); a('s_add_u32 s55, s55, 7168')
                a.label(LP + '_n2')
            xp_loads()
            ptouch(LP)
            if ZPF and wv == 1: a('s_add_u32 s12, s52, 2'); gx_wait(LP)
        TDUMP('s62')
        step_end(LP)
        if wv == 0:
            a.label(LP + '_fb')
            a('v_max3_f32 v%d, v%d, v%d, v%d', Tm, RD, RD+4, RD+8); a('v_max3_f32 v%d, v%d, v%d, v%d', Tm, Tm, RD+12, RD+16)
            red('v_max_f32', Tm)
            for j in range(5): a('v_sub_f32 v%d, v%d, v%d', EE+j, RD+4*j, Tm)
            for j in range(5): a('v_exp_f32 v%d, v%d', EE+j, EE+j)
            a('s_nop 1'); sums(); a('s_nop 1')
            a('s_branch %s_ok', LP)
    a.label('ch_u')
    a.srd(16, 4, 5, SZ_M, WS_M)
    a('s_lshr_b32 s14, s8, 1'); a('s_and_b32 s15, s8, 1')
    a('s_lshl_b32 s13, s6, 1'); a('s_add_u32 s13, s13, s14'); a('s_mul_i32 s13, s13, 401408'); a('s_mul_i32 s12, s15, %d', 7*14336); a('s_add_u32 s13, s13, s12')
    a('s_add_u32 s13, s13, %d', 14*14336)
    if PG:
        a('s_lshl_b32 s12, s6, 1'); a('s_add_u32 s12, s12, s14'); a('s_mul_i32 s12, s12, 14'); a('s_lshr_b32 s9, s12, 6'); a('s_add_u32 s12, s12, 13'); a('s_lshr_b32 s10, s12, 6')
        a('s_sub_u32 s11, s10, s9')
        a('v_and_b32 v41, 1, v22'); a('v_mul_u32_u24 v41, s11, v41')
        a('v_bfe_u32 v40, v22, 1, 4'); a('v_mul_u32_u24 v40, 7, v40'); a('s_add_u32 s12, s10, 112'); a('v_add_u32 v40, s12, v40'); a('v_sub_u32 v40, v40, v41'); a('v_lshlrev_b32 v40, 2, v40')
        for jb in range(1, 7): a('s_cmp_eq_u32 s10, %d', jb); a('s_cbranch_scc1 uw_%d', jb)
        for jb in range(7):
            a.label('uw_%d' % jb)
            ldw_pg('uw%d' % jb, [[(u, 7*kh + (jb + r_) % 7) for u in range(7) for kh in range(2)] for r_ in range(7)], True)
            a('s_branch uw_d')
        a.label('uw_d')
        after_ldw()
    else: ldw()
    a('s_mul_i32 s12, s8, 1792'); a('v_add_u32 v6, s12, v6')
    a('s_mul_i32 s12, s6, 28'); a('v_add_u32 v8, s12, v23'); a('v_lshlrev_b32 v8, 4, v8'); a('v_mul_u32_u24 v26, 7168, v24'); a('v_add_u32 v8, v8, v26')
    a('v_mul_u32_u24 v9, 224, v24'); a('v_lshl_add_u32 v9, v23, 4, v9'); a('s_mul_i32 s12, s8, 896'); a('s_add_u32 s12, s12, %d', LZ); a('v_add_u32 v9, s12, v9')
    a('v_lshrrev_b32 v26, 3, v23'); a('v_lshlrev_b32 v7, 9, v26'); a('v_lshl_add_u32 v7, v24, 7, v7'); a('v_lshl_add_u32 v7, v25, 4, v7'); a('s_lshl_b32 s12, s8, 11'); a('v_add_u32 v7, s12, v7')
    a('v_lshlrev_b32 v10, 7, v24'); a('v_lshl_add_u32 v10, v25, 4, v10'); a('s_lshl_b32 s12, s8, 9'); a('s_add_u32 s12, s12, 8192'); a('v_add_u32 v10, s12, v10')
    a('v_min_u32 v5, 6, v22'); a('v_lshlrev_b32 v5, 7, v5'); a('s_mul_i32 s12, s6, 896'); a('v_add_u32 v5, s12, v5')
    a('s_lshl_b32 s12, s8, 10'); a('s_add_u32 s12, s12, %d', L_R2 - 1024); a('v_add_u32 v16, s12, v3')
    a('s_mul_i32 s80, s8, %d', 4*28672)
    for k in range(1, 4): a('s_add_u32 s%d, s80, %d', 80+k, k*28672)
    a('s_waitcnt vmcnt(0)')
    TS0(11)
    gx_wait('ch_pro', True)
    ZE = opt('ze', 0)
    def zxl(): return ['buffer_load_dwordx4 %s, v8, s[24:27], s%d offen offset:%d sc1' % (ar(ZA+(2*k+t)*4), 80+k, 224*t) for k in range(4) for t in range(2)]
    if ZE:
        a('s_barrier')
        for q in zxl(): a(q)
    RT(a, 1, vt=62)
    a('s_cmp_eq_u32 s8, 0'); a('s_cbranch_scc0 ch_u1')
    UAC = 48; P = 76; AA = 48; AB = 56; ZM = 64; RR = 72
    for wv in range(2):
        LP = 'ch_u%d' % wv
        a.label(LP)
        for r_ in range(28): a(zz(UAC+r_))
        a('s_add_u32 s12, s53, %d', 2*MBS)
        poll_mem(LP, opt('pmu', 0))
        zl = [] if ZE else zxl()
        if wv == 0: zl = ([] if M2Q else m2l(18)) + zl + ['buffer_load_dword v17, v5, s[36:39], s12 offen sc1']
        for _ in range(opt('zpre', 2)):
            if zl: a(zl.pop(0))
        for s in range(7):
            a('s_waitcnt lgkmcnt(%d)', 6-s)
            for k in range(7):
                SM(a, UAC+4*k, FR+4*s, wreg8(k, s))
                if zl: a(zl.pop(0))
        a.nop(4)
        for k in range(7):
            for q in fold_ops(UAC+4*k, UAC+4*k): a(q)
            a('ds_write_b32 v6, v%d offset:%d', UAC+4*k, 256*k)
        for k in range(4): a('s_add_u32 s%d, s%d, %d', 80+k, 80+k, 0 if opt('hotz') else 16*28672)
        a('s_waitcnt lgkmcnt(0)')
        TS(3)
        a('s_barrier')
        for t in range(2): a('ds_read_b128 %s, v9 offset:%d', vr(ZM+4*t), 3584*t)
        if opt('pps', 4): a('s_sleep %d', opt('pps', 4))
        a('s_waitcnt lgkmcnt(0)')
        def ldp(P):
            a('buffer_load_dwordx4 %s, v7, s[40:43], s54 offen sc1', vr(P)); a('buffer_load_dwordx4 %s, v7, s[40:43], s54 offen offset:1024 sc1', vr(P+4))
            a('buffer_load_dwordx4 %s, v10, s[40:43], s54 offen sc1', vr(P+8))
        def PV(P, fail):
            ckl = ['v_max3_u32 v44, v%d, v%d, v%d' % (P, P+2, P+4), 'v_max3_u32 v45, v%d, v%d, v%d' % (P+6, P+8, P+9), 'v_max3_u32 v44, v44, v%d, v%d' % (P+10, P+11),
                   'v_max_u32 v44, v44, v45', 'v_cmp_eq_u32 vcc, -1, v44', 's_cbranch_vccnz %s' % fail]
            if not opt('spv', 1):
                while ckl: a(ckl.pop(0))
            def MF(acc, A, B, first):
                a('v_mfma_f32_16x16x32_bf16 %s, %s, %s, %s', vr(acc), A, vr(B), '0' if first else vr(acc))
                for _ in range(2):
                    if ckl: a(ckl.pop(0))
            for t in range(2): MF(AB+4*t, ar(ZA+(2+t)*4), P, True)
            for t in range(2): MF(AA+4*t, ar(ZA+t*4), P, True)
            for t in range(2): MF(AB+4*t, ar(ZA+(6+t)*4), P+4, False)
            for t in range(2): MF(AA+4*t, ar(ZA+(4+t)*4), P+4, False)
            a('s_nop 1')
            for t in range(2): MF(AA+4*t, vr(ZM+4*t), P+8, False)
        def cnt(): a('s_add_u32 s62, s62, 256'); a('s_cmp_gt_u32 s62, %d', SPIN*256); a('s_cbranch_scc1 ch_done')
        if not opt('ppi', 2):
            if opt('fts'): a('s_waitcnt vmcnt(0)'); TS(7)
            a.label(LP + '_pp')
            ldp(P); cnt(); a('s_waitcnt vmcnt(0)')
            if opt('fts'): TS(8)
            PV(P, LP + '_pp')
        else:
            PB = 32
            ldp(P); a('s_sleep %d', opt('ppi', 2))
            a.label(LP + '_pp')
            ldp(PB); cnt(); a('s_waitcnt vmcnt(3)')
            PV(P, LP + '_pq'); a('s_branch %s_pd', LP)
            a.label(LP + '_pq')
            ldp(P); a('s_waitcnt vmcnt(3)')
            PV(PB, LP + '_pp')
            a.label(LP + '_pd')
        TS(4)
        a('s_nop 4')
        for r_ in range(4): a('v_add_f32_dpp v%d, v%d, v%d row_ror:8 row_mask:0xf bank_mask:0x3', RR+r_, AB+r_, AA+r_)
        for r_ in range(4): a('v_add_f32_dpp v%d, v%d, v%d row_ror:8 row_mask:0xf bank_mask:0xc', RR+r_, AA+4+r_, AB+4+r_)
        if wv == 1:
            a('ds_write_b128 v16, %s', vr(RR)); a('s_waitcnt lgkmcnt(0)')
        if not opt('fts'): TS(5)
        a('s_barrier')
        if wv == 0:
            for k in range(3): a('ds_read_b128 %s, v3 offset:%d', vr(AA+4*k), L_R2 + 1024*k)
            a('s_waitcnt lgkmcnt(1)')
            for q in range(2): a('v_pk_add_f32 %s, %s, %s', vr(RR+2*q, 2), vr(RR+2*q, 2), vr(AA+2*q, 2))
            a('s_waitcnt lgkmcnt(0)')
            for q in range(2): a('v_pk_add_f32 %s, %s, %s', vr(AA+4+2*q, 2), vr(AA+4+2*q, 2), vr(AA+8+2*q, 2))
            for q in range(2): a('v_pk_add_f32 %s, %s, %s', vr(RR+2*q, 2), vr(RR+2*q, 2), vr(AA+4+2*q, 2))
            a(cv(18, RR)); a(cv(19, RR+2))
            mpub(18, 's59', 's55')
            a('s_add_u32 s59, s59, %d', MBS)
            TS(6)
        TDUMP('s62')
        if wv == 1:
            a('s_add_u32 s12, s52, 1'); gx_wait(LP)
        if ZE:
            a('s_barrier')
            if opt('zsl'): a('s_sleep %d', opt('zsl'))
            for q in zxl(): a(q)
        step_end(LP, (['s_mov_b32 s55, %d' % (63*7168)] + m2l(18)) if wv == 0 else [])
    a.label('ch_done')
    if INSTR: a('s_add_u32 s101, s2, 1900')
    a('s_mov_b64 exec, -1')
    RT(a, 2)
    a('s_endpgm')
NEG = 0xf149f2ca
NSP = opt('nsp', 7)
def k_bf4(a): k_bfin(a, True)
def k_bfin(a, sp=False):
    SX = '4' if sp else ''
    if sp:
        a('s_and_b32 s73, s100, 3'); a('s_lshr_b32 s100, s100, 2'); a('s_add_u32 s100, s100, %d', 64-NSP)
    a('s_load_dwordx2 s[4:5], s[0:1], %d', KA['ws'])
    a('s_load_dwordx2 s[6:7], s[0:1], %d', KA['B_x'])
    a('s_load_dwordx2 s[8:9], s[0:1], %d', KA['out'])
    a('v_lshrrev_b32 v1, 6, v0'); a('v_and_b32 v2, 63, v0'); a('s_nop 0')
    a('v_readfirstlane_b32 s10, v1')
    a('v_and_b32 v3, 31, v2'); a('v_lshrrev_b32 v4, 5, v2')
    perm(a, 5, 3, 6)
    a('s_waitcnt lgkmcnt(0)')
    a.srd(12, 4, 5, SZ_X1, WS_XF + SZ_X1); a.srd(16, 4, 5, SZ_GX, WS_GX); a.srd(20, 4, 5, SZ_VW, WS_VW)
    a.srd(24, 4, 5, SZ_TM, WS_TM); a.srd(28, 4, 5, SZ_UT, WS_UT); a.srd(32, 8, 9, 2048*1792); a.srd(76, 4, 5, SZ_MF, WS_MF)
    init_seen(a, 12, 74, 'wk_done')
    a('s_mul_i32 s11, s100, 28672'); a('v_lshlrev_b32 v6, 4, v2')
    for ks in range(28):
        if ks % 4 == 0: a('s_add_u32 s39, s11, %d', ks*1024)
        a('buffer_load_dwordx4 %s, v6, s[12:15], s39 offen offset:%d', ar(4*ks), (ks%4)*1024)
    a('v_lshrrev_b32 v7, 4, v5'); a('v_mul_u32_u24 v7, 14336, v7'); a('v_lshl_add_u32 v7, v4, 10, v7'); a('v_and_b32 v8, 15, v5'); a('v_lshl_add_u32 v7, v8, 4, v7')
    a('v_lshlrev_b32 v8, 5, v3'); a('v_lshl_add_u32 v8, v4, 4, v8')
    a('s_lshl_b32 s36, s100, 2'); a('s_add_u32 s36, s36, s10')
    a('s_mul_i32 s37, s36, 28672')
    a('s_mul_i32 s38, s36, %d', 4*28672)
    B0 = 16; B1A = 112; ACC = 128
    def buf(b, ks): return vr(B0+4*ks) if b == 0 else ar(B1A+4*ks)
    def ld(stream, b):
        for ks in range(28):
            if ks % 4 == 0:
                if stream == 0: a('s_add_u32 s39, s37, %d', ks*1024)
                else: a('s_add_u32 s39, s38, %d', (stream-1)*28672 + ks*512)
            if stream == 0: a('buffer_load_dwordx4 %s, v8, s[24:27], s39 offen offset:%d sc1', buf(b, ks), (ks%4)*1024)
            else: a('buffer_load_dwordx4 %s, v7, s[16:19], s39 offen offset:%d sc1', buf(b, ks), (ks%4)*256)
    def out_addrs(vb):
        V6, V7, V9, V8 = (6, 7, 9, 8) if vb is None else (vb, vb+1, vb+2, vb+3)
        a('s_mul_i32 s11, s100, %d', 16*448); a('s_lshl_b32 s75, s10, 5')
        if vb is not None: a('s_lshl_b32 s39, s73, 7'); a('s_add_u32 s75, s75, s39')
        a('s_add_u32 s11, s11, s75')
        a('v_add_u32 v%d, s11, v5', V8)
        a('s_mul_i32 s39, s100, %d', 16*28672); a('v_add_u32 v%d, s75, v5', V6); a('v_lshlrev_b32 v%d, 4, v%d', V6, V6); a('v_add_u32 v%d, s39, v%d', V6, V6)
        a('v_mul_u32_u24 v%d, 7168, v4', V7); a('v_add_u32 v%d, v%d, v%d', V6, V6, V7)
        a('v_lshlrev_b32 v%d, 4, v%d', V7, V8); a('v_lshl_add_u32 v%d, v4, 3, v%d', V7, V7)
        a('s_lshl_b32 s11, s100, 5'); a('v_add_u32 v%d, s11, v3', V9); a('v_mul_u32_u24 v%d, 1792, v%d', V9, V9); a('v_lshl_add_u32 v%d, v4, 4, v%d', V9, V9)
        a('s_lshl_b32 s75, s75, 1'); a('s_add_u32 s75, s75, 896'); a('v_add_u32 v%d, s75, v%d', V9, V9)
    a('v_lshlrev_b32 v9, 3, v4'); a('v_sub_u32 v9, v3, v9')
    for i in range(16):
        q, r_ = i >> 2, i & 3
        a('v_cmp_le_i32 s[%d:%d], %d, v9', 40+2*i, 41+2*i, 16*(q>>1) + 4*(q&1) + r_)
    a('s_mov_b32 s72, 0x%x', 0x3db8aa3b)
    a('v_mov_b32 v10, 0x%x', NEG)
    a('s_lshr_b32 s11, s100, 3'); a('s_lshl_b32 s11, s11, 10'); a('s_add_u32 s11, s11, %d', F_GX)
    flag_wait(a, 96, 's11', 224, 208, 74, 'wk_done')
    order = [1, 2, 3, 4, 0]
    ld(1, 0); ld(2, 1)
    for oi, st in enumerate(order):
        b = oi % 2
        if oi < 4: a('s_waitcnt vmcnt(28)' if oi < 3 else 's_waitcnt vmcnt(0)')
        for ks in range(28):
            acc = vr(ACC+16*st, 16)
            if oi == 4 and ks % 2 == 0: a('s_waitcnt vmcnt(%d)', (16 if sp else 0) + 26 - ks)
            a('v_mfma_f32_32x32x16_bf16 %s, %s, %s, %s', acc, buf(b, ks), ar(4*ks), '0' if ks == 0 else acc)
        if oi + 2 < 4:
            a('s_nop 0'); ld(order[oi+2], b)
        if oi == 3:
            if sp:
                out_addrs(208); a('s_nop 4')
                for h in range(16):
                    for k2 in range(2):
                        a('s_mov_b32 s39, %d', h*28672 + k2*14336)
                        a('buffer_load_dwordx4 %s, v208, s[20:23], s39 offen sc1', ar(112+8*h+4*k2))
            a.nop(16)
            for hl in range(4):
                S = ACC + 16*(hl+1); T = 16; XM = 244 + 2*hl
                for i in range(16): a('v_cndmask_b32_e64 v%d, v10, v%d, s[%d:%d]', S+i, S+i, 40+2*i, 41+2*i)
                a('v_max3_f32 v%d, v%d, v%d, v%d', T, S, S+1, S+2)
                for i in range(6): a('v_max3_f32 v%d, v%d, v%d, v%d', T, T, S+3+2*i, S+4+2*i)
                a('v_max_f32 v%d, v%d, v%d', T, T, S+15)
                a('v_mov_b32 v%d, v%d', T+1, T); a('s_nop 1')
                a('v_permlane32_swap_b32 v%d, v%d', T, T+1); a('s_nop 1')
                a('v_max_f32 v%d, v%d, v%d', T, T, T+1)
                a('v_mul_f32 v%d, s72, v%d', XM, T)
                for i in range(16): a('v_fma_f32 v%d, v%d, s72, -v%d', S+i, S+i, XM)
                for i in range(16): a('v_exp_f32 v%d, v%d', S+i, S+i)
                a('s_nop 0')
                a('v_add_f32 v%d, v%d, v%d', XM+1, S, S+1)
                for i in range(2, 16): a('v_add_f32 v%d, v%d, v%d', XM+1, XM+1, S+i)
            a('s_lshl_b32 s11, s100, 9'); a('v_lshlrev_b32 v14, 3, v2'); a('s_mov_b32 s74, 0')
            a.label('bf_wm' + SX)
            a('buffer_load_dwordx2 v[12:13], v14, s[76:79], s11 offen sc1')
            a('s_add_u32 s74, s74, 1'); a('s_cmp_gt_u32 s74, %d', WSPIN); a('s_cbranch_scc1 wk_done')
            a('s_waitcnt vmcnt(0)'); a('v_max_u32 v12, v12, v13')
            a('v_cmp_eq_u32 vcc, -1, v12'); a('s_cbranch_vccz bf_m' + SX); a('s_sleep %d', opt('bfs', 2) if sp else 8); a('s_branch bf_wm' + SX)
            a.label('bf_m' + SX)
            RT(a, 1)
            ld(0, 0)
            if sp:
                for h in range(16):
                    a('s_mov_b32 s39, %d', h*448*16)
                    a('buffer_load_dwordx2 %s, v209, s[28:31], s39 offen sc1', vr(212+2*h, 2))
    a.nop(16)
    RT(a, 2)
    a('v_lshlrev_b32 v11, 4, v2')
    a('s_lshl_b32 s11, s10, 13'); a('v_add_u32 v12, s11, v11')
    a('s_lshl_b32 s11, s10, 11'); a('v_add_u32 v13, s11, v11')
    T = 16; PMR = 40
    TT = [48+4*hl for hl in range(4)]
    def each(fn):
        for hl in range(4): fn(hl, ACC + 16*(hl+1), ACC + 4*hl, TT[hl], 244 + 2*hl)
    each(lambda hl, S, Mm, t, XM: a('v_max3_f32 v%d, v%d, v%d, v%d', t, Mm, Mm+1, Mm+2))
    each(lambda hl, S, Mm, t, XM: a('v_max_f32 v%d, v%d, v%d', t, t, Mm+3))
    each(lambda hl, S, Mm, t, XM: a('v_mov_b32 v%d, v%d', t+1, t))
    each(lambda hl, S, Mm, t, XM: a('v_permlane32_swap_b32 v%d, v%d', t, t+1))
    each(lambda hl, S, Mm, t, XM: a('v_max_f32 v%d, v%d, v%d', t, t, t+1))
    each(lambda hl, S, Mm, t, XM: a('v_mul_f32 v%d, s72, v%d', t, t))
    each(lambda hl, S, Mm, t, XM: a('v_max_f32 v%d, v%d, v%d', t, t, XM))
    each(lambda hl, S, Mm, t, XM: a('v_sub_f32 v%d, v%d, v%d', t+2, XM, t))
    each(lambda hl, S, Mm, t, XM: [a('v_fma_f32 v%d, v%d, s72, -v%d', Mm+i, Mm+i, t) for i in range(4)])
    each(lambda hl, S, Mm, t, XM: a('v_exp_f32 v%d, v%d', t+2, t+2))
    each(lambda hl, S, Mm, t, XM: [a('v_exp_f32 v%d, v%d', Mm+i, Mm+i) for i in range(4)])
    each(lambda hl, S, Mm, t, XM: a('v_fma_f32 v%d, v%d, v%d, v%d', t, t+2, XM+1, Mm))
    for i in range(1, 4): each(lambda hl, S, Mm, t, XM: a('v_add_f32 v%d, v%d, v%d', t, t, Mm+i))
    each(lambda hl, S, Mm, t, XM: a('v_mov_b32 v%d, v%d', t+1, t))
    each(lambda hl, S, Mm, t, XM: a('v_permlane32_swap_b32 v%d, v%d', t, t+1))
    each(lambda hl, S, Mm, t, XM: a('v_add_f32 v%d, v%d, v%d', t, t, t+1))
    each(lambda hl, S, Mm, t, XM: a('v_rcp_f32 v%d, v%d', t, t))
    each(lambda hl, S, Mm, t, XM: a('v_mul_f32 v%d, v%d, v%d', t+2, t+2, t))
    for hl in range(4):
        S = ACC + 16*(hl+1); Mm = ACC + 4*hl; t = TT[hl]; TO = 64 + 8*hl
        for i in range(8): a('v_pk_mul_f32 %s, %s, %s op_sel_hi:[1,0]', vr(S+2*i, 2), vr(S+2*i, 2), vr(t+2, 2))
        for i in range(2): a('v_pk_mul_f32 %s, %s, %s op_sel_hi:[1,0]', vr(Mm+2*i, 2), vr(Mm+2*i, 2), vr(t, 2))
        for i in range(8): a('v_cvt_pk_bf16_f32 v%d, v%d, v%d', TO+i, S+2*i, S+2*i+1)
        for i in range(2): a('v_cvt_pk_bf16_f32 v%d, v%d, v%d', PMR+2*hl+i, Mm+2*i, Mm+2*i+1)
        a('ds_write_b128 v12, %s offset:%d', vr(TO), hl*2048); a('ds_write_b128 v12, %s offset:%d', vr(TO+4), hl*2048+1024)
    a('s_nop 1')
    for hp in range(2): a('ds_write_b128 v13, %s offset:%d', vr(PMR+4*hp), 32768 + hp*1024)
    a('s_waitcnt lgkmcnt(0)'); a('s_barrier')
    RT(a, 3)
    if sp:
        OA = 176; OT = 192
        def pf(i): return ar(4*i) if i < 28 else vr(64+4*(i-28))
        a('s_cmp_lt_u32 s73, 3'); a('s_cbranch_scc1 bf4_go'); a('s_cmp_ge_u32 s10, 2'); a('s_cbranch_scc1 wk_loop')
        a.label('bf4_go')
        for i in range(40): a('ds_read_b128 %s, v11 offset:%d', pf(i), i*1024)
        for i in range(32):
            acc = vr(OA+16*(i&1), 16)
            if i % 4 == 0: a('s_waitcnt lgkmcnt(%d)', min(15, 36-i))
            a('v_mfma_f32_32x32x16_bf16 %s, %s, %s, %s', acc, ar(112+4*i), pf(i), '0' if i < 2 else acc)
        a('s_waitcnt vmcnt(0) lgkmcnt(0)')
        for hp in range(8):
            acc = vr(OA+16*(hp&1), 16)
            a('v_mfma_f32_32x32x16_bf16 %s, %s, %s, %s', acc, vr(212+4*hp), pf(32+hp), acc)
        a.nop(18)
        for i in range(8): a('v_pk_add_f32 %s, %s, %s', vr(OA+2*i, 2), vr(OA+2*i, 2), vr(OA+16+2*i, 2))
        for i in range(8): a('v_cvt_pk_bf16_f32 v%d, v%d, v%d', 16+i, OA+2*i, OA+2*i+1)
        for qq in range(2): a('buffer_store_dwordx4 %s, v210, s[32:35], 0 offen offset:%d', vr(16+4*qq), qq*32)
        a('s_branch wk_loop')
        return
    for i in range(40):
        a('ds_read_b128 %s, v11 offset:%d', ar(4*i), i*1024)
    out_addrs(None)
    OB = [16, 96]; OA = 176; OT = 192
    def ld2(it, hh, b):
        for h8 in range(8):
            h = 8*hh + h8
            for k2 in range(2):
                a('s_mov_b32 s39, %d', h*28672 + it*2048 + k2*14336)
                a('buffer_load_dwordx4 %s, v6, s[20:23], s39 offen sc1', vr(OB[b]+8*h8+4*k2))
            a('s_mov_b32 s39, %d', h*448*16 + it*128*16)
            a('buffer_load_dwordx2 %s, v7, s[28:31], s39 offen sc1', vr(OB[b]+64+2*h8, 2))
    units = [(it, hh) for it in range(4) for hh in range(2)]
    ld2(0, 0, 0)
    a('s_waitcnt lgkmcnt(0)')
    for ui, (it, hh) in enumerate(units):
        b = ui % 2
        if it == 3 and hh == 0:
            a('s_cmp_ge_u32 s10, 2'); a('s_cbranch_scc1 wk_loop')
        if ui + 1 < len(units):
            ld2(units[ui+1][0], units[ui+1][1], 1-b); a('s_waitcnt vmcnt(24)')
        else:
            a('s_waitcnt vmcnt(0)')
        acc = vr(OA, 16)
        for h8 in range(8):
            h = 8*hh + h8
            for k2 in range(2):
                a('v_mfma_f32_32x32x16_bf16 %s, %s, %s, %s', acc, vr(OB[b]+8*h8+4*k2), ar(8*h+4*k2), '0' if (hh == 0 and h8 == 0 and k2 == 0) else acc)
        for hp in range(4):
            a('v_mfma_f32_32x32x16_bf16 %s, %s, %s, %s', acc, vr(OB[b]+64+4*hp), ar(128+4*(4*hh+hp)), acc)
        if hh == 1:
            a.nop(16)
            for i in range(8): a('v_cvt_pk_bf16_f32 v%d, v%d, v%d', OT+i, OA+2*i, OA+2*i+1)
            for qq in range(2):
                a('buffer_store_dwordx4 %s, v9, s[32:35], 0 offen offset:%d', vr(OT+4*qq), it*256 + qq*32)
            a('s_nop 1')
    a('s_branch wk_loop')

def k_fold(a):
    a('s_load_dwordx4 s[4:7], s[0:1], %d', KA['A_wqkv'])
    a('s_load_dwordx2 s[8:9], s[0:1], %d', KA['A_wo'])
    a('s_load_dwordx2 s[10:11], s[0:1], %d', KA['ws'])
    a('v_lshrrev_b32 v1, 6, v0'); a('v_and_b32 v2, 63, v0'); a('s_nop 0')
    a('v_readfirstlane_b32 s3, v1')
    a('v_and_b32 v3, 31, v2'); a('v_lshrrev_b32 v4, 5, v2')
    a('s_waitcnt lgkmcnt(0)')
    a.srd(12, 4, 5, 448*1344*2); a.srd(16, 6, 7, 16*784*2); a.srd(20, 8, 9, 448*448*2)
    a.srd(24, 10, 11, SZ_WA, WS_WA); a.srd(28, 10, 11, SZ_WOT, WS_WOT)
    a('v_mov_b32 v9, 0x7ffffff0')
    a('s_cmp_ge_u32 s100, 224'); a('s_cbranch_scc1 fo_wo')
    a('s_cmp_ge_u32 s100, 112'); a('s_cbranch_scc1 fo_v')
    a('s_lshl_b32 s32, s100, 2'); a('s_add_u32 s32, s32, s3')
    a('s_mul_i32 s33, s32, 4682'); a('s_lshr_b32 s33, s33, 16')
    a('s_mul_i32 s34, s33, 14'); a('s_sub_u32 s34, s32, s34')
    a('s_lshr_b32 s35, s33, 4'); a('s_and_b32 s36, s33, 15')
    perm(a, 5, 3, 6)
    a('s_lshl_b32 s37, s34, 5'); a('v_add_u32 v6, s37, v5'); a('v_mul_u32_u24 v6, 2688, v6')
    a('s_mul_i32 s37, s35, 896'); a('s_mul_i32 s38, s36, 56'); a('s_add_u32 s37, s37, s38'); a('v_add_u32 v6, s37, v6')
    a('v_lshl_add_u32 v6, v4, 4, v6')
    for ks in range(2):
        a('buffer_load_dwordx4 %s, v6, s[12:15], 0 offen offset:%d', vr(16+4*ks), ks*32)
    a('s_mul_i32 s37, s36, 1568'); a('v_lshlrev_b32 v7, 1, v3'); a('v_add_u32 v7, s37, v7')
    a('v_mul_u32_u24 v8, 448, v4'); a('v_add_u32 v7, v7, v8')
    a('v_cmp_gt_u32 vcc, 28, v3'); a('s_nop 1'); a('v_cndmask_b32 v7, v9, v7, vcc')
    a('v_cmp_eq_u32 vcc, 0, v4'); a('s_nop 1'); a('v_cndmask_b32 v8, v9, v7, vcc')
    for ks in range(2):
        for q in range(8):
            a('buffer_load_ushort v%d, v%d, s[16:19], 0 offen offset:%d', 32+8*ks+q, 8 if (ks == 1 and q >= 4) else 7, (16*ks+q)*56)
    a('s_waitcnt vmcnt(0)')
    for i in range(8): a('v_lshl_or_b32 v%d, v%d, 16, v%d', 24+i, 32+2*i+1, 32+2*i)
    a('s_nop 1')
    a('v_mfma_f32_32x32x16_bf16 %s, %s, %s, 0', vr(48,16), vr(16), vr(24))
    a('v_mfma_f32_32x32x16_bf16 %s, %s, %s, %s', vr(48,16), vr(20), vr(28), vr(48,16))
    a.nop(18)
    for i in range(8): a('v_cvt_pk_bf16_f32 v%d, v%d, v%d', 64+i, 48+2*i, 49+2*i)
    a('s_lshl_b32 s37, s33, 5'); a('v_add_u32 v6, s37, v3'); a('v_mul_u32_u24 v6, 896, v6')
    a('s_lshl_b32 s37, s34, 6'); a('v_add_u32 v6, s37, v6'); a('v_lshl_add_u32 v6, v4, 4, v6')
    for qq in range(2):
        a('buffer_store_dwordx4 %s, v6, s[24:27], 0 offen offset:%d sc1', vr(64+4*qq), qq*32)
    a('s_branch fo_done')
    a.label('fo_v')
    a('s_sub_u32 s32, s100, 112'); a('s_lshl_b32 s32, s32, 8'); a('v_add_u32 v5, s32, v0')
    a('v_and_b32 v6, 511, v5'); a('v_lshrrev_b32 v7, 9, v5')
    a('v_lshrrev_b32 v8, 5, v6'); a('v_mul_u32_u24 v8, 28, v8'); a('v_add_u32 v8, v8, v3')
    a('v_mul_u32_u24 v10, %d, v7', 8*1344); a('v_add_u32 v8, v8, v10'); a('v_add_u32 v8, 896, v8'); a('v_lshlrev_b32 v8, 1, v8')
    a('v_cmp_gt_u32 vcc, 28, v3'); a('s_nop 1'); a('v_cndmask_b32 v8, v9, v8, vcc')
    a('s_mov_b32 s33, 0')
    for q in range(8):
        a('buffer_load_ushort v%d, v8, s[12:15], s33 offen', 32+q)
        a('s_add_u32 s33, s33, 2688')
    a('v_add_u32 v6, 1024, v6'); a('v_mul_u32_u24 v6, 896, v6'); a('v_lshl_add_u32 v6, v7, 4, v6')
    a('s_waitcnt vmcnt(0)')
    for i in range(4): a('v_lshl_or_b32 v%d, v%d, 16, v%d', 24+i, 32+2*i+1, 32+2*i)
    a('buffer_store_dwordx4 %s, v6, s[24:27], 0 offen sc1', vr(24))
    a('s_branch fo_done')
    a.label('fo_wo')
    a('s_sub_u32 s32, s100, 224'); a('s_lshl_b32 s32, s32, 2'); a('s_add_u32 s32, s32, s3')
    a('s_mov_b32 s33, 0x24924925'); a('s_mul_hi_u32 s33, s32, s33')
    a('s_mul_i32 s34, s33, 7'); a('s_sub_u32 s34, s32, s34')
    a('s_lshr_b32 s35, s33, 2'); a('s_and_b32 s36, s33, 3')
    a('s_lshl_b32 s37, s34, 6'); a('v_add_u32 v5, s37, v2')
    a('s_mul_i32 s37, s35, 28'); a('s_lshl_b32 s38, s36, 3'); a('s_add_u32 s37, s37, s38'); a('s_mul_i32 s37, s37, 896')
    a('v_lshlrev_b32 v6, 1, v5'); a('v_add_u32 v6, s37, v6')
    a('s_cmp_eq_u32 s36, 3'); a('s_cselect_b64 vcc, -1, 0'); a('v_cndmask_b32 v7, v6, v9, vcc')
    a('s_movk_i32 s39, 3584')
    for q in range(8):
        a('buffer_load_ushort v%d, v%d, s[20:23], %s offen offset:%d', 32+q, 7 if q >= 4 else 6, 's39' if q >= 4 else '0', (q&3)*896)
    a('v_lshlrev_b32 v8, 10, v5'); a('s_lshl_b32 s37, s33, 4'); a('v_add_u32 v8, s37, v8')
    a('s_waitcnt vmcnt(0)')
    for i in range(4): a('v_lshl_or_b32 v%d, v%d, 16, v%d', 24+i, 32+2*i+1, 32+2*i)
    a('buffer_store_dwordx4 %s, v8, s[28:31], 0 offen sc1', vr(24))
    a.label('fo_done')
    flag_set(a, 96, F_FOLD, 's100', 12, 74, 'wk_done')
    a('s_branch wk_loop')

LOG2E = 0x3fb8aa3b
def k_a1(a):
    flag_wait(a, 96, F_FOLD, 336, 12, 74, 'wk_done')
    flag_wait(a, 96, F_M, 224, 12, 74, 'wk_done')
    a('s_load_dwordx2 s[4:5], s[0:1], %d', KA['ws'])
    a('s_load_dwordx2 s[6:7], s[0:1], %d', KA['A_x'])
    a('v_lshrrev_b32 v1, 6, v0'); a('v_and_b32 v2, 63, v0'); a('s_nop 0')
    a('v_readfirstlane_b32 s10, v1')
    a('v_and_b32 v3, 31, v2'); a('v_lshrrev_b32 v4, 5, v2')
    a('s_and_b32 s8, s100, 15'); a('s_lshr_b32 s9, s100, 4')
    a('s_waitcnt lgkmcnt(0)')
    a.srd(12, 6, 7, 2048*896); a.srd(16, 4, 5, SZ_WA, WS_WA); a.srd(20, 4, 5, SZ_KV, WS_KV)
    a('s_lshl_b32 s11, s9, 2'); a('s_add_u32 s11, s11, s10'); a('s_lshl_b32 s11, s11, 5')
    a('v_add_u32 v6, s11, v3'); a('v_mul_u32_u24 v6, 896, v6'); a('v_lshl_add_u32 v6, v4, 4, v6')
    a('s_lshl_b32 s11, s8, 5'); a('s_add_u32 s11, s11, 512'); a('v_add_u32 v7, s11, v3'); a('v_mul_u32_u24 v7, 896, v7'); a('v_lshl_add_u32 v7, v4, 4, v7')
    a('s_mov_b32 s24, %d', 512*896)
    XF = 16
    for ks in range(28):
        a('buffer_load_dwordx4 %s, v6, s[12:15], 0 offen offset:%d', vr(XF+4*ks), ks*32)
        a('buffer_load_dwordx4 %s, v7, s[16:19], 0 offen offset:%d sc1', ar(4*ks), ks*32)
        a('buffer_load_dwordx4 %s, v7, s[16:19], s24 offen offset:%d sc1', ar(112+4*ks), ks*32)
    P = 128; V = 144; MX = 160; MN = 176; T = 192; EP = 208; EN = 224
    a('v_cmp_gt_u32 s[26:27], 28, v3'); a('v_cmp_eq_u32 s[28:29], 28, v3')
    a('v_mov_b32 v8, 0x%x', NEG); a('v_mov_b32 v9, 0x%x', NEG ^ 0x80000000); a('s_mov_b32 s30, 0x%x', LOG2E)
    a('v_mov_b32 v10, 1.0'); a('v_mov_b32 v11, 0')
    for ks in range(28):
        if ks % 4 == 0: a('s_waitcnt vmcnt(%d)', min(63, max(0, 84 - 3*(ks+4))))
        a('v_mfma_f32_32x32x16_bf16 %s, %s, %s, %s', vr(P,16), vr(XF+4*ks), ar(4*ks), '0' if ks == 0 else vr(P,16))
        a('v_mfma_f32_32x32x16_bf16 %s, %s, %s, %s', vr(V,16), vr(XF+4*ks), ar(112+4*ks), '0' if ks == 0 else vr(V,16))
    a.nop(18)
    def allred(R, op):
        for sh in (8, 4, 2, 1):
            for i in range(16):
                a('%s_dpp v%d, v%d, v%d row_ror:%d row_mask:0xf bank_mask:0xf', op, R+i, R+i, R+i, sh)
        for i in range(16): a('v_mov_b32 v%d, v%d', T+i, R+i)
        for i in range(16): a('v_permlane16_swap_b32 v%d, v%d', R+i, T+i)
        for i in range(16): a('%s v%d, v%d, v%d', op, R+i, R+i, T+i)
    for i in range(16):
        a('v_cndmask_b32_e64 v%d, v8, v%d, s[26:27]', MX+i, P+i)
        a('v_cndmask_b32_e64 v%d, v9, v%d, s[26:27]', MN+i, P+i)
    allred(MX, 'v_max_f32'); allred(MN, 'v_min_f32')
    for i in range(16):
        a('v_sub_f32 v%d, v%d, v%d', EP+i, P+i, MX+i); a('v_sub_f32 v%d, v%d, v%d', EN+i, MN+i, P+i)
    for i in range(16):
        a('v_mul_f32 v%d, s30, v%d', EP+i, EP+i); a('v_mul_f32 v%d, s30, v%d', EN+i, EN+i)
    for i in range(16):
        a('v_exp_f32 v%d, v%d', EP+i, EP+i); a('v_exp_f32 v%d, v%d', EN+i, EN+i)
    for i in range(16):
        a('v_cndmask_b32_e64 v%d, v11, v%d, s[26:27]', EP+i, EP+i); a('v_cndmask_b32_e64 v%d, v11, v%d, s[26:27]', EN+i, EN+i)
    for i in range(16):
        a('v_mov_b32 v%d, v%d', MX+i, EP+i); a('v_mov_b32 v%d, v%d', MN+i, EN+i)
    allred(MX, 'v_add_f32'); allred(MN, 'v_add_f32')
    for i in range(16):
        a('v_rcp_f32 v%d, v%d', MX+i, MX+i); a('v_rcp_f32 v%d, v%d', MN+i, MN+i)
    for i in range(16):
        a('v_mul_f32 v%d, v%d, v%d', EP+i, EP+i, MX+i); a('v_mul_f32 v%d, v%d, v%d', EN+i, EN+i, MN+i)
        a('v_cndmask_b32_e64 v%d, v%d, v10, s[28:29]', V+i, V+i)
    FP = 16; FN = 24; FV = 32
    for i in range(8):
        a('v_cvt_pk_bf16_f32 v%d, v%d, v%d', FP+i, EP+2*i, EP+2*i+1)
        a('v_cvt_pk_bf16_f32 v%d, v%d, v%d', FN+i, EN+2*i, EN+2*i+1)
        a('v_cvt_pk_bf16_f32 v%d, v%d, v%d', FV+i, V+2*i, V+2*i+1)
    a('s_nop 1')
    K0 = 48
    for sg, F in enumerate((FP, FN)):
        for k2 in range(2):
            acc = vr(K0+16*sg, 16)
            a('v_mfma_f32_32x32x16_bf16 %s, %s, %s, %s', acc, vr(FV+4*k2), vr(F+4*k2), '0' if k2 == 0 else acc)
    a.nop(18)
    a('v_lshlrev_b32 v12, 4, v2'); a('s_lshl_b32 s11, s10, 10'); a('v_add_u32 v13, s11, v12')
    for rq in range(8): a('ds_write_b128 v13, %s offset:%d', vr(K0+4*rq), rq*4096)
    a('s_waitcnt lgkmcnt(0)'); a('s_barrier')
    a('s_lshl_b32 s11, s10, 13'); a('v_add_u32 v13, s11, v12')
    for e in range(2):
        for w in range(4): a('ds_read_b128 %s, v13 offset:%d', vr(80+16*e+4*w), e*4096 + w*1024)
    a('s_lshl_b32 s11, s8, 5'); a('s_and_b32 s24, s10, 1'); a('s_lshl_b32 s24, s24, 4'); a('s_add_u32 s11, s11, s24'); a('s_lshl_b32 s11, s11, 8')
    a('s_lshr_b32 s24, s10, 1'); a('s_lshl_b32 s24, s24, 7'); a('s_add_u32 s11, s11, s24')
    a('v_lshlrev_b32 v14, 10, v4'); a('v_lshl_add_u32 v14, v3, 2, v14'); a('v_add_u32 v14, s11, v14')
    a('s_waitcnt lgkmcnt(0)')
    for e in range(2):
        for r_ in range(4):
            b = 80+16*e+r_
            a('v_add_f32 v%d, v%d, v%d', b, b, b+4); a('v_add_f32 v%d, v%d, v%d', b+8, b+8, b+12); a('v_add_f32 v%d, v%d, v%d', b, b, b+8)
    for e in range(2):
        for r_ in range(4):
            a('buffer_atomic_add_f32 v%d, v14, s[20:23], 0 offen offset:%d sc1', 80+16*e+r_, (8*e+r_)*256)
    flag_set(a, 96, F_A1, 's100', 12, 74, 'wk_done')
    a('s_branch wk_loop')

def k_a2(a):
    flag_wait(a, 96, F_FOLD, 336, 12, 74, 'wk_done')
    a('s_load_dwordx2 s[4:5], s[0:1], %d', KA['ws'])
    a('s_load_dwordx2 s[6:7], s[0:1], %d', KA['A_x'])
    a('s_load_dwordx2 s[8:9], s[0:1], %d', KA['out'])
    a('v_lshrrev_b32 v1, 6, v0'); a('v_and_b32 v2, 63, v0'); a('s_nop 0')
    a('v_readfirstlane_b32 s10, v1')
    a('v_and_b32 v3, 31, v2'); a('v_lshrrev_b32 v4, 5, v2')
    perm(a, 5, 3, 6)
    a('s_waitcnt lgkmcnt(0)')
    a.srd(12, 6, 7, 2048*896); a.srd(16, 4, 5, SZ_WA, WS_WA); a.srd(20, 4, 5, SZ_KV, WS_KV)
    a.srd(24, 4, 5, SZ_WOT, WS_WOT); a.srd(32, 8, 9, 2048*1792)
    a('s_lshl_b32 s11, s100, 5'); a('v_add_u32 v6, s11, v3'); a('v_mul_u32_u24 v6, 896, v6'); a('v_lshl_add_u32 v6, v4, 4, v6')
    for ks in range(28):
        a('buffer_load_dwordx4 %s, v6, s[12:15], 0 offen offset:%d', ar(4*ks), ks*32)
    a('s_lshl_b32 s11, s10, 7'); a('v_add_u32 v8, s11, v5'); a('v_mul_u32_u24 v7, 896, v8'); a('v_lshl_add_u32 v7, v4, 4, v7')
    a('v_lshlrev_b32 v8, 8, v8'); a('v_lshl_add_u32 v8, v4, 5, v8')
    B0 = 16; B1A = 112; ACC = 128; KVF = 192
    def buf(b, ks): return vr(B0+4*ks) if b == 0 else ar(B1A+4*ks)
    def ld(hl, b):
        a('s_mov_b32 s39, %d', hl*32*896)
        for ks in range(28):
            a('buffer_load_dwordx4 %s, v7, s[16:19], s39 offen offset:%d sc1', buf(b, ks), ks*32)
    a('v_cmp_eq_u32 s[40:41], 0, v4')
    a('v_mov_b32 v9, 0x%x', NEG); a('v_mov_b32 v10, 0x%x', NEG ^ 0x80000000); a('s_mov_b32 s30, 0x%x', LOG2E); a('v_mov_b32 v11, 0')
    ld(0, 0); ld(1, 1)
    for hl in range(4):
        b = hl % 2
        a('s_waitcnt vmcnt(28)' if hl < 3 else 's_waitcnt vmcnt(0)')
        for ks in range(28):
            acc = vr(ACC+16*hl, 16)
            a('v_mfma_f32_32x32x16_bf16 %s, %s, %s, %s', acc, buf(b, ks), ar(4*ks), '0' if ks == 0 else acc)
        if hl + 2 < 4:
            a('s_nop 0'); ld(hl+2, b)
    a.nop(16)
    flag_wait(a, 96, F_A1, 256, 224, 74, 'wk_done')
    a('v_lshlrev_b32 v12, 4, v2'); a('s_lshl_b32 s11, s10, 13'); a('v_add_u32 v13, s11, v12')
    EP = 16; EN = 32; T = 48; FP = 56; FK = 72; O = 88; OF = 104
    for hl in range(4):
        S = ACC + 16*hl
        a('s_mov_b32 s39, %d', hl*32*256)
        for i in range(8):
            a('buffer_load_dwordx4 %s, v8, s[20:23], s39 offen offset:%d sc1', vr(KVF+4*i), (i>>1)*64 + (i&1)*16)
        for i in range(4):
            a('v_cndmask_b32_e64 v%d, v9, v%d, s[40:41]', T+i, S+12+i); a('v_cndmask_b32_e64 v%d, v10, v%d, s[40:41]', T+4+i, S+12+i)
        a('v_max3_f32 v%d, v%d, v%d, v%d', T, T, T+1, T+2); a('v_min3_f32 v%d, v%d, v%d, v%d', T+4, T+4, T+5, T+6)
        a('v_max_f32 v%d, v%d, v%d', T, T, T+3); a('v_min_f32 v%d, v%d, v%d', T+4, T+4, T+7)
        for i in range(6):
            a('v_max3_f32 v%d, v%d, v%d, v%d', T, T, S+2*i, S+2*i+1); a('v_min3_f32 v%d, v%d, v%d, v%d', T+4, T+4, S+2*i, S+2*i+1)
        a('v_mov_b32 v%d, v%d', T+1, T); a('v_mov_b32 v%d, v%d', T+5, T+4); a('s_nop 1')
        a('v_permlane32_swap_b32 v%d, v%d', T, T+1); a('v_permlane32_swap_b32 v%d, v%d', T+4, T+5); a('s_nop 1')
        a('v_max_f32 v%d, v%d, v%d', T, T, T+1); a('v_min_f32 v%d, v%d, v%d', T+4, T+4, T+5)
        for i in range(16):
            a('v_sub_f32 v%d, v%d, v%d', EP+i, S+i, T); a('v_sub_f32 v%d, v%d, v%d', EN+i, T+4, S+i)
        for i in range(16):
            a('v_mul_f32 v%d, s30, v%d', EP+i, EP+i); a('v_mul_f32 v%d, s30, v%d', EN+i, EN+i)
        for i in range(16):
            a('v_exp_f32 v%d, v%d', EP+i, EP+i); a('v_exp_f32 v%d, v%d', EN+i, EN+i)
        a('s_nop 0')
        for i in range(12, 16):
            a('v_cndmask_b32_e64 v%d, v11, v%d, s[40:41]', EP+i, EP+i); a('v_cndmask_b32_e64 v%d, v11, v%d, s[40:41]', EN+i, EN+i)
        a('v_add_f32 v%d, v%d, v%d', T, EP, EP+1); a('v_add_f32 v%d, v%d, v%d', T+4, EN, EN+1)
        for i in range(2, 16):
            a('v_add_f32 v%d, v%d, v%d', T, T, EP+i); a('v_add_f32 v%d, v%d, v%d', T+4, T+4, EN+i)
        a('v_mov_b32 v%d, v%d', T+1, T); a('v_mov_b32 v%d, v%d', T+5, T+4); a('s_nop 1')
        a('v_permlane32_swap_b32 v%d, v%d', T, T+1); a('v_permlane32_swap_b32 v%d, v%d', T+4, T+5); a('s_nop 1')
        a('v_add_f32 v%d, v%d, v%d', T, T, T+1); a('v_add_f32 v%d, v%d, v%d', T+4, T+4, T+5)
        a('v_rcp_f32 v%d, v%d', T, T); a('v_rcp_f32 v%d, v%d', T+4, T+4); a('s_nop 0')
        for i in range(16):
            a('v_mul_f32 v%d, v%d, v%d', EP+i, EP+i, T); a('v_mul_f32 v%d, v%d, v%d', EN+i, EN+i, T+4)
        for i in range(16): a('v_cvt_pk_bf16_f32 v%d, v%d, v%d', FP+i, EP+2*i, EP+2*i+1)
        a('s_waitcnt vmcnt(0)')
        for i in range(16): a('v_cvt_pk_bf16_f32 v%d, v%d, v%d', FK+i, KVF+2*i, KVF+2*i+1)
        a('s_nop 1')
        for k in range(4):
            a('v_mfma_f32_32x32x16_bf16 %s, %s, %s, %s', vr(O,16), vr(FK+4*k), vr(FP+4*k), '0' if k == 0 else vr(O,16))
        a.nop(18)
        a('v_mov_b32 v%d, v%d', T, O+12); a('v_mov_b32 v%d, v%d', T+1, O+12); a('s_nop 1')
        a('v_permlane32_swap_b32 v%d, v%d', T, T+1); a('s_nop 1')
        a('v_add_f32 v%d, 0x358637bd, v%d', T+1, T+1)
        a('v_rcp_f32 v%d, v%d', T+1, T+1); a('s_nop 0')
        for i in range(16): a('v_mul_f32 v%d, v%d, v%d', O+i, O+i, T+1)
        for i in range(8): a('v_cvt_pk_bf16_f32 v%d, v%d, v%d', OF+i, O+2*i, O+2*i+1)
        a('ds_write_b128 v13, %s offset:%d', vr(OF), hl*2048); a('ds_write_b128 v13, %s offset:%d', vr(OF+4), hl*2048+1024)
        a('s_nop 1')
    a('s_waitcnt lgkmcnt(0)'); a('s_barrier')
    for i in range(32): a('ds_read_b128 %s, v12 offset:%d', ar(4*i), i*1024)
    a('s_lshl_b32 s11, s10, 5'); a('v_add_u32 v6, s11, v5'); a('v_lshlrev_b32 v6, 10, v6'); a('v_lshl_add_u32 v6, v4, 4, v6')
    a('s_lshl_b32 s11, s100, 5'); a('v_add_u32 v9, s11, v3'); a('v_mul_u32_u24 v9, 1792, v9'); a('v_lshl_add_u32 v9, v4, 4, v9')
    a('s_lshl_b32 s36, s10, 6'); a('v_add_u32 v9, s36, v9')
    OB = [16, 80]; OA = 144; OT = 160
    def ld2(it, hh, b):
        a('s_mov_b32 s39, %d', it*128*1024)
        for kk in range(16):
            a('buffer_load_dwordx4 %s, v6, s[24:27], s39 offen offset:%d sc1', vr(OB[b]+4*kk), (16*hh+kk)*32)
    units = [(it, hh) for it in range(4) for hh in range(2)]
    ld2(0, 0, 0)
    a('s_waitcnt lgkmcnt(0)')
    for ui, (it, hh) in enumerate(units):
        b = ui % 2
        if it == 3 and hh == 0:
            a('s_cmp_ge_u32 s10, 2'); a('s_cbranch_scc1 wk_loop')
        if ui + 1 < len(units):
            ld2(units[ui+1][0], units[ui+1][1], 1-b); a('s_waitcnt vmcnt(16)')
        else:
            a('s_waitcnt vmcnt(0)')
        acc = vr(OA, 16)
        for kk in range(16):
            a('v_mfma_f32_32x32x16_bf16 %s, %s, %s, %s', acc, vr(OB[b]+4*kk), ar(4*(16*hh+kk)), '0' if (hh == 0 and kk == 0) else acc)
        if hh == 1:
            a.nop(16)
            for i in range(8): a('v_cvt_pk_bf16_f32 v%d, v%d, v%d', OT+i, OA+2*i, OA+2*i+1)
            for qq in range(2):
                a('buffer_store_dwordx4 %s, v9, s[32:35], 0 offen offset:%d', vr(OT+4*qq), it*256 + qq*32)
            a('s_nop 1')
    a('s_branch wk_loop')


TASKS = [('mg', 224), ('tu', 32*NTU), ('fold', 336), ('a1', 256), ('a2', 64), ('bfin', 64-NSP), ('bf4', 4*NSP)]
def k_mega(a):
    n = 'mega_kernel'; a.begin(n)
    a('s_cmp_ge_u32 s2, 256'); a('s_cbranch_scc1 wk_done')
    init1(a)
    a('s_and_b32 s3, s2, 7'); a('s_cmp_eq_u32 s3, 0'); a('s_cbranch_scc1 ch_entry')
    a('s_movk_i32 s101, 2000'); a('s_mov_b32 s93, 0')
    a('s_load_dwordx2 s[4:5], s[0:1], %d', KA['ws']); a('s_waitcnt lgkmcnt(0)')
    a.srd(96, 4, 5, SZ_FL, WS_FL)
    if True:
        a('s_sub_u32 s100, s3, 1'); a('s_lshl_b32 s100, s100, 5'); a('s_lshr_b32 s3, s2, 3'); a('s_add_u32 s100, s100, s3')
        a('s_mov_b32 s101, s100')
        RT(a, 0)
        a('s_branch tk_mg')
    a.label('wk_loop')
    a('s_waitcnt vmcnt(0) lgkmcnt(0)'); a('s_barrier')
    RT(a, 7)
    dbg_srd(a, 80, 74)
    a('v_mov_b32 v1, 1'); a('v_mov_b32 v2, %d', C_TICKET*4); a('v_mov_b32 v3, %d', L_TK)
    a('v_cmp_eq_u32 vcc, 0, v0'); a('s_and_b64 exec, exec, vcc')
    a('buffer_atomic_add v1, v2, s[80:83], 0 offen sc0 sc1')
    a('s_waitcnt vmcnt(0)')
    a('ds_write_b32 v3, v1')
    a('s_mov_b64 exec, -1')
    a('s_waitcnt lgkmcnt(0)'); a('s_barrier')
    a('ds_read_b32 v1, v3'); a('s_waitcnt lgkmcnt(0)')
    a('v_readfirstlane_b32 s100, v1'); a('s_nop 3')
    a('s_add_u32 s101, s100, 224')
    RT(a, 0)
    tasks = [('mg', 224, t_mg), ('tu', 32*NTU, k_tu), ('fold', 336, k_fold), ('a1', 256, k_a1), ('a2', 64, k_a2), ('bfin', 64-NSP, k_bfin), ('bf4', 4*NSP, k_bf4)]
    for (nm, cnt, fn) in tasks[1:]:
        a('s_cmp_lt_u32 s100, %d', cnt); a('s_cbranch_scc1 tk_%s', nm)
        a('s_sub_u32 s100, s100, %d', cnt)
    a.label('wk_done')
    a('s_endpgm')
    for (nm, cnt, fn) in tasks:
        a.label('tk_%s' % nm); fn(a)
    a.label('ch_entry')
    k_chain(a)
    a.end(n, 256, 256)

def main():
    global INSTR
    INSTR = len(sys.argv) > 2
    a = Asm()
    k_mega(a)
    launches = [('mega_kernel', 256, 256, LDS_TOT)]
    out = HDR
    for (k, g, b, lds) in launches:
        out += '; @launch kernel=%s grid=(%d,1,1) block=(%d,1,1) lds=%d\n' % (k, g, b, lds)
    out += '.amdgcn_target "amdgcn-amd-amdhsa--gfx950"\n' + '\n'.join(a.l) + '\n'
    open(sys.argv[1] if len(sys.argv) > 1 else 'cdna_kernels/%s.s' % NAME, 'w').write(out)
if __name__ == '__main__': main()
```

```python
import sys
NAME = 'concat_heads__linear_kernel_hedgehog__memory_aug_recurrent_mem_tr__prompt'
HDR = open('cdna_kernels/%s.s.ref' % NAME).read().split('; Override launch')[0]

KA = dict(A_x=0, A_wqkv=8, A_w_phi=16, A_wo=24, B_x=32, B_mem0=40, B_Wq=48, B_Wk=56, B_Wv=64, B_Wo=72, seg=80, out=88, dbg=96, ws=104)
RS = 896
def al(x, a=4096): return (x + a - 1) // a * a
WS_M = 0;                 SZ_M = 2*16*448*RS
WS_GX = al(WS_M+SZ_M);    SZ_GX = 64*16*32*896
WS_VW = al(WS_GX+SZ_GX);  SZ_VW = 64*16*448*64
WS_TM = al(WS_VW+SZ_VW);  SZ_TM = 64*16*8*896
WS_UT = al(WS_TM+SZ_TM);  SZ_UT = 64*16*448*16
MBS = 14336
WS_MB = al(WS_UT+SZ_UT);  SZ_MB = 65*MBS
SBS = 10240
WS_SB = al(WS_MB+SZ_MB);  SZ_SB = 64*SBS
WS_M2 = al(WS_SB+SZ_SB);  SZ_M2 = 64*7168
WS_MF = al(WS_M2+SZ_M2);  SZ_MF = 64*512
WS_FL = al(WS_MF+SZ_MF);  SZ_FL = 16384
F_M = 0; F_FOLD = 1024; F_A1 = 3072; F_GX = 4096
WS_IN = WS_MB;     SZ_IN = WS_FL + SZ_FL - WS_IN
WS_P  = al(WS_FL+SZ_FL);  SZ_P = 128*4096 + 2048*64
WS_WA = al(WS_P+SZ_P);    SZ_WA = 1536*896
WS_WOT= al(WS_WA+SZ_WA);  SZ_WOT = 448*1024
WS_PQ = al(WS_WOT+SZ_WOT);SZ_PQ = 2048*16*128
WS_KV = al(WS_PQ+SZ_PQ);  SZ_KV = 16*64*32*4
WS_XF = al(WS_KV+SZ_KV);  SZ_X1 = 64*28672; SZ_XP = 64*32768; SZ_XF = 2*SZ_X1 + SZ_XP
WS_MQ = al(WS_XF+SZ_XF);  SZ_MQ = 16*401408
WS_PG = al(WS_MQ+SZ_MQ);  SZ_PG = 4096
WS_END = al(WS_PG+SZ_PG)

class Asm:
    def __init__(self): self.l = []; self.uid = 0
    def __call__(self, s, *a):
        self.l.append('    ' + (s % a if a else s))
    def label(self, s): self.l.append(s + ':')
    def c(self, s): self.l.append('    ; ' + s)
    def newlabel(self, p='L'):
        self.uid += 1; return '%s_%d' % (p, self.uid)
    def nop(self, n):
        while n > 0:
            k = min(n, 16); self('s_nop %d', k-1); n -= k
    def srd(self, d, lo, hi, size, off=0):
        if off:
            self('s_add_u32 s%d, s%d, 0x%x', d, lo, off & 0xffffffff)
            self('s_addc_u32 s%d, s%d, 0x%x', d+1, hi, off >> 32)
        else:
            self('s_mov_b32 s%d, s%d', d, lo); self('s_mov_b32 s%d, s%d', d+1, hi)
        self('s_mov_b32 s%d, 0x%x', d+2, size)
        self('s_mov_b32 s%d, 0x00020000', d+3)
    def begin(self, name):
        self.l += ['.text', '.globl %s' % name, '.p2align 8', '.type %s,@function' % name, name + ':']
    def end(self, name, vgpr, agpr=0, sgpr=102):
        acc = (vgpr + 3)//4*4
        self.l += ['    s_endpgm', '.section .rodata,"a"', '.p2align 6', '.amdhsa_kernel %s' % name,
          '  .amdhsa_next_free_vgpr %d' % (acc + agpr if agpr else vgpr), '  .amdhsa_next_free_sgpr %d' % sgpr,
          '  .amdhsa_accum_offset %d' % acc, '  .amdhsa_group_segment_fixed_size 0', '  .amdhsa_kernarg_size 112',
          '  .amdhsa_user_sgpr_count 2', '  .amdhsa_user_sgpr_kernarg_segment_ptr 1', '  .amdhsa_system_sgpr_workgroup_id_x 1',
          '.end_amdhsa_kernel']
def perm(a, d, src, t):
    a('v_and_b32 v%d, 0x13, v%d', d, src)
    a('v_and_b32 v%d, 4, v%d', t, src); a('v_lshl_or_b32 v%d, v%d, 1, v%d', d, t, d)
    a('v_and_b32 v%d, 8, v%d', t, src); a('v_lshrrev_b32 v%d, 1, v%d', t, t); a('v_or_b32 v%d, v%d, v%d', d, t, d)
def vr(b, n=4): return 'v[%d:%d]' % (b, b+n-1)
def ar(b, n=4): return 'a[%d:%d]' % (b, b+n-1)


INSTR = False
import os
OPT = dict(kv.split('=') for kv in os.environ.get('OPT','').split(',') if kv)
def opt(k, d=0): return int(OPT.get(k, d))
C_TICKET = 0; C_M = 1; C_INIT = 2; C_XCC = 3; C_P0 = 4; C_FOLD = 5; C_XF = 6; C_GX = 8
L_KS = 57344; SZ_KS = 64*528
L_TK = L_KS + 2*SZ_KS
LDS_TOT = L_TK + 64
NINIT = 256
WSPIN = 3000000
def RT(a, slot, idreg='s101', vt=254):
    if not INSTR: return
    a('s_load_dwordx2 s[88:89], s[0:1], %d', KA['ws']); a('s_memrealtime s[94:95]'); a('s_waitcnt lgkmcnt(0)')
    a.srd(88, 88, 89, SZ_P, WS_P)
    a('s_lshl_b32 s92, %s, 6', idreg); a('s_add_u32 s92, s92, %d', 128*4096)
    a('v_mov_b32 v%d, s94', vt); a('v_mov_b32 v%d, 0', vt+1)
    a('v_cmp_eq_u32 vcc, 0, v0'); a('s_and_b64 exec, exec, vcc')
    a('buffer_store_dword v%d, v%d, s[88:91], s92 offen offset:%d', vt, vt+1, slot*4)
    a('s_mov_b64 exec, -1')
def dbg_srd(a, d, t):
    a('s_load_dwordx2 s[%d:%d], s[0:1], %d', t, t+1, KA['dbg']); a('s_waitcnt lgkmcnt(0)')
    a.srd(d, t, t+1, 256)
def signal(a, d, cidx, vt, per_wave=False):
    a('s_waitcnt vmcnt(0)')
    if not per_wave: a('s_barrier')
    a('v_mov_b32 v%d, 1', vt); a('v_mov_b32 v%d, %d', vt+1, cidx*4)
    if per_wave: a('s_mov_b64 exec, 1')
    else:
        a('v_cmp_eq_u32 vcc, 0, v0'); a('s_and_b64 exec, exec, vcc')
    a('buffer_atomic_add v%d, v%d, s[%d:%d], 0 offen sc1', vt, vt+1, d, d+3)
    a('s_mov_b64 exec, -1')
def waitc(a, d, cidx, target, vt, st, fail, sleep=8, x2=False):
    L = a.newlabel('wc')
    a('v_mov_b32 v%d, %d', vt+1, cidx*4); a('s_mov_b32 s%d, 0', st)
    a.label(L)
    if x2: a('buffer_load_dwordx2 %s, v%d, s[%d:%d], 0 offen sc1', vr(vt+2, 2), vt+1, d, d+3); vt += 2
    else: a('buffer_load_dword v%d, v%d, s[%d:%d], 0 offen sc1', vt, vt+1, d, d+3)
    a('s_add_u32 s%d, s%d, 1', st, st); a('s_cmp_gt_u32 s%d, %d', st, WSPIN); a('s_cbranch_scc1 %s', fail)
    a('s_waitcnt vmcnt(0)')
    a('v_readfirstlane_b32 s%d, v%d', st+1, vt); a('s_nop 3')
    a('s_cmp_ge_u32 s%d, %d', st+1, target); a('s_cbranch_scc1 %s_ok', L)
    a('s_sleep %d', sleep); a('s_branch %s', L)
    a.label(L + '_ok')

def init_seen(a, vt, st, fail):
    L = a.newlabel('is')
    a('s_cmp_eq_u32 s93, 1'); a('s_cbranch_scc1 %s', L)
    a('s_mov_b32 s93, 1')
    a('v_readfirstlane_b32 s%d, v0', st); a('s_nop 3'); a('s_cmp_lt_u32 s%d, 64', st); a('s_cbranch_scc0 %s', L)
    dbg_srd(a, 84, st)
    waitc(a, 84, C_INIT, NINIT, vt, st, fail, 8)
    a.label(L)
def flag_set(a, d, base, idx, vt, st, fail, wait=True, chk=True):
    if chk: init_seen(a, vt, st, fail)
    if wait: a('s_waitcnt vmcnt(0)')
    a('s_barrier')
    a('v_mov_b32 v%d, 0', vt); a('s_lshl_b32 s%d, %s, 2', st, idx)
    if base >= 4096: a('s_add_u32 s%d, s%d, %d', st, st, base); base = 0
    a('v_cmp_eq_u32 vcc, 0, v0'); a('s_and_b64 exec, exec, vcc')
    a('buffer_store_dword v%d, v%d, s[%d:%d], s%d offen offset:%d sc1', vt, vt, d, d+3, st, base)
    a('s_mov_b64 exec, -1')
def flag_poll(a, d, base, count, vt, st, fail, sleep=8, lanev=None):
    L = a.newlabel('fw')
    nl = count // 4
    va = vt + 8
    a('v_and_b32 v%d, 63, v0', va); a('v_lshlrev_b32 v%d, 4, v%d', va, va)
    if isinstance(base, int): a('v_add_u32 v%d, %d, v%d', va, base, va)
    else: a('v_add_u32 v%d, %s, v%d', va, base, va)
    a('s_mov_b32 s%d, 0', st)
    for r_ in range(8): a('v_mov_b32 v%d, 0', vt+r_)
    a.label(L)
    def msk(n):
        a('s_mov_b32 exec_lo, 0x%x', 0xffffffff if n >= 32 else (1 << n) - 1); a('s_mov_b32 exec_hi, 0x%x', 0 if n <= 32 else (0xffffffff if n >= 64 else (1 << (n-32)) - 1))
    msk(nl)
    a('buffer_load_dwordx4 %s, v%d, s[%d:%d], 0 offen sc1', vr(vt), va, d, d+3)
    if nl > 64:
        msk(nl - 64)
        a('buffer_load_dwordx4 %s, v%d, s[%d:%d], 0 offen offset:1024 sc1', vr(vt+4), va, d, d+3)
    a('s_mov_b64 exec, -1')
    a('s_add_u32 s%d, s%d, 1', st, st); a('s_cmp_gt_u32 s%d, %d', st, WSPIN); a('s_cbranch_scc1 %s', fail)
    a('s_waitcnt vmcnt(0)')
    a('v_max3_u32 v%d, v%d, v%d, v%d', vt, vt, vt+1, vt+2); a('v_max3_u32 v%d, v%d, v%d, v%d', vt+4, vt+4, vt+5, vt+6)
    a('v_max3_u32 v%d, v%d, v%d, v%d', vt, vt, vt+3, vt+7); a('v_max_u32 v%d, v%d, v%d', vt, vt, vt+4)
    a('v_cmp_eq_u32 vcc, -1, v%d', vt); a('s_cbranch_vccz %s_ok', L)
    a('s_sleep %d', sleep); a('s_branch %s', L)
    a.label(L + '_ok')
def flag_wait(a, d, base, count, vt, st, fail, sleep=8, chk=True):
    L = a.newlabel('fx')
    if chk: init_seen(a, vt, st, fail)
    a('v_readfirstlane_b32 s%d, v0', st); a('s_nop 3'); a('s_cmp_lt_u32 s%d, 64', st); a('s_cbranch_scc0 %s', L)
    flag_poll(a, d, base, count, vt, st, fail, sleep)
    a.label(L)
    a('s_barrier')

def init1(a):
    a('s_load_dwordx2 s[80:81], s[0:1], %d', KA['ws']); a('s_load_dwordx2 s[82:83], s[0:1], %d', KA['B_x'])
    a('v_lshrrev_b32 v232, 6, v0'); a('v_and_b32 v233, 63, v0'); a('s_nop 0'); a('v_readfirstlane_b32 s3, v232')
    a('v_and_b32 v234, 31, v233'); a('v_lshrrev_b32 v235, 5, v233'); a('v_lshlrev_b32 v233, 4, v233')
    a('s_waitcnt lgkmcnt(0)')
    a.srd(68, 80, 81, SZ_XF, WS_XF); a.srd(72, 80, 81, SZ_IN, WS_IN); a.srd(76, 82, 83, 2048*896)
    a('s_lshl_b32 s80, s2, 2'); a('s_add_u32 s80, s80, s3')
    a('s_mul_i32 s81, s80, 4682'); a('s_lshr_b32 s81, s81, 16')
    a('s_mul_i32 s82, s81, 14'); a('s_sub_u32 s82, s80, s82')
    a('s_lshl_b32 s83, s81, 5'); a('v_add_u32 v234, s83, v234'); a('v_mul_u32_u24 v234, 896, v234'); a('v_lshl_add_u32 v234, v235, 4, v234')
    a('s_lshl_b32 s83, s82, 6'); a('v_add_u32 v234, s83, v234')
    for k in range(2): a('buffer_load_dwordx4 %s, v234, s[76:79], 0 offen offset:%d', vr(240+4*k), 32*k)
    a('v_and_b32 v232, 15, v0'); a('s_lshr_b32 s83, s80, 4'); a('s_lshl_b32 s83, s83, 1'); a('s_and_b32 s3, s80, 1'); a('s_add_u32 s83, s83, s3'); a('s_lshl_b32 s83, s83, 4')
    a('v_add_u32 v232, s83, v232'); a('v_mul_u32_u24 v232, 896, v232'); a('v_bfe_u32 v234, v0, 5, 1'); a('v_lshl_add_u32 v232, v234, 3, v232'); a('v_bfe_u32 v234, v0, 4, 1'); a('v_lshl_add_u32 v232, v234, 6, v232')
    a('s_bfe_u32 s83, s80, 0x20002'); a('s_mul_i32 s83, s83, 224'); a('s_bfe_u32 s3, s80, 0x10001'); a('s_lshl_b32 s3, s3, 7'); a('s_add_u32 s83, s83, s3')
    a('v_add_u32 v232, s83, v232')
    for hf in range(2):
        for dw in range(4): a('buffer_load_dword v%d, v232, s[76:79], 0 offen offset:%d', 224+4*hf+dw, (dw&1)*32 + hf*16 + (dw>>1)*4)
    a('s_lshl_b32 s83, s80, 11'); a('s_add_u32 s83, s83, %d', 2*SZ_X1); a('v_add_u32 v232, s83, v233')
    a('s_mul_i32 s81, s81, 28672'); a('s_lshl_b32 s82, s82, 11'); a('s_add_u32 s81, s81, s82')
    a('s_cmp_lt_u32 s80, 896'); a('s_cselect_b32 s81, s81, 0x40000000')
    a('v_add_u32 v235, s81, v233')
    NI = (SZ_IN + 1048575) // 1048576
    assert NI <= 4
    a('s_mul_i32 s80, s80, %d', NI*1024); a('v_add_u32 v234, s80, v233')
    for i in range(4): a('v_mov_b32 v%d, -1', 236+i)
    a('s_mov_b32 s83, %d', 64*28672)
def init2(a, n):
    NI = (SZ_IN + 1048575) // 1048576
    if opt('noinit'): return
    for i in range(NI): a('buffer_store_dwordx4 %s, v234, s[72:75], 0 offen offset:%d sc1', vr(236), i*1024)
    a('s_waitcnt vmcnt(%d)', min(63, n + (NI if opt('exw', 1) else 0)))
    for ab in range(2): a('buffer_store_dwordx4 %s, v232, s[68:71], 0 offen offset:%d sc1', vr(224+4*ab), ab*1024)
    for k in range(2):
        R = 240+4*k; D = 248+4*k
        a('buffer_store_dwordx4 %s, v235, s[68:71], 0 offen offset:%d sc1', vr(R), k*1024)
        a('v_mov_b32 v%d, v%d', D, R); a('v_mov_b32 v%d, v%d', D+1, R+2); a('v_mov_b32 v%d, v%d', D+2, R+1); a('v_mov_b32 v%d, v%d', D+3, R+3)
    a('s_nop 1')
    for k in range(2):
        D = 248+4*k
        a('v_permlane32_swap_b32 v%d, v%d', D, D+2); a('v_permlane32_swap_b32 v%d, v%d', D+1, D+3)
    a('s_nop 1')
    for k in range(2): a('buffer_store_dwordx4 %s, v235, s[68:71], s83 offen offset:%d sc1', vr(248+4*k), k*1024)

def t_mg(a):
    a('s_load_dwordx4 s[4:7], s[0:1], %d', KA['B_Wq'])
    a('s_load_dwordx4 s[8:11], s[0:1], %d', KA['B_Wv'])
    a('s_load_dwordx2 s[12:13], s[0:1], %d', KA['ws'])
    a('s_load_dwordx2 s[44:45], s[0:1], %d', KA['B_x'])
    a('s_load_dwordx2 s[46:47], s[0:1], %d', KA['dbg'])
    a('s_mov_b32 s14, 0x24924925'); a('s_mul_hi_u32 s15, s100, s14')
    a('s_mul_i32 s16, s15, 7'); a('s_sub_u32 s16, s100, s16')
    a('s_lshr_b32 s17, s15, 4')
    a('s_and_b32 s18, s15, 15')
    a('v_lshrrev_b32 v1, 6, v0'); a('v_and_b32 v2, 63, v0'); a('s_nop 0')
    a('v_readfirstlane_b32 s19, v1')
    a('v_and_b32 v3, 31, v2'); a('v_lshrrev_b32 v4, 5, v2')
    perm(a, 10, 3, 11)
    a('s_and_b32 s20, s19, 1'); a('s_lshr_b32 s21, s19, 1')
    a('s_waitcnt lgkmcnt(0)')
    a('s_cmp_eq_u32 s17, 0')
    a('s_cselect_b32 s24, s4, s10'); a('s_cselect_b32 s25, s5, s11')
    a('s_mov_b32 s26, 3670016'); a('s_mov_b32 s27, 0x00020000')
    a('s_cselect_b32 s28, s6, s8'); a('s_cselect_b32 s29, s7, s9')
    a('s_mov_b32 s30, 3670016'); a('s_mov_b32 s31, 0x00020000')
    a.srd(32, 12, 13, SZ_M, WS_M)
    a.srd(48, 12, 13, SZ_X1, WS_XF); a.srd(52, 12, 13, SZ_GX, WS_GX); a.srd(56, 12, 13, SZ_VW, WS_VW)
    a.srd(60, 46, 47, 256); a.srd(64, 12, 13, SZ_KV, WS_KV); a.srd(44, 12, 13, WS_PG + SZ_PG - WS_MQ, WS_MQ)
    a('v_mov_b32 v11, 0'); a('s_lshl_b32 s22, s100, 10'); a('v_lshlrev_b32 v12, 2, v0'); a('v_add_u32 v12, s22, v12')
    a('buffer_store_dword v11, v12, s[64:67], 0 offen sc1')
    def prog(val, vt=13):
        a('v_mov_b32 v%d, %d', vt, val); a('s_lshl_b32 s23, s100, 2'); a('s_add_u32 s23, s23, %d', WS_PG - WS_MQ); a('v_mov_b32 v%d, s23', vt+1)
        a('v_cmp_eq_u32 vcc, 0, v0'); a('s_and_b64 exec, exec, vcc')
        a('buffer_store_dword v%d, v%d, s[44:47], 0 offen sc1', vt, vt+1)
        a('s_mov_b64 exec, -1')
    prog(0)
    CI = opt('ci', 2); LG = opt('lg', 2); lastp = [0]; XL = opt('xl', 1)
    def cov(i): return i-1 if i <= LG else i-2
    NI2 = 0 if opt('noinit') else (SZ_IN + 1048575) // 1048576 + 6
    if not opt('exw', 1): NI2 = 0
    a('s_lshl_b32 s22, s16, 6'); a('s_lshl_b32 s23, s20, 5'); a('s_add_u32 s22, s22, s23')
    a('v_and_b32 v13, 0x19, v3'); a('v_and_b32 v14, 2, v3'); a('v_lshl_or_b32 v13, v14, 1, v13')
    a('v_and_b32 v14, 4, v3'); a('v_lshrrev_b32 v14, 1, v14'); a('v_or_b32 v13, v13, v14')
    a('s_cmp_eq_u32 s17, 0'); a('s_cselect_b64 vcc, -1, 0'); a('v_cndmask_b32 v13, v10, v13, vcc')
    a('v_add_u32 v5, s22, v13')
    a('s_mul_i32 s36, s21, 224'); a('s_lshl_b32 s37, s20, 4'); a('s_add_u32 s36, s36, s37'); a('v_add_u32 v6, s36, v4'); a('v_lshlrev_b32 v6, 13, v6')
    a('s_lshl_b32 s37, s18, 9'); a('v_add_u32 v6, s37, v6'); a('v_lshl_add_u32 v6, v3, 4, v6')
    a('s_lshl_b32 s38, s19, 4'); a('v_add_u32 v15, s38, v4'); a('v_mul_u32_u24 v15, 528, v15'); a('v_lshl_add_u32 v15, v3, 4, v15'); a('v_add_u32 v15, %d, v15', L_KS)
    JS = 16; KB = [80, 144]; ACC = 208; T = 224
    KD = opt('kd', 3)
    for i in range(7):
        a('s_add_u32 s%d, s16, %d', 4+i, i if opt('rot', 1) else 0); a('s_sub_u32 s11, s%d, 7', 4+i); a('s_cmp_ge_u32 s%d, 7', 4+i); a('s_cselect_b32 s%d, s11, s%d', 4+i, 4+i)
        if not opt('rot', 1): a('s_mov_b32 s%d, %d', 4+i, i)
    def ldk1(i):
        a('s_lshl_b32 s42, s%d, 18', 4+i)
        for m in range(8):
            a('s_add_u32 s43, s42, %d', 2*m*8192)
            a('buffer_load_dwordx4 %s, v6, s[28:31], s43 offen %s', ar(32*i+4*m), ['', 'nt', 'sc1'][opt('kmod')])
    I2P = opt('i2p', 2); WOC = opt('woc', 1)
    Qv = []
    def wt(tags):
        p_ = max(k for k, q in enumerate(Qv) if (q[0], q[1]) in tags)
        c0 = sum(q[2] for q in Qv[p_+1:]); c1 = sum(q[3] for q in Qv[p_+1:])
        a('s_waitcnt vmcnt(%d)', min(63, c0))
        if c1 < min(63, c0):
            L = a.newlabel('w1'); a('s_cmp_eq_u32 s17, 0'); a('s_cbranch_scc1 %s', L); a('s_waitcnt vmcnt(%d)', c1); a.label(L)
    def do_init2():
        init2(a, sum(min(q[2], q[3]) for q in Qv)); Qv.append(('in', 0, NI2, NI2)); RT(a, 10)
    def ldk(nj):
        del Qv[:]; Qv.append(('js', 0, nj, nj))
        for i in range(KD):
            ldk1(i); Qv.append(('ld', i, 8, 8))
            if (I2P == 1 and i == 0) or (I2P == 0 and i == KD-1): do_init2()
    def stk(i):
        for m in range(8): a('ds_write_b128 v15, %s offset:%d', ar(32*i+4*m), (i&1)*SZ_KS + m*1056)
    a('s_cmp_eq_u32 s17, 0'); a('s_cbranch_scc0 mm_mat1')
    a('s_lshl_b32 s39, s16, 6'); a('s_add_u32 s39, s39, s38'); a('v_add_u32 v7, s39, v4'); a('v_lshlrev_b32 v7, 13, v7')
    a('v_add_u32 v7, s37, v7'); a('v_lshl_add_u32 v7, v3, 4, v7')
    for m in range(8):
        a('s_mov_b32 s43, %d', 2*m*8192)
        a('buffer_load_dwordx4 %s, v7, s[24:27], s43 offen', vr(JS+4*m))
    ldk(8)
    wt([('js', 0)])
    a('v_mov_b32 v252, 1'); a('v_mov_b32 v253, %d', C_P0*4)
    a('v_cmp_eq_u32 vcc, 0, v0'); a('s_and_b64 exec, exec, vcc')
    a('buffer_atomic_add v252, v253, s[60:63], 0 offen sc1')
    a('s_mov_b64 exec, -1')
    for m in range(8): a('ds_write_b128 v15, %s offset:%d', vr(JS+4*m), SZ_KS + m*1056)
    wt([('ld', 0)])
    stk(0)
    a('s_waitcnt lgkmcnt(0)'); a('s_barrier')
    a('s_lshl_b32 s39, s20, 5'); a('v_add_u32 v7, s39, v13'); a('v_mul_u32_u24 v7, 528, v7'); a('v_lshl_add_u32 v7, v4, 4, v7'); a('v_add_u32 v7, %d, v7', L_KS + SZ_KS)
    for es in range(16): a('ds_read_b128 %s, v7 offset:%d', vr(JS+4*es), es*32)
    a('s_branch mm_go')
    a.label('mm_mat1')
    if WOC:
        a('s_mul_i32 s38, s18, 229376'); a('s_lshl_b32 s39, s16, 7'); a('s_add_u32 s38, s38, s39'); a('s_mul_i32 s39, s19, %d', 64*896); a('s_add_u32 s38, s38, s39')
        a('v_lshrrev_b32 v8, 3, v2'); a('v_and_b32 v9, 7, v2'); a('v_mul_u32_u24 v7, 896, v8'); a('v_add_u32 v7, s38, v7'); a('v_lshl_add_u32 v7, v9, 4, v7')
        for m in range(8):
            a('s_mov_b32 s39, %d', m*8*896)
            a('buffer_load_dwordx4 %s, v7, s[24:27], s39 offen', vr(JS+4*m))
        ldk(8)
        a('v_mul_u32_u24 v1, 144, v8'); a('v_lshl_add_u32 v1, v9, 4, v1'); a('s_mul_i32 s39, s19, %d', 64*144); a('v_add_u32 v1, s39, v1')
        a('v_mul_u32_u24 v7, 144, v10'); a('v_lshl_add_u32 v7, v4, 4, v7'); a('s_lshl_b32 s39, s20, 6'); a('v_add_u32 v7, s39, v7')
    else:
        a('s_mul_i32 s38, s18, 229376'); a('s_lshl_b32 s39, s22, 1'); a('s_add_u32 s38, s38, s39')
        a('v_mul_u32_u24 v7, 896, v10'); a('v_add_u32 v7, s38, v7'); a('v_lshl_add_u32 v7, v4, 4, v7')
        for et in range(8):
            a('s_mov_b32 s39, %d', et*32*896)
            for ks in range(2):
                a('buffer_load_dwordx4 %s, v7, s[24:27], s39 offen offset:%d', vr(80+8*et+4*ks), ks*32)
        ldk(16)
    a('v_lshlrev_b32 v8, 3, v4'); a('v_sub_u32 v8, v10, v8')
    a('v_mov_b32 v9, 0x3f80'); a('v_mov_b32 v11, 0x3f800000'); a('v_mov_b32 v12, 0')
    for ks in range(2):
        for q2 in range(4):
            r_ = 144 + 4*ks + q2
            a('v_cmp_eq_u32 vcc, %d, v8', 16*ks + 2*q2); a('v_cndmask_b32 v%d, v12, v9, vcc', r_)
            a('v_cmp_eq_u32 vcc, %d, v8', 16*ks + 2*q2 + 1); a('v_cndmask_b32 v%d, v%d, v11, vcc', r_, r_)
    wt([('js', 0)])
    a('v_mov_b32 v252, 1'); a('v_mov_b32 v253, %d', C_P0*4)
    a('v_cmp_eq_u32 vcc, 0, v0'); a('s_and_b64 exec, exec, vcc')
    a('buffer_atomic_add v252, v253, s[60:63], 0 offen sc1')
    a('s_mov_b64 exec, -1')
    if WOC:
        for m in range(8): a('ds_write_b128 v1, %s offset:%d', vr(JS+4*m), m*8*144)
        a('s_waitcnt lgkmcnt(0)'); a('s_barrier')
        for et in range(8):
            for ks in range(2): a('ds_read_b128 %s, v7 offset:%d', vr(80+8*et+4*ks), et*32*144 + ks*32)
    for et in range(8):
        ab = ACC if et % 2 == 0 else 160
        acc = vr(ab, 16)
        if WOC: a('s_waitcnt lgkmcnt(%d)', 14-2*et)
        a('v_mfma_f32_32x32x16_bf16 %s, %s, %s, 0', acc, vr(80+8*et), vr(144))
        a('v_mfma_f32_32x32x16_bf16 %s, %s, %s, %s', acc, vr(80+8*et+4), vr(148), acc)
        if et > 0:
            pb = ACC if et % 2 == 1 else 160
            for i in range(8): a('v_cvt_pk_bf16_f32 v%d, v%d, v%d', JS+8*(et-1)+i, pb+2*i, pb+2*i+1)
        if et == 0: a.nop(8)
    a.nop(18)
    for i in range(8): a('v_cvt_pk_bf16_f32 v%d, v%d, v%d', JS+56+i, 160+2*i, 160+2*i+1)
    wt([('ld', 0)])
    stk(0)
    a('s_waitcnt lgkmcnt(0)'); a('s_barrier')
    a.label('mm_go')
    RT(a, 4)
    Qv[0] = ('js', 0, 8, 8)
    if I2P == 3: do_init2()
    a('s_cmp_eq_u32 s17, 0'); a('s_cbranch_scc0 mm_a1')
    a('v_cmp_le_u32 vcc, 224, v5'); a('v_mov_b32 v8, 0'); a('v_mov_b32 v13, 0'); a('v_mov_b32 v9, 224'); a('v_mov_b32 v14, 1')
    a('v_cndmask_b32 v8, v8, v9, vcc'); a('v_cndmask_b32 v13, v13, v14, vcc')
    a('v_sub_u32 v8, v5, v8')
    a('s_lshl_b32 s40, s18, 1'); a('v_add_u32 v13, s40, v13')
    a('s_branch mm_a2')
    a.label('mm_a1')
    a('s_movk_i32 s40, 4682'); a('v_mul_u32_u24 v13, s40, v5'); a('v_lshrrev_b32 v13, 16, v13')
    a('v_mul_u32_u24 v8, 14, v13'); a('v_sub_u32 v8, v5, v8')
    a('s_mul_i32 s40, s18, 14'); a('s_add_u32 s40, s40, 224'); a('v_add_u32 v8, s40, v8')
    a.label('mm_a2')
    a('s_mov_b32 s40, 401408'); a('v_mul_lo_u32 v9, v13, s40')
    a('v_lshrrev_b32 v13, 4, v8'); a('v_mul_u32_u24 v13, 14336, v13'); a('v_add_u32 v9, v9, v13')
    a('v_and_b32 v8, 15, v8'); a('v_lshl_add_u32 v9, v8, 4, v9'); a('v_lshl_add_u32 v9, v4, 8, v9')
    a('s_mul_i32 s42, s21, 7168'); a('v_add_u32 v9, s42, v9'); a('v_add_u32 v8, 4096, v9')
    a('v_lshlrev_b32 v12, 4, v2')
    a('s_mul_i32 s40, s20, 28672'); a('s_mul_i32 s41, s21, 14336'); a('s_add_u32 s40, s40, s41'); a('v_add_u32 v11, s40, v12')
    a('s_mul_i32 s40, s18, 401408'); a('s_mul_i32 s41, s21, %d', 14*14336); a('s_add_u32 s40, s40, s41')
    a('s_lshl_b32 s41, s16, 11'); a('s_add_u32 s40, s40, s41'); a('s_lshl_b32 s41, s20, 10'); a('s_add_u32 s40, s40, s41')
    a('v_lshrrev_b32 v1, 4, v10'); a('v_mul_u32_u24 v1, 14336, v1'); a('v_add_u32 v1, s40, v1'); a('v_lshl_add_u32 v1, v4, 8, v1')
    a('v_and_b32 v13, 15, v10'); a('v_lshl_add_u32 v1, v13, 4, v1')
    a('s_lshl_b32 s39, s21, 5'); a('v_add_u32 v7, s39, v10'); a('v_mul_u32_u24 v7, 528, v7'); a('v_lshl_add_u32 v7, v4, 4, v7'); a('v_add_u32 v7, %d, v7', L_KS)
    pend = []
    AC2 = 144; T2 = 160
    def m0(fn):
        L = a.newlabel('m0'); a('s_cmp_eq_u32 s17, 0'); a('s_cbranch_scc0 %s', L); fn(); a.label(L)
    def mst(i, t):
        a('s_lshl_b32 s43, s%d, 10', 4+i)
        for qq in range(2): a('buffer_store_dwordx4 %s, v9, s[32:35], s43 offen offset:%d sc1', vr(T+t+4*qq), qq*512)
        def f():
            a('s_mul_i32 s43, s%d, 28672', 4+i)
            for qq in range(2): a('buffer_store_dwordx4 %s, v1, s[44:47], s43 offen offset:%d sc1', vr(T2+t+4*qq), qq*512)
        m0(f)
    def lst(i, t):
        a('s_lshl_b32 s43, s%d, 11', 4+i); a('v_add_u32 v8, s43, v11')
        for qq in range(2): a('ds_write_b128 v8, %s offset:%d', vr(T+t+4*qq), qq*1024)
    def cvts(t):
        for q in range(8): a('v_cvt_pk_bf16_f32 v%d, v%d, v%d', T+t+q, ACC+2*q, ACC+2*q+1)
        if opt('psc', 1):
            for q in range(8): a('v_pk_mul_f32 %s, %s, s[86:87]', vr(AC2+2*q, 2), vr(AC2+2*q, 2))
        for q in range(8): a('v_cvt_pk_bf16_f32 v%d, v%d, v%d', T2+t+q, AC2+2*q, AC2+2*q+1)
    kb = KB[0]
    assert KD == 3
    a('s_mov_b32 s86, 0x3db8aa3b'); a('s_mov_b32 s87, 0x3db8aa3b')
    for i in range(7):
        if i > 0: a('s_waitcnt lgkmcnt(0)'); a('s_barrier')
        if i == 3: RT(a, 5)
        if i == 1: RT(a, 8)
        if i == 2: RT(a, 9)
        if i == 6: RT(a, 6)
        if i == CI:
            a('v_mov_b32 v13, 1'); a('v_mov_b32 v14, %d', C_INIT*4)
            a('v_cmp_eq_u32 vcc, 0, v0'); a('s_and_b64 exec, exec, vcc')
            a('buffer_atomic_add v13, v14, s[60:63], 0 offen sc1')
            a('s_mov_b64 exec, -1')
        if i >= 2 and cov(i-1) + 1 > lastp[0]: lastp[0] = cov(i-1) + 1; prog(lastp[0])
        for es in range(16): a('ds_read_b128 %s, v7 offset:%d', vr(kb+4*es), (i&1)*SZ_KS + es*32)
        Ti = 8*((i-1) % 3)
        if i > 0:
            a.nop(4); cvts(Ti)
            mst(i-1, Ti); Qv.append(('st', i-1, 4, 2))
        if i + KD < 7: ldk1(i+KD); Qv.append(('ld', i+KD, 8, 8))
        if i == 0: a('s_waitcnt lgkmcnt(0)'); a('s_barrier')
        for es in range(16):
            if i > 0 and es % 4 == 0: a('s_waitcnt lgkmcnt(%d)', 12-es)
            a('v_mfma_f32_32x32x16_bf16 %s, %s, %s, %s', vr(ACC,16), vr(kb+4*es), vr(JS+4*es), '0' if es == 0 else vr(ACC,16))
            if es == 12:
                if i > 0: lst(i-1, Ti)
                if i < 6:
                    wt([('ld', i+1), ('st', cov(i))] + ([('in', 0)] if i == CI-1 else []))
                    stk(i+1)
                if i == 0 and I2P == 2: do_init2()
                if i == 6 and XL and lastp[0] < 5: wt([('st', 4)]); a('s_barrier'); prog(5)
        def f2():
            for es in range(16):
                a('v_mfma_f32_32x32x16_bf16 %s, %s, %s, %s', vr(AC2,16), vr(JS+4*es), vr(kb+4*es), '0' if es == 0 else vr(AC2,16))
        m0(f2)
    a.nop(18)
    Ti = 8*(6 % 3)
    cvts(Ti)
    lst(6, Ti)
    mst(6, Ti); Qv.append(('st', 6, 4, 2))
    if XL: wt([('st', 5)]); a('s_barrier'); prog(6)
    a('s_waitcnt lgkmcnt(0)')
    RT(a, 1)
    if opt('fm', 1):
        init_seen(a, 13, 22, 'wk_done')
        a('s_waitcnt vmcnt(0)'); a('s_barrier'); prog(8)
        flag_set(a, 96, F_M, 's100', 13, 22, 'wk_done', wait=False, chk=False)
    else:
        a('s_waitcnt vmcnt(0)'); a('s_barrier'); prog(8)
        flag_set(a, 96, F_M, 's100', 13, 22, 'wk_done')
    RT(a, 2)
    for f in range(56):
        a('ds_read_b128 %s, v12 offset:%d', ar(4*f), f*1024)
    a('s_cmp_eq_u32 s17, 0'); a('s_cselect_b64 vcc, -1, 0')
    a('v_cndmask_b32 v14, v10, v3, vcc')
    a('s_mul_i32 s22, s19, 28672'); a('v_lshl_add_u32 v5, v4, 5, v14'); a('v_lshlrev_b32 v5, 4, v5'); a('v_add_u32 v5, s22, v5')
    XB = [16, 72, 128]; GA = 184; GT = 216
    a('s_mov_b32 s36, 0')
    a('s_mov_b32 s37, 0')
    a('s_mov_b32 s38, 0')
    def ldx(c, b):
        for k in range(14):
            ks = 14*c + k
            if k == 0 or ks % 4 == 0: a('s_add_u32 s39, s36, %d', (ks//4)*4096)
            if not opt('mgnold'): a('buffer_load_dwordx4 %s, v5, s[48:51], s39 offen offset:%d', vr(XB[b]+4*k), (ks%4)*1024)
        if c == 1: a('s_add_u32 s36, s36, %d', 4*28672)
    ldx(0, 0); ldx(1, 1)
    a('s_waitcnt lgkmcnt(0)')
    a('s_cmp_eq_u32 s17, 0'); a('s_cbranch_scc0 gx_m1')
    for mat in range(2):
        if mat == 1: a.label('gx_m1')
        a('s_lshl_b32 s22, s19, 4'); a('s_add_u32 s22, s22, s18')
        if mat == 0:
            a('s_mul_i32 s22, s22, 28672'); a('s_lshl_b32 s23, s16, 11'); a('s_add_u32 s22, s22, s23')
            a('v_lshrrev_b32 v6, 4, v3'); a('v_mul_u32_u24 v6, 14336, v6'); a('v_add_u32 v6, s22, v6'); a('v_lshl_add_u32 v6, v4, 10, v6')
            a('v_and_b32 v7, 15, v3'); a('v_lshl_add_u32 v6, v7, 4, v6')
        else:
            a('s_mul_i32 s22, s22, 28672'); a('s_lshl_b32 s23, s16, 10'); a('s_add_u32 s22, s22, s23')
            a('v_lshlrev_b32 v6, 4, v10'); a('v_add_u32 v6, s22, v6'); a('v_mul_u32_u24 v7, 7168, v4'); a('v_add_u32 v6, v6, v7')
            a('v_add_u32 v7, 14336, v6')
        def sig(blk):
            flag_set(a, 96, F_GX + 1024*blk, 's100', 13, 22, 'wk_done', wait=False, chk=False)
        for it in range(16):
            for c in range(2):
                ch = 2*it + c
                b = ch % 3
                if ch + 2 < 32:
                    ldx(c, (ch+2) % 3)
                    a('s_waitcnt vmcnt(28)')
                    if c == 1 and it == 1 and opt('ge', 1): sig(8)
                    if c == 1 and it % 2 == 0 and it > 0:
                        sig(it//2 - 1)
                        if it == 2: RT(a, 3)
                else:
                    a('s_waitcnt vmcnt(%d)', 14 if ch == 30 else 0)
                for k in range(14):
                    ks = 14*c + k
                    for j2 in range(2):
                        m = ar((j2*28+ks)*4); x = vr(XB[b]+4*k); acc = vr(GA+16*j2, 16)
                        A, B = (m, x) if mat == 0 else (x, m)
                        if not opt('mgnomf') or ks == 0: a('v_mfma_f32_32x32x16_bf16 %s, %s, %s, %s', acc, A, B, '0' if ks == 0 else acc)
            a.nop(18)
            for i in range(16): a('v_cvt_pk_bf16_f32 v%d, v%d, v%d', GT+i, GA+2*i, GA+2*i+1)
            for j2 in range(2):
                for qq in range(2):
                    off = j2*512 + qq*256 if mat == 0 else j2*512
                    if not opt('mgnost'): a('buffer_store_dwordx4 %s, v%d, s[%d:%d], s37 offen offset:%d sc1', vr(GT+8*j2+4*qq), 7 if (mat == 1 and qq == 1) else 6, 52+4*mat, 55+4*mat, off)
            a('s_add_u32 s37, s37, %d', 4*16*28672)
        a('s_waitcnt vmcnt(0)'); sig(7)
        a('s_branch wk_loop')

L_MEM = 0; L_ZM = L_MEM + 8192; L_TP = L_ZM + 4096
L_RED = L_TP + 4096; L_RED2 = L_RED + 2048; L_PHI = L_RED2 + 1024; L_DUM = L_PHI + 1024; L_CHAIN = L_DUM + 1024
QT = [[0,1,2,3],[4,5,6,7],[8,9,10,11],[12,13]]
UTL = [[0,1,2],[3,4,5],[6,7,8],[9,10,11,12,13]]
SPIN = 200000
FORCE_SLOW = False
PRETOUCH = True
GM = ['sc1', '', 'nt', 'sc0'][opt('gm', 0)]
def load_weights(a, units, wreg4):
    a('s_mul_i32 s13, s2, 401408')
    for u, (kind, t) in enumerate(units):
        un = t if kind == 'q' else 14 + t
        for ks in range(14):
            if ks % 4 == 0: a('s_add_u32 s12, s13, %d', un*14336 + ks*1024)
            a('buffer_load_dwordx4 %s, v3, s[16:19], s12 offen offset:%d', wreg4(u, ks), (ks%4)*1024)
def common_addrs(a):
    a('v_mul_u32_u24 v1, 912, v25'); a('v_lshl_add_u32 v1, v24, 5, v1')
    a('v_lshrrev_b32 v26, 3, v23'); a('v_lshl_add_u32 v1, v26, 4, v1')
    a('v_mov_b32 v4, 0x4444'); a('v_mov_b32 v26, 0xeeee'); a('v_cmp_gt_u32 vcc, 8, v23'); a('s_nop 1'); a('v_cndmask_b32 v4, v26, v4, vcc')
    a('v_and_b32 v26, 1, v24'); a('v_lshlrev_b32 v6, 3, v26'); a('v_lshrrev_b32 v26, 1, v24'); a('v_lshl_add_u32 v6, v26, 2, v6')
    a('v_lshl_add_u32 v6, v23, 4, v6'); a('v_add_u32 v6, %d, v6', L_ZM)
def SM(a, acc, fr, w8):
    a('v_smfmac_f32_16x16x64_bf16 %s, %s, %s, v4', vr(acc), vr(fr), w8)
def fold_ops(R, dst):
    return ['v_permlane32_swap_b32 v%d, v%d' % (R, R+2), 'v_permlane32_swap_b32 v%d, v%d' % (R+1, R+3), 's_nop 0',
            'v_add_f32 v%d, v%d, v%d' % (R, R, R+2), 'v_add_f32 v%d, v%d, v%d' % (R+1, R+1, R+3),
            'v_cvt_pk_bf16_f32 v%d, v%d, v%d' % (dst, R, R+1)]

NTU = opt('ntu', 2)
def k_tu(a):
    flag_wait(a, 96, F_M, 224, 12, 74, 'wk_done')
    a('s_and_b32 s2, s100, 31'); a('s_lshr_b32 s52, s100, 5')
    a('s_load_dwordx2 s[4:5], s[0:1], %d', KA['ws'])
    a('s_lshr_b32 s6, s2, 1'); a('s_and_b32 s7, s2, 1')
    a('v_lshrrev_b32 v1, 6, v0'); a('v_and_b32 v22, 63, v0'); a('s_nop 0')
    a('v_readfirstlane_b32 s8, v1')
    a('v_and_b32 v23, 15, v22'); a('v_lshrrev_b32 v24, 4, v22'); a('v_and_b32 v25, 7, v22')
    a('v_lshlrev_b32 v3, 4, v22')
    a('s_waitcnt lgkmcnt(0)')
    a.srd(16, 4, 5, SZ_M, WS_M); a.srd(28, 4, 5, SZ_TM, WS_TM); a.srd(32, 4, 5, SZ_UT, WS_UT)
    a.srd(36, 4, 5, SZ_M2, WS_M2); a.srd(40, 4, 5, SZ_MF, WS_MF)
    a('v_cmp_gt_u32 s[72:73], 14, v23')
    a('v_cmp_gt_u32 s[44:45], 32, v22')
    a('v_cmp_gt_u32 s[46:47], 56, v22')
    a('s_mul_i32 s9, s2, 14'); a('s_and_b32 s15, s6, 3')
    common_addrs(a)
    a('v_and_b32 v26, 1, v24'); a('v_lshlrev_b32 v5, 7, v26'); a('v_lshrrev_b32 v26, 1, v24'); a('v_lshl_add_u32 v5, v26, 6, v5')
    a('v_bfe_u32 v26, v23, 1, 1'); a('v_lshl_add_u32 v5, v26, 4, v5')
    a('v_lshrrev_b32 v26, 2, v23'); a('v_lshl_add_u32 v5, v26, 2, v5')
    a('v_and_b32 v26, 1, v23'); a('v_lshl_add_u32 v5, v26, 1, v5'); a('v_add_u32 v5, %d, v5', L_TP)
    a('s_mul_i32 s12, s8, 1792'); a('v_add_u32 v15, s12, v3')
    a('s_mul_i32 s12, s8, 1824'); a('v_add_u32 v16, s12, v3')
    a('s_lshl_b32 s12, s8, 10'); a('v_add_u32 v11, s12, v3')
    a('v_mul_u32_u24 v14, 224, v24'); a('v_lshl_add_u32 v14, v23, 4, v14'); a('s_mul_i32 s12, s8, 896'); a('v_add_u32 v14, s12, v14')
    a('s_lshr_b32 s12, s6, 2'); a('s_mul_i32 s12, s12, 28'); a('s_mul_i32 s13, s7, 14'); a('s_add_u32 s12, s12, s13'); a('s_lshl_b32 s12, s12, 10')
    a('s_lshl_b32 s13, s15, 8'); a('s_add_u32 s12, s12, s13'); a('s_lshl_b32 s13, s8, 12'); a('s_add_u32 s12, s12, s13')
    a('v_lshlrev_b32 v12, 10, v24'); a('v_lshl_add_u32 v12, v23, 4, v12'); a('v_add_u32 v12, s12, v12')
    a('v_mul_u32_u24 v13, 448, v24'); a('v_add_u32 v13, v13, v23'); a('v_add_u32 v13, s9, v13'); a('v_lshlrev_b32 v13, 4, v13')
    a('s_mul_i32 s12, s8, %d', 4*448*16); a('v_add_u32 v13, s12, v13')
    a('s_lshl_b32 s57, s2, 4'); a('s_lshl_b32 s12, s8, 2'); a('s_add_u32 s57, s57, s12')
    a('s_lshl_b32 s12, s52, 9'); a('s_add_u32 s57, s57, s12')
    a('s_mul_i32 s53, s52, 7168'); a('s_mul_i32 s55, s52, %d', 16*8*896); a('s_mul_i32 s56, s52, %d', 16*448*16)
    for wv in range(1, 4):
        a('s_cmp_eq_u32 s8, %d', wv); a('s_cbranch_scc1 tu_w%d', wv)
    FR = 20; ACC = 48; WV = 88; PL = 76
    for wv in range(4):
        a.label('tu_w%d' % wv)
        qt = QT[wv]; ut = UTL[wv]; nq = len(qt)
        units = [('q', t) for t in qt] + [('u', t) for t in ut]
        def wreg4(u, ks): return ar(u*56 + ks*4) if u < 4 else vr(WV + (u-4)*56 + ks*4)
        def wreg8(u, s): return ar(u*56 + s*8, 8) if u < 4 else vr(WV + (u-4)*56 + s*8, 8)
        load_weights(a, units, wreg4)
        EF = opt('ef', 1)
        if EF:
            for r_ in range(4): a('v_mov_b32 v%d, -1', PL+r_)
            a('s_add_u32 s12, s55, %d', (64-NTU)*16*8*896); a('s_add_u32 s13, s56, %d', (64-NTU)*16*448*16)
            if wv == 3: a('s_mov_b64 exec, s[44:45]')
            a('buffer_store_dwordx4 %s, v12, s[28:31], s12 offen sc1', vr(PL))
            a('s_mov_b64 exec, s[72:73]')
            a('buffer_store_dwordx4 %s, v13, s[32:35], s13 offen sc1', vr(PL))
            a('s_mov_b64 exec, -1'); a('s_nop 1')
        for r_ in range(8): a('v_mov_b32 v%d, 0', PL+r_)
        LP = 'tu_loop%d' % wv
        a.label(LP)
        a('s_mov_b32 s62, 0')
        a.label(LP + '_p')
        a('s_mov_b64 exec, s[46:47]')
        for k in range(2): a('buffer_load_dwordx4 %s, v15, s[36:39], s53 offen offset:%d sc1', vr(PL+4*k), k*896)
        a('s_mov_b64 exec, -1')
        a('s_waitcnt vmcnt(0)')
        a('s_cmp_eq_u32 s62, 0'); a('s_cbranch_scc0 %s_nf', LP)
        a('s_cmp_lt_u32 s52, %d', NTU); a('s_cbranch_scc1 %s_nf', LP)
        a('s_mov_b64 exec, 1'); a('buffer_store_dword v3, v3, s[40:43], s57 offen sc1'); a('s_mov_b64 exec, -1')
        a('s_add_u32 s57, s57, %d', 512*NTU)
        a.label(LP + '_nf')
        a('s_add_u32 s62, s62, 1'); a('s_cmp_gt_u32 s62, %d', WSPIN); a('s_cbranch_scc1 wk_done')
        a('v_max3_u32 v84, v%d, v%d, v%d', PL, PL+1, PL+2); a('v_max3_u32 v85, v%d, v%d, v%d', PL+3, PL+4, PL+5); a('v_max3_u32 v84, v84, v%d, v%d', PL+6, PL+7)
        a('v_max_u32 v84, v84, v85'); a('v_cmp_eq_u32 vcc, -1, v84'); a('s_cbranch_vccz %s_g', LP)
        a('s_sleep 2'); a('s_branch %s_p', LP)
        a.label(LP + '_g')
        a('s_mov_b64 exec, s[46:47]')
        for k in range(2): a('ds_write_b128 v16, %s offset:%d', vr(PL+4*k), L_MEM + k*912)
        a('s_mov_b64 exec, -1')
        for r_ in range(28): a('v_mov_b32 v%d, 0', ACC+r_)
        a('s_waitcnt lgkmcnt(0)'); a('s_barrier')
        for s in range(7): a('ds_read_b128 %s, v1 offset:%d', vr(FR+4*s), L_MEM + s*128)
        for s in range(7):
            a('s_waitcnt lgkmcnt(%d)', 6-s)
            for u in range(7): SM(a, ACC+4*u, FR+4*s, wreg8(u, s))
        a.nop(8)
        for u in range(7):
            for q in fold_ops(ACC+4*u, ACC+4*u): a(q)
        for u, t in enumerate(qt):
            a('ds_write_b16 v5, v%d offset:%d', ACC+4*u, 256*t); a('ds_write_b16_d16_hi v5, v%d offset:%d', ACC+4*u, 256*t+32)
        for k, t in enumerate(ut):
            a('ds_write_b32 v6, v%d offset:%d', ACC+4*(nq+k), 256*t)
        a('s_waitcnt lgkmcnt(0)'); a('s_barrier')
        a('ds_read_b128 %s, v11 offset:%d', vr(FR), L_TP); a('ds_read_b128 %s, v14 offset:%d', vr(FR+4), L_ZM)
        a('s_waitcnt lgkmcnt(1)')
        if EF:
            for r_ in range(4): a('v_min_u32 v%d, 0xfffffffe, v%d', FR+r_, FR+r_)
        if wv == 3: a('s_mov_b64 exec, s[44:45]')
        a('buffer_store_dwordx4 %s, v12, s[28:31], s55 offen sc1', vr(FR))
        a('s_mov_b64 exec, s[72:73]'); a('s_waitcnt lgkmcnt(0)')
        if EF:
            for r_ in range(4): a('v_min_u32 v%d, 0xfffffffe, v%d', FR+4+r_, FR+4+r_)
        a('buffer_store_dwordx4 %s, v13, s[32:35], s56 offen sc1', vr(FR+4))
        a('s_mov_b64 exec, -1')
        a('s_add_u32 s52, s52, %d', NTU); a('s_add_u32 s53, s53, %d', 7168*NTU); a('s_add_u32 s55, s55, %d', 16*8*896*NTU); a('s_add_u32 s56, s56, %d', 16*448*16*NTU)
        a('s_cmp_lt_u32 s52, 64'); a('s_cbranch_scc1 %s', LP)
        if not EF: a('s_waitcnt vmcnt(0)')
        a('s_mov_b64 exec, 1'); a('buffer_store_dword v3, v3, s[40:43], s57 offen sc1'); a('s_mov_b64 exec, -1')
        a('s_branch wk_loop')

def k_chain(a):
    TSL = []
    def TS0(k):
        if not INSTR: return
        a('s_memrealtime s[64:65]' if opt('rt') else 's_memtime s[64:65]'); a('s_waitcnt lgkmcnt(0)')
        a('v_mov_b32 v63, s64')
        a('s_mov_b64 exec, 1')
        a('buffer_store_dword v63, v3, s[68:71], s67 offen offset:%d', 4*k)
        a('s_mov_b64 exec, -1')
    def TS(k):
        if not INSTR: return
        j = len(TSL); assert j < 7; TSL.append(k)
        a('%s s[%d:%d]', 's_memrealtime' if opt('rt') else 's_memtime', 88+2*j, 89+2*j)
    def TDUMP(extra=None):
        if not INSTR: return
        a('s_waitcnt lgkmcnt(0)')
        for j, k in enumerate(TSL): a('v_writelane_b32 v63, s%d, %d', 88+2*j, k)
        m = sum(1 << k for k in TSL)
        if extra:
            a('v_writelane_b32 v63, %s, 13', extra); m |= 1 << 13
        a('v_lshrrev_b32 v62, 2, v3')
        a('s_lshl_b32 s66, s52, 6'); a('s_add_u32 s66, s66, s67')
        a('s_mov_b64 exec, 0x%x', m)
        a('buffer_store_dword v63, v62, s[68:71], s66 offen')
        a('s_mov_b64 exec, -1'); a('s_nop 1')
        TSL.clear()
    def pub(fmt, *args):
        L = a.newlabel('pb')
        a('s_cmp_eq_u32 s63, 0'); a('s_cbranch_scc1 %s_s', L)
        a(fmt, *(args + ('',))); a('s_branch %s_d', L)
        a.label(L + '_s'); a(fmt, *(args + ('sc1',))); a.label(L + '_d')
    L_S = L_TP; L_R2 = L_TP; L_DM = L_TP + 6144
    LZ = 8192; L_S = 16384; L_R2 = 16384; L_DM = 16384 + 6144
    init2(a, 0)
    a('s_lshr_b32 s2, s2, 3')
    a('s_load_dwordx2 s[4:5], s[0:1], %d', KA['ws'])
    a('s_load_dwordx2 s[76:77], s[0:1], %d', KA['dbg'])
    a('s_load_dwordx2 s[78:79], s[0:1], %d', KA['B_mem0'])
    a('s_and_b32 s6, s2, 15')
    a('v_lshrrev_b32 v1, 6, v0'); a('v_and_b32 v22, 63, v0'); a('s_nop 0')
    a('v_readfirstlane_b32 s8, v1')
    a('v_and_b32 v23, 15, v22'); a('v_lshrrev_b32 v24, 4, v22'); a('v_and_b32 v25, 7, v22')
    a('v_lshlrev_b32 v3, 4, v22')
    a('s_waitcnt lgkmcnt(0)')
    a.srd(20, 4, 5, SZ_XF, WS_XF); a.srd(24, 4, 5, SZ_VW, WS_VW)
    a.srd(28, 4, 5, SZ_M2, WS_M2); a.srd(36, 4, 5, SZ_MB, WS_MB); a.srd(40, 4, 5, SZ_SB, WS_SB)
    a.srd(80, 76, 77, 256); a.srd(84, 78, 79, 7168)
    a('s_mov_b32 s52, 0')
    if INSTR:
        a.srd(68, 4, 5, SZ_P, WS_P)
        a('s_lshl_b32 s67, s2, 2'); a('s_add_u32 s67, s67, s8'); a('s_lshl_b32 s67, s67, 12')
    TS0(8)
    a('s_add_u32 s101, s2, 1900'); RT(a, 0)
    a.srd(72, 4, 5, SZ_FL, WS_FL)
    for r_ in range(4): a('v_mov_b32 v%d, 0', 40+r_)
    a('v_lshlrev_b32 v9, 5, v0')
    a('ds_write_b128 v9, %s', vr(40)); a('ds_write_b128 v9, %s offset:16', vr(40))
    a('v_lshrrev_b32 v26, 3, v23'); a('v_mul_u32_u24 v26, 7, v26'); a('v_lshl_add_u32 v26, v24, 1, v26'); a('s_mul_i32 s12, s6, 14'); a('v_add_u32 v26, s12, v26')
    a('v_mul_u32_u24 v27, 896, v25')
    a('v_lshl_add_u32 v8, v26, 2, v27')
    a('buffer_load_dwordx2 %s, v8, s[84:87], 0 offen', vr(18, 2))
    for e, (vu, vq) in enumerate(((11, 13), (12, 2))):
        a('v_add_u32 v28, %d, v26', e)
        a('v_lshrrev_b32 v29, 3, v28'); a('v_lshl_add_u32 v29, v29, 5, v27')
        a('v_and_b32 v30, 1, v28'); a('v_bfe_u32 v31, v28, 1, 2'); a('v_lshl_add_u32 v31, v30, 2, v31'); a('v_lshl_add_u32 v%d, v31, 2, v29', vu)
        a('v_bfe_u32 v31, v28, 2, 1'); a('v_lshl_add_u32 v31, v30, 1, v31'); a('v_bfe_u32 v30, v28, 1, 1'); a('v_lshl_add_u32 v31, v30, 2, v31')
        a('v_lshl_add_u32 v%d, v31, 2, v29', vq); a('v_add_u32 v%d, 7168, v%d', vq, vq)
    a('v_mov_b32 v28, 0x40000000'); a('v_cmp_eq_u32 vcc, 3, v24'); a('s_nop 1')
    a('v_cndmask_b32 v12, v12, v28, vcc'); a('v_cndmask_b32 v2, v2, v28, vcc')
    a('s_getreg_b32 s12, hwreg(HW_REG_XCC_ID, 0, 4)'); a('s_lshl_b32 s12, 1, s12')
    a('v_mov_b32 v48, s12'); a('v_mov_b32 v49, %d', C_XCC*4)
    a('v_cmp_eq_u32 vcc, 0, v0'); a('s_and_b64 exec, exec, vcc')
    a('buffer_atomic_or v48, v49, s[80:83], 0 offen sc1')
    a('s_mov_b64 exec, -1')
    signal(a, 80, C_INIT, 36)
    a('v_mov_b32 v50, %d', L_TK)
    a('s_cmp_eq_u32 s8, 0'); a('s_cbranch_scc0 ch_iw')
    waitc(a, 80, C_P0, 224, 36, 12, 'ch_done', opt('cis', 8))
    a.label('ch_iw')
    a('s_barrier')
    def s63_from(v):
        a('v_readfirstlane_b32 s12, v%d', v); a('s_nop 3')
        a('s_bcnt1_i32_b32 s12, s12'); a('s_cmp_eq_u32 s12, 1'); a('s_cselect_b32 s63, 1, 0')
        if FORCE_SLOW: a('s_mov_b32 s63, 0')
    def mpub(T, so, s2o, pre=False):
        L = a.newlabel('mp')
        if not (opt('nmin', 1) and pre): a('v_min_u32 v%d, 0xfffffffe, v%d', T, T); a('v_min_u32 v%d, 0xfffffffe, v%d', T+1, T+1)
        if not pre: a('s_cmp_eq_u32 s63, 0')
        a('s_cbranch_scc1 %s_s', L)
        for m in ('', 'sc1'):
            if m: a.label(L + '_s')
            for d, va in ((T, 13), (T+1, 2), (T, 11), (T+1, 12)): a('buffer_store_dword v%d, v%d, s[36:39], %s offen %s', d, va, so, m)
            if not m: a('s_branch %s_d', L)
        a.label(L + '_d')
    def m2l(T): return ['buffer_store_dword v%d, v%d, s[28:31], s55 offen sc1' % (d, va) for d, va in ((T, 11), (T+1, 12))] + ['s_add_u32 s55, s55, 7168']
    def after_init(isu):
        L = a.newlabel('ai')
        a('s_cmp_eq_u32 s8, 0'); a('s_cbranch_scc0 %s', L)
        waitc(a, 80, C_INIT, NINIT, 36, 12, 'ch_done', 8, x2=True)
        a('ds_write_b32 v50, v39')
        if isu:
            s63_from(39)
            mpub(18, '0', '0')
        a.label(L)
    def after_ldw():
        a('s_waitcnt lgkmcnt(0)'); a('s_barrier')
        a('ds_read_b32 v48, v50'); a('s_waitcnt lgkmcnt(0)')
        s63_from(48)
    TS0(9)
    PG = opt('pg', 1)
    assert PG
    a.srd(32, 4, 5, SZ_PG, WS_PG)
    a('s_mov_b32 s76, s72'); a('s_mov_b32 s77, s73'); a('s_mov_b32 s78, s74'); a('s_mov_b32 s79, s75')
    TS0(10)
    a('v_cmp_gt_u32 s[46:47], 56, v22')
    common_addrs(a)
    a('s_mul_i32 s12, s8, 1792'); a('v_add_u32 v15, s12, v3')
    a('s_mul_i32 s12, s8, 1824'); a('v_add_u32 v14, s12, v3')
    a('s_mov_b32 s53, 0'); a('s_mov_b32 s54, 0'); a('s_mov_b32 s55, 0'); a('s_mov_b32 s59, %d', MBS)
    FR = 20; WV = 88; ZA = 224; ID = 16
    def wreg4(u, ks): return ar(u*56 + ks*4) if u < 4 else vr(WV + (u-4)*56 + ks*4)
    def wreg8(u, s): return ar(u*56 + s*8, 8) if u < 4 else vr(WV + (u-4)*56 + s*8, 8)
    def ldw():
        for u in range(7):
            for ks in range(14):
                if ks % 4 == 0: a('s_add_u32 s12, s13, %d', u*14336 + ks*1024)
                a('buffer_load_dwordx4 %s, v3, s[16:19], s12 offen offset:%d', wreg4(u, ks), (ks%4)*1024)
    def ldw_pg(L, rounds, isu):
        for u in range(7): a('s_add_u32 s%d, s13, %d', 88+u, u*14336)
        a('v_add_u32 v43, 4096, v3'); a('v_add_u32 v44, 8192, v3'); a('v_add_u32 v45, 12288, v3')
        def ld(u, ks): a('buffer_load_dwordx4 %s, v%d, s[16:19], s%d offen offset:%d', wreg4(u, ks), [3, 43, 44, 45][ks//4], 88+u, (ks%4)*1024)
        def pl(): a('buffer_load_dword v42, v40, s[32:35], 0 offen sc1')
        def ck(): a('v_sub_u32 v42, v42, v41'); a('v_cmp_gt_i32 vcc, %d, v42', th)
        a('s_mov_b32 s62, 0')
        for r_, th in enumerate((1, 2, 3, 4, 5, 6, 7)):
            if r_ > 0:
                for j, (u, ks) in enumerate(rounds[r_-1]):
                    if j == 4: pl()
                    ld(u, ks)
                a('s_waitcnt vmcnt(10)'); ck(); a('s_cbranch_vccz %s_k%d', L, r_)
            a.label('%s_s%d' % (L, r_))
            pl()
            a('s_add_u32 s62, s62, 1'); a('s_cmp_gt_u32 s62, %d', WSPIN); a('s_cbranch_scc1 ch_done')
            a('s_waitcnt vmcnt(0)'); ck(); a('s_cbranch_vccz %s_k%d', L, r_)
            a('s_sleep 4'); a('s_branch %s_s%d', L, r_)
            a.label('%s_k%d' % (L, r_))
            if opt('pgt') and r_ < 4: TS0([12, 15, 7, 8][r_])
            if r_ == opt('air', 2): after_init(isu)
        for rr in rounds[6:]:
            for (u, ks) in rr: ld(u, ks)
    def poll_mem(LP, slp, pipe=0, R=20):
        a('s_mov_b32 s62, 0')
        if slp: a('s_sleep %d', slp)
        if not opt('fts'): TS(14)
        a('s_mov_b64 exec, s[46:47]')
        def ld(R):
            for k in range(2): a('buffer_load_dwordx4 %s, v15, s[36:39], s53 offen offset:%d sc1', vr(R+4*k), k*896)
        def ck(R):
            a('v_max3_u32 v36, v%d, v%d, v%d', R, R+1, R+2); a('v_max3_u32 v37, v%d, v%d, v%d', R+3, R+4, R+5)
            a('v_max3_u32 v36, v36, v%d, v%d', R+6, R+7); a('v_max_u32 v36, v36, v37')
            a('v_cmp_eq_u32 vcc, -1, v36')
        def wr(R):
            for k in range(2): a('ds_write_b128 v14, %s offset:%d', vr(R+4*k), L_MEM + k*912)
        if not pipe:
            a.label(LP + '_pm')
            ld(R)
            a('s_add_u32 s62, s62, 1'); a('s_cmp_gt_u32 s62, %d', SPIN); a('s_cbranch_scc1 ch_done')
            a('s_waitcnt vmcnt(0)')
            ck(R); a('s_cbranch_vccnz %s_pm', LP)
            wr(R)
        else:
            ld(R); a('s_sleep %d', pipe)
            a.label(LP + '_pm')
            ld(R+8)
            a('s_add_u32 s62, s62, 1'); a('s_cmp_gt_u32 s62, %d', SPIN); a('s_cbranch_scc1 ch_done')
            a('s_waitcnt vmcnt(2)')
            ck(R); a('s_cbranch_vccz %s_pa', LP)
            ld(R)
            a('s_waitcnt vmcnt(2)')
            ck(R+8); a('s_cbranch_vccnz %s_pm', LP)
            wr(R+8); a('s_branch %s_pb', LP)
            a.label(LP + '_pa')
            wr(R)
            a.label(LP + '_pb')
        a('s_mov_b64 exec, -1')
        TS(0)
        a('s_waitcnt lgkmcnt(0)')
        a('s_barrier')
        for s in range(7): a('ds_read_b128 %s, v1 offset:%d', vr(FR+4*s), L_MEM + s*128)
        TS(1)
    def cv(d, s_): return 'v_cvt_pk_bf16_f32 v%d, v%d, v%d' % (d, s_, s_+1)
    def tmf(b): return 'v_mfma_f32_16x16x32_bf16 %s, %s, %s, 0' % (vr(b+4), vr(b), vr(ID))
    def zz(r_): return 'v_mov_b32 v%d, 0' % r_
    def step_end(LP, fin=[]):
        a('s_add_u32 s52, s52, 1'); a('s_add_u32 s53, s53, %d', MBS); a('s_add_u32 s54, s54, %d', SBS)
        a('s_cmp_lt_u32 s52, 63'); a('s_cbranch_scc1 %s', LP)
        for q in fin: a(q)
        a('s_waitcnt vmcnt(0)')
        a('s_branch ch_done')
    def gx_wait(L, pro=False):
        if pro: a('s_mov_b32 s12, %d', 64 if opt('ge', 1) else 0)
        else:
            if opt('ge', 1): a('s_cmp_eq_u32 s12, 4'); a('s_cselect_b32 s12, 0, s12')
            a('s_and_b32 s13, s12, 7'); a('s_cmp_eq_u32 s13, 0'); a('s_cbranch_scc0 %s_ng', L)
            a('s_cmp_lt_u32 s12, 64'); a('s_cbranch_scc0 %s_ng', L)
        a('s_cmp_eq_u32 s8, 3'); a('s_cbranch_scc0 %s_ng', L)
        a('s_lshl_b32 s12, s12, 7'); a('s_add_u32 s12, s12, %d', F_GX)
        flag_poll(a, 76, 's12', 224, 20, 62, 'ch_done', 1)
        a.label(L + '_ng')
    a('s_cmp_ge_u32 s2, 16'); a('s_cbranch_scc1 ch_u')
    a.srd(16, 4, 5, SZ_MQ, WS_MQ)
    a('s_mul_i32 s13, s6, 401408'); a('s_mul_i32 s12, s8, %d', 7*14336); a('s_add_u32 s13, s13, s12')
    if PG:
        a('v_min_u32 v40, 6, v22'); a('s_mul_i32 s12, s6, 7'); a('v_add_u32 v40, s12, v40'); a('v_lshlrev_b32 v40, 2, v40'); a('v_mov_b32 v41, 0')
        a('s_and_b32 s12, s8, 1'); a('s_cmp_eq_u32 s12, 1'); a('s_cbranch_scc1 qw_1')
        for pv in range(2):
            a.label('qw_%d' % pv)
            ldw_pg('qw%d' % pv, [[(u, 2*((((7*pv+u)>>1) - r_) % 7) + e) for u in range(7) for e in range(2)] for r_ in range(7)], False)
            a('s_branch qw_d')
        a.label('qw_d')
        after_ldw()
    else: ldw()
    a('v_add_u32 v15, 7168, v15')
    a('v_and_b32 v26, 1, v24'); a('v_lshrrev_b32 v27, 1, v24')
    a('v_mul_u32_u24 v2, 912, v25'); a('v_lshl_add_u32 v2, v26, 6, v2'); a('v_lshl_add_u32 v2, v27, 4, v2'); a('s_mul_i32 s12, s8, 224'); a('v_add_u32 v2, s12, v2')
    a('v_lshl_add_u32 v28, v26, 1, v27'); a('v_mul_u32_u24 v28, 1360, v28'); a('s_lshl_b32 s12, s8, 2'); a('s_add_u32 s12, s12, %d', L_S); a('v_add_u32 v28, s12, v28')
    a('v_and_b32 v29, 3, v23'); a('v_mul_u32_u24 v29, 272, v29'); a('v_add_u32 v5, v28, v29'); a('v_lshrrev_b32 v29, 2, v23'); a('v_lshl_add_u32 v5, v29, 5, v5')
    a('v_lshl_add_u32 v7, v23, 5, v28'); a('v_add_u32 v7, 1088, v7'); a('v_lshlrev_b32 v29, 2, v22'); a('v_add_u32 v29, %d, v29', L_DM)
    a('v_cmp_gt_u32 vcc, 8, v23'); a('s_nop 1'); a('v_cndmask_b32 v7, v29, v7, vcc')
    a('v_lshrrev_b32 v28, 3, v22'); a('v_lshrrev_b32 v29, 4, v22'); a('v_mul_u32_u24 v8, 1360, v29'); a('v_lshl_add_u32 v8, v25, 5, v8')
    a('v_and_b32 v29, 1, v28'); a('v_lshl_add_u32 v8, v29, 4, v8'); a('v_add_u32 v8, %d, v8', L_S)
    a('v_lshrrev_b32 v29, 1, v25'); a('v_lshlrev_b32 v9, 7, v29'); a('v_lshl_add_u32 v9, v28, 4, v9'); a('v_and_b32 v30, 1, v25'); a('v_lshl_add_u32 v9, v30, 3, v9')
    a('s_lshl_b32 s12, s6, 9'); a('v_add_u32 v9, s12, v9')
    a('v_lshlrev_b32 v10, 4, v28'); a('v_lshl_add_u32 v10, v29, 2, v10'); a('s_lshl_b32 s12, s6, 7'); a('s_add_u32 s12, s12, 8192'); a('v_add_u32 v10, s12, v10')
    a('v_mov_b32 v29, 0x40000000'); a('v_cmp_eq_u32 vcc, 1, v30'); a('s_nop 1'); a('v_cndmask_b32 v10, v10, v29, vcc')
    a('v_lshlrev_b32 v11, 7, v23'); a('s_lshl_b32 s12, s6, 11'); a('v_add_u32 v11, s12, v11')
    a('v_min_u32 v12, 4, v22'); a('v_lshlrev_b32 v12, 7, v12'); a('s_mul_i32 s12, s6, 640'); a('v_add_u32 v12, s12, v12')
    a('v_bfe_u32 v27, v23, 2, 1'); a('v_lshrrev_b32 v28, 3, v23'); a('v_and_b32 v29, 3, v23'); a('v_lshl_add_u32 v28, v28, 2, v29')
    a('v_mov_b32 v29, 64'); a('v_cmp_eq_u32 vcc, v26, v27'); a('s_nop 1'); a('v_cndmask_b32 v28, v29, v28, vcc')
    a('v_mov_b32 v26, 0x3f80'); a('v_mov_b32 v27, 0x3f800000'); a('v_mov_b32 v29, 0')
    for q in range(4):
        a('v_cmp_eq_u32 vcc, %d, v28', 2*q); a('s_nop 1'); a('v_cndmask_b32 v%d, v29, v26, vcc', 16+q)
        a('v_cmp_eq_u32 vcc, %d, v28', 2*q+1); a('s_nop 1'); a('v_cndmask_b32 v%d, v%d, v27, vcc', 16+q, 16+q)
    a('s_mov_b32 s60, 0x%x', 0x3db8aa3b)
    a('s_lshl_b32 s56, s8, 13'); a('s_add_u32 s56, s56, %d', 2*SZ_X1); a('s_add_u32 s57, s56, 4096'); a('s_mov_b32 s58, %d', 2*SZ_X1 + 32768)
    def xp_loads():
        for f in range(8):
            a('buffer_load_dwordx4 %s, v3, s[20:23], s%d offen offset:%d %s', ar(ZA+4*f), 56 + f//4, (f%4)*1024, ['sc1', '', 'nt'][opt('xm', 0)])
            if opt('xsl', 1) and f < 7: a('s_sleep %d', opt('xsl', 1))
        a('s_add_u32 s56, s56, 32768'); a('s_add_u32 s57, s57, 32768')
    XE = opt('xe', 0); ZPF = opt('zpf', 2); M2Q = opt('m2q', 2)
    a('s_mul_i32 s12, s6, 28672'); a('s_sub_u32 s13, s8, 1'); a('s_mul_i32 s14, s13, 7168'); a('s_add_u32 s12, s12, s14')
    a('s_cmp_lt_u32 s13, %d', ZPF); a('s_cselect_b32 s12, s12, 0x40000000')
    a('v_lshlrev_b32 v6, 7, v22'); a('v_add_u32 v6, s12, v6'); a('v_mov_b32 v29, 0x40000000')
    a('v_cndmask_b32_e64 v6, v29, v6, s[46:47]'); a('s_mov_b32 s61, %d', 16*28672)
    a('s_mul_i32 s12, s6, 448'); a('v_add_u32 v10, s12, v3') if False else None
    a('s_mul_i32 s14, s6, 448'); a('s_cmp_eq_u32 s8, 2'); a('s_cselect_b32 s48, 0xfffffff, 0'); a('s_mov_b32 s49, 0')
    if ZPF: gx_wait('ch_proq', True)
    if XE != 1:
        xp_loads()
        a('buffer_load_dword v13, v11, s[20:23], s58 offen sc1'); a('s_add_u32 s58, s58, 32768')
    a('s_waitcnt vmcnt(0)')
    TS0(11)
    RT(a, 1, vt=62)
    a('s_cmp_eq_u32 s8, 0'); a('s_cbranch_scc0 ch_q1')
    UA = {0: 48, 1: 52, 2: 56, 3: 60, 4: 72, 5: 76, 6: 80}
    M8 = 80; XM = 48; X0 = 52; X1 = 56
    for wv in range(2):
        LP = 'ch_q%d' % wv
        a.label(LP)
        for r_ in list(range(48, 64)) + list(range(80 if opt('pipe', 0) else 72, 84)): a(zz(r_))
        poll_mem(LP, opt('pmq', 4), opt('pipe', 0), 64 if opt('pipe', 0) else 20)
        def ptouch(LP):
            if wv != 1: return
            a('s_add_u32 s12, s54, %d', SBS)
            a('s_cmp_eq_u32 s8, 1'); a('s_cbranch_scc0 %s_n1', LP)
            a('buffer_load_dword v13, v11, s[20:23], s58 offen sc1'); a('s_add_u32 s58, s58, 32768')
            a('buffer_load_dword v13, v12, s[40:43], s12 offen sc1')
            a.label(LP + '_n1')
        xl = ['buffer_load_dwordx4 %s, v3, s[20:23], s%d offen offset:%d sc1' % (ar(ZA+4*f), 56 + f//4, (f%4)*1024) for f in range(8)] if XE == 1 else []
        for _ in range(opt('xpre', 2)):
            if xl: a(xl.pop(0))
        order = [(6, s) for s in range(7)] + [(u, s) for s in range(7) for u in (0, 1)] + [(u, s) for s in range(7) for u in (2, 3)] + [(4, s) for s in range(7)] + [(5, s) for s in range(7)]
        def m8(q, r_): return 'ds_read2_b32 %s, v2 offset0:%d offset1:%d' % (vr(M8+2*r_, 2), 32*q + (r_>>1) + 2*(r_&1), 32*q + (r_>>1) + 2*(r_&1) + 8)
        def SC(acc, q, b8): return 'v_smfmac_f32_16x16x64_bf16 %s, %s, %s, v4' % (vr(acc), vr(64+4*q), b8)
        def xb(q, t): return ar(ZA + (2*q+t)*8, 8)
        fl = {9: [cv(80, 80)], 10: [cv(81, 82)], 12: ['v_mfma_f32_16x16x16_bf16 %s, %s, %s, 0' % (vr(84), vr(80, 2), vr(ID, 2))], 15: [cv(70, 84)], 16: [cv(71, 86)],
              17: [m8(0, 0)], 18: [m8(0, 1)], 19: [m8(0, 2)], 20: [m8(0, 3)],
              23: [cv(48, 48)], 24: [cv(49, 50)], 25: [cv(50, 52)], 26: [cv(51, 54)], 28: [tmf(48)], 30: [zz(48)], 31: [cv(64, 52)], 32: [cv(65, 54)],
              33: [zz(49)], 34: [zz(50)], 35: [zz(51)], 36: [zz(52)],
              37: [cv(56, 56)], 38: [cv(57, 58)], 39: [cv(58, 60)], 40: [cv(59, 62)], 41: [tmf(56), zz(53), zz(54)], 42: [zz(55)], 43: [zz(56)],
              44: [cv(66, 60)], 45: [cv(67, 62), cv(72, 72)], 46: [SC(XM, 0, vr(M8, 8)), cv(73, 74)], 47: [zz(57), m8(1, 0), m8(1, 1)], 48: [m8(1, 2), m8(1, 3), zz(58), zz(59)]}
        if opt('tri', 1):
            order = [(u, s) for s in range(7) for u in (6, 0, 1)] + order[21:]
            t16 = fl[12]
            for k in list(fl):
                if k < 37: del fl[k]
            fl.update({21: [cv(80, 80)], 22: [cv(81, 82)], 23: [cv(48, 48)], 24: t16 + [cv(49, 50), cv(50, 52)], 25: [cv(51, 54)], 27: [tmf(48), cv(70, 84), cv(71, 86)],
                       28: [m8(0, 0)], 29: [m8(0, 1), zz(48)], 30: [cv(64, 52)], 31: [cv(65, 54)], 32: [m8(0, 2)], 33: [m8(0, 3), zz(49)], 34: [zz(50)], 35: [zz(51)], 36: [zz(52)]})
        if opt('pipe', 0):
            for r_ in range(8): fl[12+r_] = [zz(72+r_)]
            fl[12].insert(0, 's_waitcnt vmcnt(0)')
        seen = set()
        for k, (u, s) in enumerate(order):
            if s not in seen: a('s_waitcnt lgkmcnt(%d)', 6-s); seen.add(s)
            if k == 46: a('s_waitcnt lgkmcnt(0)')
            SM(a, UA[u], FR+4*s, wreg8(u, s))
            for q in fl.get(k, []): a(q)
            if xl and k not in fl: a(xl.pop(0))
            if ZPF and wv == 1 and k == opt('zk', 18): a('buffer_load_dword v13, v6, s[24:27], s61 offen sc1'); a('s_add_u32 s61, s61, %d', 16*28672)
            if M2Q == 2 and wv == 1:
                if k == 1: a('s_add_u32 s12, s53, s14'); a('s_add_u32 s13, s55, s14'); a('s_mov_b32 s33, 0')
                if k == 2: a('s_mov_b64 exec, s[48:49]'); a('buffer_load_dwordx4 %s, v3, s[36:39], s12 offen sc1', vr(84)); a('s_mov_b64 exec, -1')
                if k == 15: a('s_waitcnt vmcnt(0)'); a('v_max3_u32 v13, v84, v85, v86')
                if k == 16: a('v_max_u32 v13, v13, v87')
                if k == 17:
                    a('s_mov_b64 exec, s[48:49]'); a('v_cmp_eq_u32 vcc, -1, v13'); a('s_cbranch_vccnz %s_n3', LP)
                    a('buffer_store_dwordx4 %s, v3, s[28:31], s13 offen sc1', vr(84)); a('s_mov_b32 s33, 1'); a('s_add_u32 s55, s55, 7168')
                    a.label(LP + '_n3'); a('s_mov_b64 exec, -1')
            if XE == 1 and k == 13: ptouch(LP)
            if XE == 1 and k == 22: a('s_add_u32 s56, s56, 32768'); a('s_add_u32 s57, s57, 32768')
        if XE == 1: a('s_waitcnt vmcnt(0)')
        a(SC(X0, 0, xb(0, 0))); a('s_nop 0')
        a(cv(74, 76)); a(cv(75, 78)); a('s_nop 1'); a(tmf(72)); a(SC(X1, 0, xb(0, 1))); a('s_nop 4')
        a(cv(68, 76)); a(cv(69, 78)); a('s_nop 1')
        a(SC(X0, 1, xb(1, 0))); a(SC(X1, 1, xb(1, 1))); a('s_waitcnt lgkmcnt(0)'); a(SC(XM, 1, vr(M8, 8))); a('s_nop 1')
        def sw(R): a('v_permlane32_swap_b32 v%d, v%d', R, R+2); a('v_permlane32_swap_b32 v%d, v%d', R+1, R+3)
        def ad(R): a('v_add_f32 v%d, v%d, v%d', R, R, R+2); a('v_add_f32 v%d, v%d, v%d', R+1, R+1, R+3)
        sw(X0); a('s_nop 1'); sw(X1); ad(X0); a('ds_write2_b32 v5, v%d, v%d offset0:0 offset1:4', X0, X0+1)
        ad(X1); sw(XM); a('ds_write2_b32 v5, v%d, v%d offset0:32 offset1:36', X1, X1+1); a('s_nop 0')
        ad(XM); a('ds_write2_b32 v7, v%d, v%d offset0:0 offset1:4', XM, XM+1)
        TS(9)
        a('s_waitcnt lgkmcnt(0)')
        a('s_barrier')
        if wv == 0:
            RD = 48; EE = 72; L_ = 78; Tm = 80
            for j in range(5): a('ds_read_b128 %s, v8 offset:%d', vr(RD+4*j), 272*j)
            TS(2)
            a('s_cmp_eq_u32 s63, 0')
            for j in range(5):
                a('s_waitcnt lgkmcnt(%d)', 4-j)
                a('v_pk_add_f32 %s, %s, %s', vr(RD+4*j, 2), vr(RD+4*j, 2), vr(RD+4*j+2, 2))
                a('v_add_f32 v%d, v%d, v%d', RD+4*j, RD+4*j, RD+4*j+1)
                if not opt('psc', 1): a('v_mul_f32 v%d, s60, v%d', RD+4*j, RD+4*j)
                a('v_exp_f32 v%d, v%d', EE+j, RD+4*j)
            def red(op, r_):
                for d in ('quad_perm:[1,0,3,2]', 'quad_perm:[2,3,0,1]', 'row_half_mirror'):
                    a('s_nop 1'); a('%s_dpp v%d, v%d, v%d %s row_mask:0xf bank_mask:0xf', op, r_, r_, r_, d)
            def sums():
                a('v_add_f32 v%d, v%d, v%d', L_, EE, EE+1); a('v_add_f32 v%d, v%d, v%d', L_+1, EE+2, EE+3)
                a('v_add_f32 v%d, v%d, v%d', L_, L_, L_+1); a('v_add_f32 v%d, v%d, v%d', L_, L_, EE+4)
                a('v_mov_b32_dpp v%d, v%d quad_perm:[1,0,3,2] row_mask:0xf bank_mask:0xf', EE+5, EE+4)
                red('v_add_f32', L_)
                a('v_rcp_f32 v%d, v%d', L_+1, L_)
            sums()
            a('v_subrev_u32 v%d, 0x21800000, v%d', Tm, L_); a('v_cmp_lt_u32 vcc, 0x3c000000, v%d', Tm); a('s_cbranch_vccnz %s_fb', LP)
            a.label(LP + '_ok')
            for q in range(3): a('v_pk_mul_f32 %s, %s, %s op_sel:[0,1] op_sel_hi:[1,1]', vr(EE+2*q, 2), vr(EE+2*q, 2), vr(L_, 2))
            for q in range(3): a(cv(EE+q, EE+2*q))
            if not opt('nmin', 1): a('v_min_u32 v%d, 0xfffffffe, v%d', EE, EE); a('v_min_u32 v%d, 0xfffffffe, v%d', EE+2, EE+2)
            L = a.newlabel('pp')
            a('s_cbranch_scc1 %s_s', L)
            for m in ('', 'sc1'):
                if m: a.label(L + '_s')
                a('buffer_store_dwordx2 %s, v9, s[40:43], s54 offen %s', vr(EE, 2), m); a('buffer_store_dword v%d, v10, s[40:43], s54 offen %s', EE+2, m)
                if not m: a('s_branch %s_d', L)
            a.label(L + '_d')
            TS(3)
        if XE != 1:
            if XE == 0: a('s_barrier')
            if opt('xpd'): a('s_sleep %d', opt('xpd'))
            if wv == 1 and M2Q:
                a('s_cmp_eq_u32 s8, 2'); a('s_cbranch_scc0 %s_n2', LP)
                if M2Q == 2: a('s_cmp_eq_u32 s33, 1'); a('s_cbranch_scc1 %s_n2', LP)
                a('s_add_u32 s12, s53, s14'); a('s_add_u32 s13, s55, s14'); a('s_mov_b32 s15, 0')
                a('s_mov_b64 exec, 0xfffffff')
                a.label(LP + '_m2')
                a('buffer_load_dwordx4 %s, v3, s[36:39], s12 offen sc1', vr(20))
                a('s_add_u32 s15, s15, 1'); a('s_cmp_gt_u32 s15, %d', SPIN); a('s_cbranch_scc1 ch_done')
                a('s_waitcnt vmcnt(0)')
                a('v_max3_u32 v24, v20, v21, v22'); a('v_max_u32 v24, v24, v23'); a('v_cmp_eq_u32 vcc, -1, v24'); a('s_cbranch_vccnz %s_m2', LP)
                a('buffer_store_dwordx4 %s, v3, s[28:31], s13 offen sc1', vr(20))
                a('s_mov_b64 exec, -1'); a('s_add_u32 s55, s55, 7168')
                a.label(LP + '_n2')
            xp_loads()
            ptouch(LP)
            if ZPF and wv == 1: a('s_add_u32 s12, s52, 2'); gx_wait(LP)
        TDUMP('s62')
        step_end(LP)
        if wv == 0:
            a.label(LP + '_fb')
            a('v_max3_f32 v%d, v%d, v%d, v%d', Tm, RD, RD+4, RD+8); a('v_max3_f32 v%d, v%d, v%d, v%d', Tm, Tm, RD+12, RD+16)
            red('v_max_f32', Tm)
            for j in range(5): a('v_sub_f32 v%d, v%d, v%d', EE+j, RD+4*j, Tm)
            for j in range(5): a('v_exp_f32 v%d, v%d', EE+j, EE+j)
            a('s_nop 1'); sums(); a('s_nop 1')
            a('s_branch %s_ok', LP)
    a.label('ch_u')
    a.srd(16, 4, 5, SZ_M, WS_M)
    a('s_lshr_b32 s14, s8, 1'); a('s_and_b32 s15, s8, 1')
    a('s_lshl_b32 s13, s6, 1'); a('s_add_u32 s13, s13, s14'); a('s_mul_i32 s13, s13, 401408'); a('s_mul_i32 s12, s15, %d', 7*14336); a('s_add_u32 s13, s13, s12')
    a('s_add_u32 s13, s13, %d', 14*14336)
    if PG:
        a('s_lshl_b32 s12, s6, 1'); a('s_add_u32 s12, s12, s14'); a('s_mul_i32 s12, s12, 14'); a('s_lshr_b32 s9, s12, 6'); a('s_add_u32 s12, s12, 13'); a('s_lshr_b32 s10, s12, 6')
        a('s_sub_u32 s11, s10, s9')
        a('v_and_b32 v41, 1, v22'); a('v_mul_u32_u24 v41, s11, v41')
        a('v_bfe_u32 v40, v22, 1, 4'); a('v_mul_u32_u24 v40, 7, v40'); a('s_add_u32 s12, s10, 112'); a('v_add_u32 v40, s12, v40'); a('v_sub_u32 v40, v40, v41'); a('v_lshlrev_b32 v40, 2, v40')
        for jb in range(1, 7): a('s_cmp_eq_u32 s10, %d', jb); a('s_cbranch_scc1 uw_%d', jb)
        for jb in range(7):
            a.label('uw_%d' % jb)
            ldw_pg('uw%d' % jb, [[(u, 7*kh + (jb + r_) % 7) for u in range(7) for kh in range(2)] for r_ in range(7)], True)
            a('s_branch uw_d')
        a.label('uw_d')
        after_ldw()
    else: ldw()
    a('s_mul_i32 s12, s8, 1792'); a('v_add_u32 v6, s12, v6')
    a('s_mul_i32 s12, s6, 28'); a('v_add_u32 v8, s12, v23'); a('v_lshlrev_b32 v8, 4, v8'); a('v_mul_u32_u24 v26, 7168, v24'); a('v_add_u32 v8, v8, v26')
    a('v_mul_u32_u24 v9, 224, v24'); a('v_lshl_add_u32 v9, v23, 4, v9'); a('s_mul_i32 s12, s8, 896'); a('s_add_u32 s12, s12, %d', LZ); a('v_add_u32 v9, s12, v9')
    a('v_lshrrev_b32 v26, 3, v23'); a('v_lshlrev_b32 v7, 9, v26'); a('v_lshl_add_u32 v7, v24, 7, v7'); a('v_lshl_add_u32 v7, v25, 4, v7'); a('s_lshl_b32 s12, s8, 11'); a('v_add_u32 v7, s12, v7')
    a('v_lshlrev_b32 v10, 7, v24'); a('v_lshl_add_u32 v10, v25, 4, v10'); a('s_lshl_b32 s12, s8, 9'); a('s_add_u32 s12, s12, 8192'); a('v_add_u32 v10, s12, v10')
    a('v_min_u32 v5, 6, v22'); a('v_lshlrev_b32 v5, 7, v5'); a('s_mul_i32 s12, s6, 896'); a('v_add_u32 v5, s12, v5')
    a('s_lshl_b32 s12, s8, 10'); a('s_add_u32 s12, s12, %d', L_R2 - 1024); a('v_add_u32 v16, s12, v3')
    a('s_mul_i32 s80, s8, %d', 4*28672)
    for k in range(1, 4): a('s_add_u32 s%d, s80, %d', 80+k, k*28672)
    a('s_waitcnt vmcnt(0)')
    TS0(11)
    gx_wait('ch_pro', True)
    ZE = opt('ze', 0)
    def zxl(): return ['buffer_load_dwordx4 %s, v8, s[24:27], s%d offen offset:%d sc1' % (ar(ZA+(2*k+t)*4), 80+k, 224*t) for k in range(4) for t in range(2)]
    if ZE:
        a('s_barrier')
        for q in zxl(): a(q)
    RT(a, 1, vt=62)
    a('s_cmp_eq_u32 s8, 0'); a('s_cbranch_scc0 ch_u1')
    UAC = 48; P = 76; AA = 48; AB = 56; ZM = 64; RR = 72
    for wv in range(2):
        LP = 'ch_u%d' % wv
        a.label(LP)
        for r_ in range(28): a(zz(UAC+r_))
        a('s_add_u32 s12, s53, %d', 2*MBS)
        poll_mem(LP, opt('pmu', 0))
        zl = [] if ZE else zxl()
        if wv == 0: zl = ([] if M2Q else m2l(18)) + zl + ['buffer_load_dword v17, v5, s[36:39], s12 offen sc1']
        for _ in range(opt('zpre', 2)):
            if zl: a(zl.pop(0))
        for s in range(7):
            a('s_waitcnt lgkmcnt(%d)', 6-s)
            for k in range(7):
                SM(a, UAC+4*k, FR+4*s, wreg8(k, s))
                if zl: a(zl.pop(0))
        a.nop(4)
        for k in range(7):
            for q in fold_ops(UAC+4*k, UAC+4*k): a(q)
            a('ds_write_b32 v6, v%d offset:%d', UAC+4*k, 256*k)
        for k in range(4): a('s_add_u32 s%d, s%d, %d', 80+k, 80+k, 0 if opt('hotz') else 16*28672)
        a('s_waitcnt lgkmcnt(0)')
        TS(3)
        a('s_barrier')
        for t in range(2): a('ds_read_b128 %s, v9 offset:%d', vr(ZM+4*t), 3584*t)
        if opt('pps', 4): a('s_sleep %d', opt('pps', 4))
        a('s_waitcnt lgkmcnt(0)')
        def ldp(P):
            a('buffer_load_dwordx4 %s, v7, s[40:43], s54 offen sc1', vr(P)); a('buffer_load_dwordx4 %s, v7, s[40:43], s54 offen offset:1024 sc1', vr(P+4))
            a('buffer_load_dwordx4 %s, v10, s[40:43], s54 offen sc1', vr(P+8))
        def PV(P, fail):
            ckl = ['v_max3_u32 v44, v%d, v%d, v%d' % (P, P+2, P+4), 'v_max3_u32 v45, v%d, v%d, v%d' % (P+6, P+8, P+9), 'v_max3_u32 v44, v44, v%d, v%d' % (P+10, P+11),
                   'v_max_u32 v44, v44, v45', 'v_cmp_eq_u32 vcc, -1, v44', 's_cbranch_vccnz %s' % fail]
            if not opt('spv', 1):
                while ckl: a(ckl.pop(0))
            def MF(acc, A, B, first):
                a('v_mfma_f32_16x16x32_bf16 %s, %s, %s, %s', vr(acc), A, vr(B), '0' if first else vr(acc))
                for _ in range(2):
                    if ckl: a(ckl.pop(0))
            for t in range(2): MF(AB+4*t, ar(ZA+(2+t)*4), P, True)
            for t in range(2): MF(AA+4*t, ar(ZA+t*4), P, True)
            for t in range(2): MF(AB+4*t, ar(ZA+(6+t)*4), P+4, False)
            for t in range(2): MF(AA+4*t, ar(ZA+(4+t)*4), P+4, False)
            a('s_nop 1')
            for t in range(2): MF(AA+4*t, vr(ZM+4*t), P+8, False)
        def cnt(): a('s_add_u32 s62, s62, 256'); a('s_cmp_gt_u32 s62, %d', SPIN*256); a('s_cbranch_scc1 ch_done')
        if not opt('ppi', 2):
            if opt('fts'): a('s_waitcnt vmcnt(0)'); TS(7)
            a.label(LP + '_pp')
            ldp(P); cnt(); a('s_waitcnt vmcnt(0)')
            if opt('fts'): TS(8)
            PV(P, LP + '_pp')
        else:
            PB = 32
            ldp(P); a('s_sleep %d', opt('ppi', 2))
            a.label(LP + '_pp')
            ldp(PB); cnt(); a('s_waitcnt vmcnt(3)')
            PV(P, LP + '_pq'); a('s_branch %s_pd', LP)
            a.label(LP + '_pq')
            ldp(P); a('s_waitcnt vmcnt(3)')
            PV(PB, LP + '_pp')
            a.label(LP + '_pd')
        TS(4)
        a('s_nop 4')
        for r_ in range(4): a('v_add_f32_dpp v%d, v%d, v%d row_ror:8 row_mask:0xf bank_mask:0x3', RR+r_, AB+r_, AA+r_)
        for r_ in range(4): a('v_add_f32_dpp v%d, v%d, v%d row_ror:8 row_mask:0xf bank_mask:0xc', RR+r_, AA+4+r_, AB+4+r_)
        if wv == 1:
            a('ds_write_b128 v16, %s', vr(RR)); a('s_waitcnt lgkmcnt(0)')
        if not opt('fts'): TS(5)
        a('s_barrier')
        if wv == 0:
            for k in range(3): a('ds_read_b128 %s, v3 offset:%d', vr(AA+4*k), L_R2 + 1024*k)
            a('s_cmp_eq_u32 s63, 0')
            a('s_waitcnt lgkmcnt(1)')
            for q in range(2): a('v_pk_add_f32 %s, %s, %s', vr(RR+2*q, 2), vr(RR+2*q, 2), vr(AA+2*q, 2))
            a('s_waitcnt lgkmcnt(0)')
            for q in range(2): a('v_pk_add_f32 %s, %s, %s', vr(AA+4+2*q, 2), vr(AA+4+2*q, 2), vr(AA+8+2*q, 2))
            for q in range(2): a('v_pk_add_f32 %s, %s, %s', vr(RR+2*q, 2), vr(RR+2*q, 2), vr(AA+4+2*q, 2))
            a(cv(18, RR)); a(cv(19, RR+2))
            mpub(18, 's59', 's55', True)
            a('s_add_u32 s59, s59, %d', MBS)
            TS(6)
        TDUMP('s62')
        if wv == 1:
            a('s_add_u32 s12, s52, 1'); gx_wait(LP)
        if ZE:
            a('s_barrier')
            if opt('zsl'): a('s_sleep %d', opt('zsl'))
            for q in zxl(): a(q)
        step_end(LP, (['s_mov_b32 s55, %d' % (63*7168)] + m2l(18)) if wv == 0 else [])
    a.label('ch_done')
    if INSTR: a('s_add_u32 s101, s2, 1900')
    a('s_mov_b64 exec, -1')
    RT(a, 2)
    a('s_endpgm')
NEG = 0xf149f2ca
NSP = opt('nsp', 7)
def k_bf4(a): k_bfin(a, True)
def k_bfin(a, sp=False):
    SX = '4' if sp else ''
    if sp:
        a('s_and_b32 s73, s100, 3'); a('s_lshr_b32 s100, s100, 2'); a('s_add_u32 s100, s100, %d', 64-NSP)
    a('s_load_dwordx2 s[4:5], s[0:1], %d', KA['ws'])
    a('s_load_dwordx2 s[6:7], s[0:1], %d', KA['B_x'])
    a('s_load_dwordx2 s[8:9], s[0:1], %d', KA['out'])
    a('v_lshrrev_b32 v1, 6, v0'); a('v_and_b32 v2, 63, v0'); a('s_nop 0')
    a('v_readfirstlane_b32 s10, v1')
    a('v_and_b32 v3, 31, v2'); a('v_lshrrev_b32 v4, 5, v2')
    perm(a, 5, 3, 6)
    a('s_waitcnt lgkmcnt(0)')
    a.srd(12, 4, 5, SZ_X1, WS_XF + SZ_X1); a.srd(16, 4, 5, SZ_GX, WS_GX); a.srd(20, 4, 5, SZ_VW, WS_VW)
    a.srd(24, 4, 5, SZ_TM, WS_TM); a.srd(28, 4, 5, SZ_UT, WS_UT); a.srd(32, 8, 9, 2048*1792); a.srd(76, 4, 5, SZ_MF, WS_MF)
    init_seen(a, 12, 74, 'wk_done')
    a('s_mul_i32 s11, s100, 28672'); a('v_lshlrev_b32 v6, 4, v2')
    for ks in range(28):
        if ks % 4 == 0: a('s_add_u32 s39, s11, %d', ks*1024)
        a('buffer_load_dwordx4 %s, v6, s[12:15], s39 offen offset:%d', ar(4*ks), (ks%4)*1024)
    a('v_lshrrev_b32 v7, 4, v5'); a('v_mul_u32_u24 v7, 14336, v7'); a('v_lshl_add_u32 v7, v4, 10, v7'); a('v_and_b32 v8, 15, v5'); a('v_lshl_add_u32 v7, v8, 4, v7')
    a('v_lshlrev_b32 v8, 5, v3'); a('v_lshl_add_u32 v8, v4, 4, v8')
    a('s_lshl_b32 s36, s100, 2'); a('s_add_u32 s36, s36, s10')
    a('s_mul_i32 s37, s36, 28672')
    a('s_mul_i32 s38, s36, %d', 4*28672)
    B0 = 16; B1A = 112; ACC = 128
    def buf(b, ks): return vr(B0+4*ks) if b == 0 else ar(B1A+4*ks)
    def ld(stream, b):
        for ks in range(28):
            if ks % 4 == 0:
                if stream == 0: a('s_add_u32 s39, s37, %d', ks*1024)
                else: a('s_add_u32 s39, s38, %d', (stream-1)*28672 + ks*512)
            if stream == 0: a('buffer_load_dwordx4 %s, v8, s[24:27], s39 offen offset:%d sc1', buf(b, ks), (ks%4)*1024)
            else: a('buffer_load_dwordx4 %s, v7, s[16:19], s39 offen offset:%d sc1', buf(b, ks), (ks%4)*256)
    def out_addrs(vb):
        V6, V7, V9, V8 = (6, 7, 9, 8) if vb is None else (vb, vb+1, vb+2, vb+3)
        a('s_mul_i32 s11, s100, %d', 16*448); a('s_lshl_b32 s75, s10, 5')
        if vb is not None: a('s_lshl_b32 s39, s73, 7'); a('s_add_u32 s75, s75, s39')
        a('s_add_u32 s11, s11, s75')
        a('v_add_u32 v%d, s11, v5', V8)
        a('s_mul_i32 s39, s100, %d', 16*28672); a('v_add_u32 v%d, s75, v5', V6); a('v_lshlrev_b32 v%d, 4, v%d', V6, V6); a('v_add_u32 v%d, s39, v%d', V6, V6)
        a('v_mul_u32_u24 v%d, 7168, v4', V7); a('v_add_u32 v%d, v%d, v%d', V6, V6, V7)
        a('v_lshlrev_b32 v%d, 4, v%d', V7, V8); a('v_lshl_add_u32 v%d, v4, 3, v%d', V7, V7)
        a('s_lshl_b32 s11, s100, 5'); a('v_add_u32 v%d, s11, v3', V9); a('v_mul_u32_u24 v%d, 1792, v%d', V9, V9); a('v_lshl_add_u32 v%d, v4, 4, v%d', V9, V9)
        a('s_lshl_b32 s75, s75, 1'); a('s_add_u32 s75, s75, 896'); a('v_add_u32 v%d, s75, v%d', V9, V9)
    a('v_lshlrev_b32 v9, 3, v4'); a('v_sub_u32 v9, v3, v9')
    for i in range(16):
        q, r_ = i >> 2, i & 3
        a('v_cmp_le_i32 s[%d:%d], %d, v9', 40+2*i, 41+2*i, 16*(q>>1) + 4*(q&1) + r_)
    a('s_mov_b32 s72, 0x%x', 0x3db8aa3b)
    a('v_mov_b32 v10, 0x%x', NEG)
    a('s_lshr_b32 s11, s100, 3'); a('s_lshl_b32 s11, s11, 10'); a('s_add_u32 s11, s11, %d', F_GX)
    flag_wait(a, 96, 's11', 224, 208, 74, 'wk_done')
    order = [1, 2, 3, 4, 0]
    ld(1, 0); ld(2, 1)
    for oi, st in enumerate(order):
        b = oi % 2
        if oi < 4: a('s_waitcnt vmcnt(28)' if oi < 3 else 's_waitcnt vmcnt(0)')
        for ks in range(28):
            acc = vr(ACC+16*st, 16)
            if oi == 4 and ks % 2 == 0: a('s_waitcnt vmcnt(%d)', (16 if sp else 0) + 26 - ks)
            a('v_mfma_f32_32x32x16_bf16 %s, %s, %s, %s', acc, buf(b, ks), ar(4*ks), '0' if ks == 0 else acc)
            if oi == 4 and sp and opt('ef', 1):
                R_ = B0 + 4*ks
                if ks == 0: a('v_max_u32 v12, v%d, v%d', R_, R_+1)
                else: a('v_max3_u32 v12, v12, v%d, v%d', R_, R_+1)
                a('v_max3_u32 v12, v12, v%d, v%d', R_+2, R_+3)
        if oi == 4 and sp and opt('ef', 1):
            a('v_cmp_eq_u32 vcc, -1, v12'); a('s_cbranch_vccz bf4_tok')
            a('s_add_u32 s74, s74, 1'); a('s_cmp_gt_u32 s74, %d', WSPIN); a('s_cbranch_scc1 wk_done')
            a('s_waitcnt vmcnt(0)'); a.nop(16); a('s_branch bf_m4')
            a.label('bf4_tok')
        if oi + 2 < 4:
            a('s_nop 0'); ld(order[oi+2], b)
        if oi == 3:
            if sp:
                out_addrs(208); a('s_nop 4')
                for h in range(16):
                    for k2 in range(2):
                        a('s_mov_b32 s39, %d', h*28672 + k2*14336)
                        a('buffer_load_dwordx4 %s, v208, s[20:23], s39 offen sc1', ar(112+8*h+4*k2))
            a.nop(16)
            for hl in range(4):
                S = ACC + 16*(hl+1); T = 16; XM = 244 + 2*hl
                for i in range(16): a('v_cndmask_b32_e64 v%d, v10, v%d, s[%d:%d]', S+i, S+i, 40+2*i, 41+2*i)
                a('v_max3_f32 v%d, v%d, v%d, v%d', T, S, S+1, S+2)
                for i in range(6): a('v_max3_f32 v%d, v%d, v%d, v%d', T, T, S+3+2*i, S+4+2*i)
                a('v_max_f32 v%d, v%d, v%d', T, T, S+15)
                a('v_mov_b32 v%d, v%d', T+1, T); a('s_nop 1')
                a('v_permlane32_swap_b32 v%d, v%d', T, T+1); a('s_nop 1')
                a('v_max_f32 v%d, v%d, v%d', T, T, T+1)
                a('v_mul_f32 v%d, s72, v%d', XM, T)
                for i in range(16): a('v_fma_f32 v%d, v%d, s72, -v%d', S+i, S+i, XM)
                for i in range(16): a('v_exp_f32 v%d, v%d', S+i, S+i)
                a('s_nop 0')
                a('v_add_f32 v%d, v%d, v%d', XM+1, S, S+1)
                for i in range(2, 16): a('v_add_f32 v%d, v%d, v%d', XM+1, XM+1, S+i)
            a('s_lshl_b32 s11, s100, 9'); a('v_lshlrev_b32 v14, 3, v2'); a('s_mov_b32 s74, 0')
            a.label('bf_wm' + SX)
            a('buffer_load_dwordx2 v[12:13], v14, s[76:79], s11 offen sc1')
            a('s_add_u32 s74, s74, 1'); a('s_cmp_gt_u32 s74, %d', WSPIN); a('s_cbranch_scc1 wk_done')
            a('s_waitcnt vmcnt(0)'); a('v_max_u32 v12, v12, v13')
            a('v_cmp_eq_u32 vcc, -1, v12'); a('s_cbranch_vccz bf_m' + SX); a('s_sleep %d', opt('bfs', 2) if sp else 8); a('s_branch bf_wm' + SX)
            a.label('bf_m' + SX)
            RT(a, 1)
            ld(0, 0)
            if sp:
                for h in range(16):
                    a('s_mov_b32 s39, %d', h*448*16)
                    a('buffer_load_dwordx2 %s, v209, s[28:31], s39 offen sc1', vr(212+2*h, 2))
    a.nop(16)
    RT(a, 2)
    a('v_lshlrev_b32 v11, 4, v2')
    a('s_lshl_b32 s11, s10, 13'); a('v_add_u32 v12, s11, v11')
    a('s_lshl_b32 s11, s10, 11'); a('v_add_u32 v13, s11, v11')
    T = 16; PMR = 40
    TT = [48+4*hl for hl in range(4)]
    def each(fn):
        for hl in range(4): fn(hl, ACC + 16*(hl+1), ACC + 4*hl, TT[hl], 244 + 2*hl)
    each(lambda hl, S, Mm, t, XM: a('v_max3_f32 v%d, v%d, v%d, v%d', t, Mm, Mm+1, Mm+2))
    each(lambda hl, S, Mm, t, XM: a('v_max_f32 v%d, v%d, v%d', t, t, Mm+3))
    each(lambda hl, S, Mm, t, XM: a('v_mov_b32 v%d, v%d', t+1, t))
    each(lambda hl, S, Mm, t, XM: a('v_permlane32_swap_b32 v%d, v%d', t, t+1))
    each(lambda hl, S, Mm, t, XM: a('v_max_f32 v%d, v%d, v%d', t, t, t+1))
    each(lambda hl, S, Mm, t, XM: a('v_mul_f32 v%d, s72, v%d', t, t))
    each(lambda hl, S, Mm, t, XM: a('v_max_f32 v%d, v%d, v%d', t, t, XM))
    each(lambda hl, S, Mm, t, XM: a('v_sub_f32 v%d, v%d, v%d', t+2, XM, t))
    each(lambda hl, S, Mm, t, XM: [a('v_fma_f32 v%d, v%d, s72, -v%d', Mm+i, Mm+i, t) for i in range(4)])
    each(lambda hl, S, Mm, t, XM: a('v_exp_f32 v%d, v%d', t+2, t+2))
    each(lambda hl, S, Mm, t, XM: [a('v_exp_f32 v%d, v%d', Mm+i, Mm+i) for i in range(4)])
    each(lambda hl, S, Mm, t, XM: a('v_fma_f32 v%d, v%d, v%d, v%d', t, t+2, XM+1, Mm))
    for i in range(1, 4): each(lambda hl, S, Mm, t, XM: a('v_add_f32 v%d, v%d, v%d', t, t, Mm+i))
    each(lambda hl, S, Mm, t, XM: a('v_mov_b32 v%d, v%d', t+1, t))
    each(lambda hl, S, Mm, t, XM: a('v_permlane32_swap_b32 v%d, v%d', t, t+1))
    each(lambda hl, S, Mm, t, XM: a('v_add_f32 v%d, v%d, v%d', t, t, t+1))
    each(lambda hl, S, Mm, t, XM: a('v_rcp_f32 v%d, v%d', t, t))
    each(lambda hl, S, Mm, t, XM: a('v_mul_f32 v%d, v%d, v%d', t+2, t+2, t))
    for hl in range(4):
        S = ACC + 16*(hl+1); Mm = ACC + 4*hl; t = TT[hl]; TO = 64 + 8*hl
        for i in range(8): a('v_pk_mul_f32 %s, %s, %s op_sel_hi:[1,0]', vr(S+2*i, 2), vr(S+2*i, 2), vr(t+2, 2))
        for i in range(2): a('v_pk_mul_f32 %s, %s, %s op_sel_hi:[1,0]', vr(Mm+2*i, 2), vr(Mm+2*i, 2), vr(t, 2))
        for i in range(8): a('v_cvt_pk_bf16_f32 v%d, v%d, v%d', TO+i, S+2*i, S+2*i+1)
        for i in range(2): a('v_cvt_pk_bf16_f32 v%d, v%d, v%d', PMR+2*hl+i, Mm+2*i, Mm+2*i+1)
        a('ds_write_b128 v12, %s offset:%d', vr(TO), hl*2048); a('ds_write_b128 v12, %s offset:%d', vr(TO+4), hl*2048+1024)
    a('s_nop 1')
    for hp in range(2): a('ds_write_b128 v13, %s offset:%d', vr(PMR+4*hp), 32768 + hp*1024)
    a('s_waitcnt lgkmcnt(0)'); a('s_barrier')
    RT(a, 3)
    if sp:
        OA = 176; OT = 192
        def pf(i): return ar(4*i) if i < 28 else vr(64+4*(i-28))
        a('s_cmp_lt_u32 s73, 3'); a('s_cbranch_scc1 bf4_go'); a('s_cmp_ge_u32 s10, 2'); a('s_cbranch_scc1 wk_loop')
        a.label('bf4_go')
        for i in range(40): a('ds_read_b128 %s, v11 offset:%d', pf(i), i*1024)
        for i in range(32):
            acc = vr(OA+16*(i&1), 16)
            if i % 4 == 0: a('s_waitcnt lgkmcnt(%d)', min(15, 36-i))
            a('v_mfma_f32_32x32x16_bf16 %s, %s, %s, %s', acc, ar(112+4*i), pf(i), '0' if i < 2 else acc)
        a('s_waitcnt vmcnt(0) lgkmcnt(0)')
        if opt('ef', 1):
            a.label('bf4_uc')
            a('v_max_u32 v12, v212, v213')
            for q in range(15): a('v_max3_u32 v12, v12, v%d, v%d', 214+2*q, 215+2*q)
            a('v_cmp_eq_u32 vcc, -1, v12'); a('s_cbranch_vccz bf4_uok')
            a('s_add_u32 s74, s74, 1'); a('s_cmp_gt_u32 s74, %d', WSPIN); a('s_cbranch_scc1 wk_done')
            for h in range(16):
                a('s_mov_b32 s39, %d', h*448*16)
                a('buffer_load_dwordx2 %s, v209, s[28:31], s39 offen sc1', vr(212+2*h, 2))
            a('s_waitcnt vmcnt(0)'); a('s_branch bf4_uc')
            a.label('bf4_uok')
        for hp in range(8):
            acc = vr(OA+16*(hp&1), 16)
            a('v_mfma_f32_32x32x16_bf16 %s, %s, %s, %s', acc, vr(212+4*hp), pf(32+hp), acc)
        a.nop(18)
        for i in range(8): a('v_pk_add_f32 %s, %s, %s', vr(OA+2*i, 2), vr(OA+2*i, 2), vr(OA+16+2*i, 2))
        for i in range(8): a('v_cvt_pk_bf16_f32 v%d, v%d, v%d', 16+i, OA+2*i, OA+2*i+1)
        for qq in range(2): a('buffer_store_dwordx4 %s, v210, s[32:35], 0 offen offset:%d', vr(16+4*qq), qq*32)
        a('s_branch wk_loop')
        return
    for i in range(40):
        a('ds_read_b128 %s, v11 offset:%d', ar(4*i), i*1024)
    out_addrs(None)
    OB = [16, 96]; OA = 176; OT = 192
    def ld2(it, hh, b):
        for h8 in range(8):
            h = 8*hh + h8
            for k2 in range(2):
                a('s_mov_b32 s39, %d', h*28672 + it*2048 + k2*14336)
                a('buffer_load_dwordx4 %s, v6, s[20:23], s39 offen sc1', vr(OB[b]+8*h8+4*k2))
            a('s_mov_b32 s39, %d', h*448*16 + it*128*16)
            a('buffer_load_dwordx2 %s, v7, s[28:31], s39 offen sc1', vr(OB[b]+64+2*h8, 2))
    units = [(it, hh) for it in range(4) for hh in range(2)]
    ld2(0, 0, 0)
    a('s_waitcnt lgkmcnt(0)')
    for ui, (it, hh) in enumerate(units):
        b = ui % 2
        if it == 3 and hh == 0:
            a('s_cmp_ge_u32 s10, 2'); a('s_cbranch_scc1 wk_loop')
        if ui + 1 < len(units):
            ld2(units[ui+1][0], units[ui+1][1], 1-b); a('s_waitcnt vmcnt(24)')
        else:
            a('s_waitcnt vmcnt(0)')
        acc = vr(OA, 16)
        for h8 in range(8):
            h = 8*hh + h8
            for k2 in range(2):
                a('v_mfma_f32_32x32x16_bf16 %s, %s, %s, %s', acc, vr(OB[b]+8*h8+4*k2), ar(8*h+4*k2), '0' if (hh == 0 and h8 == 0 and k2 == 0) else acc)
        for hp in range(4):
            a('v_mfma_f32_32x32x16_bf16 %s, %s, %s, %s', acc, vr(OB[b]+64+4*hp), ar(128+4*(4*hh+hp)), acc)
        if hh == 1:
            a.nop(16)
            for i in range(8): a('v_cvt_pk_bf16_f32 v%d, v%d, v%d', OT+i, OA+2*i, OA+2*i+1)
            for qq in range(2):
                a('buffer_store_dwordx4 %s, v9, s[32:35], 0 offen offset:%d', vr(OT+4*qq), it*256 + qq*32)
            a('s_nop 1')
    a('s_branch wk_loop')

def k_fold(a):
    a('s_load_dwordx4 s[4:7], s[0:1], %d', KA['A_wqkv'])
    a('s_load_dwordx2 s[8:9], s[0:1], %d', KA['A_wo'])
    a('s_load_dwordx2 s[10:11], s[0:1], %d', KA['ws'])
    a('v_lshrrev_b32 v1, 6, v0'); a('v_and_b32 v2, 63, v0'); a('s_nop 0')
    a('v_readfirstlane_b32 s3, v1')
    a('v_and_b32 v3, 31, v2'); a('v_lshrrev_b32 v4, 5, v2')
    a('s_waitcnt lgkmcnt(0)')
    a.srd(12, 4, 5, 448*1344*2); a.srd(16, 6, 7, 16*784*2); a.srd(20, 8, 9, 448*448*2)
    a.srd(24, 10, 11, SZ_WA, WS_WA); a.srd(28, 10, 11, SZ_WOT, WS_WOT)
    a('v_mov_b32 v9, 0x7ffffff0')
    a('s_cmp_ge_u32 s100, 224'); a('s_cbranch_scc1 fo_wo')
    a('s_cmp_ge_u32 s100, 112'); a('s_cbranch_scc1 fo_v')
    a('s_lshl_b32 s32, s100, 2'); a('s_add_u32 s32, s32, s3')
    a('s_mul_i32 s33, s32, 4682'); a('s_lshr_b32 s33, s33, 16')
    a('s_mul_i32 s34, s33, 14'); a('s_sub_u32 s34, s32, s34')
    a('s_lshr_b32 s35, s33, 4'); a('s_and_b32 s36, s33, 15')
    perm(a, 5, 3, 6)
    a('s_lshl_b32 s37, s34, 5'); a('v_add_u32 v6, s37, v5'); a('v_mul_u32_u24 v6, 2688, v6')
    a('s_mul_i32 s37, s35, 896'); a('s_mul_i32 s38, s36, 56'); a('s_add_u32 s37, s37, s38'); a('v_add_u32 v6, s37, v6')
    a('v_lshl_add_u32 v6, v4, 4, v6')
    for ks in range(2):
        a('buffer_load_dwordx4 %s, v6, s[12:15], 0 offen offset:%d', vr(16+4*ks), ks*32)
    a('s_mul_i32 s37, s36, 1568'); a('v_lshlrev_b32 v7, 1, v3'); a('v_add_u32 v7, s37, v7')
    a('v_mul_u32_u24 v8, 448, v4'); a('v_add_u32 v7, v7, v8')
    a('v_cmp_gt_u32 vcc, 28, v3'); a('s_nop 1'); a('v_cndmask_b32 v7, v9, v7, vcc')
    a('v_cmp_eq_u32 vcc, 0, v4'); a('s_nop 1'); a('v_cndmask_b32 v8, v9, v7, vcc')
    for ks in range(2):
        for q in range(8):
            a('buffer_load_ushort v%d, v%d, s[16:19], 0 offen offset:%d', 32+8*ks+q, 8 if (ks == 1 and q >= 4) else 7, (16*ks+q)*56)
    a('s_waitcnt vmcnt(0)')
    for i in range(8): a('v_lshl_or_b32 v%d, v%d, 16, v%d', 24+i, 32+2*i+1, 32+2*i)
    a('s_nop 1')
    a('v_mfma_f32_32x32x16_bf16 %s, %s, %s, 0', vr(48,16), vr(16), vr(24))
    a('v_mfma_f32_32x32x16_bf16 %s, %s, %s, %s', vr(48,16), vr(20), vr(28), vr(48,16))
    a.nop(18)
    for i in range(8): a('v_cvt_pk_bf16_f32 v%d, v%d, v%d', 64+i, 48+2*i, 49+2*i)
    a('s_lshl_b32 s37, s33, 5'); a('v_add_u32 v6, s37, v3'); a('v_mul_u32_u24 v6, 896, v6')
    a('s_lshl_b32 s37, s34, 6'); a('v_add_u32 v6, s37, v6'); a('v_lshl_add_u32 v6, v4, 4, v6')
    for qq in range(2):
        a('buffer_store_dwordx4 %s, v6, s[24:27], 0 offen offset:%d sc1', vr(64+4*qq), qq*32)
    a('s_branch fo_done')
    a.label('fo_v')
    a('s_sub_u32 s32, s100, 112'); a('s_lshl_b32 s32, s32, 8'); a('v_add_u32 v5, s32, v0')
    a('v_and_b32 v6, 511, v5'); a('v_lshrrev_b32 v7, 9, v5')
    a('v_lshrrev_b32 v8, 5, v6'); a('v_mul_u32_u24 v8, 28, v8'); a('v_add_u32 v8, v8, v3')
    a('v_mul_u32_u24 v10, %d, v7', 8*1344); a('v_add_u32 v8, v8, v10'); a('v_add_u32 v8, 896, v8'); a('v_lshlrev_b32 v8, 1, v8')
    a('v_cmp_gt_u32 vcc, 28, v3'); a('s_nop 1'); a('v_cndmask_b32 v8, v9, v8, vcc')
    a('s_mov_b32 s33, 0')
    for q in range(8):
        a('buffer_load_ushort v%d, v8, s[12:15], s33 offen', 32+q)
        a('s_add_u32 s33, s33, 2688')
    a('v_add_u32 v6, 1024, v6'); a('v_mul_u32_u24 v6, 896, v6'); a('v_lshl_add_u32 v6, v7, 4, v6')
    a('s_waitcnt vmcnt(0)')
    for i in range(4): a('v_lshl_or_b32 v%d, v%d, 16, v%d', 24+i, 32+2*i+1, 32+2*i)
    a('buffer_store_dwordx4 %s, v6, s[24:27], 0 offen sc1', vr(24))
    a('s_branch fo_done')
    a.label('fo_wo')
    a('s_sub_u32 s32, s100, 224'); a('s_lshl_b32 s32, s32, 2'); a('s_add_u32 s32, s32, s3')
    a('s_mov_b32 s33, 0x24924925'); a('s_mul_hi_u32 s33, s32, s33')
    a('s_mul_i32 s34, s33, 7'); a('s_sub_u32 s34, s32, s34')
    a('s_lshr_b32 s35, s33, 2'); a('s_and_b32 s36, s33, 3')
    a('s_lshl_b32 s37, s34, 6'); a('v_add_u32 v5, s37, v2')
    a('s_mul_i32 s37, s35, 28'); a('s_lshl_b32 s38, s36, 3'); a('s_add_u32 s37, s37, s38'); a('s_mul_i32 s37, s37, 896')
    a('v_lshlrev_b32 v6, 1, v5'); a('v_add_u32 v6, s37, v6')
    a('s_cmp_eq_u32 s36, 3'); a('s_cselect_b64 vcc, -1, 0'); a('v_cndmask_b32 v7, v6, v9, vcc')
    a('s_movk_i32 s39, 3584')
    for q in range(8):
        a('buffer_load_ushort v%d, v%d, s[20:23], %s offen offset:%d', 32+q, 7 if q >= 4 else 6, 's39' if q >= 4 else '0', (q&3)*896)
    a('v_lshlrev_b32 v8, 10, v5'); a('s_lshl_b32 s37, s33, 4'); a('v_add_u32 v8, s37, v8')
    a('s_waitcnt vmcnt(0)')
    for i in range(4): a('v_lshl_or_b32 v%d, v%d, 16, v%d', 24+i, 32+2*i+1, 32+2*i)
    a('buffer_store_dwordx4 %s, v8, s[28:31], 0 offen sc1', vr(24))
    a.label('fo_done')
    flag_set(a, 96, F_FOLD, 's100', 12, 74, 'wk_done')
    a('s_branch wk_loop')

LOG2E = 0x3fb8aa3b
def k_a1(a):
    flag_wait(a, 96, F_FOLD, 336, 12, 74, 'wk_done')
    flag_wait(a, 96, F_M, 224, 12, 74, 'wk_done')
    a('s_load_dwordx2 s[4:5], s[0:1], %d', KA['ws'])
    a('s_load_dwordx2 s[6:7], s[0:1], %d', KA['A_x'])
    a('v_lshrrev_b32 v1, 6, v0'); a('v_and_b32 v2, 63, v0'); a('s_nop 0')
    a('v_readfirstlane_b32 s10, v1')
    a('v_and_b32 v3, 31, v2'); a('v_lshrrev_b32 v4, 5, v2')
    a('s_and_b32 s8, s100, 15'); a('s_lshr_b32 s9, s100, 4')
    a('s_waitcnt lgkmcnt(0)')
    a.srd(12, 6, 7, 2048*896); a.srd(16, 4, 5, SZ_WA, WS_WA); a.srd(20, 4, 5, SZ_KV, WS_KV)
    a('s_lshl_b32 s11, s9, 2'); a('s_add_u32 s11, s11, s10'); a('s_lshl_b32 s11, s11, 5')
    a('v_add_u32 v6, s11, v3'); a('v_mul_u32_u24 v6, 896, v6'); a('v_lshl_add_u32 v6, v4, 4, v6')
    a('s_lshl_b32 s11, s8, 5'); a('s_add_u32 s11, s11, 512'); a('v_add_u32 v7, s11, v3'); a('v_mul_u32_u24 v7, 896, v7'); a('v_lshl_add_u32 v7, v4, 4, v7')
    a('s_mov_b32 s24, %d', 512*896)
    XF = 16
    for ks in range(28):
        a('buffer_load_dwordx4 %s, v6, s[12:15], 0 offen offset:%d', vr(XF+4*ks), ks*32)
        a('buffer_load_dwordx4 %s, v7, s[16:19], 0 offen offset:%d sc1', ar(4*ks), ks*32)
        a('buffer_load_dwordx4 %s, v7, s[16:19], s24 offen offset:%d sc1', ar(112+4*ks), ks*32)
    P = 128; V = 144; MX = 160; MN = 176; T = 192; EP = 208; EN = 224
    a('v_cmp_gt_u32 s[26:27], 28, v3'); a('v_cmp_eq_u32 s[28:29], 28, v3')
    a('v_mov_b32 v8, 0x%x', NEG); a('v_mov_b32 v9, 0x%x', NEG ^ 0x80000000); a('s_mov_b32 s30, 0x%x', LOG2E)
    a('v_mov_b32 v10, 1.0'); a('v_mov_b32 v11, 0')
    for ks in range(28):
        if ks % 4 == 0: a('s_waitcnt vmcnt(%d)', min(63, max(0, 84 - 3*(ks+4))))
        a('v_mfma_f32_32x32x16_bf16 %s, %s, %s, %s', vr(P,16), vr(XF+4*ks), ar(4*ks), '0' if ks == 0 else vr(P,16))
        a('v_mfma_f32_32x32x16_bf16 %s, %s, %s, %s', vr(V,16), vr(XF+4*ks), ar(112+4*ks), '0' if ks == 0 else vr(V,16))
    a.nop(18)
    def allred(R, op):
        for sh in (8, 4, 2, 1):
            for i in range(16):
                a('%s_dpp v%d, v%d, v%d row_ror:%d row_mask:0xf bank_mask:0xf', op, R+i, R+i, R+i, sh)
        for i in range(16): a('v_mov_b32 v%d, v%d', T+i, R+i)
        for i in range(16): a('v_permlane16_swap_b32 v%d, v%d', R+i, T+i)
        for i in range(16): a('%s v%d, v%d, v%d', op, R+i, R+i, T+i)
    for i in range(16):
        a('v_cndmask_b32_e64 v%d, v8, v%d, s[26:27]', MX+i, P+i)
        a('v_cndmask_b32_e64 v%d, v9, v%d, s[26:27]', MN+i, P+i)
    allred(MX, 'v_max_f32'); allred(MN, 'v_min_f32')
    for i in range(16):
        a('v_sub_f32 v%d, v%d, v%d', EP+i, P+i, MX+i); a('v_sub_f32 v%d, v%d, v%d', EN+i, MN+i, P+i)
    for i in range(16):
        a('v_mul_f32 v%d, s30, v%d', EP+i, EP+i); a('v_mul_f32 v%d, s30, v%d', EN+i, EN+i)
    for i in range(16):
        a('v_exp_f32 v%d, v%d', EP+i, EP+i); a('v_exp_f32 v%d, v%d', EN+i, EN+i)
    for i in range(16):
        a('v_cndmask_b32_e64 v%d, v11, v%d, s[26:27]', EP+i, EP+i); a('v_cndmask_b32_e64 v%d, v11, v%d, s[26:27]', EN+i, EN+i)
    for i in range(16):
        a('v_mov_b32 v%d, v%d', MX+i, EP+i); a('v_mov_b32 v%d, v%d', MN+i, EN+i)
    allred(MX, 'v_add_f32'); allred(MN, 'v_add_f32')
    for i in range(16):
        a('v_rcp_f32 v%d, v%d', MX+i, MX+i); a('v_rcp_f32 v%d, v%d', MN+i, MN+i)
    for i in range(16):
        a('v_mul_f32 v%d, v%d, v%d', EP+i, EP+i, MX+i); a('v_mul_f32 v%d, v%d, v%d', EN+i, EN+i, MN+i)
        a('v_cndmask_b32_e64 v%d, v%d, v10, s[28:29]', V+i, V+i)
    FP = 16; FN = 24; FV = 32
    for i in range(8):
        a('v_cvt_pk_bf16_f32 v%d, v%d, v%d', FP+i, EP+2*i, EP+2*i+1)
        a('v_cvt_pk_bf16_f32 v%d, v%d, v%d', FN+i, EN+2*i, EN+2*i+1)
        a('v_cvt_pk_bf16_f32 v%d, v%d, v%d', FV+i, V+2*i, V+2*i+1)
    a('s_nop 1')
    K0 = 48
    for sg, F in enumerate((FP, FN)):
        for k2 in range(2):
            acc = vr(K0+16*sg, 16)
            a('v_mfma_f32_32x32x16_bf16 %s, %s, %s, %s', acc, vr(FV+4*k2), vr(F+4*k2), '0' if k2 == 0 else acc)
    a.nop(18)
    a('v_lshlrev_b32 v12, 4, v2'); a('s_lshl_b32 s11, s10, 10'); a('v_add_u32 v13, s11, v12')
    for rq in range(8): a('ds_write_b128 v13, %s offset:%d', vr(K0+4*rq), rq*4096)
    a('s_waitcnt lgkmcnt(0)'); a('s_barrier')
    a('s_lshl_b32 s11, s10, 13'); a('v_add_u32 v13, s11, v12')
    for e in range(2):
        for w in range(4): a('ds_read_b128 %s, v13 offset:%d', vr(80+16*e+4*w), e*4096 + w*1024)
    a('s_lshl_b32 s11, s8, 5'); a('s_and_b32 s24, s10, 1'); a('s_lshl_b32 s24, s24, 4'); a('s_add_u32 s11, s11, s24'); a('s_lshl_b32 s11, s11, 8')
    a('s_lshr_b32 s24, s10, 1'); a('s_lshl_b32 s24, s24, 7'); a('s_add_u32 s11, s11, s24')
    a('v_lshlrev_b32 v14, 10, v4'); a('v_lshl_add_u32 v14, v3, 2, v14'); a('v_add_u32 v14, s11, v14')
    a('s_waitcnt lgkmcnt(0)')
    for e in range(2):
        for r_ in range(4):
            b = 80+16*e+r_
            a('v_add_f32 v%d, v%d, v%d', b, b, b+4); a('v_add_f32 v%d, v%d, v%d', b+8, b+8, b+12); a('v_add_f32 v%d, v%d, v%d', b, b, b+8)
    for e in range(2):
        for r_ in range(4):
            a('buffer_atomic_add_f32 v%d, v14, s[20:23], 0 offen offset:%d sc1', 80+16*e+r_, (8*e+r_)*256)
    flag_set(a, 96, F_A1, 's100', 12, 74, 'wk_done')
    a('s_branch wk_loop')

def k_a2(a):
    flag_wait(a, 96, F_FOLD, 336, 12, 74, 'wk_done')
    a('s_load_dwordx2 s[4:5], s[0:1], %d', KA['ws'])
    a('s_load_dwordx2 s[6:7], s[0:1], %d', KA['A_x'])
    a('s_load_dwordx2 s[8:9], s[0:1], %d', KA['out'])
    a('v_lshrrev_b32 v1, 6, v0'); a('v_and_b32 v2, 63, v0'); a('s_nop 0')
    a('v_readfirstlane_b32 s10, v1')
    a('v_and_b32 v3, 31, v2'); a('v_lshrrev_b32 v4, 5, v2')
    perm(a, 5, 3, 6)
    a('s_waitcnt lgkmcnt(0)')
    a.srd(12, 6, 7, 2048*896); a.srd(16, 4, 5, SZ_WA, WS_WA); a.srd(20, 4, 5, SZ_KV, WS_KV)
    a.srd(24, 4, 5, SZ_WOT, WS_WOT); a.srd(32, 8, 9, 2048*1792)
    a('s_lshl_b32 s11, s100, 5'); a('v_add_u32 v6, s11, v3'); a('v_mul_u32_u24 v6, 896, v6'); a('v_lshl_add_u32 v6, v4, 4, v6')
    for ks in range(28):
        a('buffer_load_dwordx4 %s, v6, s[12:15], 0 offen offset:%d', ar(4*ks), ks*32)
    a('s_lshl_b32 s11, s10, 7'); a('v_add_u32 v8, s11, v5'); a('v_mul_u32_u24 v7, 896, v8'); a('v_lshl_add_u32 v7, v4, 4, v7')
    a('v_lshlrev_b32 v8, 8, v8'); a('v_lshl_add_u32 v8, v4, 5, v8')
    B0 = 16; B1A = 112; ACC = 128; KVF = 192
    def buf(b, ks): return vr(B0+4*ks) if b == 0 else ar(B1A+4*ks)
    def ld(hl, b):
        a('s_mov_b32 s39, %d', hl*32*896)
        for ks in range(28):
            a('buffer_load_dwordx4 %s, v7, s[16:19], s39 offen offset:%d sc1', buf(b, ks), ks*32)
    a('v_cmp_eq_u32 s[40:41], 0, v4')
    a('v_mov_b32 v9, 0x%x', NEG); a('v_mov_b32 v10, 0x%x', NEG ^ 0x80000000); a('s_mov_b32 s30, 0x%x', LOG2E); a('v_mov_b32 v11, 0')
    ld(0, 0); ld(1, 1)
    for hl in range(4):
        b = hl % 2
        a('s_waitcnt vmcnt(28)' if hl < 3 else 's_waitcnt vmcnt(0)')
        for ks in range(28):
            acc = vr(ACC+16*hl, 16)
            a('v_mfma_f32_32x32x16_bf16 %s, %s, %s, %s', acc, buf(b, ks), ar(4*ks), '0' if ks == 0 else acc)
        if hl + 2 < 4:
            a('s_nop 0'); ld(hl+2, b)
    a.nop(16)
    flag_wait(a, 96, F_A1, 256, 224, 74, 'wk_done')
    a('v_lshlrev_b32 v12, 4, v2'); a('s_lshl_b32 s11, s10, 13'); a('v_add_u32 v13, s11, v12')
    EP = 16; EN = 32; T = 48; FP = 56; FK = 72; O = 88; OF = 104
    for hl in range(4):
        S = ACC + 16*hl
        a('s_mov_b32 s39, %d', hl*32*256)
        for i in range(8):
            a('buffer_load_dwordx4 %s, v8, s[20:23], s39 offen offset:%d sc1', vr(KVF+4*i), (i>>1)*64 + (i&1)*16)
        for i in range(4):
            a('v_cndmask_b32_e64 v%d, v9, v%d, s[40:41]', T+i, S+12+i); a('v_cndmask_b32_e64 v%d, v10, v%d, s[40:41]', T+4+i, S+12+i)
        a('v_max3_f32 v%d, v%d, v%d, v%d', T, T, T+1, T+2); a('v_min3_f32 v%d, v%d, v%d, v%d', T+4, T+4, T+5, T+6)
        a('v_max_f32 v%d, v%d, v%d', T, T, T+3); a('v_min_f32 v%d, v%d, v%d', T+4, T+4, T+7)
        for i in range(6):
            a('v_max3_f32 v%d, v%d, v%d, v%d', T, T, S+2*i, S+2*i+1); a('v_min3_f32 v%d, v%d, v%d, v%d', T+4, T+4, S+2*i, S+2*i+1)
        a('v_mov_b32 v%d, v%d', T+1, T); a('v_mov_b32 v%d, v%d', T+5, T+4); a('s_nop 1')
        a('v_permlane32_swap_b32 v%d, v%d', T, T+1); a('v_permlane32_swap_b32 v%d, v%d', T+4, T+5); a('s_nop 1')
        a('v_max_f32 v%d, v%d, v%d', T, T, T+1); a('v_min_f32 v%d, v%d, v%d', T+4, T+4, T+5)
        for i in range(16):
            a('v_sub_f32 v%d, v%d, v%d', EP+i, S+i, T); a('v_sub_f32 v%d, v%d, v%d', EN+i, T+4, S+i)
        for i in range(16):
            a('v_mul_f32 v%d, s30, v%d', EP+i, EP+i); a('v_mul_f32 v%d, s30, v%d', EN+i, EN+i)
        for i in range(16):
            a('v_exp_f32 v%d, v%d', EP+i, EP+i); a('v_exp_f32 v%d, v%d', EN+i, EN+i)
        a('s_nop 0')
        for i in range(12, 16):
            a('v_cndmask_b32_e64 v%d, v11, v%d, s[40:41]', EP+i, EP+i); a('v_cndmask_b32_e64 v%d, v11, v%d, s[40:41]', EN+i, EN+i)
        a('v_add_f32 v%d, v%d, v%d', T, EP, EP+1); a('v_add_f32 v%d, v%d, v%d', T+4, EN, EN+1)
        for i in range(2, 16):
            a('v_add_f32 v%d, v%d, v%d', T, T, EP+i); a('v_add_f32 v%d, v%d, v%d', T+4, T+4, EN+i)
        a('v_mov_b32 v%d, v%d', T+1, T); a('v_mov_b32 v%d, v%d', T+5, T+4); a('s_nop 1')
        a('v_permlane32_swap_b32 v%d, v%d', T, T+1); a('v_permlane32_swap_b32 v%d, v%d', T+4, T+5); a('s_nop 1')
        a('v_add_f32 v%d, v%d, v%d', T, T, T+1); a('v_add_f32 v%d, v%d, v%d', T+4, T+4, T+5)
        a('v_rcp_f32 v%d, v%d', T, T); a('v_rcp_f32 v%d, v%d', T+4, T+4); a('s_nop 0')
        for i in range(16):
            a('v_mul_f32 v%d, v%d, v%d', EP+i, EP+i, T); a('v_mul_f32 v%d, v%d, v%d', EN+i, EN+i, T+4)
        for i in range(16): a('v_cvt_pk_bf16_f32 v%d, v%d, v%d', FP+i, EP+2*i, EP+2*i+1)
        a('s_waitcnt vmcnt(0)')
        for i in range(16): a('v_cvt_pk_bf16_f32 v%d, v%d, v%d', FK+i, KVF+2*i, KVF+2*i+1)
        a('s_nop 1')
        for k in range(4):
            a('v_mfma_f32_32x32x16_bf16 %s, %s, %s, %s', vr(O,16), vr(FK+4*k), vr(FP+4*k), '0' if k == 0 else vr(O,16))
        a.nop(18)
        a('v_mov_b32 v%d, v%d', T, O+12); a('v_mov_b32 v%d, v%d', T+1, O+12); a('s_nop 1')
        a('v_permlane32_swap_b32 v%d, v%d', T, T+1); a('s_nop 1')
        a('v_add_f32 v%d, 0x358637bd, v%d', T+1, T+1)
        a('v_rcp_f32 v%d, v%d', T+1, T+1); a('s_nop 0')
        for i in range(16): a('v_mul_f32 v%d, v%d, v%d', O+i, O+i, T+1)
        for i in range(8): a('v_cvt_pk_bf16_f32 v%d, v%d, v%d', OF+i, O+2*i, O+2*i+1)
        a('ds_write_b128 v13, %s offset:%d', vr(OF), hl*2048); a('ds_write_b128 v13, %s offset:%d', vr(OF+4), hl*2048+1024)
        a('s_nop 1')
    a('s_waitcnt lgkmcnt(0)'); a('s_barrier')
    for i in range(32): a('ds_read_b128 %s, v12 offset:%d', ar(4*i), i*1024)
    a('s_lshl_b32 s11, s10, 5'); a('v_add_u32 v6, s11, v5'); a('v_lshlrev_b32 v6, 10, v6'); a('v_lshl_add_u32 v6, v4, 4, v6')
    a('s_lshl_b32 s11, s100, 5'); a('v_add_u32 v9, s11, v3'); a('v_mul_u32_u24 v9, 1792, v9'); a('v_lshl_add_u32 v9, v4, 4, v9')
    a('s_lshl_b32 s36, s10, 6'); a('v_add_u32 v9, s36, v9')
    OB = [16, 80]; OA = 144; OT = 160
    def ld2(it, hh, b):
        a('s_mov_b32 s39, %d', it*128*1024)
        for kk in range(16):
            a('buffer_load_dwordx4 %s, v6, s[24:27], s39 offen offset:%d sc1', vr(OB[b]+4*kk), (16*hh+kk)*32)
    units = [(it, hh) for it in range(4) for hh in range(2)]
    ld2(0, 0, 0)
    a('s_waitcnt lgkmcnt(0)')
    for ui, (it, hh) in enumerate(units):
        b = ui % 2
        if it == 3 and hh == 0:
            a('s_cmp_ge_u32 s10, 2'); a('s_cbranch_scc1 wk_loop')
        if ui + 1 < len(units):
            ld2(units[ui+1][0], units[ui+1][1], 1-b); a('s_waitcnt vmcnt(16)')
        else:
            a('s_waitcnt vmcnt(0)')
        acc = vr(OA, 16)
        for kk in range(16):
            a('v_mfma_f32_32x32x16_bf16 %s, %s, %s, %s', acc, vr(OB[b]+4*kk), ar(4*(16*hh+kk)), '0' if (hh == 0 and kk == 0) else acc)
        if hh == 1:
            a.nop(16)
            for i in range(8): a('v_cvt_pk_bf16_f32 v%d, v%d, v%d', OT+i, OA+2*i, OA+2*i+1)
            for qq in range(2):
                a('buffer_store_dwordx4 %s, v9, s[32:35], 0 offen offset:%d', vr(OT+4*qq), it*256 + qq*32)
            a('s_nop 1')
    a('s_branch wk_loop')


TASKS = [('mg', 224), ('tu', 32*NTU), ('fold', 336), ('a1', 256), ('a2', 64), ('bfin', 64-NSP), ('bf4', 4*NSP)]
def k_mega(a):
    n = 'mega_kernel'; a.begin(n)
    a('s_cmp_ge_u32 s2, 256'); a('s_cbranch_scc1 wk_done')
    init1(a)
    a('s_and_b32 s3, s2, 7'); a('s_cmp_eq_u32 s3, 0'); a('s_cbranch_scc1 ch_entry')
    a('s_movk_i32 s101, 2000'); a('s_mov_b32 s93, 0')
    a('s_load_dwordx2 s[4:5], s[0:1], %d', KA['ws']); a('s_waitcnt lgkmcnt(0)')
    a.srd(96, 4, 5, SZ_FL, WS_FL)
    if True:
        a('s_sub_u32 s100, s3, 1'); a('s_lshl_b32 s100, s100, 5'); a('s_lshr_b32 s3, s2, 3'); a('s_add_u32 s100, s100, s3')
        a('s_mov_b32 s101, s100')
        RT(a, 0)
        a('s_branch tk_mg')
    a.label('wk_loop')
    a('s_waitcnt vmcnt(0) lgkmcnt(0)'); a('s_barrier')
    RT(a, 7)
    dbg_srd(a, 80, 74)
    a('v_mov_b32 v1, 1'); a('v_mov_b32 v2, %d', C_TICKET*4); a('v_mov_b32 v3, %d', L_TK)
    a('v_cmp_eq_u32 vcc, 0, v0'); a('s_and_b64 exec, exec, vcc')
    a('buffer_atomic_add v1, v2, s[80:83], 0 offen sc0 sc1')
    a('s_waitcnt vmcnt(0)')
    a('ds_write_b32 v3, v1')
    a('s_mov_b64 exec, -1')
    a('s_waitcnt lgkmcnt(0)'); a('s_barrier')
    a('ds_read_b32 v1, v3'); a('s_waitcnt lgkmcnt(0)')
    a('v_readfirstlane_b32 s100, v1'); a('s_nop 3')
    a('s_add_u32 s101, s100, 224')
    RT(a, 0)
    tasks = [('mg', 224, t_mg), ('tu', 32*NTU, k_tu), ('fold', 336, k_fold), ('a1', 256, k_a1), ('a2', 64, k_a2), ('bfin', 64-NSP, k_bfin), ('bf4', 4*NSP, k_bf4)]
    for (nm, cnt, fn) in tasks[1:]:
        a('s_cmp_lt_u32 s100, %d', cnt); a('s_cbranch_scc1 tk_%s', nm)
        a('s_sub_u32 s100, s100, %d', cnt)
    a.label('wk_done')
    a('s_endpgm')
    for (nm, cnt, fn) in tasks:
        a.label('tk_%s' % nm); fn(a)
    a.label('ch_entry')
    k_chain(a)
    a.end(n, 256, 256)

def main():
    global INSTR
    INSTR = len(sys.argv) > 2
    a = Asm()
    k_mega(a)
    launches = [('mega_kernel', 256, 256, LDS_TOT)]
    out = HDR
    for (k, g, b, lds) in launches:
        out += '; @launch kernel=%s grid=(%d,1,1) block=(%d,1,1) lds=%d\n' % (k, g, b, lds)
    out += '.amdgcn_target "amdgcn-amd-amdhsa--gfx950"\n' + '\n'.join(a.l) + '\n'
    open(sys.argv[1] if len(sys.argv) > 1 else 'cdna_kernels/%s.s' % NAME, 'w').write(out)
if __name__ == '__main__': main()
```

```python
import sys
NAME = 'concat_heads__linear_kernel_hedgehog__memory_aug_recurrent_mem_tr__prompt'
HDR = open('cdna_kernels/%s.s.ref' % NAME).read().split('; Override launch')[0]

KA = dict(A_x=0, A_wqkv=8, A_w_phi=16, A_wo=24, B_x=32, B_mem0=40, B_Wq=48, B_Wk=56, B_Wv=64, B_Wo=72, seg=80, out=88, dbg=96, ws=104)
RS = 896
def al(x, a=4096): return (x + a - 1) // a * a
WS_M = 0;                 SZ_M = 2*16*448*RS
WS_GX = al(WS_M+SZ_M);    SZ_GX = 64*16*32*896
WS_VW = al(WS_GX+SZ_GX);  SZ_VW = 64*16*448*64
WS_TM = al(WS_VW+SZ_VW);  SZ_TM = 64*16*8*896
WS_UT = al(WS_TM+SZ_TM);  SZ_UT = 64*16*448*16
MBS = 14336
WS_MB = al(WS_UT+SZ_UT);  SZ_MB = 65*MBS
SBS = 10240
WS_SB = al(WS_MB+SZ_MB);  SZ_SB = 64*SBS
WS_M2 = al(WS_SB+SZ_SB);  SZ_M2 = 64*7168
WS_MF = al(WS_M2+SZ_M2);  SZ_MF = 64*512
WS_FL = al(WS_MF+SZ_MF);  SZ_FL = 16384
F_M = 0; F_FOLD = 1024; F_A1 = 3072; F_GX = 4096
WS_IN = WS_MB;     SZ_IN = WS_FL + SZ_FL - WS_IN
WS_P  = al(WS_FL+SZ_FL);  SZ_P = 128*4096 + 2048*64
WS_WA = al(WS_P+SZ_P);    SZ_WA = 1536*896
WS_WOT= al(WS_WA+SZ_WA);  SZ_WOT = 448*1024
WS_PQ = al(WS_WOT+SZ_WOT);SZ_PQ = 2048*16*128
WS_KV = al(WS_PQ+SZ_PQ);  SZ_KV = 16*64*32*4
WS_XF = al(WS_KV+SZ_KV);  SZ_X1 = 64*28672; SZ_XP = 64*32768; SZ_XF = 2*SZ_X1 + SZ_XP
WS_MQ = al(WS_XF+SZ_XF);  SZ_MQ = 16*401408
WS_PG = al(WS_MQ+SZ_MQ);  SZ_PG = 4096
WS_END = al(WS_PG+SZ_PG)

class Asm:
    def __init__(self): self.l = []; self.uid = 0
    def __call__(self, s, *a):
        self.l.append('    ' + (s % a if a else s))
    def label(self, s): self.l.append(s + ':')
    def c(self, s): self.l.append('    ; ' + s)
    def newlabel(self, p='L'):
        self.uid += 1; return '%s_%d' % (p, self.uid)
    def nop(self, n):
        while n > 0:
            k = min(n, 16); self('s_nop %d', k-1); n -= k
    def srd(self, d, lo, hi, size, off=0):
        if off:
            self('s_add_u32 s%d, s%d, 0x%x', d, lo, off & 0xffffffff)
            self('s_addc_u32 s%d, s%d, 0x%x', d+1, hi, off >> 32)
        else:
            self('s_mov_b32 s%d, s%d', d, lo); self('s_mov_b32 s%d, s%d', d+1, hi)
        self('s_mov_b32 s%d, 0x%x', d+2, size)
        self('s_mov_b32 s%d, 0x00020000', d+3)
    def begin(self, name):
        self.l += ['.text', '.globl %s' % name, '.p2align 8', '.type %s,@function' % name, name + ':']
    def end(self, name, vgpr, agpr=0, sgpr=102):
        acc = (vgpr + 3)//4*4
        self.l += ['    s_endpgm', '.section .rodata,"a"', '.p2align 6', '.amdhsa_kernel %s' % name,
          '  .amdhsa_next_free_vgpr %d' % (acc + agpr if agpr else vgpr), '  .amdhsa_next_free_sgpr %d' % sgpr,
          '  .amdhsa_accum_offset %d' % acc, '  .amdhsa_group_segment_fixed_size 0', '  .amdhsa_kernarg_size 112',
          '  .amdhsa_user_sgpr_count 2', '  .amdhsa_user_sgpr_kernarg_segment_ptr 1', '  .amdhsa_system_sgpr_workgroup_id_x 1',
          '.end_amdhsa_kernel']
def perm(a, d, src, t):
    a('v_and_b32 v%d, 0x13, v%d', d, src)
    a('v_and_b32 v%d, 4, v%d', t, src); a('v_lshl_or_b32 v%d, v%d, 1, v%d', d, t, d)
    a('v_and_b32 v%d, 8, v%d', t, src); a('v_lshrrev_b32 v%d, 1, v%d', t, t); a('v_or_b32 v%d, v%d, v%d', d, t, d)
def vr(b, n=4): return 'v[%d:%d]' % (b, b+n-1)
def ar(b, n=4): return 'a[%d:%d]' % (b, b+n-1)


INSTR = False
import os
OPT = dict(kv.split('=') for kv in os.environ.get('OPT','').split(',') if kv)
def opt(k, d=0): return int(OPT.get(k, d))
C_TICKET = 0; C_M = 1; C_INIT = 2; C_XCC = 3; C_P0 = 4; C_FOLD = 5; C_XF = 6; C_GX = 8
L_KS = 57344; SZ_KS = 64*528
L_TK = L_KS + 2*SZ_KS
LDS_TOT = L_TK + 64
NINIT = 256
WSPIN = 3000000
def RT(a, slot, idreg='s101', vt=254):
    if not INSTR: return
    a('s_load_dwordx2 s[88:89], s[0:1], %d', KA['ws']); a('s_memrealtime s[94:95]'); a('s_waitcnt lgkmcnt(0)')
    a.srd(88, 88, 89, SZ_P, WS_P)
    a('s_lshl_b32 s92, %s, 6', idreg); a('s_add_u32 s92, s92, %d', 128*4096)
    a('v_mov_b32 v%d, s94', vt); a('v_mov_b32 v%d, 0', vt+1)
    a('v_cmp_eq_u32 vcc, 0, v0'); a('s_and_b64 exec, exec, vcc')
    a('buffer_store_dword v%d, v%d, s[88:91], s92 offen offset:%d', vt, vt+1, slot*4)
    a('s_mov_b64 exec, -1')
def dbg_srd(a, d, t):
    a('s_load_dwordx2 s[%d:%d], s[0:1], %d', t, t+1, KA['dbg']); a('s_waitcnt lgkmcnt(0)')
    a.srd(d, t, t+1, 256)
def signal(a, d, cidx, vt, per_wave=False):
    a('s_waitcnt vmcnt(0)')
    if not per_wave: a('s_barrier')
    a('v_mov_b32 v%d, 1', vt); a('v_mov_b32 v%d, %d', vt+1, cidx*4)
    if per_wave: a('s_mov_b64 exec, 1')
    else:
        a('v_cmp_eq_u32 vcc, 0, v0'); a('s_and_b64 exec, exec, vcc')
    a('buffer_atomic_add v%d, v%d, s[%d:%d], 0 offen sc1', vt, vt+1, d, d+3)
    a('s_mov_b64 exec, -1')
def waitc(a, d, cidx, target, vt, st, fail, sleep=8, x2=False):
    L = a.newlabel('wc')
    a('v_mov_b32 v%d, %d', vt+1, cidx*4); a('s_mov_b32 s%d, 0', st)
    a.label(L)
    if x2: a('buffer_load_dwordx2 %s, v%d, s[%d:%d], 0 offen sc1', vr(vt+2, 2), vt+1, d, d+3); vt += 2
    else: a('buffer_load_dword v%d, v%d, s[%d:%d], 0 offen sc1', vt, vt+1, d, d+3)
    a('s_add_u32 s%d, s%d, 1', st, st); a('s_cmp_gt_u32 s%d, %d', st, WSPIN); a('s_cbranch_scc1 %s', fail)
    a('s_waitcnt vmcnt(0)')
    a('v_readfirstlane_b32 s%d, v%d', st+1, vt); a('s_nop 3')
    a('s_cmp_ge_u32 s%d, %d', st+1, target); a('s_cbranch_scc1 %s_ok', L)
    a('s_sleep %d', sleep); a('s_branch %s', L)
    a.label(L + '_ok')

def init_seen(a, vt, st, fail):
    L = a.newlabel('is')
    a('s_cmp_eq_u32 s93, 1'); a('s_cbranch_scc1 %s', L)
    a('s_mov_b32 s93, 1')
    a('v_readfirstlane_b32 s%d, v0', st); a('s_nop 3'); a('s_cmp_lt_u32 s%d, 64', st); a('s_cbranch_scc0 %s', L)
    dbg_srd(a, 84, st)
    waitc(a, 84, C_INIT, NINIT, vt, st, fail, 8)
    a.label(L)
def flag_set(a, d, base, idx, vt, st, fail, wait=True, chk=True):
    if chk: init_seen(a, vt, st, fail)
    if wait: a('s_waitcnt vmcnt(0)')
    a('s_barrier')
    a('v_mov_b32 v%d, 0', vt); a('s_lshl_b32 s%d, %s, 2', st, idx)
    if base >= 4096: a('s_add_u32 s%d, s%d, %d', st, st, base); base = 0
    a('v_cmp_eq_u32 vcc, 0, v0'); a('s_and_b64 exec, exec, vcc')
    a('buffer_store_dword v%d, v%d, s[%d:%d], s%d offen offset:%d sc1', vt, vt, d, d+3, st, base)
    a('s_mov_b64 exec, -1')
def flag_poll(a, d, base, count, vt, st, fail, sleep=8, lanev=None):
    L = a.newlabel('fw')
    nl = count // 4
    va = vt + 8
    a('v_and_b32 v%d, 63, v0', va); a('v_lshlrev_b32 v%d, 4, v%d', va, va)
    if isinstance(base, int): a('v_add_u32 v%d, %d, v%d', va, base, va)
    else: a('v_add_u32 v%d, %s, v%d', va, base, va)
    a('s_mov_b32 s%d, 0', st)
    for r_ in range(8): a('v_mov_b32 v%d, 0', vt+r_)
    a.label(L)
    def msk(n):
        a('s_mov_b32 exec_lo, 0x%x', 0xffffffff if n >= 32 else (1 << n) - 1); a('s_mov_b32 exec_hi, 0x%x', 0 if n <= 32 else (0xffffffff if n >= 64 else (1 << (n-32)) - 1))
    msk(nl)
    a('buffer_load_dwordx4 %s, v%d, s[%d:%d], 0 offen sc1', vr(vt), va, d, d+3)
    if nl > 64:
        msk(nl - 64)
        a('buffer_load_dwordx4 %s, v%d, s[%d:%d], 0 offen offset:1024 sc1', vr(vt+4), va, d, d+3)
    a('s_mov_b64 exec, -1')
    a('s_add_u32 s%d, s%d, 1', st, st); a('s_cmp_gt_u32 s%d, %d', st, WSPIN); a('s_cbranch_scc1 %s', fail)
    a('s_waitcnt vmcnt(0)')
    a('v_max3_u32 v%d, v%d, v%d, v%d', vt, vt, vt+1, vt+2); a('v_max3_u32 v%d, v%d, v%d, v%d', vt+4, vt+4, vt+5, vt+6)
    a('v_max3_u32 v%d, v%d, v%d, v%d', vt, vt, vt+3, vt+7); a('v_max_u32 v%d, v%d, v%d', vt, vt, vt+4)
    a('v_cmp_eq_u32 vcc, -1, v%d', vt); a('s_cbranch_vccz %s_ok', L)
    a('s_sleep %d', sleep); a('s_branch %s', L)
    a.label(L + '_ok')
def flag_wait(a, d, base, count, vt, st, fail, sleep=8, chk=True):
    L = a.newlabel('fx')
    if chk: init_seen(a, vt, st, fail)
    a('v_readfirstlane_b32 s%d, v0', st); a('s_nop 3'); a('s_cmp_lt_u32 s%d, 64', st); a('s_cbranch_scc0 %s', L)
    flag_poll(a, d, base, count, vt, st, fail, sleep)
    a.label(L)
    a('s_barrier')

def init1(a):
    a('s_load_dwordx2 s[80:81], s[0:1], %d', KA['ws']); a('s_load_dwordx2 s[82:83], s[0:1], %d', KA['B_x'])
    a('v_lshrrev_b32 v232, 6, v0'); a('v_and_b32 v233, 63, v0'); a('s_nop 0'); a('v_readfirstlane_b32 s3, v232')
    a('v_and_b32 v234, 31, v233'); a('v_lshrrev_b32 v235, 5, v233'); a('v_lshlrev_b32 v233, 4, v233')
    a('s_waitcnt lgkmcnt(0)')
    a.srd(68, 80, 81, SZ_XF, WS_XF); a.srd(72, 80, 81, SZ_IN, WS_IN); a.srd(76, 82, 83, 2048*896)
    a('s_lshl_b32 s80, s2, 2'); a('s_add_u32 s80, s80, s3')
    a('s_mul_i32 s81, s80, 4682'); a('s_lshr_b32 s81, s81, 16')
    a('s_mul_i32 s82, s81, 14'); a('s_sub_u32 s82, s80, s82')
    a('s_lshl_b32 s83, s81, 5'); a('v_add_u32 v234, s83, v234'); a('v_mul_u32_u24 v234, 896, v234'); a('v_lshl_add_u32 v234, v235, 4, v234')
    a('s_lshl_b32 s83, s82, 6'); a('v_add_u32 v234, s83, v234')
    for k in range(2): a('buffer_load_dwordx4 %s, v234, s[76:79], 0 offen offset:%d', vr(240+4*k), 32*k)
    a('v_and_b32 v232, 15, v0'); a('s_lshr_b32 s83, s80, 4'); a('s_lshl_b32 s83, s83, 1'); a('s_and_b32 s3, s80, 1'); a('s_add_u32 s83, s83, s3'); a('s_lshl_b32 s83, s83, 4')
    a('v_add_u32 v232, s83, v232'); a('v_mul_u32_u24 v232, 896, v232'); a('v_bfe_u32 v234, v0, 5, 1'); a('v_lshl_add_u32 v232, v234, 3, v232'); a('v_bfe_u32 v234, v0, 4, 1'); a('v_lshl_add_u32 v232, v234, 6, v232')
    a('s_bfe_u32 s83, s80, 0x20002'); a('s_mul_i32 s83, s83, 224'); a('s_bfe_u32 s3, s80, 0x10001'); a('s_lshl_b32 s3, s3, 7'); a('s_add_u32 s83, s83, s3')
    a('v_add_u32 v232, s83, v232')
    for hf in range(2):
        for dw in range(4): a('buffer_load_dword v%d, v232, s[76:79], 0 offen offset:%d', 224+4*hf+dw, (dw&1)*32 + hf*16 + (dw>>1)*4)
    a('s_lshl_b32 s83, s80, 11'); a('s_add_u32 s83, s83, %d', 2*SZ_X1); a('v_add_u32 v232, s83, v233')
    a('s_mul_i32 s81, s81, 28672'); a('s_lshl_b32 s82, s82, 11'); a('s_add_u32 s81, s81, s82')
    a('s_cmp_lt_u32 s80, 896'); a('s_cselect_b32 s81, s81, 0x40000000')
    a('v_add_u32 v235, s81, v233')
    NI = (SZ_IN + 1048575) // 1048576
    assert NI <= 4
    a('s_mul_i32 s80, s80, %d', NI*1024); a('v_add_u32 v234, s80, v233')
    for i in range(4): a('v_mov_b32 v%d, -1', 236+i)
    a('s_mov_b32 s83, %d', 64*28672)
def init2(a, n):
    NI = (SZ_IN + 1048575) // 1048576
    if opt('noinit'): return
    for i in range(NI): a('buffer_store_dwordx4 %s, v234, s[72:75], 0 offen offset:%d sc1', vr(236), i*1024)
    a('s_waitcnt vmcnt(%d)', min(63, n + (NI if opt('exw', 1) else 0)))
    for ab in range(2): a('buffer_store_dwordx4 %s, v232, s[68:71], 0 offen offset:%d sc1', vr(224+4*ab), ab*1024)
    for k in range(2):
        R = 240+4*k; D = 248+4*k
        a('buffer_store_dwordx4 %s, v235, s[68:71], 0 offen offset:%d sc1', vr(R), k*1024)
        a('v_mov_b32 v%d, v%d', D, R); a('v_mov_b32 v%d, v%d', D+1, R+2); a('v_mov_b32 v%d, v%d', D+2, R+1); a('v_mov_b32 v%d, v%d', D+3, R+3)
    a('s_nop 1')
    for k in range(2):
        D = 248+4*k
        a('v_permlane32_swap_b32 v%d, v%d', D, D+2); a('v_permlane32_swap_b32 v%d, v%d', D+1, D+3)
    a('s_nop 1')
    for k in range(2): a('buffer_store_dwordx4 %s, v235, s[68:71], s83 offen offset:%d sc1', vr(248+4*k), k*1024)

def t_mg(a):
    a('s_load_dwordx4 s[4:7], s[0:1], %d', KA['B_Wq'])
    a('s_load_dwordx4 s[8:11], s[0:1], %d', KA['B_Wv'])
    a('s_load_dwordx2 s[12:13], s[0:1], %d', KA['ws'])
    a('s_load_dwordx2 s[44:45], s[0:1], %d', KA['B_x'])
    a('s_load_dwordx2 s[46:47], s[0:1], %d', KA['dbg'])
    a('s_mov_b32 s14, 0x24924925'); a('s_mul_hi_u32 s15, s100, s14')
    a('s_mul_i32 s16, s15, 7'); a('s_sub_u32 s16, s100, s16')
    a('s_lshr_b32 s17, s15, 4')
    a('s_and_b32 s18, s15, 15')
    a('v_lshrrev_b32 v1, 6, v0'); a('v_and_b32 v2, 63, v0'); a('s_nop 0')
    a('v_readfirstlane_b32 s19, v1')
    a('v_and_b32 v3, 31, v2'); a('v_lshrrev_b32 v4, 5, v2')
    perm(a, 10, 3, 11)
    a('s_and_b32 s20, s19, 1'); a('s_lshr_b32 s21, s19, 1')
    a('s_waitcnt lgkmcnt(0)')
    a('s_cmp_eq_u32 s17, 0')
    a('s_cselect_b32 s24, s4, s10'); a('s_cselect_b32 s25, s5, s11')
    a('s_mov_b32 s26, 3670016'); a('s_mov_b32 s27, 0x00020000')
    a('s_cselect_b32 s28, s6, s8'); a('s_cselect_b32 s29, s7, s9')
    a('s_mov_b32 s30, 3670016'); a('s_mov_b32 s31, 0x00020000')
    a.srd(32, 12, 13, SZ_M, WS_M)
    a.srd(48, 12, 13, SZ_X1, WS_XF); a.srd(52, 12, 13, SZ_GX, WS_GX); a.srd(56, 12, 13, SZ_VW, WS_VW)
    a.srd(60, 46, 47, 256); a.srd(64, 12, 13, SZ_KV, WS_KV); a.srd(44, 12, 13, WS_PG + SZ_PG - WS_MQ, WS_MQ)
    a('v_mov_b32 v11, 0'); a('s_lshl_b32 s22, s100, 10'); a('v_lshlrev_b32 v12, 2, v0'); a('v_add_u32 v12, s22, v12')
    a('buffer_store_dword v11, v12, s[64:67], 0 offen sc1')
    def prog(val, vt=13):
        a('v_mov_b32 v%d, %d', vt, val); a('s_lshl_b32 s23, s100, 2'); a('s_add_u32 s23, s23, %d', WS_PG - WS_MQ); a('v_mov_b32 v%d, s23', vt+1)
        a('v_cmp_eq_u32 vcc, 0, v0'); a('s_and_b64 exec, exec, vcc')
        a('buffer_store_dword v%d, v%d, s[44:47], 0 offen sc1', vt, vt+1)
        a('s_mov_b64 exec, -1')
    prog(0)
    CI = opt('ci', 2); LG = opt('lg', 2); lastp = [0]; XL = opt('xl', 1)
    def cov(i): return i-1 if i <= LG else i-2
    NI2 = 0 if opt('noinit') else (SZ_IN + 1048575) // 1048576 + 6
    if not opt('exw', 1): NI2 = 0
    a('s_lshl_b32 s22, s16, 6'); a('s_lshl_b32 s23, s20, 5'); a('s_add_u32 s22, s22, s23')
    a('v_and_b32 v13, 0x19, v3'); a('v_and_b32 v14, 2, v3'); a('v_lshl_or_b32 v13, v14, 1, v13')
    a('v_and_b32 v14, 4, v3'); a('v_lshrrev_b32 v14, 1, v14'); a('v_or_b32 v13, v13, v14')
    a('s_cmp_eq_u32 s17, 0'); a('s_cselect_b64 vcc, -1, 0'); a('v_cndmask_b32 v13, v10, v13, vcc')
    a('v_add_u32 v5, s22, v13')
    a('s_mul_i32 s36, s21, 224'); a('s_lshl_b32 s37, s20, 4'); a('s_add_u32 s36, s36, s37'); a('v_add_u32 v6, s36, v4'); a('v_lshlrev_b32 v6, 13, v6')
    a('s_lshl_b32 s37, s18, 9'); a('v_add_u32 v6, s37, v6'); a('v_lshl_add_u32 v6, v3, 4, v6')
    a('s_lshl_b32 s38, s19, 4'); a('v_add_u32 v15, s38, v4'); a('v_mul_u32_u24 v15, 528, v15'); a('v_lshl_add_u32 v15, v3, 4, v15'); a('v_add_u32 v15, %d, v15', L_KS)
    JS = 16; KB = [80, 144]; ACC = 208; T = 224
    KD = opt('kd', 3)
    for i in range(7):
        a('s_add_u32 s%d, s16, %d', 4+i, i if opt('rot', 1) else 0); a('s_sub_u32 s11, s%d, 7', 4+i); a('s_cmp_ge_u32 s%d, 7', 4+i); a('s_cselect_b32 s%d, s11, s%d', 4+i, 4+i)
        if not opt('rot', 1): a('s_mov_b32 s%d, %d', 4+i, i)
    def ldk1(i):
        a('s_lshl_b32 s42, s%d, 18', 4+i)
        for m in range(8):
            a('s_add_u32 s43, s42, %d', 2*m*8192)
            a('buffer_load_dwordx4 %s, v6, s[28:31], s43 offen %s', ar(32*i+4*m), ['', 'nt', 'sc1'][opt('kmod')])
    I2P = opt('i2p', 2); WOC = opt('woc', 1)
    Qv = []
    def wt(tags):
        p_ = max(k for k, q in enumerate(Qv) if (q[0], q[1]) in tags)
        c0 = sum(q[2] for q in Qv[p_+1:]); c1 = sum(q[3] for q in Qv[p_+1:])
        a('s_waitcnt vmcnt(%d)', min(63, c0))
        if c1 < min(63, c0):
            L = a.newlabel('w1'); a('s_cmp_eq_u32 s17, 0'); a('s_cbranch_scc1 %s', L); a('s_waitcnt vmcnt(%d)', c1); a.label(L)
    def do_init2():
        init2(a, sum(min(q[2], q[3]) for q in Qv)); Qv.append(('in', 0, NI2, NI2)); RT(a, 10)
    def ldk(nj):
        del Qv[:]; Qv.append(('js', 0, nj, nj))
        for i in range(KD):
            ldk1(i); Qv.append(('ld', i, 8, 8))
            if (I2P == 1 and i == 0) or (I2P == 0 and i == KD-1): do_init2()
    def stk(i):
        for m in range(8): a('ds_write_b128 v15, %s offset:%d', ar(32*i+4*m), (i&1)*SZ_KS + m*1056)
    a('s_cmp_eq_u32 s17, 0'); a('s_cbranch_scc0 mm_mat1')
    a('s_lshl_b32 s39, s16, 6'); a('s_add_u32 s39, s39, s38'); a('v_add_u32 v7, s39, v4'); a('v_lshlrev_b32 v7, 13, v7')
    a('v_add_u32 v7, s37, v7'); a('v_lshl_add_u32 v7, v3, 4, v7')
    for m in range(8):
        a('s_mov_b32 s43, %d', 2*m*8192)
        a('buffer_load_dwordx4 %s, v7, s[24:27], s43 offen', vr(JS+4*m))
    ldk(8)
    wt([('js', 0)])
    a('v_mov_b32 v252, 1'); a('v_mov_b32 v253, %d', C_P0*4)
    a('v_cmp_eq_u32 vcc, 0, v0'); a('s_and_b64 exec, exec, vcc')
    a('buffer_atomic_add v252, v253, s[60:63], 0 offen sc1')
    a('s_mov_b64 exec, -1')
    for m in range(8): a('ds_write_b128 v15, %s offset:%d', vr(JS+4*m), SZ_KS + m*1056)
    wt([('ld', 0)])
    stk(0)
    a('s_waitcnt lgkmcnt(0)'); a('s_barrier')
    a('s_lshl_b32 s39, s20, 5'); a('v_add_u32 v7, s39, v13'); a('v_mul_u32_u24 v7, 528, v7'); a('v_lshl_add_u32 v7, v4, 4, v7'); a('v_add_u32 v7, %d, v7', L_KS + SZ_KS)
    for es in range(16): a('ds_read_b128 %s, v7 offset:%d', vr(JS+4*es), es*32)
    a('s_branch mm_go')
    a.label('mm_mat1')
    if WOC:
        a('s_mul_i32 s38, s18, 229376'); a('s_lshl_b32 s39, s16, 7'); a('s_add_u32 s38, s38, s39'); a('s_mul_i32 s39, s19, %d', 64*896); a('s_add_u32 s38, s38, s39')
        a('v_lshrrev_b32 v8, 3, v2'); a('v_and_b32 v9, 7, v2'); a('v_mul_u32_u24 v7, 896, v8'); a('v_add_u32 v7, s38, v7'); a('v_lshl_add_u32 v7, v9, 4, v7')
        for m in range(8):
            a('s_mov_b32 s39, %d', m*8*896)
            a('buffer_load_dwordx4 %s, v7, s[24:27], s39 offen', vr(JS+4*m))
        ldk(8)
        a('v_mul_u32_u24 v1, 144, v8'); a('v_lshl_add_u32 v1, v9, 4, v1'); a('s_mul_i32 s39, s19, %d', 64*144); a('v_add_u32 v1, s39, v1')
        a('v_mul_u32_u24 v7, 144, v10'); a('v_lshl_add_u32 v7, v4, 4, v7'); a('s_lshl_b32 s39, s20, 6'); a('v_add_u32 v7, s39, v7')
    else:
        a('s_mul_i32 s38, s18, 229376'); a('s_lshl_b32 s39, s22, 1'); a('s_add_u32 s38, s38, s39')
        a('v_mul_u32_u24 v7, 896, v10'); a('v_add_u32 v7, s38, v7'); a('v_lshl_add_u32 v7, v4, 4, v7')
        for et in range(8):
            a('s_mov_b32 s39, %d', et*32*896)
            for ks in range(2):
                a('buffer_load_dwordx4 %s, v7, s[24:27], s39 offen offset:%d', vr(80+8*et+4*ks), ks*32)
        ldk(16)
    a('v_lshlrev_b32 v8, 3, v4'); a('v_sub_u32 v8, v10, v8')
    a('v_mov_b32 v9, 0x3f80'); a('v_mov_b32 v11, 0x3f800000'); a('v_mov_b32 v12, 0')
    for ks in range(2):
        for q2 in range(4):
            r_ = 144 + 4*ks + q2
            a('v_cmp_eq_u32 vcc, %d, v8', 16*ks + 2*q2); a('v_cndmask_b32 v%d, v12, v9, vcc', r_)
            a('v_cmp_eq_u32 vcc, %d, v8', 16*ks + 2*q2 + 1); a('v_cndmask_b32 v%d, v%d, v11, vcc', r_, r_)
    wt([('js', 0)])
    a('v_mov_b32 v252, 1'); a('v_mov_b32 v253, %d', C_P0*4)
    a('v_cmp_eq_u32 vcc, 0, v0'); a('s_and_b64 exec, exec, vcc')
    a('buffer_atomic_add v252, v253, s[60:63], 0 offen sc1')
    a('s_mov_b64 exec, -1')
    if WOC:
        for m in range(8): a('ds_write_b128 v1, %s offset:%d', vr(JS+4*m), m*8*144)
        a('s_waitcnt lgkmcnt(0)'); a('s_barrier')
        for et in range(8):
            for ks in range(2): a('ds_read_b128 %s, v7 offset:%d', vr(80+8*et+4*ks), et*32*144 + ks*32)
    for et in range(8):
        ab = ACC if et % 2 == 0 else 160
        acc = vr(ab, 16)
        if WOC: a('s_waitcnt lgkmcnt(%d)', 14-2*et)
        a('v_mfma_f32_32x32x16_bf16 %s, %s, %s, 0', acc, vr(80+8*et), vr(144))
        a('v_mfma_f32_32x32x16_bf16 %s, %s, %s, %s', acc, vr(80+8*et+4), vr(148), acc)
        if et > 0:
            pb = ACC if et % 2 == 1 else 160
            for i in range(8): a('v_cvt_pk_bf16_f32 v%d, v%d, v%d', JS+8*(et-1)+i, pb+2*i, pb+2*i+1)
        if et == 0: a.nop(8)
    a.nop(18)
    for i in range(8): a('v_cvt_pk_bf16_f32 v%d, v%d, v%d', JS+56+i, 160+2*i, 160+2*i+1)
    wt([('ld', 0)])
    stk(0)
    a('s_waitcnt lgkmcnt(0)'); a('s_barrier')
    a.label('mm_go')
    RT(a, 4)
    Qv[0] = ('js', 0, 8, 8)
    if I2P == 3: do_init2()
    a('s_cmp_eq_u32 s17, 0'); a('s_cbranch_scc0 mm_a1')
    a('v_cmp_le_u32 vcc, 224, v5'); a('v_mov_b32 v8, 0'); a('v_mov_b32 v13, 0'); a('v_mov_b32 v9, 224'); a('v_mov_b32 v14, 1')
    a('v_cndmask_b32 v8, v8, v9, vcc'); a('v_cndmask_b32 v13, v13, v14, vcc')
    a('v_sub_u32 v8, v5, v8')
    a('s_lshl_b32 s40, s18, 1'); a('v_add_u32 v13, s40, v13')
    a('s_branch mm_a2')
    a.label('mm_a1')
    a('s_movk_i32 s40, 4682'); a('v_mul_u32_u24 v13, s40, v5'); a('v_lshrrev_b32 v13, 16, v13')
    a('v_mul_u32_u24 v8, 14, v13'); a('v_sub_u32 v8, v5, v8')
    a('s_mul_i32 s40, s18, 14'); a('s_add_u32 s40, s40, 224'); a('v_add_u32 v8, s40, v8')
    a.label('mm_a2')
    a('s_mov_b32 s40, 401408'); a('v_mul_lo_u32 v9, v13, s40')
    a('v_lshrrev_b32 v13, 4, v8'); a('v_mul_u32_u24 v13, 14336, v13'); a('v_add_u32 v9, v9, v13')
    a('v_and_b32 v8, 15, v8'); a('v_lshl_add_u32 v9, v8, 4, v9'); a('v_lshl_add_u32 v9, v4, 8, v9')
    a('s_mul_i32 s42, s21, 7168'); a('v_add_u32 v9, s42, v9'); a('v_add_u32 v8, 4096, v9')
    a('v_lshlrev_b32 v12, 4, v2')
    a('s_mul_i32 s40, s20, 28672'); a('s_mul_i32 s41, s21, 14336'); a('s_add_u32 s40, s40, s41'); a('v_add_u32 v11, s40, v12')
    a('s_mul_i32 s40, s18, 401408'); a('s_mul_i32 s41, s21, %d', 14*14336); a('s_add_u32 s40, s40, s41')
    a('s_lshl_b32 s41, s16, 11'); a('s_add_u32 s40, s40, s41'); a('s_lshl_b32 s41, s20, 10'); a('s_add_u32 s40, s40, s41')
    a('v_lshrrev_b32 v1, 4, v10'); a('v_mul_u32_u24 v1, 14336, v1'); a('v_add_u32 v1, s40, v1'); a('v_lshl_add_u32 v1, v4, 8, v1')
    a('v_and_b32 v13, 15, v10'); a('v_lshl_add_u32 v1, v13, 4, v1')
    a('s_lshl_b32 s39, s21, 5'); a('v_add_u32 v7, s39, v10'); a('v_mul_u32_u24 v7, 528, v7'); a('v_lshl_add_u32 v7, v4, 4, v7'); a('v_add_u32 v7, %d, v7', L_KS)
    pend = []
    AC2 = 144; T2 = 160
    def m0(fn):
        L = a.newlabel('m0'); a('s_cmp_eq_u32 s17, 0'); a('s_cbranch_scc0 %s', L); fn(); a.label(L)
    def mst(i, t):
        a('s_lshl_b32 s43, s%d, 10', 4+i)
        for qq in range(2): a('buffer_store_dwordx4 %s, v9, s[32:35], s43 offen offset:%d sc1', vr(T+t+4*qq), qq*512)
        def f():
            a('s_mul_i32 s43, s%d, 28672', 4+i)
            for qq in range(2): a('buffer_store_dwordx4 %s, v1, s[44:47], s43 offen offset:%d sc1', vr(T2+t+4*qq), qq*512)
        m0(f)
    def lst(i, t):
        a('s_lshl_b32 s43, s%d, 11', 4+i); a('v_add_u32 v8, s43, v11')
        for qq in range(2): a('ds_write_b128 v8, %s offset:%d', vr(T+t+4*qq), qq*1024)
    def cvts(t):
        for q in range(8): a('v_cvt_pk_bf16_f32 v%d, v%d, v%d', T+t+q, ACC+2*q, ACC+2*q+1)
        if opt('psc', 1):
            for q in range(8): a('v_pk_mul_f32 %s, %s, s[86:87]', vr(AC2+2*q, 2), vr(AC2+2*q, 2))
        for q in range(8): a('v_cvt_pk_bf16_f32 v%d, v%d, v%d', T2+t+q, AC2+2*q, AC2+2*q+1)
    kb = KB[0]
    assert KD == 3
    a('s_mov_b32 s86, 0x3db8aa3b'); a('s_mov_b32 s87, 0x3db8aa3b')
    for i in range(7):
        if i > 0: a('s_waitcnt lgkmcnt(0)'); a('s_barrier')
        if i == 3: RT(a, 5)
        if i == 1: RT(a, 8)
        if i == 2: RT(a, 9)
        if i == 6: RT(a, 6)
        if i == CI:
            a('v_mov_b32 v13, 1'); a('v_mov_b32 v14, %d', C_INIT*4)
            a('v_cmp_eq_u32 vcc, 0, v0'); a('s_and_b64 exec, exec, vcc')
            a('buffer_atomic_add v13, v14, s[60:63], 0 offen sc1')
            a('s_mov_b64 exec, -1')
        if i >= 2 and cov(i-1) + 1 > lastp[0]: lastp[0] = cov(i-1) + 1; prog(lastp[0])
        for es in range(16): a('ds_read_b128 %s, v7 offset:%d', vr(kb+4*es), (i&1)*SZ_KS + es*32)
        Ti = 8*((i-1) % 3)
        if i > 0:
            a.nop(4); cvts(Ti)
            mst(i-1, Ti); Qv.append(('st', i-1, 4, 2))
        if i + KD < 7: ldk1(i+KD); Qv.append(('ld', i+KD, 8, 8))
        if i == 0: a('s_waitcnt lgkmcnt(0)'); a('s_barrier')
        for es in range(16):
            if i > 0 and es % 4 == 0: a('s_waitcnt lgkmcnt(%d)', 12-es)
            a('v_mfma_f32_32x32x16_bf16 %s, %s, %s, %s', vr(ACC,16), vr(kb+4*es), vr(JS+4*es), '0' if es == 0 else vr(ACC,16))
            if es == 12:
                if i > 0: lst(i-1, Ti)
                if i < 6:
                    wt([('ld', i+1), ('st', cov(i))] + ([('in', 0)] if i == CI-1 else []))
                    stk(i+1)
                if i == 0 and I2P == 2: do_init2()
                if i == 6 and XL and lastp[0] < 5: wt([('st', 4)]); a('s_barrier'); prog(5)
        def f2():
            for es in range(16):
                a('v_mfma_f32_32x32x16_bf16 %s, %s, %s, %s', vr(AC2,16), vr(JS+4*es), vr(kb+4*es), '0' if es == 0 else vr(AC2,16))
        m0(f2)
    a.nop(18)
    Ti = 8*(6 % 3)
    cvts(Ti)
    lst(6, Ti)
    mst(6, Ti); Qv.append(('st', 6, 4, 2))
    if XL: wt([('st', 5)]); a('s_barrier'); prog(6)
    a('s_waitcnt lgkmcnt(0)')
    RT(a, 1)
    if opt('fm', 1):
        init_seen(a, 13, 22, 'wk_done')
        a('s_waitcnt vmcnt(0)'); a('s_barrier'); prog(8)
        flag_set(a, 96, F_M, 's100', 13, 22, 'wk_done', wait=False, chk=False)
    else:
        a('s_waitcnt vmcnt(0)'); a('s_barrier'); prog(8)
        flag_set(a, 96, F_M, 's100', 13, 22, 'wk_done')
    RT(a, 2)
    for f in range(56):
        a('ds_read_b128 %s, v12 offset:%d', ar(4*f), f*1024)
    a('s_cmp_eq_u32 s17, 0'); a('s_cselect_b64 vcc, -1, 0')
    a('v_cndmask_b32 v14, v10, v3, vcc')
    a('s_mul_i32 s22, s19, 28672'); a('v_lshl_add_u32 v5, v4, 5, v14'); a('v_lshlrev_b32 v5, 4, v5'); a('v_add_u32 v5, s22, v5')
    XB = [16, 72, 128]; GA = 184; GT = 216
    a('s_mov_b32 s36, 0')
    a('s_mov_b32 s37, 0')
    a('s_mov_b32 s38, 0')
    def ldx(c, b):
        for k in range(14):
            ks = 14*c + k
            if k == 0 or ks % 4 == 0: a('s_add_u32 s39, s36, %d', (ks//4)*4096)
            if not opt('mgnold'): a('buffer_load_dwordx4 %s, v5, s[48:51], s39 offen offset:%d', vr(XB[b]+4*k), (ks%4)*1024)
        if c == 1: a('s_add_u32 s36, s36, %d', 4*28672)
    ldx(0, 0); ldx(1, 1)
    a('s_waitcnt lgkmcnt(0)')
    a('s_cmp_eq_u32 s17, 0'); a('s_cbranch_scc0 gx_m1')
    for mat in range(2):
        if mat == 1: a.label('gx_m1')
        a('s_lshl_b32 s22, s19, 4'); a('s_add_u32 s22, s22, s18')
        if mat == 0:
            a('s_mul_i32 s22, s22, 28672'); a('s_lshl_b32 s23, s16, 11'); a('s_add_u32 s22, s22, s23')
            a('v_lshrrev_b32 v6, 4, v3'); a('v_mul_u32_u24 v6, 14336, v6'); a('v_add_u32 v6, s22, v6'); a('v_lshl_add_u32 v6, v4, 10, v6')
            a('v_and_b32 v7, 15, v3'); a('v_lshl_add_u32 v6, v7, 4, v6')
        else:
            a('s_mul_i32 s22, s22, 28672'); a('s_lshl_b32 s23, s16, 10'); a('s_add_u32 s22, s22, s23')
            a('v_lshlrev_b32 v6, 4, v10'); a('v_add_u32 v6, s22, v6'); a('v_mul_u32_u24 v7, 7168, v4'); a('v_add_u32 v6, v6, v7')
            a('v_add_u32 v7, 14336, v6')
        def sig(blk):
            flag_set(a, 96, F_GX + 1024*blk, 's100', 13, 22, 'wk_done', wait=False, chk=False)
        for it in range(16):
            for c in range(2):
                ch = 2*it + c
                b = ch % 3
                if ch + 2 < 32:
                    ldx(c, (ch+2) % 3)
                    a('s_waitcnt vmcnt(28)')
                    if c == 1 and it == 1 and opt('ge', 1): sig(8)
                    if c == 1 and it % 2 == 0 and it > 0:
                        sig(it//2 - 1)
                        if it == 2: RT(a, 3)
                else:
                    a('s_waitcnt vmcnt(%d)', 14 if ch == 30 else 0)
                for k in range(14):
                    ks = 14*c + k
                    for j2 in range(2):
                        m = ar((j2*28+ks)*4); x = vr(XB[b]+4*k); acc = vr(GA+16*j2, 16)
                        A, B = (m, x) if mat == 0 else (x, m)
                        if not opt('mgnomf') or ks == 0: a('v_mfma_f32_32x32x16_bf16 %s, %s, %s, %s', acc, A, B, '0' if ks == 0 else acc)
            a.nop(18)
            for i in range(16): a('v_cvt_pk_bf16_f32 v%d, v%d, v%d', GT+i, GA+2*i, GA+2*i+1)
            for j2 in range(2):
                for qq in range(2):
                    off = j2*512 + qq*256 if mat == 0 else j2*512
                    if not opt('mgnost'): a('buffer_store_dwordx4 %s, v%d, s[%d:%d], s37 offen offset:%d sc1', vr(GT+8*j2+4*qq), 7 if (mat == 1 and qq == 1) else 6, 52+4*mat, 55+4*mat, off)
            a('s_add_u32 s37, s37, %d', 4*16*28672)
        a('s_waitcnt vmcnt(0)'); sig(7)
        a('s_branch wk_loop')

L_MEM = 0; L_ZM = L_MEM + 8192; L_TP = L_ZM + 4096
L_RED = L_TP + 4096; L_RED2 = L_RED + 2048; L_PHI = L_RED2 + 1024; L_DUM = L_PHI + 1024; L_CHAIN = L_DUM + 1024
QT = [[0,1,2,3],[4,5,6,7],[8,9,10,11],[12,13]]
UTL = [[0,1,2],[3,4,5],[6,7,8],[9,10,11,12,13]]
SPIN = 200000
FORCE_SLOW = bool(opt('slow', 0))
PRETOUCH = True
GM = ['sc1', '', 'nt', 'sc0'][opt('gm', 0)]
def load_weights(a, units, wreg4):
    a('s_mul_i32 s13, s2, 401408')
    for u, (kind, t) in enumerate(units):
        un = t if kind == 'q' else 14 + t
        for ks in range(14):
            if ks % 4 == 0: a('s_add_u32 s12, s13, %d', un*14336 + ks*1024)
            a('buffer_load_dwordx4 %s, v3, s[16:19], s12 offen offset:%d', wreg4(u, ks), (ks%4)*1024)
def common_addrs(a):
    a('v_mul_u32_u24 v1, 912, v25'); a('v_lshl_add_u32 v1, v24, 5, v1')
    a('v_lshrrev_b32 v26, 3, v23'); a('v_lshl_add_u32 v1, v26, 4, v1')
    a('v_mov_b32 v4, 0x4444'); a('v_mov_b32 v26, 0xeeee'); a('v_cmp_gt_u32 vcc, 8, v23'); a('s_nop 1'); a('v_cndmask_b32 v4, v26, v4, vcc')
    a('v_and_b32 v26, 1, v24'); a('v_lshlrev_b32 v6, 3, v26'); a('v_lshrrev_b32 v26, 1, v24'); a('v_lshl_add_u32 v6, v26, 2, v6')
    a('v_lshl_add_u32 v6, v23, 4, v6'); a('v_add_u32 v6, %d, v6', L_ZM)
def SM(a, acc, fr, w8):
    a('v_smfmac_f32_16x16x64_bf16 %s, %s, %s, v4', vr(acc), vr(fr), w8)
def fold_ops(R, dst):
    return ['v_permlane32_swap_b32 v%d, v%d' % (R, R+2), 'v_permlane32_swap_b32 v%d, v%d' % (R+1, R+3), 's_nop 0',
            'v_add_f32 v%d, v%d, v%d' % (R, R, R+2), 'v_add_f32 v%d, v%d, v%d' % (R+1, R+1, R+3),
            'v_cvt_pk_bf16_f32 v%d, v%d, v%d' % (dst, R, R+1)]

NTU = opt('ntu', 2)
def k_tu(a):
    flag_wait(a, 96, F_M, 224, 12, 74, 'wk_done')
    a('s_and_b32 s2, s100, 31'); a('s_lshr_b32 s52, s100, 5')
    a('s_load_dwordx2 s[4:5], s[0:1], %d', KA['ws'])
    a('s_lshr_b32 s6, s2, 1'); a('s_and_b32 s7, s2, 1')
    a('v_lshrrev_b32 v1, 6, v0'); a('v_and_b32 v22, 63, v0'); a('s_nop 0')
    a('v_readfirstlane_b32 s8, v1')
    a('v_and_b32 v23, 15, v22'); a('v_lshrrev_b32 v24, 4, v22'); a('v_and_b32 v25, 7, v22')
    a('v_lshlrev_b32 v3, 4, v22')
    a('s_waitcnt lgkmcnt(0)')
    a.srd(16, 4, 5, SZ_M, WS_M); a.srd(28, 4, 5, SZ_TM, WS_TM); a.srd(32, 4, 5, SZ_UT, WS_UT)
    a.srd(36, 4, 5, SZ_M2, WS_M2); a.srd(40, 4, 5, SZ_MF, WS_MF)
    a('v_cmp_gt_u32 s[72:73], 14, v23')
    a('v_cmp_gt_u32 s[44:45], 32, v22')
    a('v_cmp_gt_u32 s[46:47], 56, v22')
    a('s_mul_i32 s9, s2, 14'); a('s_and_b32 s15, s6, 3')
    common_addrs(a)
    a('v_and_b32 v26, 1, v24'); a('v_lshlrev_b32 v5, 7, v26'); a('v_lshrrev_b32 v26, 1, v24'); a('v_lshl_add_u32 v5, v26, 6, v5')
    a('v_bfe_u32 v26, v23, 1, 1'); a('v_lshl_add_u32 v5, v26, 4, v5')
    a('v_lshrrev_b32 v26, 2, v23'); a('v_lshl_add_u32 v5, v26, 2, v5')
    a('v_and_b32 v26, 1, v23'); a('v_lshl_add_u32 v5, v26, 1, v5'); a('v_add_u32 v5, %d, v5', L_TP)
    a('s_mul_i32 s12, s8, 1792'); a('v_add_u32 v15, s12, v3')
    a('s_mul_i32 s12, s8, 1824'); a('v_add_u32 v16, s12, v3')
    a('s_lshl_b32 s12, s8, 10'); a('v_add_u32 v11, s12, v3')
    a('v_mul_u32_u24 v14, 224, v24'); a('v_lshl_add_u32 v14, v23, 4, v14'); a('s_mul_i32 s12, s8, 896'); a('v_add_u32 v14, s12, v14')
    a('s_lshr_b32 s12, s6, 2'); a('s_mul_i32 s12, s12, 28'); a('s_mul_i32 s13, s7, 14'); a('s_add_u32 s12, s12, s13'); a('s_lshl_b32 s12, s12, 10')
    a('s_lshl_b32 s13, s15, 8'); a('s_add_u32 s12, s12, s13'); a('s_lshl_b32 s13, s8, 12'); a('s_add_u32 s12, s12, s13')
    a('v_lshlrev_b32 v12, 10, v24'); a('v_lshl_add_u32 v12, v23, 4, v12'); a('v_add_u32 v12, s12, v12')
    a('v_mul_u32_u24 v13, 448, v24'); a('v_add_u32 v13, v13, v23'); a('v_add_u32 v13, s9, v13'); a('v_lshlrev_b32 v13, 4, v13')
    a('s_mul_i32 s12, s8, %d', 4*448*16); a('v_add_u32 v13, s12, v13')
    a('s_lshl_b32 s57, s2, 4'); a('s_lshl_b32 s12, s8, 2'); a('s_add_u32 s57, s57, s12')
    a('s_lshl_b32 s12, s52, 9'); a('s_add_u32 s57, s57, s12')
    a('s_mul_i32 s53, s52, 7168'); a('s_mul_i32 s55, s52, %d', 16*8*896); a('s_mul_i32 s56, s52, %d', 16*448*16)
    for wv in range(1, 4):
        a('s_cmp_eq_u32 s8, %d', wv); a('s_cbranch_scc1 tu_w%d', wv)
    FR = 20; ACC = 48; WV = 88; PL = 76
    for wv in range(4):
        a.label('tu_w%d' % wv)
        qt = QT[wv]; ut = UTL[wv]; nq = len(qt)
        units = [('q', t) for t in qt] + [('u', t) for t in ut]
        def wreg4(u, ks): return ar(u*56 + ks*4) if u < 4 else vr(WV + (u-4)*56 + ks*4)
        def wreg8(u, s): return ar(u*56 + s*8, 8) if u < 4 else vr(WV + (u-4)*56 + s*8, 8)
        load_weights(a, units, wreg4)
        EF = opt('ef', 1)
        if EF:
            for r_ in range(4): a('v_mov_b32 v%d, -1', PL+r_)
            a('s_add_u32 s12, s55, %d', (64-NTU)*16*8*896); a('s_add_u32 s13, s56, %d', (64-NTU)*16*448*16)
            if wv == 3: a('s_mov_b64 exec, s[44:45]')
            a('buffer_store_dwordx4 %s, v12, s[28:31], s12 offen sc1', vr(PL))
            a('s_mov_b64 exec, s[72:73]')
            a('buffer_store_dwordx4 %s, v13, s[32:35], s13 offen sc1', vr(PL))
            a('s_mov_b64 exec, -1'); a('s_nop 1')
        for r_ in range(8): a('v_mov_b32 v%d, 0', PL+r_)
        LP = 'tu_loop%d' % wv
        a.label(LP)
        a('s_mov_b32 s62, 0')
        a.label(LP + '_p')
        a('s_mov_b64 exec, s[46:47]')
        for k in range(2): a('buffer_load_dwordx4 %s, v15, s[36:39], s53 offen offset:%d sc1', vr(PL+4*k), k*896)
        a('s_mov_b64 exec, -1')
        a('s_waitcnt vmcnt(0)')
        a('s_cmp_eq_u32 s62, 0'); a('s_cbranch_scc0 %s_nf', LP)
        a('s_cmp_lt_u32 s52, %d', NTU); a('s_cbranch_scc1 %s_nf', LP)
        a('s_mov_b64 exec, 1'); a('buffer_store_dword v3, v3, s[40:43], s57 offen sc1'); a('s_mov_b64 exec, -1')
        a('s_add_u32 s57, s57, %d', 512*NTU)
        a.label(LP + '_nf')
        a('s_add_u32 s62, s62, 1'); a('s_cmp_gt_u32 s62, %d', WSPIN); a('s_cbranch_scc1 wk_done')
        a('v_max3_u32 v84, v%d, v%d, v%d', PL, PL+1, PL+2); a('v_max3_u32 v85, v%d, v%d, v%d', PL+3, PL+4, PL+5); a('v_max3_u32 v84, v84, v%d, v%d', PL+6, PL+7)
        a('v_max_u32 v84, v84, v85'); a('v_cmp_eq_u32 vcc, -1, v84'); a('s_cbranch_vccz %s_g', LP)
        a('s_sleep %d', opt('tus', 2)); a('s_branch %s_p', LP)
        a.label(LP + '_g')
        a('s_mov_b64 exec, s[46:47]')
        for k in range(2): a('ds_write_b128 v16, %s offset:%d', vr(PL+4*k), L_MEM + k*912)
        a('s_mov_b64 exec, -1')
        for r_ in range(28): a('v_mov_b32 v%d, 0', ACC+r_)
        a('s_waitcnt lgkmcnt(0)'); a('s_barrier')
        for s in range(7): a('ds_read_b128 %s, v1 offset:%d', vr(FR+4*s), L_MEM + s*128)
        for s in range(7):
            a('s_waitcnt lgkmcnt(%d)', 6-s)
            for u in range(7): SM(a, ACC+4*u, FR+4*s, wreg8(u, s))
        a.nop(8)
        for u in range(7):
            for q in fold_ops(ACC+4*u, ACC+4*u): a(q)
        for u, t in enumerate(qt):
            a('ds_write_b16 v5, v%d offset:%d', ACC+4*u, 256*t); a('ds_write_b16_d16_hi v5, v%d offset:%d', ACC+4*u, 256*t+32)
        for k, t in enumerate(ut):
            a('ds_write_b32 v6, v%d offset:%d', ACC+4*(nq+k), 256*t)
        a('s_waitcnt lgkmcnt(0)'); a('s_barrier')
        a('ds_read_b128 %s, v11 offset:%d', vr(FR), L_TP); a('ds_read_b128 %s, v14 offset:%d', vr(FR+4), L_ZM)
        a('s_waitcnt lgkmcnt(1)')
        if EF:
            for r_ in range(4): a('v_min_u32 v%d, 0xfffffffe, v%d', FR+r_, FR+r_)
        if wv == 3: a('s_mov_b64 exec, s[44:45]')
        a('buffer_store_dwordx4 %s, v12, s[28:31], s55 offen sc1', vr(FR))
        a('s_mov_b64 exec, s[72:73]'); a('s_waitcnt lgkmcnt(0)')
        if EF:
            for r_ in range(4): a('v_min_u32 v%d, 0xfffffffe, v%d', FR+4+r_, FR+4+r_)
        a('buffer_store_dwordx4 %s, v13, s[32:35], s56 offen sc1', vr(FR+4))
        a('s_mov_b64 exec, -1')
        a('s_add_u32 s52, s52, %d', NTU); a('s_add_u32 s53, s53, %d', 7168*NTU); a('s_add_u32 s55, s55, %d', 16*8*896*NTU); a('s_add_u32 s56, s56, %d', 16*448*16*NTU)
        a('s_cmp_lt_u32 s52, 64'); a('s_cbranch_scc1 %s', LP)
        if not EF: a('s_waitcnt vmcnt(0)')
        a('s_mov_b64 exec, 1'); a('buffer_store_dword v3, v3, s[40:43], s57 offen sc1'); a('s_mov_b64 exec, -1')
        a('s_branch wk_loop')

def k_chain(a):
    TSL = []
    def TS0(k):
        if not INSTR: return
        a('s_memrealtime s[64:65]' if opt('rt') else 's_memtime s[64:65]'); a('s_waitcnt lgkmcnt(0)')
        a('v_mov_b32 v63, s64')
        a('s_mov_b64 exec, 1')
        a('buffer_store_dword v63, v3, s[68:71], s67 offen offset:%d', 4*k)
        a('s_mov_b64 exec, -1')
    def TS(k):
        if not INSTR: return
        j = len(TSL); assert j < 7; TSL.append(k)
        a('%s s[%d:%d]', 's_memrealtime' if opt('rt') else 's_memtime', 88+2*j, 89+2*j)
    def TDUMP(extra=None):
        if not INSTR: return
        a('s_waitcnt lgkmcnt(0)')
        for j, k in enumerate(TSL): a('v_writelane_b32 v63, s%d, %d', 88+2*j, k)
        m = sum(1 << k for k in TSL)
        if extra:
            a('v_writelane_b32 v63, %s, 13', extra); m |= 1 << 13
        a('v_lshrrev_b32 v62, 2, v3')
        a('s_lshl_b32 s66, s52, 6'); a('s_add_u32 s66, s66, s67')
        a('s_mov_b64 exec, 0x%x', m)
        a('buffer_store_dword v63, v62, s[68:71], s66 offen')
        a('s_mov_b64 exec, -1'); a('s_nop 1')
        TSL.clear()
    def pub(fmt, *args):
        L = a.newlabel('pb')
        a('s_cmp_eq_u32 s63, 0'); a('s_cbranch_scc1 %s_s', L)
        a(fmt, *(args + ('',))); a('s_branch %s_d', L)
        a.label(L + '_s'); a(fmt, *(args + ('sc1',))); a.label(L + '_d')
    L_S = L_TP; L_R2 = L_TP; L_DM = L_TP + 6144
    LZ = 8192; L_S = 16384; L_R2 = 16384; L_DM = 16384 + 6144
    init2(a, 0)
    a('s_lshr_b32 s2, s2, 3')
    a('s_load_dwordx2 s[4:5], s[0:1], %d', KA['ws'])
    a('s_load_dwordx2 s[76:77], s[0:1], %d', KA['dbg'])
    a('s_load_dwordx2 s[78:79], s[0:1], %d', KA['B_mem0'])
    a('s_and_b32 s6, s2, 15')
    a('v_lshrrev_b32 v1, 6, v0'); a('v_and_b32 v22, 63, v0'); a('s_nop 0')
    a('v_readfirstlane_b32 s8, v1')
    a('v_and_b32 v23, 15, v22'); a('v_lshrrev_b32 v24, 4, v22'); a('v_and_b32 v25, 7, v22')
    a('v_lshlrev_b32 v3, 4, v22')
    a('s_waitcnt lgkmcnt(0)')
    a.srd(20, 4, 5, SZ_XF, WS_XF); a.srd(24, 4, 5, SZ_VW, WS_VW)
    a.srd(28, 4, 5, SZ_M2, WS_M2); a.srd(36, 4, 5, SZ_MB, WS_MB); a.srd(40, 4, 5, SZ_SB, WS_SB)
    a.srd(80, 76, 77, 256); a.srd(84, 78, 79, 7168)
    a('s_mov_b32 s52, 0')
    if INSTR:
        a.srd(68, 4, 5, SZ_P, WS_P)
        a('s_lshl_b32 s67, s2, 2'); a('s_add_u32 s67, s67, s8'); a('s_lshl_b32 s67, s67, 12')
    TS0(8)
    a('s_add_u32 s101, s2, 1900'); RT(a, 0)
    a.srd(72, 4, 5, SZ_FL, WS_FL)
    for r_ in range(4): a('v_mov_b32 v%d, 0', 40+r_)
    a('v_lshlrev_b32 v9, 5, v0')
    a('ds_write_b128 v9, %s', vr(40)); a('ds_write_b128 v9, %s offset:16', vr(40))
    a('v_lshrrev_b32 v26, 3, v23'); a('v_mul_u32_u24 v26, 7, v26'); a('v_lshl_add_u32 v26, v24, 1, v26'); a('s_mul_i32 s12, s6, 14'); a('v_add_u32 v26, s12, v26')
    a('v_mul_u32_u24 v27, 896, v25')
    a('v_lshl_add_u32 v8, v26, 2, v27')
    a('buffer_load_dwordx2 %s, v8, s[84:87], 0 offen', vr(18, 2))
    for e, (vu, vq) in enumerate(((11, 13), (12, 2))):
        a('v_add_u32 v28, %d, v26', e)
        a('v_lshrrev_b32 v29, 3, v28'); a('v_lshl_add_u32 v29, v29, 5, v27')
        a('v_and_b32 v30, 1, v28'); a('v_bfe_u32 v31, v28, 1, 2'); a('v_lshl_add_u32 v31, v30, 2, v31'); a('v_lshl_add_u32 v%d, v31, 2, v29', vu)
        a('v_bfe_u32 v31, v28, 2, 1'); a('v_lshl_add_u32 v31, v30, 1, v31'); a('v_bfe_u32 v30, v28, 1, 1'); a('v_lshl_add_u32 v31, v30, 2, v31')
        a('v_lshl_add_u32 v%d, v31, 2, v29', vq); a('v_add_u32 v%d, 7168, v%d', vq, vq)
    a('v_mov_b32 v28, 0x40000000'); a('v_cmp_eq_u32 vcc, 3, v24'); a('s_nop 1')
    a('v_cndmask_b32 v12, v12, v28, vcc'); a('v_cndmask_b32 v2, v2, v28, vcc')
    a('s_getreg_b32 s12, hwreg(HW_REG_XCC_ID, 0, 4)'); a('s_lshl_b32 s12, 1, s12')
    a('v_mov_b32 v48, s12'); a('v_mov_b32 v49, %d', C_XCC*4)
    a('v_cmp_eq_u32 vcc, 0, v0'); a('s_and_b64 exec, exec, vcc')
    a('buffer_atomic_or v48, v49, s[80:83], 0 offen sc1')
    a('s_mov_b64 exec, -1')
    signal(a, 80, C_INIT, 36)
    a('v_mov_b32 v50, %d', L_TK)
    a('s_cmp_eq_u32 s8, 0'); a('s_cbranch_scc0 ch_iw')
    waitc(a, 80, C_P0, 224, 36, 12, 'ch_done', opt('cis', 8))
    a.label('ch_iw')
    a('s_barrier')
    def s63_from(v):
        a('v_readfirstlane_b32 s12, v%d', v); a('s_nop 3')
        a('s_bcnt1_i32_b32 s12, s12'); a('s_cmp_eq_u32 s12, 1'); a('s_cselect_b32 s63, 1, 0')
        if FORCE_SLOW: a('s_mov_b32 s63, 0')
    def mpub(T, so, s2o, pre=False):
        L = a.newlabel('mp')
        if not (opt('nmin', 1) and pre): a('v_min_u32 v%d, 0xfffffffe, v%d', T, T); a('v_min_u32 v%d, 0xfffffffe, v%d', T+1, T+1)
        if not pre: a('s_cmp_eq_u32 s63, 0')
        a('s_cbranch_scc1 %s_s', L)
        for m in ('', 'sc1'):
            if m: a.label(L + '_s')
            for d, va in ((T, 13), (T+1, 2), (T, 11), (T+1, 12)): a('buffer_store_dword v%d, v%d, s[36:39], %s offen %s', d, va, so, m)
            if not m: a('s_branch %s_d', L)
        a.label(L + '_d')
    def m2l(T): return ['buffer_store_dword v%d, v%d, s[28:31], s55 offen sc1' % (d, va) for d, va in ((T, 11), (T+1, 12))] + ['s_add_u32 s55, s55, 7168']
    def after_init(isu):
        L = a.newlabel('ai')
        a('s_cmp_eq_u32 s8, 0'); a('s_cbranch_scc0 %s', L)
        waitc(a, 80, C_INIT, NINIT, 36, 12, 'ch_done', 8, x2=True)
        a('ds_write_b32 v50, v39')
        if isu:
            s63_from(39)
            mpub(18, '0', '0')
        a.label(L)
    def after_ldw():
        a('s_waitcnt lgkmcnt(0)'); a('s_barrier')
        a('ds_read_b32 v48, v50'); a('s_waitcnt lgkmcnt(0)')
        s63_from(48)
    TS0(9)
    PG = opt('pg', 1)
    assert PG
    a.srd(32, 4, 5, SZ_PG, WS_PG)
    a('s_mov_b32 s76, s72'); a('s_mov_b32 s77, s73'); a('s_mov_b32 s78, s74'); a('s_mov_b32 s79, s75')
    TS0(10)
    a('v_cmp_gt_u32 s[46:47], 56, v22')
    common_addrs(a)
    a('s_mul_i32 s12, s8, 1792'); a('v_add_u32 v15, s12, v3')
    a('s_mul_i32 s12, s8, 1824'); a('v_add_u32 v14, s12, v3')
    a('s_mov_b32 s53, 0'); a('s_mov_b32 s54, 0'); a('s_mov_b32 s55, 0'); a('s_mov_b32 s59, %d', MBS)
    FR = 20; WV = 88; ZA = 224; ID = 16
    def wreg4(u, ks): return ar(u*56 + ks*4) if u < 4 else vr(WV + (u-4)*56 + ks*4)
    def wreg8(u, s): return ar(u*56 + s*8, 8) if u < 4 else vr(WV + (u-4)*56 + s*8, 8)
    def ldw():
        for u in range(7):
            for ks in range(14):
                if ks % 4 == 0: a('s_add_u32 s12, s13, %d', u*14336 + ks*1024)
                a('buffer_load_dwordx4 %s, v3, s[16:19], s12 offen offset:%d', wreg4(u, ks), (ks%4)*1024)
    def ldw_pg(L, rounds, isu):
        for u in range(7): a('s_add_u32 s%d, s13, %d', 88+u, u*14336)
        a('v_add_u32 v43, 4096, v3'); a('v_add_u32 v44, 8192, v3'); a('v_add_u32 v45, 12288, v3')
        def ld(u, ks): a('buffer_load_dwordx4 %s, v%d, s[16:19], s%d offen offset:%d', wreg4(u, ks), [3, 43, 44, 45][ks//4], 88+u, (ks%4)*1024)
        def pl(): a('buffer_load_dword v42, v40, s[32:35], 0 offen sc1')
        def ck(): a('v_sub_u32 v42, v42, v41'); a('v_cmp_gt_i32 vcc, %d, v42', th)
        a('s_mov_b32 s62, 0')
        for r_, th in enumerate((1, 2, 3, 4, 5, 6, 7)):
            if r_ > 0:
                for j, (u, ks) in enumerate(rounds[r_-1]):
                    if j == 4: pl()
                    ld(u, ks)
                a('s_waitcnt vmcnt(10)'); ck(); a('s_cbranch_vccz %s_k%d', L, r_)
            a.label('%s_s%d' % (L, r_))
            pl()
            a('s_add_u32 s62, s62, 1'); a('s_cmp_gt_u32 s62, %d', WSPIN); a('s_cbranch_scc1 ch_done')
            a('s_waitcnt vmcnt(0)'); ck(); a('s_cbranch_vccz %s_k%d', L, r_)
            a('s_sleep 4'); a('s_branch %s_s%d', L, r_)
            a.label('%s_k%d' % (L, r_))
            if opt('pgt') and r_ < 4: TS0([12, 15, 7, 8][r_])
            if r_ == opt('air', 2): after_init(isu)
        for rr in rounds[6:]:
            for (u, ks) in rr: ld(u, ks)
    def poll_mem(LP, slp, pipe=0, R=20):
        a('s_mov_b32 s62, 0')
        if slp: a('s_sleep %d', slp)
        if not opt('fts'): TS(14)
        a('s_mov_b64 exec, s[46:47]')
        def ld(R):
            for k in range(2): a('buffer_load_dwordx4 %s, v15, s[36:39], s53 offen offset:%d sc1', vr(R+4*k), k*896)
        def ck(R):
            a('v_max3_u32 v36, v%d, v%d, v%d', R, R+1, R+2); a('v_max3_u32 v37, v%d, v%d, v%d', R+3, R+4, R+5)
            a('v_max3_u32 v36, v36, v%d, v%d', R+6, R+7); a('v_max_u32 v36, v36, v37')
            a('v_cmp_eq_u32 vcc, -1, v36')
        def wr(R):
            for k in range(2): a('ds_write_b128 v14, %s offset:%d', vr(R+4*k), L_MEM + k*912)
        if not pipe:
            a.label(LP + '_pm')
            ld(R)
            a('s_add_u32 s62, s62, 1'); a('s_cmp_gt_u32 s62, %d', SPIN); a('s_cbranch_scc1 ch_done')
            a('s_waitcnt vmcnt(0)')
            SPW = opt('spw', 0) == 2 and LP.startswith('ch_q')
            if SPW: wr(R)
            ck(R); a('s_cbranch_vccnz %s_pm', LP)
            if not SPW: wr(R)
        else:
            ld(R); a('s_sleep %d', pipe)
            a.label(LP + '_pm')
            ld(R+8)
            a('s_add_u32 s62, s62, 1'); a('s_cmp_gt_u32 s62, %d', SPIN); a('s_cbranch_scc1 ch_done')
            a('s_waitcnt vmcnt(2)')
            ck(R); a('s_cbranch_vccz %s_pa', LP)
            ld(R)
            a('s_waitcnt vmcnt(2)')
            ck(R+8); a('s_cbranch_vccnz %s_pm', LP)
            wr(R+8); a('s_branch %s_pb', LP)
            a.label(LP + '_pa')
            wr(R)
            a.label(LP + '_pb')
        a('s_mov_b64 exec, -1')
        TS(0)
        a('s_waitcnt lgkmcnt(0)')
        a('s_barrier')
        for s in range(7): a('ds_read_b128 %s, v1 offset:%d', vr(FR+4*s), L_MEM + s*128)
        TS(1)
    def cv(d, s_): return 'v_cvt_pk_bf16_f32 v%d, v%d, v%d' % (d, s_, s_+1)
    def tmf(b): return 'v_mfma_f32_16x16x32_bf16 %s, %s, %s, 0' % (vr(b+4), vr(b), vr(ID))
    def zz(r_): return 'v_mov_b32 v%d, 0' % r_
    def step_end(LP, fin=[]):
        a('s_add_u32 s52, s52, 1'); a('s_add_u32 s53, s53, %d', MBS); a('s_add_u32 s54, s54, %d', SBS)
        a('s_cmp_lt_u32 s52, 63'); a('s_cbranch_scc1 %s', LP)
        for q in fin: a(q)
        a('s_waitcnt vmcnt(0)')
        a('s_branch ch_done')
    def gx_wait(L, pro=False):
        if pro: a('s_mov_b32 s12, %d', 64 if opt('ge', 1) else 0)
        else:
            if opt('ge', 1): a('s_cmp_eq_u32 s12, 4'); a('s_cselect_b32 s12, 0, s12')
            a('s_and_b32 s13, s12, 7'); a('s_cmp_eq_u32 s13, 0'); a('s_cbranch_scc0 %s_ng', L)
            a('s_cmp_lt_u32 s12, 64'); a('s_cbranch_scc0 %s_ng', L)
        a('s_cmp_eq_u32 s8, 3'); a('s_cbranch_scc0 %s_ng', L)
        a('s_lshl_b32 s12, s12, 7'); a('s_add_u32 s12, s12, %d', F_GX)
        flag_poll(a, 76, 's12', 224, 20, 62, 'ch_done', 1)
        a.label(L + '_ng')
    a('s_cmp_ge_u32 s2, 16'); a('s_cbranch_scc1 ch_u')
    a.srd(16, 4, 5, SZ_MQ, WS_MQ)
    a('s_mul_i32 s13, s6, 401408'); a('s_mul_i32 s12, s8, %d', 7*14336); a('s_add_u32 s13, s13, s12')
    if PG:
        a('v_min_u32 v40, 6, v22'); a('s_mul_i32 s12, s6, 7'); a('v_add_u32 v40, s12, v40'); a('v_lshlrev_b32 v40, 2, v40'); a('v_mov_b32 v41, 0')
        a('s_and_b32 s12, s8, 1'); a('s_cmp_eq_u32 s12, 1'); a('s_cbranch_scc1 qw_1')
        for pv in range(2):
            a.label('qw_%d' % pv)
            ldw_pg('qw%d' % pv, [[(u, 2*((((7*pv+u)>>1) - r_) % 7) + e) for u in range(7) for e in range(2)] for r_ in range(7)], False)
            a('s_branch qw_d')
        a.label('qw_d')
        after_ldw()
    else: ldw()
    a('v_add_u32 v15, 7168, v15')
    a('v_and_b32 v26, 1, v24'); a('v_lshrrev_b32 v27, 1, v24')
    a('v_mul_u32_u24 v2, 912, v25'); a('v_lshl_add_u32 v2, v26, 6, v2'); a('v_lshl_add_u32 v2, v27, 4, v2'); a('s_mul_i32 s12, s8, 224'); a('v_add_u32 v2, s12, v2')
    a('v_lshl_add_u32 v28, v26, 1, v27'); a('v_mul_u32_u24 v28, 1360, v28'); a('s_lshl_b32 s12, s8, 2'); a('s_add_u32 s12, s12, %d', L_S); a('v_add_u32 v28, s12, v28')
    a('v_and_b32 v29, 3, v23'); a('v_mul_u32_u24 v29, 272, v29'); a('v_add_u32 v5, v28, v29'); a('v_lshrrev_b32 v29, 2, v23'); a('v_lshl_add_u32 v5, v29, 5, v5')
    a('v_lshl_add_u32 v7, v23, 5, v28'); a('v_add_u32 v7, 1088, v7'); a('v_lshlrev_b32 v29, 2, v22'); a('v_add_u32 v29, %d, v29', L_DM)
    a('v_cmp_gt_u32 vcc, 8, v23'); a('s_nop 1'); a('v_cndmask_b32 v7, v29, v7, vcc')
    a('v_lshrrev_b32 v28, 3, v22'); a('v_lshrrev_b32 v29, 4, v22'); a('v_mul_u32_u24 v8, 1360, v29'); a('v_lshl_add_u32 v8, v25, 5, v8')
    a('v_and_b32 v29, 1, v28'); a('v_lshl_add_u32 v8, v29, 4, v8'); a('v_add_u32 v8, %d, v8', L_S)
    a('v_lshrrev_b32 v29, 1, v25'); a('v_lshlrev_b32 v9, 7, v29'); a('v_lshl_add_u32 v9, v28, 4, v9'); a('v_and_b32 v30, 1, v25'); a('v_lshl_add_u32 v9, v30, 3, v9')
    a('s_lshl_b32 s12, s6, 9'); a('v_add_u32 v9, s12, v9')
    a('v_lshlrev_b32 v10, 4, v28'); a('v_lshl_add_u32 v10, v29, 2, v10'); a('s_lshl_b32 s12, s6, 7'); a('s_add_u32 s12, s12, 8192'); a('v_add_u32 v10, s12, v10')
    a('v_mov_b32 v29, 0x40000000'); a('v_cmp_eq_u32 vcc, 1, v30'); a('s_nop 1'); a('v_cndmask_b32 v10, v10, v29, vcc')
    a('v_lshlrev_b32 v11, 7, v23'); a('s_lshl_b32 s12, s6, 11'); a('v_add_u32 v11, s12, v11')
    a('v_min_u32 v12, 4, v22'); a('v_lshlrev_b32 v12, 7, v12'); a('s_mul_i32 s12, s6, 640'); a('v_add_u32 v12, s12, v12')
    a('v_bfe_u32 v27, v23, 2, 1'); a('v_lshrrev_b32 v28, 3, v23'); a('v_and_b32 v29, 3, v23'); a('v_lshl_add_u32 v28, v28, 2, v29')
    a('v_mov_b32 v29, 64'); a('v_cmp_eq_u32 vcc, v26, v27'); a('s_nop 1'); a('v_cndmask_b32 v28, v29, v28, vcc')
    a('v_mov_b32 v26, 0x3f80'); a('v_mov_b32 v27, 0x3f800000'); a('v_mov_b32 v29, 0')
    for q in range(4):
        a('v_cmp_eq_u32 vcc, %d, v28', 2*q); a('s_nop 1'); a('v_cndmask_b32 v%d, v29, v26, vcc', 16+q)
        a('v_cmp_eq_u32 vcc, %d, v28', 2*q+1); a('s_nop 1'); a('v_cndmask_b32 v%d, v%d, v27, vcc', 16+q, 16+q)
    a('s_mov_b32 s60, 0x%x', 0x3db8aa3b)
    a('s_lshl_b32 s56, s8, 13'); a('s_add_u32 s56, s56, %d', 2*SZ_X1); a('s_add_u32 s57, s56, 4096'); a('s_mov_b32 s58, %d', 2*SZ_X1 + 32768)
    def xp_loads():
        for f in range(8):
            a('buffer_load_dwordx4 %s, v3, s[20:23], s%d offen offset:%d %s', ar(ZA+4*f), 56 + f//4, (f%4)*1024, ['sc1', '', 'nt'][opt('xm', 0)])
            if opt('xsl', 1) and f < 7: a('s_sleep %d', opt('xsl', 1))
        a('s_add_u32 s56, s56, 32768'); a('s_add_u32 s57, s57, 32768')
    XE = opt('xe', 0); ZPF = opt('zpf', 2); M2Q = opt('m2q', 2)
    a('s_mul_i32 s12, s6, 28672'); a('s_sub_u32 s13, s8, 1'); a('s_mul_i32 s14, s13, 7168'); a('s_add_u32 s12, s12, s14')
    a('s_cmp_lt_u32 s13, %d', ZPF); a('s_cselect_b32 s12, s12, 0x40000000')
    a('v_lshlrev_b32 v6, 7, v22'); a('v_add_u32 v6, s12, v6'); a('v_mov_b32 v29, 0x40000000')
    a('v_cndmask_b32_e64 v6, v29, v6, s[46:47]'); a('s_mov_b32 s61, %d', 16*28672)
    a('s_mul_i32 s12, s6, 448'); a('v_add_u32 v10, s12, v3') if False else None
    a('s_mul_i32 s14, s6, 448'); a('s_cmp_eq_u32 s8, 2'); a('s_cselect_b32 s48, 0xfffffff, 0'); a('s_mov_b32 s49, 0')
    if ZPF: gx_wait('ch_proq', True)
    if XE != 1:
        xp_loads()
        a('buffer_load_dword v13, v11, s[20:23], s58 offen sc1'); a('s_add_u32 s58, s58, 32768')
    a('s_waitcnt vmcnt(0)')
    TS0(11)
    RT(a, 1, vt=62)
    a('s_cmp_eq_u32 s8, 0'); a('s_cbranch_scc0 ch_q1')
    UA = {0: 48, 1: 52, 2: 56, 3: 60, 4: 72, 5: 76, 6: 80}
    M8 = 80; XM = 48; X0 = 52; X1 = 56
    for wv in range(2):
        LP = 'ch_q%d' % wv
        a.label(LP)
        for r_ in list(range(48, 64)) + list(range(80 if opt('pipe', 0) else 72, 84)): a(zz(r_))
        poll_mem(LP, opt('pmq', 4), opt('pipe', 0), 64 if opt('pipe', 0) else 20)
        def ptouch(LP):
            if wv != 1: return
            a('s_add_u32 s12, s54, %d', SBS)
            a('s_cmp_eq_u32 s8, 1'); a('s_cbranch_scc0 %s_n1', LP)
            a('buffer_load_dword v13, v11, s[20:23], s58 offen sc1'); a('s_add_u32 s58, s58, 32768')
            a('buffer_load_dword v13, v12, s[40:43], s12 offen sc1')
            a.label(LP + '_n1')
        xl = ['buffer_load_dwordx4 %s, v3, s[20:23], s%d offen offset:%d sc1' % (ar(ZA+4*f), 56 + f//4, (f%4)*1024) for f in range(8)] if XE == 1 else []
        for _ in range(opt('xpre', 2)):
            if xl: a(xl.pop(0))
        order = [(6, s) for s in range(7)] + [(u, s) for s in range(7) for u in (0, 1)] + [(u, s) for s in range(7) for u in (2, 3)] + [(4, s) for s in range(7)] + [(5, s) for s in range(7)]
        def m8(q, r_): return 'ds_read2_b32 %s, v2 offset0:%d offset1:%d' % (vr(M8+2*r_, 2), 32*q + (r_>>1) + 2*(r_&1), 32*q + (r_>>1) + 2*(r_&1) + 8)
        def SC(acc, q, b8): return 'v_smfmac_f32_16x16x64_bf16 %s, %s, %s, v4' % (vr(acc), vr(64+4*q), b8)
        def xb(q, t): return ar(ZA + (2*q+t)*8, 8)
        fl = {9: [cv(80, 80)], 10: [cv(81, 82)], 12: ['v_mfma_f32_16x16x16_bf16 %s, %s, %s, 0' % (vr(84), vr(80, 2), vr(ID, 2))], 15: [cv(70, 84)], 16: [cv(71, 86)],
              17: [m8(0, 0)], 18: [m8(0, 1)], 19: [m8(0, 2)], 20: [m8(0, 3)],
              23: [cv(48, 48)], 24: [cv(49, 50)], 25: [cv(50, 52)], 26: [cv(51, 54)], 28: [tmf(48)], 30: [zz(48)], 31: [cv(64, 52)], 32: [cv(65, 54)],
              33: [zz(49)], 34: [zz(50)], 35: [zz(51)], 36: [zz(52)],
              37: [cv(56, 56)], 38: [cv(57, 58)], 39: [cv(58, 60)], 40: [cv(59, 62)], 41: [tmf(56), zz(53), zz(54)], 42: [zz(55)], 43: [zz(56)],
              44: [cv(66, 60)], 45: [cv(67, 62), cv(72, 72)], 46: [SC(XM, 0, vr(M8, 8)), cv(73, 74)], 47: [zz(57), m8(1, 0), m8(1, 1)], 48: [m8(1, 2), m8(1, 3), zz(58), zz(59)]}
        if opt('tri', 1):
            order = [(u, s) for s in range(7) for u in (6, 0, 1)] + order[21:]
            t16 = fl[12]
            for k in list(fl):
                if k < 37: del fl[k]
            fl.update({21: [cv(80, 80)], 22: [cv(81, 82)], 23: [cv(48, 48)], 24: t16 + [cv(49, 50), cv(50, 52)], 25: [cv(51, 54)], 27: [tmf(48), cv(70, 84), cv(71, 86)],
                       28: [m8(0, 0)], 29: [m8(0, 1), zz(48)], 30: [cv(64, 52)], 31: [cv(65, 54)], 32: [m8(0, 2)], 33: [m8(0, 3), zz(49)], 34: [zz(50)], 35: [zz(51)], 36: [zz(52)]})
        if opt('pipe', 0):
            for r_ in range(8): fl[12+r_] = [zz(72+r_)]
            fl[12].insert(0, 's_waitcnt vmcnt(0)')
        seen = set()
        for k, (u, s) in enumerate(order):
            if s not in seen: a('s_waitcnt lgkmcnt(%d)', 6-s); seen.add(s)
            if k == 46: a('s_waitcnt lgkmcnt(0)')
            SM(a, UA[u], FR+4*s, wreg8(u, s))
            for q in fl.get(k, []): a(q)
            if xl and k not in fl: a(xl.pop(0))
            if ZPF and wv == 1 and k == opt('zk', 18): a('buffer_load_dword v13, v6, s[24:27], s61 offen sc1'); a('s_add_u32 s61, s61, %d', 16*28672)
            if M2Q == 2 and wv == 1:
                if k == 1: a('s_add_u32 s12, s53, s14'); a('s_add_u32 s13, s55, s14'); a('s_mov_b32 s33, 0')
                MK = opt('m2k', 15); CR = 84 if MK == 15 else 8; CT = 13 if MK == 15 else 12
                if k == 2: a('s_mov_b64 exec, s[48:49]'); a('buffer_load_dwordx4 %s, v3, s[36:39], s12 offen sc1', vr(CR)); a('s_mov_b64 exec, -1')
                if MK == 15:
                    if k == 15: a('s_waitcnt vmcnt(0)'); a('v_max3_u32 v13, v84, v85, v86')
                    if k == 16: a('v_max_u32 v13, v13, v87')
                if k == MK + 2:
                    a('s_mov_b64 exec, s[48:49]')
                    if MK != 15:
                        a('s_cbranch_execz %s_n3', LP)
                        a('s_waitcnt vmcnt(%d)', 1 if opt('zk', 18) <= k else 0); a('v_max3_u32 v12, v8, v9, v10'); a('v_max_u32 v12, v12, v11')
                    a('v_cmp_eq_u32 vcc, -1, v%d', CT); a('s_cbranch_vccnz %s_n3', LP)
                    a('buffer_store_dwordx4 %s, v3, s[28:31], s13 offen sc1', vr(CR)); a('s_mov_b32 s33, 1'); a('s_add_u32 s55, s55, 7168')
                    a.label(LP + '_n3'); a('s_mov_b64 exec, -1')
            if XE == 1 and k == 13: ptouch(LP)
            if XE == 1 and k == 22: a('s_add_u32 s56, s56, 32768'); a('s_add_u32 s57, s57, 32768')
        if XE == 1: a('s_waitcnt vmcnt(0)')
        a(SC(X0, 0, xb(0, 0))); a('s_nop 0')
        a(cv(74, 76)); a(cv(75, 78)); a('s_nop 1'); a(tmf(72)); a(SC(X1, 0, xb(0, 1))); a('s_nop 4')
        a(cv(68, 76)); a(cv(69, 78)); a('s_nop 1')
        a(SC(X0, 1, xb(1, 0))); a(SC(X1, 1, xb(1, 1))); a('s_waitcnt lgkmcnt(0)'); a(SC(XM, 1, vr(M8, 8))); a('s_nop 1')
        def sw(R): a('v_permlane32_swap_b32 v%d, v%d', R, R+2); a('v_permlane32_swap_b32 v%d, v%d', R+1, R+3)
        def ad(R): a('v_add_f32 v%d, v%d, v%d', R, R, R+2); a('v_add_f32 v%d, v%d, v%d', R+1, R+1, R+3)
        sw(X0); a('s_nop 1'); sw(X1); ad(X0); a('ds_write2_b32 v5, v%d, v%d offset0:0 offset1:4', X0, X0+1)
        ad(X1); sw(XM); a('ds_write2_b32 v5, v%d, v%d offset0:32 offset1:36', X1, X1+1); a('s_nop 0')
        ad(XM); a('ds_write2_b32 v7, v%d, v%d offset0:0 offset1:4', XM, XM+1)
        TS(9)
        a('s_waitcnt lgkmcnt(0)')
        a('s_barrier')
        if wv == 0:
            RD = 48; EE = 72; L_ = 78; Tm = 80
            for j in range(5): a('ds_read_b128 %s, v8 offset:%d', vr(RD+4*j), 272*j)
            TS(2)
            a('s_cmp_eq_u32 s63, 0')
            for j in range(5):
                a('s_waitcnt lgkmcnt(%d)', 4-j)
                a('v_pk_add_f32 %s, %s, %s', vr(RD+4*j, 2), vr(RD+4*j, 2), vr(RD+4*j+2, 2))
                a('v_add_f32 v%d, v%d, v%d', RD+4*j, RD+4*j, RD+4*j+1)
                if not opt('psc', 1): a('v_mul_f32 v%d, s60, v%d', RD+4*j, RD+4*j)
                a('v_exp_f32 v%d, v%d', EE+j, RD+4*j)
            def red(op, r_):
                for d in ('quad_perm:[1,0,3,2]', 'quad_perm:[2,3,0,1]', 'row_half_mirror'):
                    a('s_nop 1'); a('%s_dpp v%d, v%d, v%d %s row_mask:0xf bank_mask:0xf', op, r_, r_, r_, d)
            def sums():
                a('v_add_f32 v%d, v%d, v%d', L_, EE, EE+1); a('v_add_f32 v%d, v%d, v%d', L_+1, EE+2, EE+3)
                a('v_add_f32 v%d, v%d, v%d', L_, L_, L_+1); a('v_add_f32 v%d, v%d, v%d', L_, L_, EE+4)
                a('v_mov_b32_dpp v%d, v%d quad_perm:[1,0,3,2] row_mask:0xf bank_mask:0xf', EE+5, EE+4)
                red('v_add_f32', L_)
                a('v_rcp_f32 v%d, v%d', L_+1, L_)
            sums()
            a('v_subrev_u32 v%d, 0x21800000, v%d', Tm, L_); a('v_cmp_lt_u32 vcc, 0x3c000000, v%d', Tm); a('s_cbranch_vccnz %s_fb', LP)
            a.label(LP + '_ok')
            for q in range(3): a('v_pk_mul_f32 %s, %s, %s op_sel:[0,1] op_sel_hi:[1,1]', vr(EE+2*q, 2), vr(EE+2*q, 2), vr(L_, 2))
            for q in range(3): a(cv(EE+q, EE+2*q))
            if not opt('nmin', 1): a('v_min_u32 v%d, 0xfffffffe, v%d', EE, EE); a('v_min_u32 v%d, 0xfffffffe, v%d', EE+2, EE+2)
            L = a.newlabel('pp')
            a('s_cbranch_scc1 %s_s', L)
            for m in ('', 'sc1'):
                if m: a.label(L + '_s')
                a('buffer_store_dwordx2 %s, v9, s[40:43], s54 offen %s', vr(EE, 2), m); a('buffer_store_dword v%d, v10, s[40:43], s54 offen %s', EE+2, m)
                if not m: a('s_branch %s_d', L)
            a.label(L + '_d')
            TS(3)
        if XE != 1:
            if XE == 0: a('s_barrier')
            if opt('xpd'): a('s_sleep %d', opt('xpd'))
            if wv == 1 and M2Q:
                a('s_cmp_eq_u32 s8, 2'); a('s_cbranch_scc0 %s_n2', LP)
                if M2Q == 2: a('s_cmp_eq_u32 s33, 1'); a('s_cbranch_scc1 %s_n2', LP)
                a('s_add_u32 s12, s53, s14'); a('s_add_u32 s13, s55, s14'); a('s_mov_b32 s15, 0')
                a('s_mov_b64 exec, 0xfffffff')
                a.label(LP + '_m2')
                a('buffer_load_dwordx4 %s, v3, s[36:39], s12 offen sc1', vr(20))
                a('s_add_u32 s15, s15, 1'); a('s_cmp_gt_u32 s15, %d', SPIN); a('s_cbranch_scc1 ch_done')
                a('s_waitcnt vmcnt(0)')
                a('v_max3_u32 v24, v20, v21, v22'); a('v_max_u32 v24, v24, v23'); a('v_cmp_eq_u32 vcc, -1, v24'); a('s_cbranch_vccnz %s_m2', LP)
                a('buffer_store_dwordx4 %s, v3, s[28:31], s13 offen sc1', vr(20))
                a('s_mov_b64 exec, -1'); a('s_add_u32 s55, s55, 7168')
                a.label(LP + '_n2')
            xp_loads()
            ptouch(LP)
            if ZPF and wv == 1: a('s_add_u32 s12, s52, 2'); gx_wait(LP)
        TDUMP('s62')
        step_end(LP)
        if wv == 0:
            a.label(LP + '_fb')
            a('v_max3_f32 v%d, v%d, v%d, v%d', Tm, RD, RD+4, RD+8); a('v_max3_f32 v%d, v%d, v%d, v%d', Tm, Tm, RD+12, RD+16)
            red('v_max_f32', Tm)
            for j in range(5): a('v_sub_f32 v%d, v%d, v%d', EE+j, RD+4*j, Tm)
            for j in range(5): a('v_exp_f32 v%d, v%d', EE+j, EE+j)
            a('s_nop 1'); sums(); a('s_nop 1')
            a('s_branch %s_ok', LP)
    a.label('ch_u')
    a.srd(16, 4, 5, SZ_M, WS_M)
    a('s_lshr_b32 s14, s8, 1'); a('s_and_b32 s15, s8, 1')
    a('s_lshl_b32 s13, s6, 1'); a('s_add_u32 s13, s13, s14'); a('s_mul_i32 s13, s13, 401408'); a('s_mul_i32 s12, s15, %d', 7*14336); a('s_add_u32 s13, s13, s12')
    a('s_add_u32 s13, s13, %d', 14*14336)
    if PG:
        a('s_lshl_b32 s12, s6, 1'); a('s_add_u32 s12, s12, s14'); a('s_mul_i32 s12, s12, 14'); a('s_lshr_b32 s9, s12, 6'); a('s_add_u32 s12, s12, 13'); a('s_lshr_b32 s10, s12, 6')
        a('s_sub_u32 s11, s10, s9')
        a('v_and_b32 v41, 1, v22'); a('v_mul_u32_u24 v41, s11, v41')
        a('v_bfe_u32 v40, v22, 1, 4'); a('v_mul_u32_u24 v40, 7, v40'); a('s_add_u32 s12, s10, 112'); a('v_add_u32 v40, s12, v40'); a('v_sub_u32 v40, v40, v41'); a('v_lshlrev_b32 v40, 2, v40')
        for jb in range(1, 7): a('s_cmp_eq_u32 s10, %d', jb); a('s_cbranch_scc1 uw_%d', jb)
        for jb in range(7):
            a.label('uw_%d' % jb)
            ldw_pg('uw%d' % jb, [[(u, 7*kh + (jb + r_) % 7) for u in range(7) for kh in range(2)] for r_ in range(7)], True)
            a('s_branch uw_d')
        a.label('uw_d')
        after_ldw()
    else: ldw()
    a('s_mul_i32 s12, s8, 1792'); a('v_add_u32 v6, s12, v6')
    a('s_mul_i32 s12, s6, 28'); a('v_add_u32 v8, s12, v23'); a('v_lshlrev_b32 v8, 4, v8'); a('v_mul_u32_u24 v26, 7168, v24'); a('v_add_u32 v8, v8, v26')
    a('v_mul_u32_u24 v9, 224, v24'); a('v_lshl_add_u32 v9, v23, 4, v9'); a('s_mul_i32 s12, s8, 896'); a('s_add_u32 s12, s12, %d', LZ); a('v_add_u32 v9, s12, v9')
    a('v_lshrrev_b32 v26, 3, v23'); a('v_lshlrev_b32 v7, 9, v26'); a('v_lshl_add_u32 v7, v24, 7, v7'); a('v_lshl_add_u32 v7, v25, 4, v7'); a('s_lshl_b32 s12, s8, 11'); a('v_add_u32 v7, s12, v7')
    a('v_lshlrev_b32 v10, 7, v24'); a('v_lshl_add_u32 v10, v25, 4, v10'); a('s_lshl_b32 s12, s8, 9'); a('s_add_u32 s12, s12, 8192'); a('v_add_u32 v10, s12, v10')
    a('v_min_u32 v5, 6, v22'); a('v_lshlrev_b32 v5, 7, v5'); a('s_mul_i32 s12, s6, 896'); a('v_add_u32 v5, s12, v5')
    a('s_lshl_b32 s12, s8, 10'); a('s_add_u32 s12, s12, %d', L_R2 - 1024); a('v_add_u32 v16, s12, v3')
    a('s_mul_i32 s80, s8, %d', 4*28672)
    for k in range(1, 4): a('s_add_u32 s%d, s80, %d', 80+k, k*28672)
    a('s_waitcnt vmcnt(0)')
    TS0(11)
    gx_wait('ch_pro', True)
    ZE = opt('ze', 0)
    def zxl(): return ['buffer_load_dwordx4 %s, v8, s[24:27], s%d offen offset:%d sc1' % (ar(ZA+(2*k+t)*4), 80+k, 224*t) for k in range(4) for t in range(2)]
    if ZE:
        a('s_barrier')
        for q in zxl(): a(q)
    RT(a, 1, vt=62)
    a('s_cmp_eq_u32 s8, 0'); a('s_cbranch_scc0 ch_u1')
    UAC = 48; P = 76; AA = 48; AB = 56; ZM = 64; RR = 72
    for wv in range(2):
        LP = 'ch_u%d' % wv
        a.label(LP)
        for r_ in range(28): a(zz(UAC+r_))
        a('s_add_u32 s12, s53, %d', 2*MBS)
        poll_mem(LP, opt('pmu', 0))
        zl = [] if ZE else zxl()
        if wv == 0: zl = ([] if M2Q else m2l(18)) + zl + ['buffer_load_dword v17, v5, s[36:39], s12 offen sc1']
        for _ in range(opt('zpre', 2)):
            if zl: a(zl.pop(0))
        for s in range(7):
            a('s_waitcnt lgkmcnt(%d)', 6-s)
            for k in range(7):
                SM(a, UAC+4*k, FR+4*s, wreg8(k, s))
                if zl: a(zl.pop(0))
        a.nop(4)
        for k in range(7):
            for q in fold_ops(UAC+4*k, UAC+4*k): a(q)
            a('ds_write_b32 v6, v%d offset:%d', UAC+4*k, 256*k)
        for k in range(4): a('s_add_u32 s%d, s%d, %d', 80+k, 80+k, 0 if opt('hotz') else 16*28672)
        a('s_waitcnt lgkmcnt(0)')
        TS(3)
        a('s_barrier')
        for t in range(2): a('ds_read_b128 %s, v9 offset:%d', vr(ZM+4*t), 3584*t)
        if opt('pps', 4): a('s_sleep %d', opt('pps', 4))
        a('s_waitcnt lgkmcnt(0)')
        def ldp(P):
            a('buffer_load_dwordx4 %s, v7, s[40:43], s54 offen sc1', vr(P)); a('buffer_load_dwordx4 %s, v7, s[40:43], s54 offen offset:1024 sc1', vr(P+4))
            a('buffer_load_dwordx4 %s, v10, s[40:43], s54 offen sc1', vr(P+8))
        def PV(P, fail):
            ckl = ['v_max3_u32 v44, v%d, v%d, v%d' % (P, P+2, P+4), 'v_max3_u32 v45, v%d, v%d, v%d' % (P+6, P+8, P+9), 'v_max3_u32 v44, v44, v%d, v%d' % (P+10, P+11),
                   'v_max_u32 v44, v44, v45', 'v_cmp_eq_u32 vcc, -1, v44', 's_cbranch_vccnz %s' % fail]
            if not opt('spv', 1):
                while ckl: a(ckl.pop(0))
            def MF(acc, A, B, first):
                a('v_mfma_f32_16x16x32_bf16 %s, %s, %s, %s', vr(acc), A, vr(B), '0' if first else vr(acc))
                for _ in range(2):
                    if ckl: a(ckl.pop(0))
            for t in range(2): MF(AB+4*t, ar(ZA+(2+t)*4), P, True)
            for t in range(2): MF(AA+4*t, ar(ZA+t*4), P, True)
            for t in range(2): MF(AB+4*t, ar(ZA+(6+t)*4), P+4, False)
            for t in range(2): MF(AA+4*t, ar(ZA+(4+t)*4), P+4, False)
            a('s_nop 1')
            for t in range(2): MF(AA+4*t, vr(ZM+4*t), P+8, False)
        def cnt(): a('s_add_u32 s62, s62, 256'); a('s_cmp_gt_u32 s62, %d', SPIN*256); a('s_cbranch_scc1 ch_done')
        if not opt('ppi', 2):
            if opt('fts'): a('s_waitcnt vmcnt(0)'); TS(7)
            a.label(LP + '_pp')
            ldp(P); cnt(); a('s_waitcnt vmcnt(0)')
            if opt('fts'): TS(8)
            PV(P, LP + '_pp')
        else:
            PB = 32
            ldp(P); a('s_sleep %d', opt('ppi', 2))
            a.label(LP + '_pp')
            ldp(PB); cnt(); a('s_waitcnt vmcnt(3)')
            PV(P, LP + '_pq'); a('s_branch %s_pd', LP)
            a.label(LP + '_pq')
            ldp(P); a('s_waitcnt vmcnt(3)')
            PV(PB, LP + '_pp')
            a.label(LP + '_pd')
        TS(4)
        a('s_nop 4')
        for r_ in range(4): a('v_add_f32_dpp v%d, v%d, v%d row_ror:8 row_mask:0xf bank_mask:0x3', RR+r_, AB+r_, AA+r_)
        for r_ in range(4): a('v_add_f32_dpp v%d, v%d, v%d row_ror:8 row_mask:0xf bank_mask:0xc', RR+r_, AA+4+r_, AB+4+r_)
        if wv == 1:
            a('ds_write_b128 v16, %s', vr(RR)); a('s_waitcnt lgkmcnt(0)')
        if not opt('fts'): TS(5)
        a('s_barrier')
        if wv == 0:
            for k in range(3): a('ds_read_b128 %s, v3 offset:%d', vr(AA+4*k), L_R2 + 1024*k)
            a('s_cmp_eq_u32 s63, 0')
            if opt('sqa', 0):
                for k in range(3):
                    a('s_waitcnt lgkmcnt(%d)', 2-k)
                    for q in range(2): a('v_pk_add_f32 %s, %s, %s', vr(RR+2*q, 2), vr(RR+2*q, 2), vr(AA+4*k+2*q, 2))
            else:
                a('s_waitcnt lgkmcnt(1)')
                for q in range(2): a('v_pk_add_f32 %s, %s, %s', vr(RR+2*q, 2), vr(RR+2*q, 2), vr(AA+2*q, 2))
                a('s_waitcnt lgkmcnt(0)')
                for q in range(2): a('v_pk_add_f32 %s, %s, %s', vr(AA+4+2*q, 2), vr(AA+4+2*q, 2), vr(AA+8+2*q, 2))
                for q in range(2): a('v_pk_add_f32 %s, %s, %s', vr(RR+2*q, 2), vr(RR+2*q, 2), vr(AA+4+2*q, 2))
            a(cv(18, RR)); a(cv(19, RR+2))
            mpub(18, 's59', 's55', True)
            a('s_add_u32 s59, s59, %d', MBS)
            TS(6)
        TDUMP('s62')
        if wv == 1:
            a('s_add_u32 s12, s52, 1'); gx_wait(LP)
        if ZE:
            a('s_barrier')
            if opt('zsl'): a('s_sleep %d', opt('zsl'))
            for q in zxl(): a(q)
        step_end(LP, (['s_mov_b32 s55, %d' % (63*7168)] + m2l(18)) if wv == 0 else [])
    a.label('ch_done')
    if INSTR: a('s_add_u32 s101, s2, 1900')
    a('s_mov_b64 exec, -1')
    RT(a, 2)
    a('s_endpgm')
NEG = 0xf149f2ca
NSP = opt('nsp', 7)
def k_bf4(a): k_bfin(a, True)
def k_bfin(a, sp=False):
    SX = '4' if sp else ''
    if sp:
        a('s_and_b32 s73, s100, 3'); a('s_lshr_b32 s100, s100, 2'); a('s_add_u32 s100, s100, %d', 64-NSP)
    a('s_load_dwordx2 s[4:5], s[0:1], %d', KA['ws'])
    a('s_load_dwordx2 s[6:7], s[0:1], %d', KA['B_x'])
    a('s_load_dwordx2 s[8:9], s[0:1], %d', KA['out'])
    a('v_lshrrev_b32 v1, 6, v0'); a('v_and_b32 v2, 63, v0'); a('s_nop 0')
    a('v_readfirstlane_b32 s10, v1')
    a('v_and_b32 v3, 31, v2'); a('v_lshrrev_b32 v4, 5, v2')
    perm(a, 5, 3, 6)
    a('s_waitcnt lgkmcnt(0)')
    a.srd(12, 4, 5, SZ_X1, WS_XF + SZ_X1); a.srd(16, 4, 5, SZ_GX, WS_GX); a.srd(20, 4, 5, SZ_VW, WS_VW)
    a.srd(24, 4, 5, SZ_TM, WS_TM); a.srd(28, 4, 5, SZ_UT, WS_UT); a.srd(32, 8, 9, 2048*1792); a.srd(76, 4, 5, SZ_MF, WS_MF)
    init_seen(a, 12, 74, 'wk_done')
    a('s_mul_i32 s11, s100, 28672'); a('v_lshlrev_b32 v6, 4, v2')
    for ks in range(28):
        if ks % 4 == 0: a('s_add_u32 s39, s11, %d', ks*1024)
        a('buffer_load_dwordx4 %s, v6, s[12:15], s39 offen offset:%d', ar(4*ks), (ks%4)*1024)
    a('v_lshrrev_b32 v7, 4, v5'); a('v_mul_u32_u24 v7, 14336, v7'); a('v_lshl_add_u32 v7, v4, 10, v7'); a('v_and_b32 v8, 15, v5'); a('v_lshl_add_u32 v7, v8, 4, v7')
    a('v_lshlrev_b32 v8, 5, v3'); a('v_lshl_add_u32 v8, v4, 4, v8')
    a('s_lshl_b32 s36, s100, 2'); a('s_add_u32 s36, s36, s10')
    a('s_mul_i32 s37, s36, 28672')
    a('s_mul_i32 s38, s36, %d', 4*28672)
    B0 = 16; B1A = 112; ACC = 128
    def buf(b, ks): return vr(B0+4*ks) if b == 0 else ar(B1A+4*ks)
    def ld(stream, b):
        for ks in range(28):
            if ks % 4 == 0:
                if stream == 0: a('s_add_u32 s39, s37, %d', ks*1024)
                else: a('s_add_u32 s39, s38, %d', (stream-1)*28672 + ks*512)
            if stream == 0: a('buffer_load_dwordx4 %s, v8, s[24:27], s39 offen offset:%d sc1', buf(b, ks), (ks%4)*1024)
            else: a('buffer_load_dwordx4 %s, v7, s[16:19], s39 offen offset:%d sc1', buf(b, ks), (ks%4)*256)
    def out_addrs(vb):
        V6, V7, V9, V8 = (6, 7, 9, 8) if vb is None else (vb, vb+1, vb+2, vb+3)
        a('s_mul_i32 s11, s100, %d', 16*448); a('s_lshl_b32 s75, s10, 5')
        if vb is not None: a('s_lshl_b32 s39, s73, 7'); a('s_add_u32 s75, s75, s39')
        a('s_add_u32 s11, s11, s75')
        a('v_add_u32 v%d, s11, v5', V8)
        a('s_mul_i32 s39, s100, %d', 16*28672); a('v_add_u32 v%d, s75, v5', V6); a('v_lshlrev_b32 v%d, 4, v%d', V6, V6); a('v_add_u32 v%d, s39, v%d', V6, V6)
        a('v_mul_u32_u24 v%d, 7168, v4', V7); a('v_add_u32 v%d, v%d, v%d', V6, V6, V7)
        a('v_lshlrev_b32 v%d, 4, v%d', V7, V8); a('v_lshl_add_u32 v%d, v4, 3, v%d', V7, V7)
        a('s_lshl_b32 s11, s100, 5'); a('v_add_u32 v%d, s11, v3', V9); a('v_mul_u32_u24 v%d, 1792, v%d', V9, V9); a('v_lshl_add_u32 v%d, v4, 4, v%d', V9, V9)
        a('s_lshl_b32 s75, s75, 1'); a('s_add_u32 s75, s75, 896'); a('v_add_u32 v%d, s75, v%d', V9, V9)
    a('v_lshlrev_b32 v9, 3, v4'); a('v_sub_u32 v9, v3, v9')
    for i in range(16):
        q, r_ = i >> 2, i & 3
        a('v_cmp_le_i32 s[%d:%d], %d, v9', 40+2*i, 41+2*i, 16*(q>>1) + 4*(q&1) + r_)
    a('s_mov_b32 s72, 0x%x', 0x3db8aa3b)
    a('v_mov_b32 v10, 0x%x', NEG)
    a('s_lshr_b32 s11, s100, 3'); a('s_lshl_b32 s11, s11, 10'); a('s_add_u32 s11, s11, %d', F_GX)
    flag_wait(a, 96, 's11', 224, 208, 74, 'wk_done')
    order = [1, 2, 3, 4, 0]
    ld(1, 0); ld(2, 1)
    for oi, st in enumerate(order):
        b = oi % 2
        if oi < 4: a('s_waitcnt vmcnt(28)' if oi < 3 else 's_waitcnt vmcnt(0)')
        for ks in range(28):
            acc = vr(ACC+16*st, 16)
            if oi == 4 and ks % 2 == 0: a('s_waitcnt vmcnt(%d)', (16 if sp else 0) + 26 - ks)
            a('v_mfma_f32_32x32x16_bf16 %s, %s, %s, %s', acc, buf(b, ks), ar(4*ks), '0' if ks == 0 else acc)
            if oi == 4 and sp and opt('ef', 1):
                R_ = B0 + 4*ks
                if ks == 0: a('v_max_u32 v12, v%d, v%d', R_, R_+1)
                else: a('v_max3_u32 v12, v12, v%d, v%d', R_, R_+1)
                a('v_max3_u32 v12, v12, v%d, v%d', R_+2, R_+3)
        if oi == 4 and sp and opt('ef', 1):
            a('v_cmp_eq_u32 vcc, -1, v12'); a('s_cbranch_vccz bf4_tok')
            a('s_add_u32 s74, s74, 1'); a('s_cmp_gt_u32 s74, %d', WSPIN); a('s_cbranch_scc1 wk_done')
            a('s_waitcnt vmcnt(0)'); a.nop(16); a('s_branch bf_m4')
            a.label('bf4_tok')
        if oi + 2 < 4:
            a('s_nop 0'); ld(order[oi+2], b)
        if oi == 3:
            if sp:
                out_addrs(208); a('s_nop 4')
                for h in range(16):
                    for k2 in range(2):
                        a('s_mov_b32 s39, %d', h*28672 + k2*14336)
                        a('buffer_load_dwordx4 %s, v208, s[20:23], s39 offen sc1', ar(112+8*h+4*k2))
            a.nop(16)
            for hl in range(4):
                S = ACC + 16*(hl+1); T = 16; XM = 244 + 2*hl
                for i in range(16): a('v_cndmask_b32_e64 v%d, v10, v%d, s[%d:%d]', S+i, S+i, 40+2*i, 41+2*i)
                a('v_max3_f32 v%d, v%d, v%d, v%d', T, S, S+1, S+2)
                for i in range(6): a('v_max3_f32 v%d, v%d, v%d, v%d', T, T, S+3+2*i, S+4+2*i)
                a('v_max_f32 v%d, v%d, v%d', T, T, S+15)
                a('v_mov_b32 v%d, v%d', T+1, T); a('s_nop 1')
                a('v_permlane32_swap_b32 v%d, v%d', T, T+1); a('s_nop 1')
                a('v_max_f32 v%d, v%d, v%d', T, T, T+1)
                a('v_mul_f32 v%d, s72, v%d', XM, T)
                for i in range(16): a('v_fma_f32 v%d, v%d, s72, -v%d', S+i, S+i, XM)
                for i in range(16): a('v_exp_f32 v%d, v%d', S+i, S+i)
                a('s_nop 0')
                a('v_add_f32 v%d, v%d, v%d', XM+1, S, S+1)
                for i in range(2, 16): a('v_add_f32 v%d, v%d, v%d', XM+1, XM+1, S+i)
            a('s_lshl_b32 s11, s100, 9'); a('v_lshlrev_b32 v14, 3, v2'); a('s_mov_b32 s74, 0')
            a.label('bf_wm' + SX)
            a('buffer_load_dwordx2 v[12:13], v14, s[76:79], s11 offen sc1')
            a('s_add_u32 s74, s74, 1'); a('s_cmp_gt_u32 s74, %d', WSPIN); a('s_cbranch_scc1 wk_done')
            a('s_waitcnt vmcnt(0)'); a('v_max_u32 v12, v12, v13')
            a('v_cmp_eq_u32 vcc, -1, v12'); a('s_cbranch_vccz bf_m' + SX); a('s_sleep %d', opt('bfs', 2) if sp else 8); a('s_branch bf_wm' + SX)
            a.label('bf_m' + SX)
            RT(a, 1)
            ld(0, 0)
            if sp:
                for h in range(16):
                    a('s_mov_b32 s39, %d', h*448*16)
                    a('buffer_load_dwordx2 %s, v209, s[28:31], s39 offen sc1', vr(212+2*h, 2))
    a.nop(16)
    RT(a, 2)
    a('v_lshlrev_b32 v11, 4, v2')
    a('s_lshl_b32 s11, s10, 13'); a('v_add_u32 v12, s11, v11')
    a('s_lshl_b32 s11, s10, 11'); a('v_add_u32 v13, s11, v11')
    T = 16; PMR = 40
    TT = [48+4*hl for hl in range(4)]
    def each(fn):
        for hl in range(4): fn(hl, ACC + 16*(hl+1), ACC + 4*hl, TT[hl], 244 + 2*hl)
    each(lambda hl, S, Mm, t, XM: a('v_max3_f32 v%d, v%d, v%d, v%d', t, Mm, Mm+1, Mm+2))
    each(lambda hl, S, Mm, t, XM: a('v_max_f32 v%d, v%d, v%d', t, t, Mm+3))
    each(lambda hl, S, Mm, t, XM: a('v_mov_b32 v%d, v%d', t+1, t))
    each(lambda hl, S, Mm, t, XM: a('v_permlane32_swap_b32 v%d, v%d', t, t+1))
    each(lambda hl, S, Mm, t, XM: a('v_max_f32 v%d, v%d, v%d', t, t, t+1))
    each(lambda hl, S, Mm, t, XM: a('v_mul_f32 v%d, s72, v%d', t, t))
    each(lambda hl, S, Mm, t, XM: a('v_max_f32 v%d, v%d, v%d', t, t, XM))
    each(lambda hl, S, Mm, t, XM: a('v_sub_f32 v%d, v%d, v%d', t+2, XM, t))
    each(lambda hl, S, Mm, t, XM: [a('v_fma_f32 v%d, v%d, s72, -v%d', Mm+i, Mm+i, t) for i in range(4)])
    each(lambda hl, S, Mm, t, XM: a('v_exp_f32 v%d, v%d', t+2, t+2))
    each(lambda hl, S, Mm, t, XM: [a('v_exp_f32 v%d, v%d', Mm+i, Mm+i) for i in range(4)])
    each(lambda hl, S, Mm, t, XM: a('v_fma_f32 v%d, v%d, v%d, v%d', t, t+2, XM+1, Mm))
    for i in range(1, 4): each(lambda hl, S, Mm, t, XM: a('v_add_f32 v%d, v%d, v%d', t, t, Mm+i))
    each(lambda hl, S, Mm, t, XM: a('v_mov_b32 v%d, v%d', t+1, t))
    each(lambda hl, S, Mm, t, XM: a('v_permlane32_swap_b32 v%d, v%d', t, t+1))
    each(lambda hl, S, Mm, t, XM: a('v_add_f32 v%d, v%d, v%d', t, t, t+1))
    each(lambda hl, S, Mm, t, XM: a('v_rcp_f32 v%d, v%d', t, t))
    each(lambda hl, S, Mm, t, XM: a('v_mul_f32 v%d, v%d, v%d', t+2, t+2, t))
    for hl in range(4):
        S = ACC + 16*(hl+1); Mm = ACC + 4*hl; t = TT[hl]; TO = 64 + 8*hl
        for i in range(8): a('v_pk_mul_f32 %s, %s, %s op_sel_hi:[1,0]', vr(S+2*i, 2), vr(S+2*i, 2), vr(t+2, 2))
        for i in range(2): a('v_pk_mul_f32 %s, %s, %s op_sel_hi:[1,0]', vr(Mm+2*i, 2), vr(Mm+2*i, 2), vr(t, 2))
        for i in range(8): a('v_cvt_pk_bf16_f32 v%d, v%d, v%d', TO+i, S+2*i, S+2*i+1)
        for i in range(2): a('v_cvt_pk_bf16_f32 v%d, v%d, v%d', PMR+2*hl+i, Mm+2*i, Mm+2*i+1)
        a('ds_write_b128 v12, %s offset:%d', vr(TO), hl*2048); a('ds_write_b128 v12, %s offset:%d', vr(TO+4), hl*2048+1024)
    a('s_nop 1')
    for hp in range(2): a('ds_write_b128 v13, %s offset:%d', vr(PMR+4*hp), 32768 + hp*1024)
    a('s_waitcnt lgkmcnt(0)'); a('s_barrier')
    RT(a, 3)
    if sp:
        OA = 176; OT = 192
        def pf(i): return ar(4*i) if i < 28 else vr(64+4*(i-28))
        a('s_cmp_lt_u32 s73, 3'); a('s_cbranch_scc1 bf4_go'); a('s_cmp_ge_u32 s10, 2'); a('s_cbranch_scc1 wk_loop')
        a.label('bf4_go')
        for i in range(40): a('ds_read_b128 %s, v11 offset:%d', pf(i), i*1024)
        for i in range(32):
            acc = vr(OA+16*(i&1), 16)
            if i % 4 == 0: a('s_waitcnt lgkmcnt(%d)', min(15, 36-i))
            a('v_mfma_f32_32x32x16_bf16 %s, %s, %s, %s', acc, ar(112+4*i), pf(i), '0' if i < 2 else acc)
        a('s_waitcnt vmcnt(0) lgkmcnt(0)')
        if opt('ef', 1):
            a.label('bf4_uc')
            a('v_max_u32 v12, v212, v213')
            for q in range(15): a('v_max3_u32 v12, v12, v%d, v%d', 214+2*q, 215+2*q)
            a('v_cmp_eq_u32 vcc, -1, v12'); a('s_cbranch_vccz bf4_uok')
            a('s_add_u32 s74, s74, 1'); a('s_cmp_gt_u32 s74, %d', WSPIN); a('s_cbranch_scc1 wk_done')
            for h in range(16):
                a('s_mov_b32 s39, %d', h*448*16)
                a('buffer_load_dwordx2 %s, v209, s[28:31], s39 offen sc1', vr(212+2*h, 2))
            a('s_waitcnt vmcnt(0)'); a('s_branch bf4_uc')
            a.label('bf4_uok')
        for hp in range(8):
            acc = vr(OA+16*(hp&1), 16)
            a('v_mfma_f32_32x32x16_bf16 %s, %s, %s, %s', acc, vr(212+4*hp), pf(32+hp), acc)
        a.nop(18)
        for i in range(8): a('v_pk_add_f32 %s, %s, %s', vr(OA+2*i, 2), vr(OA+2*i, 2), vr(OA+16+2*i, 2))
        for i in range(8): a('v_cvt_pk_bf16_f32 v%d, v%d, v%d', 16+i, OA+2*i, OA+2*i+1)
        for qq in range(2): a('buffer_store_dwordx4 %s, v210, s[32:35], 0 offen offset:%d', vr(16+4*qq), qq*32)
        a('s_branch wk_loop')
        return
    for i in range(40):
        a('ds_read_b128 %s, v11 offset:%d', ar(4*i), i*1024)
    out_addrs(None)
    OB = [16, 96]; OA = 176; OT = 192
    def ld2(it, hh, b):
        for h8 in range(8):
            h = 8*hh + h8
            for k2 in range(2):
                a('s_mov_b32 s39, %d', h*28672 + it*2048 + k2*14336)
                a('buffer_load_dwordx4 %s, v6, s[20:23], s39 offen sc1', vr(OB[b]+8*h8+4*k2))
            a('s_mov_b32 s39, %d', h*448*16 + it*128*16)
            a('buffer_load_dwordx2 %s, v7, s[28:31], s39 offen sc1', vr(OB[b]+64+2*h8, 2))
    units = [(it, hh) for it in range(4) for hh in range(2)]
    ld2(0, 0, 0)
    a('s_waitcnt lgkmcnt(0)')
    for ui, (it, hh) in enumerate(units):
        b = ui % 2
        if it == 3 and hh == 0:
            a('s_cmp_ge_u32 s10, 2'); a('s_cbranch_scc1 wk_loop')
        if ui + 1 < len(units):
            ld2(units[ui+1][0], units[ui+1][1], 1-b); a('s_waitcnt vmcnt(24)')
        else:
            a('s_waitcnt vmcnt(0)')
        acc = vr(OA, 16)
        for h8 in range(8):
            h = 8*hh + h8
            for k2 in range(2):
                a('v_mfma_f32_32x32x16_bf16 %s, %s, %s, %s', acc, vr(OB[b]+8*h8+4*k2), ar(8*h+4*k2), '0' if (hh == 0 and h8 == 0 and k2 == 0) else acc)
        for hp in range(4):
            a('v_mfma_f32_32x32x16_bf16 %s, %s, %s, %s', acc, vr(OB[b]+64+4*hp), ar(128+4*(4*hh+hp)), acc)
        if hh == 1:
            a.nop(16)
            for i in range(8): a('v_cvt_pk_bf16_f32 v%d, v%d, v%d', OT+i, OA+2*i, OA+2*i+1)
            for qq in range(2):
                a('buffer_store_dwordx4 %s, v9, s[32:35], 0 offen offset:%d', vr(OT+4*qq), it*256 + qq*32)
            a('s_nop 1')
    a('s_branch wk_loop')

def k_fold(a):
    a('s_load_dwordx4 s[4:7], s[0:1], %d', KA['A_wqkv'])
    a('s_load_dwordx2 s[8:9], s[0:1], %d', KA['A_wo'])
    a('s_load_dwordx2 s[10:11], s[0:1], %d', KA['ws'])
    a('v_lshrrev_b32 v1, 6, v0'); a('v_and_b32 v2, 63, v0'); a('s_nop 0')
    a('v_readfirstlane_b32 s3, v1')
    a('v_and_b32 v3, 31, v2'); a('v_lshrrev_b32 v4, 5, v2')
    a('s_waitcnt lgkmcnt(0)')
    a.srd(12, 4, 5, 448*1344*2); a.srd(16, 6, 7, 16*784*2); a.srd(20, 8, 9, 448*448*2)
    a.srd(24, 10, 11, SZ_WA, WS_WA); a.srd(28, 10, 11, SZ_WOT, WS_WOT)
    a('v_mov_b32 v9, 0x7ffffff0')
    a('s_cmp_ge_u32 s100, 224'); a('s_cbranch_scc1 fo_wo')
    a('s_cmp_ge_u32 s100, 112'); a('s_cbranch_scc1 fo_v')
    a('s_lshl_b32 s32, s100, 2'); a('s_add_u32 s32, s32, s3')
    a('s_mul_i32 s33, s32, 4682'); a('s_lshr_b32 s33, s33, 16')
    a('s_mul_i32 s34, s33, 14'); a('s_sub_u32 s34, s32, s34')
    a('s_lshr_b32 s35, s33, 4'); a('s_and_b32 s36, s33, 15')
    perm(a, 5, 3, 6)
    a('s_lshl_b32 s37, s34, 5'); a('v_add_u32 v6, s37, v5'); a('v_mul_u32_u24 v6, 2688, v6')
    a('s_mul_i32 s37, s35, 896'); a('s_mul_i32 s38, s36, 56'); a('s_add_u32 s37, s37, s38'); a('v_add_u32 v6, s37, v6')
    a('v_lshl_add_u32 v6, v4, 4, v6')
    for ks in range(2):
        a('buffer_load_dwordx4 %s, v6, s[12:15], 0 offen offset:%d', vr(16+4*ks), ks*32)
    a('s_mul_i32 s37, s36, 1568'); a('v_lshlrev_b32 v7, 1, v3'); a('v_add_u32 v7, s37, v7')
    a('v_mul_u32_u24 v8, 448, v4'); a('v_add_u32 v7, v7, v8')
    a('v_cmp_gt_u32 vcc, 28, v3'); a('s_nop 1'); a('v_cndmask_b32 v7, v9, v7, vcc')
    a('v_cmp_eq_u32 vcc, 0, v4'); a('s_nop 1'); a('v_cndmask_b32 v8, v9, v7, vcc')
    for ks in range(2):
        for q in range(8):
            a('buffer_load_ushort v%d, v%d, s[16:19], 0 offen offset:%d', 32+8*ks+q, 8 if (ks == 1 and q >= 4) else 7, (16*ks+q)*56)
    a('s_waitcnt vmcnt(0)')
    for i in range(8): a('v_lshl_or_b32 v%d, v%d, 16, v%d', 24+i, 32+2*i+1, 32+2*i)
    a('s_nop 1')
    a('v_mfma_f32_32x32x16_bf16 %s, %s, %s, 0', vr(48,16), vr(16), vr(24))
    a('v_mfma_f32_32x32x16_bf16 %s, %s, %s, %s', vr(48,16), vr(20), vr(28), vr(48,16))
    a.nop(18)
    for i in range(8): a('v_cvt_pk_bf16_f32 v%d, v%d, v%d', 64+i, 48+2*i, 49+2*i)
    a('s_lshl_b32 s37, s33, 5'); a('v_add_u32 v6, s37, v3'); a('v_mul_u32_u24 v6, 896, v6')
    a('s_lshl_b32 s37, s34, 6'); a('v_add_u32 v6, s37, v6'); a('v_lshl_add_u32 v6, v4, 4, v6')
    for qq in range(2):
        a('buffer_store_dwordx4 %s, v6, s[24:27], 0 offen offset:%d sc1', vr(64+4*qq), qq*32)
    a('s_branch fo_done')
    a.label('fo_v')
    a('s_sub_u32 s32, s100, 112'); a('s_lshl_b32 s32, s32, 8'); a('v_add_u32 v5, s32, v0')
    a('v_and_b32 v6, 511, v5'); a('v_lshrrev_b32 v7, 9, v5')
    a('v_lshrrev_b32 v8, 5, v6'); a('v_mul_u32_u24 v8, 28, v8'); a('v_add_u32 v8, v8, v3')
    a('v_mul_u32_u24 v10, %d, v7', 8*1344); a('v_add_u32 v8, v8, v10'); a('v_add_u32 v8, 896, v8'); a('v_lshlrev_b32 v8, 1, v8')
    a('v_cmp_gt_u32 vcc, 28, v3'); a('s_nop 1'); a('v_cndmask_b32 v8, v9, v8, vcc')
    a('s_mov_b32 s33, 0')
    for q in range(8):
        a('buffer_load_ushort v%d, v8, s[12:15], s33 offen', 32+q)
        a('s_add_u32 s33, s33, 2688')
    a('v_add_u32 v6, 1024, v6'); a('v_mul_u32_u24 v6, 896, v6'); a('v_lshl_add_u32 v6, v7, 4, v6')
    a('s_waitcnt vmcnt(0)')
    for i in range(4): a('v_lshl_or_b32 v%d, v%d, 16, v%d', 24+i, 32+2*i+1, 32+2*i)
    a('buffer_store_dwordx4 %s, v6, s[24:27], 0 offen sc1', vr(24))
    a('s_branch fo_done')
    a.label('fo_wo')
    a('s_sub_u32 s32, s100, 224'); a('s_lshl_b32 s32, s32, 2'); a('s_add_u32 s32, s32, s3')
    a('s_mov_b32 s33, 0x24924925'); a('s_mul_hi_u32 s33, s32, s33')
    a('s_mul_i32 s34, s33, 7'); a('s_sub_u32 s34, s32, s34')
    a('s_lshr_b32 s35, s33, 2'); a('s_and_b32 s36, s33, 3')
    a('s_lshl_b32 s37, s34, 6'); a('v_add_u32 v5, s37, v2')
    a('s_mul_i32 s37, s35, 28'); a('s_lshl_b32 s38, s36, 3'); a('s_add_u32 s37, s37, s38'); a('s_mul_i32 s37, s37, 896')
    a('v_lshlrev_b32 v6, 1, v5'); a('v_add_u32 v6, s37, v6')
    a('s_cmp_eq_u32 s36, 3'); a('s_cselect_b64 vcc, -1, 0'); a('v_cndmask_b32 v7, v6, v9, vcc')
    a('s_movk_i32 s39, 3584')
    for q in range(8):
        a('buffer_load_ushort v%d, v%d, s[20:23], %s offen offset:%d', 32+q, 7 if q >= 4 else 6, 's39' if q >= 4 else '0', (q&3)*896)
    a('v_lshlrev_b32 v8, 10, v5'); a('s_lshl_b32 s37, s33, 4'); a('v_add_u32 v8, s37, v8')
    a('s_waitcnt vmcnt(0)')
    for i in range(4): a('v_lshl_or_b32 v%d, v%d, 16, v%d', 24+i, 32+2*i+1, 32+2*i)
    a('buffer_store_dwordx4 %s, v8, s[28:31], 0 offen sc1', vr(24))
    a.label('fo_done')
    flag_set(a, 96, F_FOLD, 's100', 12, 74, 'wk_done')
    a('s_branch wk_loop')

LOG2E = 0x3fb8aa3b
def k_a1(a):
    flag_wait(a, 96, F_FOLD, 336, 12, 74, 'wk_done')
    flag_wait(a, 96, F_M, 224, 12, 74, 'wk_done')
    a('s_load_dwordx2 s[4:5], s[0:1], %d', KA['ws'])
    a('s_load_dwordx2 s[6:7], s[0:1], %d', KA['A_x'])
    a('v_lshrrev_b32 v1, 6, v0'); a('v_and_b32 v2, 63, v0'); a('s_nop 0')
    a('v_readfirstlane_b32 s10, v1')
    a('v_and_b32 v3, 31, v2'); a('v_lshrrev_b32 v4, 5, v2')
    a('s_and_b32 s8, s100, 15'); a('s_lshr_b32 s9, s100, 4')
    a('s_waitcnt lgkmcnt(0)')
    a.srd(12, 6, 7, 2048*896); a.srd(16, 4, 5, SZ_WA, WS_WA); a.srd(20, 4, 5, SZ_KV, WS_KV)
    a('s_lshl_b32 s11, s9, 2'); a('s_add_u32 s11, s11, s10'); a('s_lshl_b32 s11, s11, 5')
    a('v_add_u32 v6, s11, v3'); a('v_mul_u32_u24 v6, 896, v6'); a('v_lshl_add_u32 v6, v4, 4, v6')
    a('s_lshl_b32 s11, s8, 5'); a('s_add_u32 s11, s11, 512'); a('v_add_u32 v7, s11, v3'); a('v_mul_u32_u24 v7, 896, v7'); a('v_lshl_add_u32 v7, v4, 4, v7')
    a('s_mov_b32 s24, %d', 512*896)
    XF = 16
    for ks in range(28):
        a('buffer_load_dwordx4 %s, v6, s[12:15], 0 offen offset:%d', vr(XF+4*ks), ks*32)
        a('buffer_load_dwordx4 %s, v7, s[16:19], 0 offen offset:%d sc1', ar(4*ks), ks*32)
        a('buffer_load_dwordx4 %s, v7, s[16:19], s24 offen offset:%d sc1', ar(112+4*ks), ks*32)
    P = 128; V = 144; MX = 160; MN = 176; T = 192; EP = 208; EN = 224
    a('v_cmp_gt_u32 s[26:27], 28, v3'); a('v_cmp_eq_u32 s[28:29], 28, v3')
    a('v_mov_b32 v8, 0x%x', NEG); a('v_mov_b32 v9, 0x%x', NEG ^ 0x80000000); a('s_mov_b32 s30, 0x%x', LOG2E)
    a('v_mov_b32 v10, 1.0'); a('v_mov_b32 v11, 0')
    for ks in range(28):
        if ks % 4 == 0: a('s_waitcnt vmcnt(%d)', min(63, max(0, 84 - 3*(ks+4))))
        a('v_mfma_f32_32x32x16_bf16 %s, %s, %s, %s', vr(P,16), vr(XF+4*ks), ar(4*ks), '0' if ks == 0 else vr(P,16))
        a('v_mfma_f32_32x32x16_bf16 %s, %s, %s, %s', vr(V,16), vr(XF+4*ks), ar(112+4*ks), '0' if ks == 0 else vr(V,16))
    a.nop(18)
    def allred(R, op):
        for sh in (8, 4, 2, 1):
            for i in range(16):
                a('%s_dpp v%d, v%d, v%d row_ror:%d row_mask:0xf bank_mask:0xf', op, R+i, R+i, R+i, sh)
        for i in range(16): a('v_mov_b32 v%d, v%d', T+i, R+i)
        for i in range(16): a('v_permlane16_swap_b32 v%d, v%d', R+i, T+i)
        for i in range(16): a('%s v%d, v%d, v%d', op, R+i, R+i, T+i)
    for i in range(16):
        a('v_cndmask_b32_e64 v%d, v8, v%d, s[26:27]', MX+i, P+i)
        a('v_cndmask_b32_e64 v%d, v9, v%d, s[26:27]', MN+i, P+i)
    allred(MX, 'v_max_f32'); allred(MN, 'v_min_f32')
    for i in range(16):
        a('v_sub_f32 v%d, v%d, v%d', EP+i, P+i, MX+i); a('v_sub_f32 v%d, v%d, v%d', EN+i, MN+i, P+i)
    for i in range(16):
        a('v_mul_f32 v%d, s30, v%d', EP+i, EP+i); a('v_mul_f32 v%d, s30, v%d', EN+i, EN+i)
    for i in range(16):
        a('v_exp_f32 v%d, v%d', EP+i, EP+i); a('v_exp_f32 v%d, v%d', EN+i, EN+i)
    for i in range(16):
        a('v_cndmask_b32_e64 v%d, v11, v%d, s[26:27]', EP+i, EP+i); a('v_cndmask_b32_e64 v%d, v11, v%d, s[26:27]', EN+i, EN+i)
    for i in range(16):
        a('v_mov_b32 v%d, v%d', MX+i, EP+i); a('v_mov_b32 v%d, v%d', MN+i, EN+i)
    allred(MX, 'v_add_f32'); allred(MN, 'v_add_f32')
    for i in range(16):
        a('v_rcp_f32 v%d, v%d', MX+i, MX+i); a('v_rcp_f32 v%d, v%d', MN+i, MN+i)
    for i in range(16):
        a('v_mul_f32 v%d, v%d, v%d', EP+i, EP+i, MX+i); a('v_mul_f32 v%d, v%d, v%d', EN+i, EN+i, MN+i)
        a('v_cndmask_b32_e64 v%d, v%d, v10, s[28:29]', V+i, V+i)
    FP = 16; FN = 24; FV = 32
    for i in range(8):
        a('v_cvt_pk_bf16_f32 v%d, v%d, v%d', FP+i, EP+2*i, EP+2*i+1)
        a('v_cvt_pk_bf16_f32 v%d, v%d, v%d', FN+i, EN+2*i, EN+2*i+1)
        a('v_cvt_pk_bf16_f32 v%d, v%d, v%d', FV+i, V+2*i, V+2*i+1)
    a('s_nop 1')
    K0 = 48
    for sg, F in enumerate((FP, FN)):
        for k2 in range(2):
            acc = vr(K0+16*sg, 16)
            a('v_mfma_f32_32x32x16_bf16 %s, %s, %s, %s', acc, vr(FV+4*k2), vr(F+4*k2), '0' if k2 == 0 else acc)
    a.nop(18)
    a('v_lshlrev_b32 v12, 4, v2'); a('s_lshl_b32 s11, s10, 10'); a('v_add_u32 v13, s11, v12')
    for rq in range(8): a('ds_write_b128 v13, %s offset:%d', vr(K0+4*rq), rq*4096)
    a('s_waitcnt lgkmcnt(0)'); a('s_barrier')
    a('s_lshl_b32 s11, s10, 13'); a('v_add_u32 v13, s11, v12')
    for e in range(2):
        for w in range(4): a('ds_read_b128 %s, v13 offset:%d', vr(80+16*e+4*w), e*4096 + w*1024)
    a('s_lshl_b32 s11, s8, 5'); a('s_and_b32 s24, s10, 1'); a('s_lshl_b32 s24, s24, 4'); a('s_add_u32 s11, s11, s24'); a('s_lshl_b32 s11, s11, 8')
    a('s_lshr_b32 s24, s10, 1'); a('s_lshl_b32 s24, s24, 7'); a('s_add_u32 s11, s11, s24')
    a('v_lshlrev_b32 v14, 10, v4'); a('v_lshl_add_u32 v14, v3, 2, v14'); a('v_add_u32 v14, s11, v14')
    a('s_waitcnt lgkmcnt(0)')
    for e in range(2):
        for r_ in range(4):
            b = 80+16*e+r_
            a('v_add_f32 v%d, v%d, v%d', b, b, b+4); a('v_add_f32 v%d, v%d, v%d', b+8, b+8, b+12); a('v_add_f32 v%d, v%d, v%d', b, b, b+8)
    for e in range(2):
        for r_ in range(4):
            a('buffer_atomic_add_f32 v%d, v14, s[20:23], 0 offen offset:%d sc1', 80+16*e+r_, (8*e+r_)*256)
    flag_set(a, 96, F_A1, 's100', 12, 74, 'wk_done')
    a('s_branch wk_loop')

def k_a2(a):
    flag_wait(a, 96, F_FOLD, 336, 12, 74, 'wk_done')
    a('s_load_dwordx2 s[4:5], s[0:1], %d', KA['ws'])
    a('s_load_dwordx2 s[6:7], s[0:1], %d', KA['A_x'])
    a('s_load_dwordx2 s[8:9], s[0:1], %d', KA['out'])
    a('v_lshrrev_b32 v1, 6, v0'); a('v_and_b32 v2, 63, v0'); a('s_nop 0')
    a('v_readfirstlane_b32 s10, v1')
    a('v_and_b32 v3, 31, v2'); a('v_lshrrev_b32 v4, 5, v2')
    perm(a, 5, 3, 6)
    a('s_waitcnt lgkmcnt(0)')
    a.srd(12, 6, 7, 2048*896); a.srd(16, 4, 5, SZ_WA, WS_WA); a.srd(20, 4, 5, SZ_KV, WS_KV)
    a.srd(24, 4, 5, SZ_WOT, WS_WOT); a.srd(32, 8, 9, 2048*1792)
    a('s_lshl_b32 s11, s100, 5'); a('v_add_u32 v6, s11, v3'); a('v_mul_u32_u24 v6, 896, v6'); a('v_lshl_add_u32 v6, v4, 4, v6')
    for ks in range(28):
        a('buffer_load_dwordx4 %s, v6, s[12:15], 0 offen offset:%d', ar(4*ks), ks*32)
    a('s_lshl_b32 s11, s10, 7'); a('v_add_u32 v8, s11, v5'); a('v_mul_u32_u24 v7, 896, v8'); a('v_lshl_add_u32 v7, v4, 4, v7')
    a('v_lshlrev_b32 v8, 8, v8'); a('v_lshl_add_u32 v8, v4, 5, v8')
    B0 = 16; B1A = 112; ACC = 128; KVF = 192
    def buf(b, ks): return vr(B0+4*ks) if b == 0 else ar(B1A+4*ks)
    def ld(hl, b):
        a('s_mov_b32 s39, %d', hl*32*896)
        for ks in range(28):
            a('buffer_load_dwordx4 %s, v7, s[16:19], s39 offen offset:%d sc1', buf(b, ks), ks*32)
    a('v_cmp_eq_u32 s[40:41], 0, v4')
    a('v_mov_b32 v9, 0x%x', NEG); a('v_mov_b32 v10, 0x%x', NEG ^ 0x80000000); a('s_mov_b32 s30, 0x%x', LOG2E); a('v_mov_b32 v11, 0')
    ld(0, 0); ld(1, 1)
    for hl in range(4):
        b = hl % 2
        a('s_waitcnt vmcnt(28)' if hl < 3 else 's_waitcnt vmcnt(0)')
        for ks in range(28):
            acc = vr(ACC+16*hl, 16)
            a('v_mfma_f32_32x32x16_bf16 %s, %s, %s, %s', acc, buf(b, ks), ar(4*ks), '0' if ks == 0 else acc)
        if hl + 2 < 4:
            a('s_nop 0'); ld(hl+2, b)
    a.nop(16)
    flag_wait(a, 96, F_A1, 256, 224, 74, 'wk_done')
    a('v_lshlrev_b32 v12, 4, v2'); a('s_lshl_b32 s11, s10, 13'); a('v_add_u32 v13, s11, v12')
    EP = 16; EN = 32; T = 48; FP = 56; FK = 72; O = 88; OF = 104
    for hl in range(4):
        S = ACC + 16*hl
        a('s_mov_b32 s39, %d', hl*32*256)
        for i in range(8):
            a('buffer_load_dwordx4 %s, v8, s[20:23], s39 offen offset:%d sc1', vr(KVF+4*i), (i>>1)*64 + (i&1)*16)
        for i in range(4):
            a('v_cndmask_b32_e64 v%d, v9, v%d, s[40:41]', T+i, S+12+i); a('v_cndmask_b32_e64 v%d, v10, v%d, s[40:41]', T+4+i, S+12+i)
        a('v_max3_f32 v%d, v%d, v%d, v%d', T, T, T+1, T+2); a('v_min3_f32 v%d, v%d, v%d, v%d', T+4, T+4, T+5, T+6)
        a('v_max_f32 v%d, v%d, v%d', T, T, T+3); a('v_min_f32 v%d, v%d, v%d', T+4, T+4, T+7)
        for i in range(6):
            a('v_max3_f32 v%d, v%d, v%d, v%d', T, T, S+2*i, S+2*i+1); a('v_min3_f32 v%d, v%d, v%d, v%d', T+4, T+4, S+2*i, S+2*i+1)
        a('v_mov_b32 v%d, v%d', T+1, T); a('v_mov_b32 v%d, v%d', T+5, T+4); a('s_nop 1')
        a('v_permlane32_swap_b32 v%d, v%d', T, T+1); a('v_permlane32_swap_b32 v%d, v%d', T+4, T+5); a('s_nop 1')
        a('v_max_f32 v%d, v%d, v%d', T, T, T+1); a('v_min_f32 v%d, v%d, v%d', T+4, T+4, T+5)
        for i in range(16):
            a('v_sub_f32 v%d, v%d, v%d', EP+i, S+i, T); a('v_sub_f32 v%d, v%d, v%d', EN+i, T+4, S+i)
        for i in range(16):
            a('v_mul_f32 v%d, s30, v%d', EP+i, EP+i); a('v_mul_f32 v%d, s30, v%d', EN+i, EN+i)
        for i in range(16):
            a('v_exp_f32 v%d, v%d', EP+i, EP+i); a('v_exp_f32 v%d, v%d', EN+i, EN+i)
        a('s_nop 0')
        for i in range(12, 16):
            a('v_cndmask_b32_e64 v%d, v11, v%d, s[40:41]', EP+i, EP+i); a('v_cndmask_b32_e64 v%d, v11, v%d, s[40:41]', EN+i, EN+i)
        a('v_add_f32 v%d, v%d, v%d', T, EP, EP+1); a('v_add_f32 v%d, v%d, v%d', T+4, EN, EN+1)
        for i in range(2, 16):
            a('v_add_f32 v%d, v%d, v%d', T, T, EP+i); a('v_add_f32 v%d, v%d, v%d', T+4, T+4, EN+i)
        a('v_mov_b32 v%d, v%d', T+1, T); a('v_mov_b32 v%d, v%d', T+5, T+4); a('s_nop 1')
        a('v_permlane32_swap_b32 v%d, v%d', T, T+1); a('v_permlane32_swap_b32 v%d, v%d', T+4, T+5); a('s_nop 1')
        a('v_add_f32 v%d, v%d, v%d', T, T, T+1); a('v_add_f32 v%d, v%d, v%d', T+4, T+4, T+5)
        a('v_rcp_f32 v%d, v%d', T, T); a('v_rcp_f32 v%d, v%d', T+4, T+4); a('s_nop 0')
        for i in range(16):
            a('v_mul_f32 v%d, v%d, v%d', EP+i, EP+i, T); a('v_mul_f32 v%d, v%d, v%d', EN+i, EN+i, T+4)
        for i in range(16): a('v_cvt_pk_bf16_f32 v%d, v%d, v%d', FP+i, EP+2*i, EP+2*i+1)
        a('s_waitcnt vmcnt(0)')
        for i in range(16): a('v_cvt_pk_bf16_f32 v%d, v%d, v%d', FK+i, KVF+2*i, KVF+2*i+1)
        a('s_nop 1')
        for k in range(4):
            a('v_mfma_f32_32x32x16_bf16 %s, %s, %s, %s', vr(O,16), vr(FK+4*k), vr(FP+4*k), '0' if k == 0 else vr(O,16))
        a.nop(18)
        a('v_mov_b32 v%d, v%d', T, O+12); a('v_mov_b32 v%d, v%d', T+1, O+12); a('s_nop 1')
        a('v_permlane32_swap_b32 v%d, v%d', T, T+1); a('s_nop 1')
        a('v_add_f32 v%d, 0x358637bd, v%d', T+1, T+1)
        a('v_rcp_f32 v%d, v%d', T+1, T+1); a('s_nop 0')
        for i in range(16): a('v_mul_f32 v%d, v%d, v%d', O+i, O+i, T+1)
        for i in range(8): a('v_cvt_pk_bf16_f32 v%d, v%d, v%d', OF+i, O+2*i, O+2*i+1)
        a('ds_write_b128 v13, %s offset:%d', vr(OF), hl*2048); a('ds_write_b128 v13, %s offset:%d', vr(OF+4), hl*2048+1024)
        a('s_nop 1')
    a('s_waitcnt lgkmcnt(0)'); a('s_barrier')
    for i in range(32): a('ds_read_b128 %s, v12 offset:%d', ar(4*i), i*1024)
    a('s_lshl_b32 s11, s10, 5'); a('v_add_u32 v6, s11, v5'); a('v_lshlrev_b32 v6, 10, v6'); a('v_lshl_add_u32 v6, v4, 4, v6')
    a('s_lshl_b32 s11, s100, 5'); a('v_add_u32 v9, s11, v3'); a('v_mul_u32_u24 v9, 1792, v9'); a('v_lshl_add_u32 v9, v4, 4, v9')
    a('s_lshl_b32 s36, s10, 6'); a('v_add_u32 v9, s36, v9')
    OB = [16, 80]; OA = 144; OT = 160
    def ld2(it, hh, b):
        a('s_mov_b32 s39, %d', it*128*1024)
        for kk in range(16):
            a('buffer_load_dwordx4 %s, v6, s[24:27], s39 offen offset:%d sc1', vr(OB[b]+4*kk), (16*hh+kk)*32)
    units = [(it, hh) for it in range(4) for hh in range(2)]
    ld2(0, 0, 0)
    a('s_waitcnt lgkmcnt(0)')
    for ui, (it, hh) in enumerate(units):
        b = ui % 2
        if it == 3 and hh == 0:
            a('s_cmp_ge_u32 s10, 2'); a('s_cbranch_scc1 wk_loop')
        if ui + 1 < len(units):
            ld2(units[ui+1][0], units[ui+1][1], 1-b); a('s_waitcnt vmcnt(16)')
        else:
            a('s_waitcnt vmcnt(0)')
        acc = vr(OA, 16)
        for kk in range(16):
            a('v_mfma_f32_32x32x16_bf16 %s, %s, %s, %s', acc, vr(OB[b]+4*kk), ar(4*(16*hh+kk)), '0' if (hh == 0 and kk == 0) else acc)
        if hh == 1:
            a.nop(16)
            for i in range(8): a('v_cvt_pk_bf16_f32 v%d, v%d, v%d', OT+i, OA+2*i, OA+2*i+1)
            for qq in range(2):
                a('buffer_store_dwordx4 %s, v9, s[32:35], 0 offen offset:%d', vr(OT+4*qq), it*256 + qq*32)
            a('s_nop 1')
    a('s_branch wk_loop')


TASKS = [('mg', 224), ('tu', 32*NTU), ('fold', 336), ('a1', 256), ('a2', 64), ('bfin', 64-NSP), ('bf4', 4*NSP)]
def k_mega(a):
    n = 'mega_kernel'; a.begin(n)
    a('s_cmp_ge_u32 s2, 256'); a('s_cbranch_scc1 wk_done')
    init1(a)
    a('s_and_b32 s3, s2, 7'); a('s_cmp_eq_u32 s3, 0'); a('s_cbranch_scc1 ch_entry')
    a('s_movk_i32 s101, 2000'); a('s_mov_b32 s93, 0')
    a('s_load_dwordx2 s[4:5], s[0:1], %d', KA['ws']); a('s_waitcnt lgkmcnt(0)')
    a.srd(96, 4, 5, SZ_FL, WS_FL)
    if True:
        a('s_sub_u32 s100, s3, 1'); a('s_lshl_b32 s100, s100, 5'); a('s_lshr_b32 s3, s2, 3'); a('s_add_u32 s100, s100, s3')
        a('s_mov_b32 s101, s100')
        RT(a, 0)
        a('s_branch tk_mg')
    a.label('wk_loop')
    a('s_waitcnt vmcnt(0) lgkmcnt(0)'); a('s_barrier')
    RT(a, 7)
    dbg_srd(a, 80, 74)
    a('v_mov_b32 v1, 1'); a('v_mov_b32 v2, %d', C_TICKET*4); a('v_mov_b32 v3, %d', L_TK)
    a('v_cmp_eq_u32 vcc, 0, v0'); a('s_and_b64 exec, exec, vcc')
    a('buffer_atomic_add v1, v2, s[80:83], 0 offen sc0 sc1')
    a('s_waitcnt vmcnt(0)')
    a('ds_write_b32 v3, v1')
    a('s_mov_b64 exec, -1')
    a('s_waitcnt lgkmcnt(0)'); a('s_barrier')
    a('ds_read_b32 v1, v3'); a('s_waitcnt lgkmcnt(0)')
    a('v_readfirstlane_b32 s100, v1'); a('s_nop 3')
    a('s_add_u32 s101, s100, 224')
    RT(a, 0)
    tasks = [('mg', 224, t_mg), ('tu', 32*NTU, k_tu), ('fold', 336, k_fold), ('a1', 256, k_a1), ('a2', 64, k_a2), ('bfin', 64-NSP, k_bfin), ('bf4', 4*NSP, k_bf4)]
    for (nm, cnt, fn) in tasks[1:]:
        a('s_cmp_lt_u32 s100, %d', cnt); a('s_cbranch_scc1 tk_%s', nm)
        a('s_sub_u32 s100, s100, %d', cnt)
    a.label('wk_done')
    a('s_endpgm')
    for (nm, cnt, fn) in tasks:
        a.label('tk_%s' % nm); fn(a)
    a.label('ch_entry')
    k_chain(a)
    a.end(n, 256, 256)

def main():
    global INSTR
    INSTR = len(sys.argv) > 2
    a = Asm()
    k_mega(a)
    launches = [('mega_kernel', 256, 256, LDS_TOT)]
    out = HDR
    for (k, g, b, lds) in launches:
        out += '; @launch kernel=%s grid=(%d,1,1) block=(%d,1,1) lds=%d\n' % (k, g, b, lds)
    out += '.amdgcn_target "amdgcn-amd-amdhsa--gfx950"\n' + '\n'.join(a.l) + '\n'
    open(sys.argv[1] if len(sys.argv) > 1 else 'cdna_kernels/%s.s' % NAME, 'w').write(out)
if __name__ == '__main__': main()
```
